```python
import torch

def _softmax(x, axis=-1):
    return torch.softmax(x, dim=axis)
def _gelu(x):
    return torch.nn.functional.gelu(x, approximate="tanh")
def _silu(x):
    return torch.nn.functional.silu(x)
def _sigmoid(x):
    return torch.sigmoid(x)
def _layernorm(x, axis=-1, eps=1e-5):
    m = x.mean(dim=axis, keepdim=True)
    v = x.var(dim=axis, keepdim=True, unbiased=False)
    return (x - m) / torch.sqrt(v + eps)
def _scatter_add(tgt, idx, src, axis=0):
    return tgt.clone().index_add_(axis, idx, src)
def _segment_sum(src, seg, n):
    out = torch.zeros((n,) + src.shape[1:], dtype=src.dtype)
    return out.index_add_(0, seg, src)
def _pad(x, pw):
    flat = tuple(v for pair in reversed(pw) for v in pair)
    return torch.nn.functional.pad(x, flat)

kernel_name = 'concat_heads__ssm_conv_h3__compressed_kv_cla__prompt'

def setup_inputs():

    _w = (lambda a: (lambda t: t.to(torch.bfloat16) if t.is_floating_point() else t)(torch.as_tensor(a)))
    def _A_setup():
        B, S, D = 1, 2048, 576
        ks = 4
        return {
            "q": _w((lambda *s: torch.randn(*s, dtype=torch.bfloat16) * 0.05)(B, S, D)),
            "k": _w((lambda *s: torch.randn(*s, dtype=torch.bfloat16) * 0.1)(B, S, D)),
            "v": _w((lambda *s: torch.randn(*s, dtype=torch.bfloat16) * 0.1)(B, S, D)),
            "shift_k": _w((lambda *s: torch.randn(*s, dtype=torch.bfloat16) * 0.1)(D, ks) * 0.5),
            "ssm_k": _w((lambda *s: torch.randn(*s, dtype=torch.bfloat16) * 0.1)(D, S) * (1.0 / S ** 0.5)),
            "ssm_D": _w((lambda *s: torch.randn(*s, dtype=torch.bfloat16) * 0.1)(D)),
        }
    _A_in = _A_setup()

    def _B_setup():
        B, H, Sq, Sk, D, M = 1, 32, 2048, 2048, 128, 576
        Dc = 4 * D
        return {
            "x": _w((lambda *s: torch.randn(*s, dtype=torch.bfloat16) * 3.2)(B, Sq, M)),
            "c_kv": _w((lambda *s: torch.randn(*s, dtype=torch.bfloat16) * 0.05)(B, Sk, Dc)),
            "w_q": _w((lambda *s: torch.randn(*s, dtype=torch.bfloat16) * 3.2)(M, H, D) * (M ** -0.5)),
            "w_uk": _w((lambda *s: torch.randn(*s, dtype=torch.bfloat16) * 3.2)(Dc, H, D) * (Dc ** -0.5)),
            "w_uv": _w((lambda *s: torch.randn(*s, dtype=torch.bfloat16) * 0.05)(Dc, H, D) * (Dc ** -0.5)),
            "w_o": _w((lambda *s: torch.randn(*s, dtype=torch.bfloat16) * 0.05)(H, D, M) * ((H * D) ** -0.5)),
        }
    _B_in = _B_setup()

    return {
        "A_q": _A_in["q"],
        "A_k": _A_in["k"],
        "A_v": _A_in["v"],
        "A_shift_k": _A_in["shift_k"],
        "A_ssm_k": _A_in["ssm_k"],
        "A_ssm_D": _A_in["ssm_D"],
        "B_x": _B_in["x"],
        "B_c_kv": _B_in["c_kv"],
        "B_w_q": _B_in["w_q"],
        "B_w_uk": _B_in["w_uk"],
        "B_w_uv": _B_in["w_uv"],
        "B_w_o": _B_in["w_o"],
    }

def reference(A_q, A_k, A_v, A_shift_k, A_ssm_k, A_ssm_D, B_x, B_c_kv, B_w_q, B_w_uk, B_w_uv, B_w_o):
    def _A_ref(q, k, v, shift_k, ssm_k, ssm_D):
        B, S, D = q.shape
        ks = shift_k.shape[-1]
        k_pad = _pad(k, ((0, 0), (ks - 1, 0), (0, 0)))
        k_shift = torch.zeros_like(k)
        for t in range(ks):
            k_shift = k_shift + k_pad[:, t:t + S, :] * shift_k[:, ks - 1 - t][None, None, :]
        kv = k_shift * v
        L = 2 * S
        kv_pad = _pad(kv, ((0, 0), (0, S), (0, 0)))
        kf_pad = _pad(ssm_k, ((0, 0), (0, S)))
        kv_f = (lambda x, axes=(-2,-1): torch.fft.rfft2(x.float(), dim=axes))(kv_pad[:, None, :, :], axes=(1, 2))
        kf_f = (lambda x, axes=(-2,-1): torch.fft.rfft2(x.float(), dim=axes))(kf_pad[:, None, :], axes=(1, 2))
        kf_f = (lambda x, *d: x.permute(*d))(kf_f, 1, 2, 0)
        y_f = kv_f * kf_f[None, :, :, :]
        y = (lambda x, s, axes=(-2,-1): torch.fft.irfft2(x, s=s, dim=axes).to(torch.bfloat16))(y_f, (1, L), axes=(1, 2))[:, 0, :S, :]
        y = y + kv * ssm_D[None, None, :]
        return q * y

    def _B_ref(x, c_kv, w_q, w_uk, w_uv, w_o):
        B, Sq, M = x.shape[0], x.shape[1], x.shape[2]
        Sk = c_kv.shape[1]
        H, D = w_q.shape[1], w_q.shape[2]
        q = torch.einsum("bqm,mhd->bhqd", x, w_q)
        k = torch.einsum("bkc,chd->bhkd", c_kv, w_uk)
        v = torch.einsum("bkc,chd->bhkd", c_kv, w_uv)
        scores = torch.einsum("bhqd,bhkd->bhqk", q, k) * (D ** -0.5)
        off = Sk - Sq
        qi = torch.arange(Sq)[:, None]
        kj = torch.arange(Sk)[None, :]
        cmask = kj <= (qi + off)
        scores = torch.where(cmask[None, None], scores, -1e9)
        p = _softmax(scores, axis=-1)
        ctx = torch.einsum("bhqk,bhkd->bhqd", p, v)
        return torch.einsum("bhqd,hdm->bqm", ctx, w_o)

    a = _A_ref(A_q, A_k, A_v, A_shift_k, A_ssm_k, A_ssm_D)
    b = _B_ref(B_x, B_c_kv, B_w_q, B_w_uk, B_w_uv, B_w_o)
    return torch.concatenate([a, b], axis=-1)
```

```python
import re

def v(a, n=1):
    return f"v{a}" if n == 1 else f"v[{a}:{a+n-1}]"
def s(a, n=1):
    return f"s{a}" if n == 1 else f"s[{a}:{a+n-1}]"

class Asm:
    def __init__(self):
        self.lines = []
        self._uid = 0
    def e(self, txt):
        for l in txt.strip("\n").split("\n"):
            l = l.strip()
            if l:
                self.lines.append("    " + l)
    def c(self, txt):
        self.lines.append("    ; " + txt)
    def label(self, name):
        self.lines.append(name + ":")
    def raw(self, txt):
        self.lines.append(txt)
    def uid(self, p="L"):
        self._uid += 1
        return f"{p}_{self._uid}"
    def text(self):
        return "\n".join(self.lines) + "\n"

def srd(a, d, base_lo, nbytes):
    a.e(f"s_mov_b32 s{d}, s{base_lo}")
    a.e(f"s_and_b32 s{d+1}, s{base_lo+1}, 0xffff")
    a.e(f"s_mov_b32 s{d+2}, {nbytes}")
    a.e(f"s_mov_b32 s{d+3}, 0x20000")

def kernel_begin(a, name):
    a.raw(".text")
    a.raw(f".globl {name}")
    a.raw(".p2align 8")
    a.raw(f".type {name},@function")
    a.label(name)

def kernel_desc(a, name, vgpr, sgpr=102):
    acc = (vgpr + 3) // 4 * 4
    a.raw('.section .rodata,"a"')
    a.raw(".p2align 6")
    a.raw(f".amdhsa_kernel {name}")
    a.raw(f"  .amdhsa_next_free_vgpr {vgpr}")
    a.raw(f"  .amdhsa_next_free_sgpr {sgpr}")
    a.raw(f"  .amdhsa_accum_offset {acc}")
    a.raw("  .amdhsa_group_segment_fixed_size 0")
    a.raw("  .amdhsa_kernarg_size 120")
    a.raw("  .amdhsa_user_sgpr_count 2")
    a.raw("  .amdhsa_user_sgpr_kernarg_segment_ptr 1")
    a.raw("  .amdhsa_system_sgpr_workgroup_id_x 1")
    a.raw(".end_amdhsa_kernel")

_REG = re.compile(r"^(-|abs\()?\|?([vsa])(\d+|\[(\d+):(\d+)\])\)?\|?$")
def regs_of(tok):
    tok = tok.strip()
    if tok in ("vcc", "vcc_lo", "vcc_hi"):
        return {("s", 106), ("s", 107)} if tok == "vcc" else {("s", 106 if tok == "vcc_lo" else 107)}
    if tok in ("exec", "exec_lo", "exec_hi"):
        return {("s", 126), ("s", 127)}
    if tok == "m0":
        return {("s", 124)}
    m = _REG.match(tok)
    if not m:
        return set()
    k = m.group(2)
    if m.group(4) is not None:
        return {(k, i) for i in range(int(m.group(4)), int(m.group(5)) + 1)}
    return {(k, int(m.group(3)))}

TRANS = ("v_exp_f32", "v_log_f32", "v_rcp_f32", "v_rsq_f32", "v_sqrt_f32", "v_sin_f32", "v_cos_f32", "v_rcp_iflag_f32")

class I:
    pass

def parse(line):
    t = line.split(";")[0].strip()
    if not t or t.startswith("."):
        return None
    ins = I()
    ins.text = t
    if t.endswith(":"):
        ins.kind = "label"; ins.name = t[:-1]
        return ins
    parts = t.split(None, 1)
    mn = parts[0]
    ops = []
    if len(parts) > 1:
        cur = ""; depth = 0
        for ch in parts[1]:
            if ch == "[": depth += 1
            if ch == "]": depth -= 1
            if ch == "," and depth == 0:
                ops.append(cur.strip()); cur = ""
            else:
                cur += ch
        ops.append(cur.strip())
    mods = []
    if ops:
        sp = ops[-1].split()
        if len(sp) > 1 and not ops[-1].startswith("vmcnt") and not ops[-1].startswith("lgkmcnt"):
            ops[-1] = sp[0]; mods = sp[1:]
    base = mn.replace("_e32", "").replace("_e64", "")
    ins.mn = base; ins.ops = ops; ins.mods = mods
    ins.w = set(); ins.r = set()
    ins.ws = 1
    R = [regs_of(o) for o in ops]
    if base == "s_nop":
        ins.kind = "nop"; ins.ws = int(ops[0], 0) + 1
    elif base.startswith("v_mfma"):
        ins.kind = "mfma"
        ins.w = R[0]; ins.A = R[1]; ins.B = R[2]; ins.C = R[3]
        ins.r = R[1] | R[2] | R[3]
        ins.passes = 8 if "32x32" in base else 4
    elif base.startswith("v_"):
        ins.kind = "valu"
        if base.startswith("v_cmp"):
            ins.w = R[0]; ins.r = set().union(*R[1:])
            if base.startswith("v_cmpx"): ins.w |= regs_of("exec")
        elif base in ("v_readfirstlane_b32", "v_readlane_b32"):
            ins.w = R[0]; ins.r = set().union(*R[1:])
        elif base.startswith("v_permlane32_swap") or base.startswith("v_permlane16_swap") or base.startswith("v_swap"):
            ins.w = R[0] | R[1]; ins.r = R[0] | R[1]
        elif base in ("v_add_co_u32", "v_sub_co_u32", "v_addc_co_u32", "v_subb_co_u32", "v_mad_u64_u32"):
            ins.w = R[0] | R[1]; ins.r = set().union(*R[2:])
        else:
            ins.w = R[0]; ins.r = set().union(*R[1:]) if len(R) > 1 else set()
            if base.startswith("v_fmac") or base.startswith("v_dot2c") or base == "v_writelane_b32":
                ins.r |= R[0]
            if base == "v_cndmask_b32" and len(ops) == 3:
                ins.r |= regs_of("vcc")
        ins.trans = base in TRANS
        ins.dpp = any(m.startswith("row_") or m.startswith("quad_perm") or m.startswith("wave_") for m in mods)
    elif base.startswith("ds_"):
        ins.kind = "ds"
        if base.startswith("ds_read") or base.startswith("ds_bpermute") or base.startswith("ds_permute") or base.startswith("ds_swizzle") or "_rtn" in base:
            ins.w = R[0]; ins.r = set().union(*R[1:])
        else:
            ins.r = set().union(*R)
    elif base.startswith("buffer_") or base.startswith("global_"):
        ins.kind = "vmem"
        ins.lds = "lds" in mods or "_lds_" in base
        if "_load" in base and not ins.lds:
            ins.w = R[0]; ins.r = set().union(*R[1:])
        elif base in ("buffer_inv", "buffer_wbl2"):
            pass
        else:
            ins.r = set().union(*R) if R else set()
        ins.wide_store = ("_store_dwordx4" in base or "_store_dwordx3" in base)
        if ins.wide_store:
            ins.data = R[0] if base.startswith("buffer_") else R[1]
        if ins.lds: ins.r |= regs_of("m0")
    elif base in ("s_branch",) or base.startswith("s_cbranch"):
        ins.kind = "branch"; ins.target = ops[0]; ins.uncond = base == "s_branch"
    elif base == "s_endpgm":
        ins.kind = "end"
    elif base.startswith("s_"):
        ins.kind = "salu"
        if base.startswith("s_cmp") or base in ("s_waitcnt", "s_barrier", "s_setprio", "s_sleep"):
            ins.r = set().union(*R) if R else set()
        else:
            ins.w = R[0] if R else set(); ins.r = set().union(*R[1:]) if len(R) > 1 else set()
    else:
        raise ValueError("unknown instr: " + t)
    return ins

def lint(text, verbose=True):
    ins = [x for x in (parse(l) for l in text.split("\n")) if x is not None]
    labels = {x.name: i for i, x in enumerate(ins) if x.kind == "label"}
    problems = []
    def succ(i):
        x = ins[i]
        if x.kind == "end": return []
        if x.kind == "branch":
            t = [labels[x.target]] if x.target in labels else []
            return t if x.uncond else t + [i + 1]
        return [i + 1] if i + 1 < len(ins) else []
    def vs(S): return {r for r in S if r[0] in "va"}
    def ss(S): return {r for r in S if r[0] == "s"}
    def need(p, c):
        n = 0
        if p.kind == "valu":
            pw = vs(p.w); sw = ss(p.w)
            if c.kind == "mfma" and pw & c.r: n = max(n, 2)
            if c.kind == "valu":
                if (c.mn.startswith("v_permlane") or c.dpp) and pw & c.r: n = max(n, 2)
                if c.mn in ("v_readfirstlane_b32", "v_readlane_b32") and pw & c.r: n = max(n, 1)
                if p.trans and not c.trans and pw & c.r: n = max(n, 1)
                if sw & c.r: n = max(n, 4 if c.mn in ("v_readlane_b32", "v_writelane_b32") else 2)
                if regs_of("exec") & sw and c.dpp: n = max(n, 5)
                if regs_of("exec") & sw and (c.mn.startswith("v_permlane") or c.mn.startswith("v_read")): n = max(n, 4)
            if c.kind == "mfma" and regs_of("exec") & sw: n = max(n, 4)
            if c.kind == "vmem" and sw & c.r: n = max(n, 5)
        if p.kind == "mfma":
            big = 12 if p.passes == 8 else 8
            if c.kind == "mfma":
                if p.w & (c.A | c.B): n = max(n, big)
                if p.w & c.C and not (p.w == c.C and p.passes == c.passes): n = max(n, big - 2)
                if p.w & c.w and not (p.w & c.C): n = max(n, big)
            if c.kind in ("valu", "vmem", "ds") and p.w & (c.r | c.w): n = max(n, big)
            if c.kind == "valu" and p.C & c.w: n = max(n, 7 if p.passes == 8 else 3)
        if p.kind == "salu" and regs_of("m0") & p.w and c.kind == "vmem" and c.lds: n = max(n, 1)
        if p.kind == "vmem" and getattr(p, "wide_store", False):
            if c.kind == "valu" and p.data & c.w: n = max(n, 2)
            elif c.kind in ("ds", "vmem", "mfma") and p.data & c.w: n = max(n, 1)
        return n
    for i, p in enumerate(ins):
        if p.kind in ("label", "nop", "branch", "end"): continue
        if p.kind == "salu" and not (regs_of("m0") & p.w): continue
        if p.kind == "ds": continue
        if p.kind == "vmem" and not getattr(p, "wide_store", False): continue
        stack = [(j, 0) for j in succ(i)]
        seen = set()
        while stack:
            j, d = stack.pop()
            if (j, d) in seen or d >= 12: continue
            seen.add((j, d))
            c = ins[j]
            if c.kind == "label":
                for k in succ(j): stack.append((k, d))
                continue
            if c.kind not in ("nop", "branch", "end"):
                n = need(p, c)
                if n > d:
                    problems.append(f"hazard: need {n} have {d}: [{i}] {p.text}  ->  [{j}] {c.text}")
            for k in succ(j): stack.append((k, d + c.ws))
    problems = sorted(set(problems))
    if verbose:
        for p in problems[:50]: print(p)
        print(f"lint: {len(ins)} instrs, {len(problems)} hazards")
    return problems


STAMP_BASE = 64
WS_STAMP = 128 << 20
class Stamps:
    def __init__(self, a, on, kidx=0):
        self.a = a; self.on = on; self.n = 0; self.kidx = kidx
    def stamp(self, real=False):
        if not self.on: return
        r = STAMP_BASE + 2 * self.n; self.n += 1
        self.a.e(f"{'s_memrealtime' if real else 's_memtime'} s[{r}:{r+1}]")
    def at(self, i, real=False):
        if not self.on: return
        r = STAMP_BASE + 2 * i; self.n = max(self.n, i + 1)
        self.a.e(f"{'s_memrealtime' if real else 's_memtime'} s[{r}:{r+1}]")
    def dump(self, ws_lo, swave, nmax=16):
        if not self.on: return
        a = self.a
        a.e("s_waitcnt lgkmcnt(0)")
        a.e(f"s_add_u32 s96, s{ws_lo}, {WS_STAMP + self.kidx * (1 << 20)}")
        a.e(f"s_addc_u32 s97, s{ws_lo+1}, 0")
        a.e("s_and_b32 s97, s97, 0xffff")
        a.e("s_mov_b32 s98, 1048576")
        a.e("s_mov_b32 s99, 0x20000")
        a.e("s_lshl_b32 s100, s2, 3")
        a.e(f"s_add_u32 s100, s100, s{swave}")
        a.e("s_lshl_b32 s100, s100, 6")
        a.e("v_mov_b32 v0, 0")
        for i in range(self.n):
            a.e(f"v_mov_b32 v1, s{STAMP_BASE + 2*i}")
            a.e(f"buffer_store_dword v1, v0, s[96:99], s100 offen offset:{4*i}")
        a.e("s_waitcnt vmcnt(0)")
```

```python
from asmlib import *

WS_KV = 0
WS_CTX = 32 << 20
WS_WOF = 48 << 20
WS_KVB = 56 << 20
WS_QB = 60 << 20
MF = "v_mfma_f32_16x16x32_bf16"

def interleave(ms, fill, lead=0):
    out = []
    n = len(ms) - lead; k = 0
    for i, m in enumerate(ms):
        out.append(m)
        if i < lead: continue
        tgt = (len(fill) * (i - lead + 1) + n - 1) // n
        while k < min(tgt, len(fill)):
            out.append(fill[k]); k += 1
    return out

def wg_decode(a, sH, sRT, sT0, sT1):
    a.e(f"s_and_b32 s{sT0}, s2, 7")
    a.e(f"s_lshl_b32 s{sT0}, s{sT0}, 2")
    a.e(f"s_lshr_b32 s{sT1}, s2, 3")
    a.e(f"s_and_b32 s{sT1}, s{sT1}, 3")
    a.e(f"s_add_u32 s{sH}, s{sT0}, s{sT1}")
    a.e(f"s_lshr_b32 s{sRT}, s2, 5")

def act_dma_offsets(a, vD, vL, vT, srow, stride):
    a.e(f"v_lshrrev_b32 v{vT}, 3, v{vL}")
    a.e(f"v_add_u32 v{vT}, s{srow}, v{vT}")
    a.e(f"v_mul_u32_u24 v{vT}, {stride}, v{vT}")
    a.e(f"v_and_b32 v{vT+1}, 7, v{vL}")
    a.e(f"v_lshrrev_b32 v{vT+2}, 4, v{vL}")
    a.e(f"v_xor_b32 v{vT+3}, v{vT+1}, v{vT+2}")
    a.e(f"v_xor_b32 v{vT+4}, 4, v{vT+3}")
    for i in range(4):
        src = vT + 3 if i % 2 == 0 else vT + 4
        a.e(f"v_lshl_add_u32 v{vD+i}, v{src}, 4, v{vT}")
        if i:
            a.e(f"v_add_u32 v{vD+i}, {i*(8*stride-1024)}, v{vD+i}")

def w_dma_offsets(a, vD, vL, vT, skrow, scol, idxs):
    a.e(f"v_lshrrev_b32 v{vT+2}, 4, v{vL}")
    a.e(f"v_add_u32 v{vT}, s{skrow}, v{vT+2}")
    a.e(f"v_lshlrev_b32 v{vT}, 13, v{vT}")
    a.e(f"v_add_u32 v{vT}, s{scol}, v{vT}")
    a.e(f"v_and_b32 v{vT+1}, 15, v{vL}")
    a.e(f"v_lshlrev_b32 v{vT+3}, 1, v{vT+2}")
    a.e(f"v_xor_b32 v{vT+1}, v{vT+1}, v{vT+3}")
    a.e(f"v_xor_b32 v{vT+3}, 8, v{vT+1}")
    for n, (i, hi) in enumerate(idxs):
        src = vT + 3 if hi else vT + 1
        a.e(f"v_lshl_add_u32 v{vD+n}, v{src}, 4, v{vT}")
        if i:
            a.e(f"v_add_u32 v{vD+n}, {i*4*8192 - n*1024}, v{vD+n}")

def act_read_addr(a, vR, vL, vT, sbase):
    a.e(f"v_and_b32 v{vT}, 15, v{vL}")
    a.e(f"v_lshrrev_b32 v{vT+1}, 4, v{vL}")
    a.e(f"v_bfe_u32 v{vT+2}, v{vL}, 1, 3")
    a.e(f"v_xor_b32 v{vT+2}, v{vT+2}, v{vT+1}")
    a.e(f"v_lshlrev_b32 v{vT}, 7, v{vT}")
    a.e(f"v_add_u32 v{vT}, s{sbase}, v{vT}")
    a.e(f"v_lshl_add_u32 v{vR}, v{vT+2}, 4, v{vT}")
    a.e(f"v_xor_b32 v{vT+2}, 4, v{vT+2}")
    a.e(f"v_lshl_add_u32 v{vR+1}, v{vT+2}, 4, v{vT}")

def w_read_addr(a, vR, vL, vT, sbase, sdt0, sT):
    a.e(f"v_bfe_u32 v{vT}, v{vL}, 2, 2")
    a.e(f"v_lshrrev_b32 v{vT+1}, 4, v{vL}")
    a.e(f"v_lshl_add_u32 v{vT+2}, v{vT+1}, 3, v{vT}")
    a.e(f"v_lshlrev_b32 v{vT+2}, 8, v{vT+2}")
    a.e(f"v_and_b32 v{vT+3}, 3, v{vL}")
    a.e(f"v_lshl_add_u32 v{vT+2}, v{vT+3}, 3, v{vT+2}")
    a.e(f"v_add_u32 v{vT+2}, s{sbase}, v{vT+2}")
    a.e(f"v_and_b32 v{vT+1}, 1, v{vT+1}")
    a.e(f"v_lshl_or_b32 v{vT}, v{vT+1}, 2, v{vT}")
    for d in range(4):
        a.e(f"s_add_u32 s{sT}, s{sdt0}, {d}")
        a.e(f"v_xor_b32 v{vT+1}, s{sT}, v{vT}")
        a.e(f"v_lshl_add_u32 v{vR+d}, v{vT+1}, 5, v{vT+2}")

def gen_k1(a, name="k1_kernel", diag=False):
    kernel_begin(a, name)
    st = Stamps(a, diag, 0)
    S_C, S_W, S_O = 8, 12, 16
    sW, sH, sRT = 20, 21, 22
    sKC, sKW = 23, 24
    sM0C, sM0W = 25, 26
    sIT = 27
    sT0, sT1, sT2 = 28, 29, 30
    vL = 1; vDC = 2; vDW = 6; vRC = 10; vRW = 12; vST = 16; vT = 17
    CF = 32
    WA, WB = 48, 64
    ACC = 128
    a.e("s_cmp_ge_u32 s2, 256")
    a.e(f"s_cbranch_scc1 {name}_end")
    st.at(0); st.at(1, True)
    a.e("s_load_dwordx2 s[4:5], s[0:1], 56")
    a.e("s_load_dwordx4 s[32:35], s[0:1], 72")
    a.e("s_load_dwordx2 s[6:7], s[0:1], 112")
    a.e("s_load_dwordx2 s[38:39], s[0:1], 88")
    a.e(f"v_lshrrev_b32 v{vT}, 6, v0")
    a.e(f"v_and_b32 v{vL}, 63, v0")
    a.e(f"v_readfirstlane_b32 s{sW}, v{vT}")
    wg_decode(a, sH, sRT, sT0, sT1)
    a.e(f"s_lshl_b32 s{sT0}, s{sRT}, 8")
    a.e(f"s_lshl_b32 s{sT1}, s{sW}, 5")
    a.e(f"s_add_u32 s{sT0}, s{sT0}, s{sT1}")
    act_dma_offsets(a, vDC, vL, vT, sT0, 1024)
    a.e(f"s_and_b32 s{sT0}, s{sW}, 3")
    a.e(f"s_lshl_b32 s{sT0}, s{sT0}, 4")
    a.e(f"s_lshl_b32 s{sT1}, s{sH}, 8")
    w_dma_offsets(a, vDW, vL, vT, sT0, sT1, [(0, 0), (1, 0), (2, 1), (3, 1)])
    a.e(f"s_lshl_b32 s{sM0C}, s{sW}, 12")
    a.e(f"s_add_u32 s{sM0W}, s{sM0C}, 32768")
    a.e(f"s_mov_b32 s{sKC}, 0")
    a.e(f"s_mov_b32 s{sKW}, 0")
    a.e("s_waitcnt lgkmcnt(0)")
    srd(a, S_C, 4, 2048 * 1024)
    a.e(f"s_cmp_lt_u32 s{sW}, 4")
    a.e("s_cselect_b32 s36, s32, s34")
    a.e("s_cselect_b32 s37, s33, s35")
    srd(a, S_W, 36, 512 * 8192)
    srd(a, S_O, 6, 32 << 20)
    def dma_c(i):
        return f"buffer_load_dwordx4 v{vDC+i}, s[{S_C}:{S_C+3}], s{sKC} offen offset:{i*1024} lds"
    def dma_w(i):
        return f"buffer_load_dwordx4 v{vDW+i}, s[{S_W}:{S_W+3}], s{sKW} offen offset:{i*1024} lds"
    def dma_adv():
        return [f"s_add_u32 s{sKC}, s{sKC}, 128", f"s_add_u32 s{sKW}, s{sKW}, {64*8192}",
                f"s_xor_b32 s{sM0C}, s{sM0C}, 0x10000", f"s_xor_b32 s{sM0W}, s{sM0W}, 0x10000"]
    def dma_stage():
        return ([f"s_mov_b32 m0, s{sM0C}", "s_nop 0"] + [dma_c(i) for i in range(4)] +
                [f"s_mov_b32 m0, s{sM0W}", "s_nop 0"] + [dma_w(i) for i in range(4)] + dma_adv())
    for x in dma_stage(): a.e(x)
    import k3
    S_WO, S_WF = 40, 44
    srd(a, S_WO, 38, 4096 * 1152)
    a.e(f"s_add_u32 s38, s6, {WS_WOF}"); a.e("s_addc_u32 s39, s7, 0")
    srd(a, S_WF, 38, 8 * 128 * 4608)
    k3.gen_wof(a, sW, vL, 131072, 2, (sT0, sT1, sT2), 80, S_WO, S_WF, 0)
    a.e(f"s_and_b32 s{sT0}, s{sW}, 1")
    a.e(f"s_lshl_b32 s{sT0}, s{sT0}, 14")
    act_read_addr(a, vRC, vL, vT, sT0)
    a.e(f"s_lshr_b32 s{sT0}, s{sW}, 2")
    a.e(f"s_lshl_b32 s{sT0}, s{sT0}, 14")
    a.e(f"s_add_u32 s{sT0}, s{sT0}, 32768")
    a.e(f"s_and_b32 s{sT1}, s{sW}, 2")
    a.e(f"s_lshl_b32 s{sT1}, s{sT1}, 1")
    w_read_addr(a, vRW, vL, vT, sT0, sT1, sT2)
    a.e(f"s_lshl_b32 s{sT0}, s{sH}, 20")
    a.e(f"s_lshl_b32 s{sT1}, s{sRT}, 17")
    a.e(f"s_add_u32 s{sT0}, s{sT0}, s{sT1}")
    a.e(f"s_and_b32 s{sT1}, s{sW}, 1")
    a.e(f"s_lshl_b32 s{sT1}, s{sT1}, 16")
    a.e(f"s_add_u32 s{sT0}, s{sT0}, s{sT1}")
    a.e(f"v_lshlrev_b32 v{vST}, 4, v{vL}")
    a.e(f"v_add_u32 v{vST}, s{sT0}, v{vST}")
    for i in range(128):
        a.e(f"v_mov_b32 v{ACC+i}, 0")
    for x in dma_stage(): a.e(x)

    def rd_w(W, ks2):
        r = []
        for d in range(4):
            r.append(f"ds_read_b64_tr_b16 {v(W+4*d,2)}, v{vRW+d} offset:{ks2*8192}")
            r.append(f"ds_read_b64_tr_b16 {v(W+4*d+2,2)}, v{vRW+d} offset:{ks2*8192+1024}")
        return r
    def rd_c(t, ks2):
        return f"ds_read_b128 {v(CF+4*(t%4),4)}, v{vRC+ks2} offset:{t*2048}"
    def mf(W, t, d, isK):
        acc = v(ACC + (t*4+d)*4, 4); cf = v(CF+4*(t%4), 4); wf = v(W+4*d, 4)
        return f"{MF} {acc}, {wf}, {cf}, {acc}" if isK else f"{MF} {acc}, {cf}, {wf}, {acc}"

    st.at(2)
    a.e("s_waitcnt vmcnt(8)")
    a.e("s_barrier")
    st.at(3)
    if diag: a.e("s_waitcnt lgkmcnt(0)")
    k3.gen_wof(a, sW, vL, 131072, 2, (sT0, sT1, sT2), 80, S_WO, S_WF, 1)
    for x in rd_w(WA, 0): a.e(x)
    for t in range(3): a.e(rd_c(t, 0))
    a.e(f"s_mov_b32 s{sIT}, 0")
    a.e(f"s_cmp_lt_u32 s{sW}, 4")
    a.e(f"s_cbranch_scc0 {name}_vloop")
    for isK in (True, False):
        tag = "k" if isK else "v"
        a.label(f"{name}_{tag}loop")
        wn = rd_w(WB, 1)
        for t in range(8):
            a.e(f"s_waitcnt lgkmcnt({[2,4,6,6,6,4,2,2][t]})")
            ms = [mf(WA, t, d, isK) for d in range(4)]
            nt = t + 3
            a.e(ms[0])
            if t < 4: a.e(wn[2*t])
            a.e(ms[1]); a.e(ms[2])
            if t < 4: a.e(wn[2*t+1])
            a.e(ms[3])
            a.e(rd_c(nt % 8, 0 if nt < 8 else 1))
        for t in range(5):
            a.e("s_waitcnt lgkmcnt(2)")
            for d in range(4): a.e(mf(WB, t, d, isK))
            a.e(rd_c(t + 3, 1))
        a.e("s_waitcnt lgkmcnt(2)")
        for d in range(4): a.e(mf(WB, 5, d, isK))
        a.e("s_waitcnt lgkmcnt(0) vmcnt(0)")
        a.e("s_barrier")
        for r in [vRC, vRC+1, vRW, vRW+1, vRW+2, vRW+3]:
            a.e(f"v_xor_b32 v{r}, 0x10000, v{r}")
        wn = rd_w(WA, 0)
        ms = [mf(WB, 6, d, isK) for d in range(4)]
        for d in range(4):
            a.e(ms[d]); a.e(wn[2*d]); a.e(wn[2*d+1])
        a.e(rd_c(0, 0)); a.e(rd_c(1, 0))
        lab = a.uid(f"{name}_nodma")
        a.e(f"s_cmp_ge_u32 s{sIT}, 6")
        a.e(f"s_cbranch_scc1 {lab}")
        for x in dma_stage(): a.e(x)
        a.label(lab)
        for d in range(4): a.e(mf(WB, 7, d, isK))
        a.e(rd_c(2, 0))
        a.e(f"s_add_u32 s{sIT}, s{sIT}, 1")
        a.e(f"s_cmp_lt_u32 s{sIT}, 8")
        a.e(f"s_cbranch_scc1 {name}_{tag}loop")
        st.at(4)
        a.e("s_waitcnt lgkmcnt(0)")
        a.e(f"s_and_b32 s{sT1}, s{sW}, 2")
        if isK:
            a.e(f"s_lshl_b32 s{sT0}, s{sT1}, 10")
        else:
            a.e(f"s_lshl_b32 s{sT0}, s{sT1}, 11")
            a.e(f"s_add_u32 s{sT0}, s{sT0}, 16384")
        a.e("s_nop 7")
        k = 0
        def pack(P, t0, t1):
            a.e(f"v_cvt_pk_bf16_f32 v{P}, v{t0}, v{t0+1}")
            a.e(f"v_cvt_pk_bf16_f32 v{P+1}, v{t0+2}, v{t0+3}")
            a.e(f"v_cvt_pk_bf16_f32 v{P+2}, v{t1}, v{t1+1}")
            a.e(f"v_cvt_pk_bf16_f32 v{P+3}, v{t1+2}, v{t1+3}")
        for n in range(16):
            P = 32 + (k % 8) * 4; k += 1
            if isK:
                t = n >> 1; x = n & 1
                pack(P, ACC + (t*4 + 2*x)*4, ACC + (t*4 + 2*x + 1)*4)
                off = (t >> 2) * 32768 + (t & 3) * 4096 + x * 1024
            else:
                y = n >> 2; d = n & 3
                pack(P, ACC + (2*y*4 + d)*4, ACC + ((2*y+1)*4 + d)*4)
                off = (y >> 1) * 32768 + (y & 1) * 8192 + d * 1024
            a.e(f"s_add_u32 s{sT1}, s{sT0}, {off}")
            a.e(f"buffer_store_dwordx4 {v(P,4)}, v{vST}, s[{S_O}:{S_O+3}], s{sT1} offen")
        st.at(5)
        if diag: a.e("s_waitcnt vmcnt(0)")
        st.at(6); st.at(7, True)
        st.dump(6, sW)
        a.e("s_endpgm")
    a.label(f"{name}_end")
    a.e("s_endpgm")
    kernel_desc(a, name, 256, 102 if diag else 48)
```

```python
from asmlib import *
from k1 import MF, WS_KV, WS_CTX, wg_decode, act_dma_offsets, act_read_addr, w_read_addr

QSCALE = 0x3e0293ee
NEG = 0xf149f2ca
TTHR = 0x41800000

def gen_k2(a, name="k2_kernel", diag=False):
    kernel_begin(a, name)
    st = Stamps(a, diag, 1)
    S_X, S_WQ, S_KV, S_CT = 8, 12, 16, 20
    sW, sH, sP = 24, 25, 26
    sG, sWL = 27, 28
    sI = 29
    sN = 30
    sKoff, sVoff = 31, 32
    sKt, sVt = 33, 34
    sM0K, sM0V = 35, 36
    sTA = 37
    sBase = 38
    sTile = 39
    sT0, sT1, sT2 = 40, 41, 42
    sKX, sKW = 43, 44
    sTH = 45
    sMSK = 46
    sRET = 54
    vL = 1; vDMA = 2; vKR = 3; vVR = 4; vTHR = 5; vNEG = 6; vMX = 7
    vL16 = 8
    vT = 10
    vDX = 26; vDW = 30; vRX = 32; vRW = 34
    vLS = 40; vM = 42
    FR = 72; NB = 8
    C = 104; P = 112; S = 128; Q = 160; O = 192
    XS = [0, 131072, 65536]; WSL = [32768, 49152, 98304]
    KRING = 0; VRING = 65536; QA_OFF = 98304; QB_OFF = 131072

    a.e("s_cmp_ge_u32 s2, 256")
    a.e(f"s_cbranch_scc1 {name}_end")
    st.at(0); st.at(1, True)
    a.e("s_load_dwordx2 s[4:5], s[0:1], 48")
    a.e("s_load_dwordx2 s[56:57], s[0:1], 64")
    a.e("s_load_dwordx2 s[6:7], s[0:1], 112")
    a.e(f"v_lshrrev_b32 v{vT}, 6, v0")
    a.e(f"v_and_b32 v{vL}, 63, v0")
    a.e(f"v_readfirstlane_b32 s{sW}, v{vT}")
    wg_decode(a, sH, sP, sT0, sT1)
    a.e(f"s_lshr_b32 s{sG}, s{sW}, 2")
    a.e(f"s_and_b32 s{sWL}, s{sW}, 3")
    a.e(f"s_sub_u32 s{sT0}, 15, s{sP}")
    a.e(f"s_cmp_eq_u32 s{sG}, 0")
    a.e(f"s_cselect_b32 s{sT0}, s{sT0}, s{sP}")
    a.e(f"s_lshl_b32 s{sT0}, s{sT0}, 7")
    a.e(f"s_lshl_b32 s{sT1}, s{sWL}, 5")
    a.e(f"s_add_u32 s{sT0}, s{sT0}, s{sT1}")
    act_dma_offsets(a, vDX, vL, vT, sT0, 1152)
    a.e(f"v_lshrrev_b32 v{vT+2}, 4, v{vL}")
    a.e(f"s_lshl_b32 s{sT0}, s{sW}, 3")
    a.e(f"v_add_u32 v{vT}, s{sT0}, v{vT+2}")
    a.e(f"v_lshlrev_b32 v{vT}, 13, v{vT}")
    a.e(f"s_lshl_b32 s{sT1}, s{sH}, 8")
    a.e(f"v_add_u32 v{vT}, s{sT1}, v{vT}")
    a.e(f"v_and_b32 v{vT+1}, 15, v{vL}")
    a.e(f"v_lshlrev_b32 v{vT+3}, 1, v{vT+2}")
    a.e(f"v_xor_b32 v{vT+1}, v{vT+1}, v{vT+3}")
    a.e(f"s_and_b32 s{sT0}, s{sW}, 1")
    a.e(f"s_lshl_b32 s{sT0}, s{sT0}, 3")
    a.e(f"v_xor_b32 v{vT+1}, s{sT0}, v{vT+1}")
    a.e(f"v_lshl_add_u32 v{vDW}, v{vT+1}, 4, v{vT}")
    a.e(f"v_add_u32 v{vDW+1}, {4*8192-1024}, v{vDW}")
    a.e("s_waitcnt lgkmcnt(0)")
    srd(a, S_X, 4, 2048 * 1152)
    srd(a, S_WQ, 56, 576 * 8192)
    srd(a, S_KV, 6, 32 << 20)
    a.e(f"s_add_u32 s58, s6, {WS_CTX}")
    a.e("s_addc_u32 s59, s7, 0")
    srd(a, S_CT, 58, 16 << 20)

    def qdma(stage):
        sl = stage % 3
        r = [f"s_lshl_b32 s{sT0}, s{sW}, 12", f"s_add_u32 m0, s{sT0}, {XS[sl]}", f"s_mov_b32 s{sKX}, {stage*128}"]
        r += [f"buffer_load_dwordx4 v{vDX+i}, s[{S_X}:{S_X+3}], s{sKX} offen offset:{i*1024} lds" for i in range(4)]
        r += [f"s_lshl_b32 s{sT0}, s{sW}, 11", f"s_add_u32 m0, s{sT0}, {WSL[sl]}", f"s_mov_b32 s{sKW}, {stage*64*8192}"]
        r += [f"buffer_load_dwordx4 v{vDW+i}, s[{S_WQ}:{S_WQ+3}], s{sKW} offen offset:{i*1024} lds" for i in range(2)]
        return r
    for x in qdma(0): a.e(x)
    a.e(f"s_lshr_b32 s{sT0}, s{sW}, 1")
    a.e(f"s_lshl_b32 s{sT0}, s{sT0}, 13")
    act_read_addr(a, vRX, vL, vT, sT0)
    a.e(f"s_mov_b32 s{sT0}, {WSL[0]}")
    a.e(f"s_and_b32 s{sT1}, s{sW}, 1")
    a.e(f"s_lshl_b32 s{sT1}, s{sT1}, 2")
    w_read_addr(a, vRW, vL, vT, sT0, sT1, sT2)
    for x in qdma(1): a.e(x)
    for i in range(64): a.e(f"v_mov_b32 v{O+i}, 0")
    a.e(f"v_lshlrev_b32 v{vL16}, 4, v{vL}")
    a.e(f"s_lshl_b32 s{sT0}, s{sWL}, 12")
    a.e(f"v_add_u32 v{vDMA}, s{sT0}, v{vL16}")
    a.e(f"s_lshl_b32 s{sT1}, s{sG}, 14")
    a.e(f"v_add_u32 v{vKR}, s{sT1}, v{vL16}")
    a.e(f"v_add_u32 v{vVR}, {VRING}, v{vKR}")
    a.e(f"s_add_u32 s{sM0K}, s{sT0}, s{sT1}")
    a.e(f"s_add_u32 s{sM0V}, s{sM0K}, {VRING}")
    a.e(f"s_lshl_b32 s{sBase}, s{sH}, 20")
    a.e(f"s_lshl_b32 s{sT1}, s{sG}, 15")
    a.e(f"s_add_u32 s{sBase}, s{sBase}, s{sT1}")
    a.e(f"s_mov_b32 s{sKoff}, s{sBase}")
    a.e(f"s_add_u32 s{sVoff}, s{sBase}, 16384")
    a.e(f"s_mov_b32 s{sKt}, 0")
    a.e(f"s_mov_b32 s{sVt}, 0")
    a.e(f"s_sub_u32 s{sTA}, 16, s{sP}")
    a.e(f"s_sub_u32 s{sI}, 15, s{sP}")
    a.e(f"s_mov_b32 s{sTile}, 0")
    a.e(f"s_mov_b32 s{sTH}, {TTHR}")
    a.e(f"v_mov_b32 v{vNEG}, {NEG}")
    a.e(f"s_lshl_b32 s{sT0}, s{sWL}, 5")
    a.e(f"s_lshl_b32 s{sT1}, s{sG}, 6")
    a.e(f"s_sub_u32 s{sT0}, s{sT0}, s{sT1}")
    a.e(f"v_and_b32 v{vT}, 15, v{vL}")
    a.e(f"v_add_u32 v{vT}, s{sT0}, v{vT}")
    a.e(f"v_lshrrev_b32 v{vT+1}, 4, v{vL}")
    a.e(f"v_lshlrev_b32 v{vT+1}, 2, v{vT+1}")
    a.e(f"v_sub_u32 v{vTHR}, v{vT}, v{vT+1}")
    for x in qdma(2): a.e(x)

    def kv_dma(isK):
        off, tt, m0 = (sKoff, sKt, sM0K) if isK else (sVoff, sVt, sM0V)
        r = [f"s_mov_b32 m0, s{m0}", "s_nop 0"]
        r += [f"buffer_load_dwordx4 v{vDMA}, s[{S_KV}:{S_KV+3}], s{off} offen offset:{i*1024} lds" for i in range(4)]
        return r
    def kv_adv(isK):
        off, tt, m0 = (sKoff, sKt, sM0K) if isK else (sVoff, sVt, sM0V)
        return [f"s_xor_b32 s{m0}, s{m0}, 0x8000",
                f"s_add_u32 s{tt}, s{tt}, 1",
                f"s_add_u32 s{off}, s{off}, 65536",
                f"s_add_u32 s{sT2}, s{sBase}, {0 if isK else 16384}",
                f"s_cmp_eq_u32 s{tt}, s{sTA}",
                f"s_cselect_b32 s{off}, s{sT2}, s{off}",
                f"s_cmp_ge_u32 s{tt}, 17",
                f"s_cselect_b32 s{off}, 0x7ff00000, s{off}"]

    SETS = [72, 104]
    def q_reads(F, ks2):
        r = []
        for d in range(4):
            r.append(f"ds_read_b64_tr_b16 {v(F+16+4*d,2)}, v{vRW+d} offset:{ks2*8192}")
            r.append(f"ds_read_b64_tr_b16 {v(F+16+4*d+2,2)}, v{vRW+d} offset:{ks2*8192+1024}")
            r.append(f"ds_read_b128 {v(F+4*d,4)}, v{vRX+ks2} offset:{d*2048}")
        return r
    def q_mfmas(F):
        return [f"{MF} {v(O+(t*4+d)*4,4)}, {v(F+16+4*d,4)}, {v(F+4*t,4)}, {v(O+(t*4+d)*4,4)}" for t in range(4) for d in range(4)]
    def spread(ms, fill, upto):
        out = []; k = 0
        for i, m in enumerate(ms):
            out.append(m)
            tgt = min(len(fill), (len(fill) * (i + 1) + upto - 1) // upto)
            while k < tgt:
                out.append(fill[k]); k += 1
        return out
    st.at(2)
    a.e("s_waitcnt vmcnt(12)")
    a.e("s_barrier")
    st.at(3)
    if diag: a.e("s_waitcnt lgkmcnt(0)")
    for x in q_reads(SETS[0], 0): a.e(x)
    for it in range(9):
        a.e("s_waitcnt lgkmcnt(0)")
        for x in spread(q_mfmas(SETS[0]), q_reads(SETS[1], 1), 12): a.e(x)
        if it < 8:
            a.e(f"s_waitcnt lgkmcnt(0) vmcnt({12 if it < 6 else (6 if it == 6 else 4)})".replace("vmcnt(12)", "vmcnt(6)"))
            a.e("s_barrier")
            dx = XS[(it+1) % 3] - XS[it % 3]; dw = WSL[(it+1) % 3] - WSL[it % 3]
            for r in (vRX, vRX+1): a.e(f"v_add_u32 v{r}, {dx & 0xffffffff}, v{r}")
            for r in range(vRW, vRW+4): a.e(f"v_add_u32 v{r}, {dw & 0xffffffff}, v{r}")
            if it < 6: dm = qdma(it + 3)
            else: dm = kv_dma(True) + kv_adv(True)
            rd = q_reads(SETS[0], 0)
            ms = q_mfmas(SETS[1])
            for x in spread(ms[:8], rd, 8): a.e(x)
            for x in spread(ms[8:], dm, 8): a.e(x)
        else:
            a.e("s_waitcnt lgkmcnt(0)")
            a.e("s_barrier")
            dm = kv_dma(False) + kv_adv(False)
            for x in spread(q_mfmas(SETS[1]), dm, 16): a.e(x)
    st.at(4)
    a.e(f"s_lshr_b32 s{sT0}, s{sW}, 1")
    a.e(f"s_and_b32 s{sT1}, s{sT0}, 1")
    a.e(f"s_lshl_b32 s{sT1}, s{sT1}, 14")
    a.e(f"s_lshl_b32 s{sT0}, s{sG}, 15")
    a.e(f"s_add_u32 s{sT0}, s{sT0}, s{sT1}")
    a.e(f"s_and_b32 s{sT1}, s{sW}, 1")
    a.e(f"s_lshl_b32 s{sT1}, s{sT1}, 11")
    a.e(f"s_add_u32 s{sT0}, s{sT0}, s{sT1}")
    a.e(f"s_add_u32 s{sT0}, s{sT0}, {QA_OFF}")
    a.e(f"v_add_u32 v{vT}, s{sT0}, v{vL16}")
    a.e(f"s_mov_b32 s{sT1}, {QSCALE}")
    a.e("s_nop 2")
    for t in range(4):
        for x in range(2):
            PK = FR + ((t*2+x) % 4) * 4
            t0 = O + (t*4 + 2*x)*4
            for j in range(8): a.e(f"v_mul_f32 v{t0+j}, s{sT1}, v{t0+j}")
            for j in range(4): a.e(f"v_cvt_pk_bf16_f32 v{PK+j}, v{t0+2*j}, v{t0+2*j+1}")
            a.e(f"ds_write_b128 v{vT}, {v(PK,4)} offset:{t*4096 + x*1024}")
    a.e("s_waitcnt lgkmcnt(0) vmcnt(8)")
    a.e("s_barrier")
    a.e(f"s_lshl_b32 s{sT0}, s{sWL}, 13")
    a.e(f"s_add_u32 s{sT0}, s{sT0}, {QA_OFF}")
    a.e(f"v_add_u32 v{vT}, s{sT0}, v{vL16}")
    for f in range(8):
        a.e(f"ds_read_b128 {v(Q+4*f,4)}, v{vT} offset:{f*1024}")
    st.at(5)

    def Sr(buf, kt, qt): return S + buf*16 + (kt*2+qt)*4
    def Pr(buf, qt): return P + buf*8 + qt*4
    def Or(dt, qt): return O + (dt*2+qt)*4
    def slot_k(b, n):
        kt, ds = n >> 2, n & 3
        rd = lambda f: f"ds_read_b128 {v(f,4)}, v{vKR} offset:{((2*b+kt)*4+ds)*1024}"
        def ms(f, czero=False):
            r = []
            for qt in range(2):
                c = ("0" if czero else v(C+4*qt,4)) if ds == 0 else v(Sr(b,kt,qt),4)
                r.append(f"{MF} {v(Sr(b,kt,qt),4)}, {v(f,4)}, {v(Q+(qt*4+ds)*4,4)}, {c}")
            return r
        return rd, ms
    def slot_v(b, dt):
        rd = lambda f: f"ds_read_b128 {v(f,4)}, v{vVR} offset:{(b*8+dt)*1024}"
        def ms(f):
            return [f"{MF} {v(Or(dt,qt),4)}, {v(f,4)}, {v(Pr(b,qt),4)}, {v(Or(dt,qt),4)}" for qt in range(2)]
        return rd, ms
    def mask_code(buf, t):
        r = []
        items = [(kt, qt, rr) for kt in range(2) for qt in range(2) for rr in range(4)]
        for base in range(0, 16, 4):
            for n, (kt, qt, rr) in enumerate(items[base:base+4]):
                r.append(f"v_cmp_le_i32 s[{sMSK+2*n}:{sMSK+2*n+1}], {16*kt+rr-16*qt+32*t}, v{vTHR}")
            for n, (kt, qt, rr) in enumerate(items[base:base+4]):
                x = Sr(buf,kt,qt)+rr
                r.append(f"v_cndmask_b32 v{x}, v{vNEG}, v{x}, s[{sMSK+2*n}:{sMSK+2*n+1}]")
        return r
    def max_code(buf):
        b0 = S + buf*16
        r = [f"v_max3_f32 v{vMX}, v{b0}, v{b0+1}, v{b0+2}"]
        for i in range(6): r.append(f"v_max3_f32 v{vMX}, v{vMX}, v{b0+3+2*i}, v{b0+4+2*i}")
        r.append(f"v_max_f32 v{vMX}, v{vMX}, v{b0+15}")
        return r
    def exp_code(buf):
        r = []
        pend = []
        for qt in range(2):
            for kt in range(2):
                x = Sr(buf,kt,qt)
                for rr in range(4):
                    r.append(f"v_exp_f32 v{x+rr}, v{x+rr}")
                    if pend: r.append(pend.pop(0))
                    if pend and rr % 2 == 1: r.append(pend.pop(0))
                pend += [f"v_add_f32 v{vLS+qt}, v{vLS+qt}, v{x}", f"v_add_f32 v{vLS+qt}, v{vLS+qt}, v{x+1}",
                         f"v_cvt_pk_bf16_f32 v{Pr(buf,qt)+2*kt}, v{x}, v{x+1}",
                         f"v_add_f32 v{vLS+qt}, v{vLS+qt}, v{x+2}", f"v_add_f32 v{vLS+qt}, v{vLS+qt}, v{x+3}",
                         f"v_cvt_pk_bf16_f32 v{Pr(buf,qt)+2*kt+1}, v{x+2}, v{x+3}"]
        r += pend
        return r
    def xlane(op, x, t):
        return [f"v_mov_b32 v{t}, v{x}", "s_nop 1", f"v_permlane16_swap_b32 v{x}, v{t}", f"{op} v{x}, v{x}, v{t}",
                f"v_mov_b32 v{t}, v{x}", "s_nop 1", f"v_permlane32_swap_b32 v{x}, v{t}", f"{op} v{x}, v{x}, v{t}"]
    rare_sites = []
    def emit_rare(lab, ret, sbuf, pbuf):
        a.label(lab)
        a.e("s_nop 7")
        for qt in range(2):
            d = vT + qt; f = vT + 2 + qt
            x0, x1 = Sr(sbuf,0,qt), Sr(sbuf,1,qt)
            a.e(f"v_max3_f32 v{d}, v{x0}, v{x0+1}, v{x0+2}")
            a.e(f"v_max3_f32 v{d}, v{d}, v{x0+3}, v{x1}")
            a.e(f"v_max3_f32 v{d}, v{d}, v{x1+1}, v{x1+2}")
            a.e(f"v_max3_f32 v{d}, v{d}, v{x1+3}, 0")
            for x in xlane("v_max_f32", d, vT + 4): a.e(x)
            a.e(f"v_ceil_f32 v{d}, v{d}")
            a.e(f"v_cvt_i32_f32 v{f}, v{d}")
            a.e(f"v_sub_u32 v{f}, 0, v{f}")
            a.e(f"v_max_i32 v{f}, -200, v{f}".replace("-200", "0xffffff38"))
            a.e(f"v_ldexp_f32 v{f}, 1.0, v{f}")
            for kt in range(2):
                for rr in range(4): a.e(f"v_sub_f32 v{Sr(sbuf,kt,qt)+rr}, v{Sr(sbuf,kt,qt)+rr}, v{d}")
            for rr in range(4): a.e(f"v_sub_f32 v{C+4*qt+rr}, v{C+4*qt+rr}, v{d}")
            a.e(f"v_add_f32 v{vM+qt}, v{vM+qt}, v{d}")
            a.e(f"v_mul_f32 v{vLS+qt}, v{vLS+qt}, v{f}")
            for dt in range(8):
                for rr in range(4): a.e(f"v_mul_f32 v{Or(dt,qt)+rr}, v{Or(dt,qt)+rr}, v{f}")
            for rr in range(4):
                p = Pr(pbuf,qt)+rr
                a.e(f"v_lshlrev_b32 v{vT+4}, 16, v{p}")
                a.e(f"v_and_b32 v{vT+5}, 0xffff0000, v{p}")
                a.e(f"v_mul_f32 v{vT+4}, v{vT+4}, v{f}")
                a.e(f"v_mul_f32 v{vT+5}, v{vT+5}, v{f}")
                a.e(f"v_cvt_pk_bf16_f32 v{p}, v{vT+4}, v{vT+5}")
        a.e("s_nop 1")
        a.e(f"s_branch {ret}")

    D = 5
    def run_slots(slots, fills, nxt, sync_after=None, sync=None):
        n = len(slots)
        for sidx, (rd, ms) in enumerate(slots):
            f = FR + 4 * (sidx % NB)
            if sync_after is None:
                out = min(D - 1, n - 1 - sidx + len(nxt[:max(0, sidx + D - n)]))
            else:
                out = min(D - 1, n - 1 - sidx) if sidx <= sync_after else None
            if out is not None: a.e(f"s_waitcnt lgkmcnt({out})")
            m = ms(f)
            fl = fills.get(sidx, [])
            h = (len(fl) + 1) // 2
            a.e(m[0])
            for x in fl[:h]: a.e(x)
            a.e(m[1])
            for x in fl[h:]: a.e(x)
            t = sidx + D
            if t < n:
                a.e(slots[t][0](FR + 4 * (t % NB)))
            elif sync_after is None:
                if t - n < len(nxt): a.e(nxt[t - n][0](FR + 4 * (t % NB)))
            elif sidx == sync_after:
                for x in sync: a.e(x)
                for tt in range(n, sidx + D + 1):
                    a.e(nxt[tt - n][0](FR + 4 * (tt % NB)))
            elif sidx > sync_after:
                a.e(nxt[t - n][0](FR + 4 * (t % NB)))
    def distribute(fills, items, lo, hi):
        n = hi - lo
        for i in range(n):
            c0 = len(items) * i // n; c1 = len(items) * (i + 1) // n
            fills.setdefault(lo + i, []).extend(items[c0:c1])
    toggles = [f"v_xor_b32 v{vKR}, 0x8000, v{vKR}", f"v_xor_b32 v{vVR}, 0x8000, v{vVR}"]
    vslots = lambda b: [slot_v(b, dt) for dt in range(8)]
    kslots = lambda b: [slot_k(b, n) for n in range(8)]

    a.label(f"{name}_tile")
    k0 = kslots(0); k1s = kslots(1)
    for t in range(D): a.e(k0[t][0](FR + 4 * t))
    for i in range(64): a.e(f"v_mov_b32 v{O+i}, 0")
    a.e(f"v_mov_b32 v{vLS}, 0"); a.e(f"v_mov_b32 v{vLS+1}, 0")
    z = [(rd, (lambda ms: (lambda f: ms(f, True)))(ms)) for rd, ms in k0]
    run_slots(z, {}, k1s)
    lab = a.uid(f"{name}_nm")
    a.e(f"s_cmp_lg_u32 s{sI}, 0")
    a.e("s_nop 6")
    a.e(f"s_cbranch_scc1 {lab}")
    for x in mask_code(0, 0): a.e(x)
    a.label(lab)
    for qt in range(2):
        d = vM + qt
        x0, x1 = Sr(0,0,qt), Sr(0,1,qt)
        a.e(f"v_max3_f32 v{d}, v{x0}, v{x0+1}, v{x0+2}")
        a.e(f"v_max3_f32 v{d}, v{d}, v{x0+3}, v{x1}")
        a.e(f"v_max3_f32 v{d}, v{d}, v{x1+1}, v{x1+2}")
        a.e(f"v_max_f32 v{d}, v{d}, v{x1+3}")
        for x in xlane("v_max_f32", d, vT + 4): a.e(x)
        for rr in range(4): a.e(f"v_sub_f32 v{C+4*qt+rr}, 0, v{d}")
        for kt in range(2):
            for rr in range(4): a.e(f"v_sub_f32 v{Sr(0,kt,qt)+rr}, v{Sr(0,kt,qt)+rr}, v{d}")
    fills = {}
    distribute(fills, exp_code(0), 0, 8)
    labA = a.uid(f"{name}_wa"); labB = a.uid(f"{name}_wb")
    sync = ["s_waitcnt lgkmcnt(0)", f"s_cmp_eq_u32 s{sTile}, 0", f"s_cbranch_scc1 {labA}", "s_waitcnt vmcnt(4)", f"s_branch {labB}",
            labA + ":", "s_waitcnt vmcnt(0)", labB + ":", "s_barrier", f"v_xor_b32 v{vKR}, 0x8000, v{vKR}"]
    _e = a.e
    def e2(x):
        if x.endswith(":"): a.label(x[:-1])
        else: _e(x)
    a.e = e2
    run_slots(k1s, fills, vslots(0), sync_after=4, sync=sync)
    a.e(f"s_mov_b32 s{sN}, 0")
    a.e(f"s_cmp_eq_u32 s{sI}, 0")
    a.e(f"s_cbranch_scc1 {name}_tail")

    def check(sbuf, pbuf):
        lab = a.uid(f"{name}_rare"); ret = a.uid(f"{name}_ret")
        rare_sites.append((lab, ret, sbuf, pbuf))
        return [f"v_cmp_lt_f32 vcc, s{sTH}, v{vMX}", f"s_cbranch_vccnz {lab}", ret + ":"]
    dma_all = kv_dma(True) + kv_dma(False)
    dma_adv = kv_adv(True) + kv_adv(False)
    a.label(f"{name}_loop")
    slots = vslots(0) + kslots(0) + vslots(1) + kslots(1)
    fills = {}
    distribute(fills, max_code(1), 2, 5)
    fills.setdefault(4, []).extend(check(1, 0))
    distribute(fills, exp_code(1), 5, 16)
    mlab = a.uid(f"{name}_mask"); mret = a.uid(f"{name}_mret")
    fills.setdefault(18, []).extend([f"s_add_u32 s{sN}, s{sN}, 1", f"s_cmp_eq_u32 s{sN}, s{sI}", f"s_cbranch_scc1 {mlab}", mret + ":"])
    distribute(fills, max_code(0), 19, 21)
    fills.setdefault(20, []).extend(check(0, 1))
    distribute(fills, exp_code(0), 21, 32)
    fills2 = {}
    distribute(fills2, dma_all[:6], 0, 4)
    distribute(fills2, dma_all[6:], 6, 11)
    distribute(fills2, dma_adv, 11, 15)
    for k_, v_ in fills2.items(): fills[k_] = v_ + fills.get(k_, [])
    sync = ["s_waitcnt lgkmcnt(0) vmcnt(0)", "s_barrier"] + toggles
    run_slots(slots, fills, vslots(0), sync_after=28, sync=sync)
    a.e(f"s_cmp_lt_u32 s{sN}, s{sI}")
    a.e(f"s_cbranch_scc1 {name}_loop")
    a.label(f"{name}_tail")
    slots = vslots(0) + vslots(1)
    fills = {}
    distribute(fills, dma_all[:6], 0, 2)
    distribute(fills, mask_code(1, 1) + max_code(1), 2, 4)
    fills.setdefault(3, []).extend(check(1, 0))
    distribute(fills, exp_code(1), 4, 8)
    fills.setdefault(7, []).append("s_nop 1")
    distribute(fills, dma_all[6:] + dma_adv, 8, 16)
    run_slots(slots, fills, [])
    st.at(6)
    a.e(f"s_lshl_b32 s{sT0}, s{sWL}, 13")
    a.e(f"s_add_u32 s{sT0}, s{sT0}, {QB_OFF}")
    a.e(f"v_add_u32 v{vT}, s{sT0}, v{vL16}")
    for f in range(8):
        a.e(f"ds_read_b128 {v(Q+4*f,4)}, v{vT} offset:{f*1024}")
    for qt in range(2):
        for x in xlane("v_add_f32", vLS + qt, vT + 4): a.e(x)
    a.e(f"v_readfirstlane_b32 s{sT0}, v{vVR}")
    a.e(f"s_and_b32 s{sT0}, s{sT0}, 0x18000")
    a.e(f"s_cmp_eq_u32 s{sG}, 0")
    a.e(f"s_cselect_b32 s{sT1}, {QB_OFF}, s{sT0}")
    a.e(f"s_cselect_b32 s{sT2}, s{sT0}, {QB_OFF}")
    a.e(f"s_lshl_b32 s{sT0}, s{sWL}, 13")
    a.e(f"s_add_u32 s{sT1}, s{sT1}, s{sT0}")
    a.e(f"s_add_u32 s{sT2}, s{sT2}, s{sT0}")
    vOWN, vPAR = vT + 6, vT + 7
    a.e(f"v_add_u32 v{vOWN}, s{sT1}, v{vL16}")
    a.e(f"v_add_u32 v{vPAR}, s{sT2}, v{vL16}")
    a.e("s_waitcnt lgkmcnt(0)")
    a.e("s_barrier")
    a.e(f"ds_write_b128 v{vPAR}, {v(vLS,4)}")
    a.e("s_waitcnt lgkmcnt(0)")
    a.e("s_barrier")
    X = vT + 10
    a.e(f"ds_read_b128 {v(X,4)}, v{vOWN}")
    a.e("s_waitcnt lgkmcnt(0)")
    for qt in range(2):
        mm = vT + 4; e0 = vT + 5; e1 = vT + 8
        a.e(f"v_max_f32 v{mm}, v{vM+qt}, v{X+2+qt}")
        a.e(f"v_sub_f32 v{e0}, v{vM+qt}, v{mm}")
        a.e(f"v_sub_f32 v{e1}, v{X+2+qt}, v{mm}")
        a.e(f"v_exp_f32 v{e0}, v{e0}")
        a.e(f"v_exp_f32 v{e1}, v{e1}")
        a.e("s_nop 0")
        a.e(f"v_mul_f32 v{mm}, v{e0}, v{vLS+qt}")
        a.e(f"v_fmac_f32 v{mm}, v{e1}, v{X+qt}")
        a.e(f"v_rcp_f32 v{mm}, v{mm}")
        a.e("s_nop 0")
        a.e(f"v_mul_f32 v{vT+qt}, v{e0}, v{mm}")
    for dt in range(8):
        for qt in range(2):
            for rr in range(4): a.e(f"v_mul_f32 v{Or(dt,qt)+rr}, v{Or(dt,qt)+rr}, v{vT+qt}")
    lg1 = a.uid(f"{name}_g1"); lgd = a.uid(f"{name}_gd")
    a.e(f"s_lshl_b32 s{sT0}, s{sI}, 3")
    a.e(f"s_lshl_b32 s{sT1}, s{sWL}, 1")
    a.e(f"s_add_u32 s{sT0}, s{sT0}, s{sT1}")
    a.e(f"s_lshl_b32 s{sT0}, s{sT0}, 17")
    a.e(f"s_lshl_b32 s{sT1}, s{sH}, 12")
    a.e(f"s_add_u32 s{sT0}, s{sT0}, s{sT1}")
    a.e(f"s_lshl_b32 s{sT1}, s{sG}, 11")
    a.e(f"s_add_u32 s{sT0}, s{sT0}, s{sT1}")
    a.e(f"s_add_u32 s{sT1}, s{sT0}, 131072")
    a.e(f"s_cmp_eq_u32 s{sG}, 0")
    a.e(f"s_cbranch_scc0 {lg1}")
    for g in range(2):
        keep = O + 32 * g; send = O + 32 * (1 - g)
        if g == 1: a.label(lg1)
        for n in range(8): a.e(f"ds_write_b128 v{vOWN}, {v(send+4*n,4)} offset:{n*1024}")
        a.e("s_waitcnt lgkmcnt(0)")
        a.e("s_barrier")
        for n in range(8): a.e(f"ds_read_b128 {v(FR+4*n,4)}, v{vPAR} offset:{n*1024}")
        for xx in range(2):
            for qt in range(2):
                n0 = (2*xx)*2 + qt; n1 = (2*xx+1)*2 + qt
                a.e(f"s_waitcnt lgkmcnt({7 - n1})")
                for n in (n0, n1):
                    for rr in range(4): a.e(f"v_add_f32 v{keep+4*n+rr}, v{keep+4*n+rr}, v{FR+4*n+rr}")
                PK = S + (xx*2+qt)*4
                a.e(f"v_cvt_pk_bf16_f32 v{PK}, v{keep+4*n0}, v{keep+4*n0+1}")
                a.e(f"v_cvt_pk_bf16_f32 v{PK+1}, v{keep+4*n0+2}, v{keep+4*n0+3}")
                a.e(f"v_cvt_pk_bf16_f32 v{PK+2}, v{keep+4*n1}, v{keep+4*n1+1}")
                a.e(f"v_cvt_pk_bf16_f32 v{PK+3}, v{keep+4*n1+2}, v{keep+4*n1+3}")
                a.e(f"buffer_store_dwordx4 {v(PK,4)}, v{vL16}, s[{S_CT}:{S_CT+3}], s{sT1 if qt else sT0} offen offset:{xx*1024}")
        if g == 0: a.e(f"s_branch {lgd}")
    a.label(lgd)
    a.e(f"v_xor_b32 v{vVR}, 0x8000, v{vVR}")
    a.e(f"s_cmp_eq_u32 s{sTile}, 0")
    a.e(f"s_mov_b32 s{sTile}, 1")
    a.e(f"s_mov_b32 s{sI}, s{sP}")
    if diag:
        l2 = a.uid("dg")
        a.e(f"s_cbranch_scc0 {l2}")
        st.at(7)
        a.e("s_waitcnt lgkmcnt(0)")
        a.e(f"s_branch {name}_tile")
        a.label(l2)
    else:
        a.e(f"s_cbranch_scc1 {name}_tile")
    st.at(8)
    if diag: a.e("s_waitcnt vmcnt(0)")
    st.at(9); st.at(10, True)
    st.dump(6, sW)
    a.e("s_endpgm")
    a.label(mlab)
    for x in mask_code(0, 0): a.e(x)
    a.e(f"s_branch {mret}")
    for lab, ret, sb, pb in rare_sites: emit_rare(lab, ret, sb, pb)
    a.label(f"{name}_end")
    a.e("s_endpgm")
    a.e = _e
    kernel_desc(a, name, 256, 102 if diag else 64)
```

```python
from asmlib import *
from k1 import MF, WS_CTX, WS_WOF

NCONV = 72
UROW = 4608; HROW = 4128; HBASE = 8 * UROW
K3_LDS = HBASE + 8 * HROW

def gen_wof(a, sW, vL, lds_base, sB, tmpS, tmpV, S_WO, S_WF, part):
    t0, t1, t2 = tmpS
    V = tmpV
    if part == 0:
        a.e(f"s_lshr_b32 s{t0}, s{sB}, 1")
        a.e(f"s_mul_i32 s{t0}, s{t0}, {32*1152}")
        a.e(f"s_and_b32 s{t1}, s{sB}, 1")
        a.e(f"s_mul_i32 s{t1}, s{t1}, 576")
        a.e(f"s_add_u32 s{t0}, s{t0}, s{t1}")
        a.e(f"s_lshl_b32 s{t1}, s{sW}, 6")
        for n in range(3):
            a.e(f"v_add_u32 v{V}, s{t1}, v{vL}")
            if n: a.e(f"v_add_u32 v{V}, {512*n}, v{V}")
            a.e(f"v_mul_u32_u24 v{V+1}, 1821, v{V}")
            a.e(f"v_lshrrev_b32 v{V+1}, 16, v{V+1}")
            a.e(f"v_mul_u32_u24 v{V+2}, 36, v{V+1}")
            a.e(f"v_sub_u32 v{V+2}, v{V}, v{V+2}")
            a.e(f"v_mul_u32_u24 v{V+1}, 1152, v{V+1}")
            a.e(f"v_lshl_add_u32 v{V+3+n}, v{V+2}, 4, v{V+1}")
            if n == 2:
                a.e(f"v_cmp_gt_u32 vcc, 1152, v{V}")
                a.e(f"v_mov_b32 v{V+1}, 0x7ff00000")
                a.e("s_nop 0")
                a.e(f"v_cndmask_b32 v{V+3+n}, v{V+1}, v{V+3+n}, vcc")
        for n in range(3):
            a.e(f"s_lshl_b32 s{t1}, s{sW}, 10")
            a.e(f"s_add_u32 m0, s{t1}, {lds_base + n*8192}")
            a.e("s_nop 0")
            a.e(f"buffer_load_dwordx4 v{V+3+n}, s[{S_WO}:{S_WO+3}], s{t0} offen lds")
    else:
        a.e(f"v_lshrrev_b32 v{V}, 2, v{vL}")
        a.e(f"v_mul_u32_u24 v{V}, 576, v{V}")
        a.e(f"v_and_b32 v{V+1}, 3, v{vL}")
        a.e(f"v_lshl_add_u32 v{V}, v{V+1}, 3, v{V}")
        a.e(f"v_lshlrev_b32 v{V+1}, 4, v{vL}")
        a.e(f"v_lshrrev_b32 v{V+2}, 4, v{vL}")
        a.e(f"v_and_b32 v{V+3}, 15, v{vL}")
        a.e(f"v_lshl_add_u32 v{V+2}, v{V+2}, 3, v{V+3}")
        a.e(f"v_lshlrev_b32 v{V+2}, 4, v{V+2}")
        a.e(f"v_cmp_gt_u32 vcc, 8, v{V+3}")
        a.e(f"v_mov_b32 v{V+3}, 0x7ff00000")
        a.e("s_nop 0")
        a.e(f"v_cndmask_b32 v{V+2}, v{V+3}, v{V+2}, vcc")
        for n in range(3):
            lab = a.uid("wof_skip")
            a.e(f"s_add_u32 s{t0}, s{sW}, {8*n}")
            if n == 2:
                a.e(f"s_cmp_ge_u32 s{t0}, 20")
                a.e(f"s_cbranch_scc1 {lab}")
            a.e(f"s_mul_i32 s{t1}, s{t0}, 52")
            a.e(f"s_lshr_b32 s{t1}, s{t1}, 8")
            a.e(f"s_mul_i32 s{t2}, s{t1}, 5")
            a.e(f"s_sub_u32 s{t0}, s{t0}, s{t2}")
            a.e(f"s_mul_i32 s{t2}, s{t1}, 144")
            a.e(f"s_lshl_b32 vcc_lo, s{t0}, 5")
            a.e(f"s_add_u32 s{t2}, s{t2}, vcc_lo")
            a.e(f"s_add_u32 s{t2}, s{t2}, {lds_base}")
            a.e(f"v_add_u32 v{V+4}, s{t2}, v{V}")
            a.e(f"ds_read_b64_tr_b16 {v(V+6,2)}, v{V+4}")
            a.e(f"ds_read_b64_tr_b16 {v(V+8,2)}, v{V+4} offset:{16*576}")
            a.e(f"s_and_b32 s{t2}, s{sB}, 1")
            a.e(f"s_lshl_b32 s{t2}, s{t2}, 2")
            a.e(f"s_add_u32 s{t1}, s{t1}, s{t2}")
            a.e(f"s_lshl_b32 s{t1}, s{t1}, 7")
            a.e(f"s_lshr_b32 s{t2}, s{sB}, 1")
            a.e(f"s_add_u32 s{t1}, s{t1}, s{t2}")
            a.e(f"s_mul_i32 s{t1}, s{t1}, 4608")
            a.e(f"s_lshl_b32 s{t2}, s{t0}, 10")
            a.e(f"s_add_u32 s{t1}, s{t1}, s{t2}")
            a.e(f"s_cmp_eq_u32 s{t0}, 4")
            a.e("s_cselect_b64 vcc, -1, 0")
            a.e(f"v_cndmask_b32 v{V+5}, v{V+1}, v{V+2}, vcc")
            a.e("s_waitcnt lgkmcnt(0)")
            a.e(f"buffer_store_dwordx4 {v(V+6,4)}, v{V+5}, s[{S_WF}:{S_WF+3}], s{t1} offen")
            a.e("s_nop 1")
            a.label(lab)

def gen_k3(a, name="k3_kernel", diag=False):
    kernel_begin(a, name)
    st = Stamps(a, diag, 2)
    sW = 24; sT0, sT1, sT2 = 25, 26, 27
    vL = 1; vT = 2
    a.e(f"s_cmp_ge_u32 s2, {256 + NCONV}")
    a.e(f"s_cbranch_scc1 {name}_end")
    st.at(0); st.at(1, True)
    a.e("s_load_dwordx2 s[6:7], s[0:1], 112")
    a.e("s_load_dwordx2 s[4:5], s[0:1], 96")
    a.e(f"v_lshrrev_b32 v{vT}, 6, v0")
    a.e(f"v_and_b32 v{vL}, 63, v0")
    a.e(f"v_readfirstlane_b32 s{sW}, v{vT}")
    a.e(f"s_cmp_lt_u32 s2, {NCONV}")
    a.e(f"s_cbranch_scc1 {name}_conv")
    S_CT, S_WF, S_OUT = 8, 12, 16
    sMT, sNT, sKC, sKW, sIT = 28, 29, 30, 31, 32
    vC = 4
    vWf = 8; vWh = 9; vO = 10; vRed = 11
    ACC = 176; STG = 32
    a.e(f"s_sub_u32 s{sT0}, s2, {NCONV}")
    a.e(f"s_and_b32 s{sMT}, s{sT0}, 7")
    a.e(f"s_lshl_b32 s{sMT}, s{sMT}, 2")
    a.e(f"s_lshr_b32 s{sT1}, s{sT0}, 3")
    a.e(f"s_and_b32 s{sT1}, s{sT1}, 3")
    a.e(f"s_add_u32 s{sMT}, s{sMT}, s{sT1}")
    a.e(f"s_lshr_b32 s{sNT}, s{sT0}, 5")
    a.e(f"v_lshlrev_b32 v{vWf}, 4, v{vL}")
    for i in range(4):
        a.e(f"v_add_u32 v{vC+i}, {i*131072}, v{vWf}")
    a.e(f"v_lshrrev_b32 v{vT}, 4, v{vL}")
    a.e(f"v_and_b32 v{vT+1}, 7, v{vL}")
    a.e(f"v_lshl_add_u32 v{vWh}, v{vT}, 3, v{vT+1}")
    a.e(f"v_lshlrev_b32 v{vWh}, 4, v{vWh}")
    a.e(f"v_add_u32 v{vWh}, 4096, v{vWh}")
    a.e(f"s_lshl_b32 s{sKC}, s{sMT}, 19")
    a.e(f"s_lshl_b32 s{sT0}, s{sW}, 15")
    a.e(f"s_add_u32 s{sKC}, s{sKC}, s{sT0}")
    a.e(f"s_lshl_b32 s{sKW}, s{sNT}, 7")
    a.e(f"s_lshl_b32 s{sT0}, s{sW}, 5")
    a.e(f"s_add_u32 s{sKW}, s{sKW}, s{sT0}")
    a.e(f"s_mul_i32 s{sKW}, s{sKW}, 4608")
    a.e("s_waitcnt lgkmcnt(0)")
    a.e(f"s_add_u32 s20, s6, {WS_CTX}"); a.e("s_addc_u32 s21, s7, 0")
    srd(a, S_CT, 20, 16 << 20)
    a.e(f"s_add_u32 s20, s6, {WS_WOF}"); a.e("s_addc_u32 s21, s7, 0")
    srd(a, S_WF, 20, 8 * 128 * 4608)
    srd(a, S_OUT, 4, 2048 * 2304)
    def loads(sg):
        B = STG + 36 * sg
        r = []
        for j in range(4):
            r.append(f"buffer_load_dwordx4 {v(B+16+4*j,4)}, v{vWf}, s[{S_WF}:{S_WF+3}], s{sKW} offen offset:{j*1024}")
        r.append(f"buffer_load_dwordx4 {v(B+32,4)}, v{vWh}, s[{S_WF}:{S_WF+3}], s{sKW} offen")
        for i in range(4):
            r.append(f"buffer_load_dwordx4 {v(B+4*i,4)}, v{vC+i}, s[{S_CT}:{S_CT+3}], s{sKC} offen")
        r.append(f"s_add_u32 s{sKC}, s{sKC}, 1024")
        r.append(f"s_add_u32 s{sKW}, s{sKW}, 4608")
        return r
    for sg in range(3):
        for x in loads(sg): a.e(x)
    for i in range(80): a.e(f"v_mov_b32 v{ACC+i}, 0")
    a.e(f"s_mov_b32 s{sIT}, 0")
    st.at(2)
    a.label(f"{name}_oloop")
    for sg in range(4):
        B = STG + 36 * sg
        ld = loads((sg + 3) % 4)
        ms = [f"{MF} {v(ACC+(i*5+j)*4,4)}, {v(B+16+4*j,4)}, {v(B+4*i,4)}, {v(ACC+(i*5+j)*4,4)}" for i in range(4) for j in range(5)]
        a.e("s_waitcnt vmcnt(18)")
        k = 0
        for n, m in enumerate(ms):
            a.e(m)
            if n % 2 == 0 and k < len(ld):
                a.e(ld[k]); k += 1
        while k < len(ld):
            a.e(ld[k]); k += 1
    a.e(f"s_add_u32 s{sIT}, s{sIT}, 1")
    a.e(f"s_cmp_lt_u32 s{sIT}, 8")
    a.e(f"s_cbranch_scc1 {name}_oloop")
    st.at(3)
    a.e(f"v_lshlrev_b32 v{vRed}, 4, v{vL}")
    a.e("s_nop 4")
    for i in range(4):
        lab = a.uid(f"{name}_own")
        a.e(f"s_sub_u32 s{sT0}, s{sW}, {i+1}")
        a.e(f"s_and_b32 s{sT0}, s{sT0}, 3")
        a.e(f"s_cmp_eq_u32 s{sT0}, 3")
        a.e(f"s_cbranch_scc1 {lab}")
        a.e(f"s_mul_i32 s{sT0}, s{sT0}, 5120")
        a.e(f"s_add_u32 s{sT0}, s{sT0}, {i*15360}")
        a.e(f"v_add_u32 v{vT}, s{sT0}, v{vRed}")
        for j in range(5):
            a.e(f"ds_write_b128 v{vT}, {v(ACC+(i*5+j)*4,4)} offset:{j*1024}")
        a.label(lab)
    a.e("s_waitcnt vmcnt(0)")
    for i in range(4):
        lab = a.uid(f"{name}_mv")
        a.e(f"s_cmp_lg_u32 s{sW}, {i}")
        a.e(f"s_cbranch_scc1 {lab}")
        for r in range(20): a.e(f"v_mov_b32 v{32+r}, v{ACC+i*20+r}")
        a.label(lab)
    a.e(f"s_mul_i32 s{sT0}, s{sW}, 15360")
    a.e(f"v_add_u32 v{vT}, s{sT0}, v{vRed}")
    a.e(f"s_lshl_b32 s{sT0}, s{sMT}, 6")
    a.e(f"s_lshl_b32 s{sT1}, s{sW}, 4")
    a.e(f"s_add_u32 s{sT0}, s{sT0}, s{sT1}")
    a.e(f"v_and_b32 v{vO}, 15, v{vL}")
    a.e(f"v_add_u32 v{vO}, s{sT0}, v{vO}")
    a.e(f"v_mul_u32_u24 v{vO}, 2304, v{vO}")
    a.e(f"v_lshrrev_b32 v{vT+1}, 4, v{vL}")
    a.e(f"v_lshl_add_u32 v{vO}, v{vT+1}, 3, v{vO}")
    a.e(f"s_mul_i32 s{sT0}, s{sNT}, 144")
    a.e(f"s_add_u32 s{sT0}, s{sT0}, 1152")
    a.e(f"v_cmp_gt_u32 vcc, 32, v{vL}")
    a.e(f"v_mov_b32 v{vT+1}, 0x7ff00000")
    a.e("s_waitcnt lgkmcnt(0)")
    a.e("s_barrier")
    a.e(f"v_cndmask_b32 v{vRed}, v{vT+1}, v{vO}, vcc")
    for sl in range(3):
        for j in range(5):
            a.e(f"ds_read_b128 {v(64+(sl*5+j)*4,4)}, v{vT} offset:{sl*5120+j*1024}")
    for j in range(5):
        a.e(f"s_waitcnt lgkmcnt({4-j})")
        for r in range(4):
            a.e(f"v_add_f32 v{32+4*j+r}, v{32+4*j+r}, v{64+4*j+r}")
            a.e(f"v_add_f32 v{84+4*j+r}, v{84+4*j+r}, v{104+4*j+r}")
        for r in range(4):
            a.e(f"v_add_f32 v{32+4*j+r}, v{32+4*j+r}, v{84+4*j+r}")
        a.e(f"v_cvt_pk_bf16_f32 v{128+2*j}, v{32+4*j}, v{33+4*j}")
        a.e(f"v_cvt_pk_bf16_f32 v{129+2*j}, v{34+4*j}, v{35+4*j}")
        a.e(f"buffer_store_dwordx2 {v(128+2*j,2)}, v{vO if j < 4 else vRed}, s[{S_OUT}:{S_OUT+3}], s{sT0} offen offset:{32*j}")
    st.at(4)
    if diag: a.e("s_waitcnt vmcnt(0)")
    st.at(5); st.at(6, True)
    st.dump(6, sW)
    a.e("s_endpgm")

    a.label(f"{name}_conv")
    S_Q, S_K, S_V, S_H, S_OUT = 8, 12, 16, 20, 28
    sCG = 32; sD = 33; sCH = 34; sR = 35
    SK = 36
    a.e("s_load_dwordx4 s[40:43], s[0:1], 0")
    a.e("s_load_dwordx4 s[44:47], s[0:1], 16")
    a.e("s_load_dwordx4 s[48:51], s[0:1], 32")
    vA, vB, vCc = 4, 5, 6
    a.e(f"v_mul_u32_u24 v{vB}, {8*1152}, v0")
    a.e(f"s_lshl_b32 s{sT0}, s2, 4")
    a.e(f"v_add_u32 v{vB}, s{sT0}, v{vB}")
    a.e(f"v_add_u32 v{vA}, {(-3456) & 0xffffffff}, v{vB}")
    a.e(f"v_add_u32 v{vCc}, 4608, v{vB}")
    a.e("s_waitcnt lgkmcnt(0)")
    srd(a, S_Q, 40, 2048 * 1152); srd(a, S_K, 42, 2048 * 1152); srd(a, S_V, 44, 2048 * 1152)
    srd(a, S_H, 48, 576 * 4096); srd(a, S_OUT, 4, 2048 * 2304)
    KR = 32; VR = 76; QR = 108
    WK = 140
    for i in range(3): a.e(f"buffer_load_dwordx4 {v(KR+4*i,4)}, v{vA}, s[{S_K}:{S_K+3}], 0 offen offset:{i*1152}")
    for i in range(8): a.e(f"buffer_load_dwordx4 {v(KR+12+4*i,4)}, v{vB if i < 4 else vCc}, s[{S_K}:{S_K+3}], 0 offen offset:{(i%4)*1152}")
    for i in range(8): a.e(f"buffer_load_dwordx4 {v(VR+4*i,4)}, v{vB if i < 4 else vCc}, s[{S_V}:{S_V+3}], 0 offen offset:{(i%4)*1152}")
    a.e(f"s_lshl_b32 s{sT0}, s2, 6")
    a.e(f"s_add_u32 s46, s46, s{sT0}"); a.e("s_addc_u32 s47, s47, 0")
    a.e(f"s_lshl_b32 s{sT0}, s2, 4"); a.e(f"s_lshl_b32 s{sT1}, s{sW}, 2"); a.e(f"s_add_u32 s{sT0}, s{sT0}, s{sT1}")
    a.e(f"s_add_u32 s50, s50, s{sT0}"); a.e("s_addc_u32 s51, s51, 0")
    a.e("s_load_dwordx8 s[36:43], s[46:47], 0")
    a.e("s_load_dwordx8 s[52:59], s[46:47], 32")
    a.e(f"s_load_dword s{sD}, s[50:51], 0")
    a.e(f"v_lshlrev_b32 v{vT}, 4, v{vL}")
    for c in range(2):
        a.e(f"s_lshl_b32 s{sT0}, s{sW}, 1")
        a.e(f"s_add_u32 s{sT0}, s{sT0}, {c}")
        a.e(f"s_mul_i32 s{sT1}, s{sT0}, {HROW}")
        a.e(f"s_add_u32 m0, s{sT1}, {HBASE + 32}")
        a.e(f"s_lshl_b32 s{sT1}, s2, 3")
        a.e(f"s_add_u32 s{sT1}, s{sT1}, s{sT0}")
        a.e(f"s_lshl_b32 s{sT1}, s{sT1}, 12")
        for i in range(4):
            a.e(f"buffer_load_dwordx4 v{vT}, s[{S_H}:{S_H+3}], s{sT1} offen offset:{i*1024} lds")
    for i in range(8): a.e(f"buffer_load_dwordx4 {v(QR+4*i,4)}, v{vB if i < 4 else vCc}, s[{S_Q}:{S_Q+3}], 0 offen offset:{(i%4)*1152}")
    Z = 8
    for i in range(4): a.e(f"v_mov_b32 v{Z+i}, 0")
    a.e(f"v_lshrrev_b32 v{vT+1}, 5, v0")
    a.e(f"v_mul_u32_u24 v12, {UROW}, v{vT+1}")
    a.e("v_and_b32 v13, 31, v0")
    a.e("v_lshl_add_u32 v12, v13, 4, v12")
    a.e(f"ds_write_b128 v12, {v(Z,4)} offset:4096")
    a.e(f"v_mul_u32_u24 v12, {HROW}, v{vT+1}")
    a.e("v_and_b32 v13, 1, v0")
    a.e("v_lshl_add_u32 v12, v13, 4, v12")
    a.e(f"ds_write_b128 v12, {v(Z,4)} offset:{HBASE}")
    a.e("s_waitcnt lgkmcnt(0)")
    raw = list(range(36, 44)) + list(range(52, 60))
    for c in range(8):
        for hlf in range(2):
            sr = raw[2*c + hlf]
            a.e(f"s_lshl_b32 s{sT0}, s{sr}, 16")
            a.e(f"v_mov_b32 v{WK+4*c+2*hlf}, s{sT0}")
            a.e(f"s_and_b32 s{sT0}, s{sr}, 0xffff0000")
            a.e(f"v_mov_b32 v{WK+4*c+2*hlf+1}, s{sT0}")
    a.e("v_lshlrev_b32 v12, 4, v0")
    a.e("v_sub_u32 v12, 4080, v12")
    st.at(2)
    a.e("s_waitcnt vmcnt(16)")
    st.at(3)
    UK = 176; UV = 190; KV = 200; PK = 212
    for c in range(8):
        dw = c >> 1
        def unp(dst, src):
            return f"v_and_b32 v{dst}, 0xffff0000, v{src}" if c & 1 else f"v_lshlrev_b32 v{dst}, 16, v{src}"
        for i in range(11): a.e(unp(UK + i, KR + 4*i + dw))
        for i in range(8): a.e(unp(UV + i, VR + 4*i + dw))
        for i in range(8):
            a.e(f"v_mul_f32 v{KV+i}, v{UK+i}, v{WK+4*c+3}")
        for j in (2, 1, 0):
            for i in range(8):
                a.e(f"v_fmac_f32 v{KV+i}, v{UK+i+3-j}, v{WK+4*c+j}")
        for i in range(8): a.e(f"v_mul_f32 v{KV+i}, v{KV+i}, v{UV+i}")
        P = PK + 4 * (c & 1)
        for i in range(4): a.e(f"v_cvt_pk_bf16_f32 v{P+i}, v{KV+7-2*i}, v{KV+6-2*i}")
        a.e(f"ds_write_b128 v12, {v(P,4)} offset:{c*UROW}")
    a.e("s_waitcnt lgkmcnt(0) vmcnt(8)")
    a.e("s_barrier")
    st.at(4)
    vAa, vBa, vKa, vYa = 12, 13, 14, 15
    a.e(f"v_and_b32 v{vT}, 15, v{vL}")
    a.e(f"v_lshrrev_b32 v{vT+1}, 4, v{vL}")
    a.e(f"v_lshl_add_u32 v16, v{vT+1}, 3, v{vT}")
    a.e(f"v_lshlrev_b32 v16, 1, v16")
    a.e(f"v_add_u32 v16, {HBASE + 2}, v16")
    a.e(f"v_lshlrev_b32 v17, 5, v{vT}")
    a.e(f"v_lshlrev_b32 v18, 4, v{vT+1}")
    a.e(f"v_sub_u32 v19, v18, v17")
    a.e(f"v_add_u32 v19, {4064 - 3584}, v19")
    a.e(f"v_lshlrev_b32 v18, 3, v{vT+1}")
    a.e(f"v_add_u32 v20, v17, v18")
    a.e(f"v_sub_u32 v21, {4088 - 3584}, v20")
    a.e(f"v_add_u32 v20, {HBASE}, v20")
    AF = [144, 208]
    BUF = [144, 32]
    ACC = 208
    a.e(f"s_mov_b32 s{sCH}, 0")
    a.label(f"{name}_chloop")
    a.e(f"s_lshl_b32 s{sT0}, s{sW}, 1")
    a.e(f"s_add_u32 s{sT0}, s{sT0}, s{sCH}")
    a.e(f"s_mul_i32 s{sT1}, s{sT0}, {HROW}")
    a.e(f"s_mul_i32 s{sT2}, s{sT0}, {UROW}")
    a.e(f"v_add_u32 v{vAa}, s{sT1}, v16")
    a.e(f"v_add_u32 v{vBa}, s{sT2}, v19")
    a.e(f"v_add_u32 v{vKa}, s{sT2}, v21")
    a.e(f"v_add_u32 v{vYa}, s{sT1}, v20")
    def creads(buf, r):
        B = BUF[buf]; o = []
        for m in range(8):
            o.append(f"ds_read_b128 {v(B+4*m,4)}, v{vAa} offset:{512*m+64*r}")
            o.append(f"ds_read_b128 {v(B+32+4*m,4)}, v{vBa} offset:{512*(7-m)+64*r}")
        return o
    for x in creads(0, 0): a.e(x)
    for i in range(32): a.e(f"v_mov_b32 v{ACC+i}, 0")
    for r in range(8):
        B = BUF[r % 2]
        ms = []
        pairs = sorted([(m, j - m) for j in range(8) for m in range(j + 1)], key=lambda p: (max(p), p[0] + p[1]))
        for (m, n) in pairs:
            j = m + n
            ms.append(f"{MF} {v(ACC+4*j,4)}, {v(B+4*m,4)}, {v(B+32+4*n,4)}, {v(ACC+4*j,4)}")
        rd = creads((r + 1) % 2, r + 1) if r < 7 else [f"ds_read_b64 {v(240+2*j,2)}, v{vKa} offset:{512*(7-j)}" for j in range(8)]
        a.e("s_waitcnt lgkmcnt(0)")
        k = 0
        for n, m in enumerate(ms):
            a.e(m)
            if n % 2 == 0 and k < len(rd):
                a.e(rd[k]); k += 1
    a.e(f"s_lshl_b32 s{sT0}, s{sD}, 16")
    a.e(f"s_and_b32 s{sT1}, s{sD}, 0xffff0000")
    a.e(f"s_cmp_eq_u32 s{sCH}, 0")
    a.e(f"s_cselect_b32 s{sT0}, s{sT0}, s{sT1}")
    a.e("s_waitcnt lgkmcnt(0)")
    a.e("s_nop 3")
    for j in range(8):
        a.e(f"v_and_b32 v24, 0xffff0000, v{241+2*j}")
        a.e(f"v_lshlrev_b32 v25, 16, v{241+2*j}")
        a.e(f"v_and_b32 v26, 0xffff0000, v{240+2*j}")
        a.e(f"v_lshlrev_b32 v27, 16, v{240+2*j}")
        for rr in range(4): a.e(f"v_fmac_f32 v{ACC+4*j+rr}, s{sT0}, v{24+rr}")
        Pq = 28 + 2 * (j & 1)
        a.e(f"v_cvt_pk_bf16_f32 v{Pq}, v{ACC+4*j}, v{ACC+4*j+1}")
        a.e(f"v_cvt_pk_bf16_f32 v{Pq+1}, v{ACC+4*j+2}, v{ACC+4*j+3}")
        a.e(f"ds_write_b64 v{vYa}, {v(Pq,2)} offset:{512*j}")
    a.e(f"s_add_u32 s{sCH}, s{sCH}, 1")
    a.e(f"s_cmp_lt_u32 s{sCH}, 2")
    a.e(f"s_cbranch_scc1 {name}_chloop")
    a.e("s_waitcnt lgkmcnt(0) vmcnt(0)")
    a.e("s_barrier")
    st.at(5)
    a.e("v_lshlrev_b32 v12, 4, v0")
    a.e(f"v_add_u32 v12, {HBASE}, v12")
    YR = 32
    for c in range(8): a.e(f"ds_read_b128 {v(YR+4*c,4)}, v12 offset:{c*HROW}")
    a.e(f"v_mul_u32_u24 v13, {8*2304}, v0")
    a.e(f"s_lshl_b32 s{sT0}, s2, 4")
    a.e(f"v_add_u32 v13, s{sT0}, v13")
    a.e("s_waitcnt lgkmcnt(0)")
    for i in range(8):
        OP = 176 + 4 * (i % 4)
        for d in range(4):
            for hlf in range(2):
                c = 2 * d + hlf
                ysrc = YR + 4 * c + (i >> 1)
                a.e(f"v_and_b32 v{64+hlf}, 0xffff0000, v{ysrc}" if i & 1 else f"v_lshlrev_b32 v{64+hlf}, 16, v{ysrc}")
                a.e(f"v_and_b32 v{66+hlf}, 0xffff0000, v{QR+4*i+d}" if hlf else f"v_lshlrev_b32 v{66+hlf}, 16, v{QR+4*i+d}")
                a.e(f"v_mul_f32 v{64+hlf}, v{64+hlf}, v{66+hlf}")
            a.e(f"v_cvt_pk_bf16_f32 v{OP+d}, v64, v65")
        a.e(f"s_mov_b32 s{sT1}, {i*2304}")
        a.e(f"buffer_store_dwordx4 {v(OP,4)}, v13, s[{S_OUT}:{S_OUT+3}], s{sT1} offen")
    st.at(6)
    if diag: a.e("s_waitcnt vmcnt(0)")
    st.at(7); st.at(8, True)
    st.dump(6, sW)
    a.label(f"{name}_end")
    a.e("s_endpgm")
    kernel_desc(a, name, 256, 102 if diag else 64)
```

```python
import sys
from asmlib import *
import k1, k2, k3
HDR = open("concat_heads__ssm_conv_h3__compressed_kv_cla__prompt.s.ref").read().split("; Override launch")[0]
def build(launches, gens, path):
    a = Asm()
    a.raw(HDR.rstrip("\n"))
    for (k, g, b, l) in launches:
        a.raw(f"; @launch kernel={k} grid=({g},1,1) block=({b},1,1) lds={l}")
    a.raw('.amdgcn_target "amdgcn-amd-amdhsa--gfx950"')
    for g in gens: g(a)
    t = a.text()
    lint(t)
    open(path, "w").write(t)
L1 = ("k1_kernel", 256, 512, 163840)
L2 = ("k2_kernel", 256, 512, 163840)
L3 = ("k3_kernel", 256 + k3.NCONV, 256, k3.K3_LDS)
FINAL = "concat_heads__ssm_conv_h3__compressed_kv_cla__prompt.s"
if __name__ == "__main__":
    build([L1, L2, L3], [k1.gen_k1, k2.gen_k2, k3.gen_k3], "all.s")
    build([L1, L2, L3], [lambda a: k1.gen_k1(a, diag=True), lambda a: k2.gen_k2(a, diag=True), lambda a: k3.gen_k3(a, diag=True)], "alldiag.s")
    import shutil; shutil.copy("all.s", FINAL)
```

```python
import re

def v(a, n=1):
    return f"v{a}" if n == 1 else f"v[{a}:{a+n-1}]"
def s(a, n=1):
    return f"s{a}" if n == 1 else f"s[{a}:{a+n-1}]"

class Asm:
    def __init__(self):
        self.lines = []
        self._uid = 0
    def e(self, txt):
        for l in txt.strip("\n").split("\n"):
            l = l.strip()
            if l:
                self.lines.append("    " + l)
    def c(self, txt):
        self.lines.append("    ; " + txt)
    def label(self, name):
        self.lines.append(name + ":")
    def raw(self, txt):
        self.lines.append(txt)
    def uid(self, p="L"):
        self._uid += 1
        return f"{p}_{self._uid}"
    def text(self):
        return "\n".join(self.lines) + "\n"

def srd(a, d, base_lo, nbytes):
    a.e(f"s_mov_b32 s{d}, s{base_lo}")
    a.e(f"s_and_b32 s{d+1}, s{base_lo+1}, 0xffff")
    a.e(f"s_mov_b32 s{d+2}, {nbytes}")
    a.e(f"s_mov_b32 s{d+3}, 0x20000")

def kernel_begin(a, name):
    a.raw(".text")
    a.raw(f".globl {name}")
    a.raw(".p2align 8")
    a.raw(f".type {name},@function")
    a.label(name)

def kernel_desc(a, name, vgpr, sgpr=102):
    acc = (vgpr + 3) // 4 * 4
    a.raw('.section .rodata,"a"')
    a.raw(".p2align 6")
    a.raw(f".amdhsa_kernel {name}")
    a.raw(f"  .amdhsa_next_free_vgpr {vgpr}")
    a.raw(f"  .amdhsa_next_free_sgpr {sgpr}")
    a.raw(f"  .amdhsa_accum_offset {acc}")
    a.raw("  .amdhsa_group_segment_fixed_size 0")
    a.raw("  .amdhsa_kernarg_size 120")
    a.raw("  .amdhsa_user_sgpr_count 2")
    a.raw("  .amdhsa_user_sgpr_kernarg_segment_ptr 1")
    a.raw("  .amdhsa_system_sgpr_workgroup_id_x 1")
    a.raw(".end_amdhsa_kernel")

_REG = re.compile(r"^(-|abs\()?\|?([vsa])(\d+|\[(\d+):(\d+)\])\)?\|?$")
def regs_of(tok):
    tok = tok.strip()
    if tok in ("vcc", "vcc_lo", "vcc_hi"):
        return {("s", 106), ("s", 107)} if tok == "vcc" else {("s", 106 if tok == "vcc_lo" else 107)}
    if tok in ("exec", "exec_lo", "exec_hi"):
        return {("s", 126), ("s", 127)}
    if tok == "m0":
        return {("s", 124)}
    m = _REG.match(tok)
    if not m:
        return set()
    k = m.group(2)
    if m.group(4) is not None:
        return {(k, i) for i in range(int(m.group(4)), int(m.group(5)) + 1)}
    return {(k, int(m.group(3)))}

TRANS = ("v_exp_f32", "v_log_f32", "v_rcp_f32", "v_rsq_f32", "v_sqrt_f32", "v_sin_f32", "v_cos_f32", "v_rcp_iflag_f32")

class I:
    pass

def parse(line):
    t = line.split(";")[0].strip()
    if not t or t.startswith("."):
        return None
    ins = I()
    ins.text = t
    if t.endswith(":"):
        ins.kind = "label"; ins.name = t[:-1]
        return ins
    parts = t.split(None, 1)
    mn = parts[0]
    ops = []
    if len(parts) > 1:
        cur = ""; depth = 0
        for ch in parts[1]:
            if ch == "[": depth += 1
            if ch == "]": depth -= 1
            if ch == "," and depth == 0:
                ops.append(cur.strip()); cur = ""
            else:
                cur += ch
        ops.append(cur.strip())
    mods = []
    if ops:
        sp = ops[-1].split()
        if len(sp) > 1 and not ops[-1].startswith("vmcnt") and not ops[-1].startswith("lgkmcnt"):
            ops[-1] = sp[0]; mods = sp[1:]
    base = mn.replace("_e32", "").replace("_e64", "")
    ins.mn = base; ins.ops = ops; ins.mods = mods
    ins.w = set(); ins.r = set()
    ins.ws = 1
    R = [regs_of(o) for o in ops]
    if base == "s_nop":
        ins.kind = "nop"; ins.ws = int(ops[0], 0) + 1
    elif base.startswith("v_mfma"):
        ins.kind = "mfma"
        ins.w = R[0]; ins.A = R[1]; ins.B = R[2]; ins.C = R[3]
        ins.r = R[1] | R[2] | R[3]
        ins.passes = 8 if "32x32" in base else 4
    elif base.startswith("v_"):
        ins.kind = "valu"
        if base.startswith("v_cmp"):
            ins.w = R[0]; ins.r = set().union(*R[1:])
            if base.startswith("v_cmpx"): ins.w |= regs_of("exec")
        elif base in ("v_readfirstlane_b32", "v_readlane_b32"):
            ins.w = R[0]; ins.r = set().union(*R[1:])
        elif base.startswith("v_permlane32_swap") or base.startswith("v_permlane16_swap") or base.startswith("v_swap"):
            ins.w = R[0] | R[1]; ins.r = R[0] | R[1]
        elif base in ("v_add_co_u32", "v_sub_co_u32", "v_addc_co_u32", "v_subb_co_u32", "v_mad_u64_u32"):
            ins.w = R[0] | R[1]; ins.r = set().union(*R[2:])
        else:
            ins.w = R[0]; ins.r = set().union(*R[1:]) if len(R) > 1 else set()
            if base.startswith("v_fmac") or base.startswith("v_dot2c") or base == "v_writelane_b32":
                ins.r |= R[0]
            if base == "v_cndmask_b32" and len(ops) == 3:
                ins.r |= regs_of("vcc")
        ins.trans = base in TRANS
        ins.dpp = any(m.startswith("row_") or m.startswith("quad_perm") or m.startswith("wave_") for m in mods)
    elif base.startswith("ds_"):
        ins.kind = "ds"
        if base.startswith("ds_read") or base.startswith("ds_bpermute") or base.startswith("ds_permute") or base.startswith("ds_swizzle") or "_rtn" in base:
            ins.w = R[0]; ins.r = set().union(*R[1:])
        else:
            ins.r = set().union(*R)
    elif base.startswith("buffer_") or base.startswith("global_"):
        ins.kind = "vmem"
        ins.lds = "lds" in mods or "_lds_" in base
        if "_load" in base and not ins.lds:
            ins.w = R[0]; ins.r = set().union(*R[1:])
        elif base in ("buffer_inv", "buffer_wbl2"):
            pass
        else:
            ins.r = set().union(*R) if R else set()
        ins.wide_store = ("_store_dwordx4" in base or "_store_dwordx3" in base)
        if ins.wide_store:
            ins.data = R[0] if base.startswith("buffer_") else R[1]
        if ins.lds: ins.r |= regs_of("m0")
    elif base in ("s_branch",) or base.startswith("s_cbranch"):
        ins.kind = "branch"; ins.target = ops[0]; ins.uncond = base == "s_branch"
    elif base == "s_endpgm":
        ins.kind = "end"
    elif base.startswith("s_"):
        ins.kind = "salu"
        if base.startswith("s_cmp") or base in ("s_waitcnt", "s_barrier", "s_setprio", "s_sleep"):
            ins.r = set().union(*R) if R else set()
        else:
            ins.w = R[0] if R else set(); ins.r = set().union(*R[1:]) if len(R) > 1 else set()
    else:
        raise ValueError("unknown instr: " + t)
    return ins

def lint(text, verbose=True):
    ins = [x for x in (parse(l) for l in text.split("\n")) if x is not None]
    labels = {x.name: i for i, x in enumerate(ins) if x.kind == "label"}
    problems = []
    def succ(i):
        x = ins[i]
        if x.kind == "end": return []
        if x.kind == "branch":
            t = [labels[x.target]] if x.target in labels else []
            return t if x.uncond else t + [i + 1]
        return [i + 1] if i + 1 < len(ins) else []
    def vs(S): return {r for r in S if r[0] in "va"}
    def ss(S): return {r for r in S if r[0] == "s"}
    def need(p, c):
        n = 0
        if p.kind == "valu":
            pw = vs(p.w); sw = ss(p.w)
            if c.kind == "mfma" and pw & c.r: n = max(n, 2)
            if c.kind == "valu":
                if (c.mn.startswith("v_permlane") or c.dpp) and pw & c.r: n = max(n, 2)
                if c.mn in ("v_readfirstlane_b32", "v_readlane_b32") and pw & c.r: n = max(n, 1)
                if p.trans and not c.trans and pw & c.r: n = max(n, 1)
                if sw & c.r: n = max(n, 4 if c.mn in ("v_readlane_b32", "v_writelane_b32") else 2)
                if regs_of("exec") & sw and c.dpp: n = max(n, 5)
                if regs_of("exec") & sw and (c.mn.startswith("v_permlane") or c.mn.startswith("v_read")): n = max(n, 4)
            if c.kind == "mfma" and regs_of("exec") & sw: n = max(n, 4)
            if c.kind == "vmem" and sw & c.r: n = max(n, 5)
        if p.kind == "mfma":
            big = 12 if p.passes == 8 else 8
            if c.kind == "mfma":
                if p.w & (c.A | c.B): n = max(n, big)
                if p.w & c.C and not (p.w == c.C and p.passes == c.passes): n = max(n, big - 2)
                if p.w & c.w and not (p.w & c.C): n = max(n, big)
            if c.kind in ("valu", "vmem", "ds") and p.w & (c.r | c.w): n = max(n, big)
            if c.kind == "valu" and p.C & c.w: n = max(n, 7 if p.passes == 8 else 3)
        if p.kind == "salu" and regs_of("m0") & p.w and c.kind == "vmem" and c.lds: n = max(n, 1)
        if p.kind == "vmem" and getattr(p, "wide_store", False):
            if c.kind == "valu" and p.data & c.w: n = max(n, 2)
            elif c.kind in ("ds", "vmem", "mfma") and p.data & c.w: n = max(n, 1)
        return n
    for i, p in enumerate(ins):
        if p.kind in ("label", "nop", "branch", "end"): continue
        if p.kind == "salu" and not (regs_of("m0") & p.w): continue
        if p.kind == "ds": continue
        if p.kind == "vmem" and not getattr(p, "wide_store", False): continue
        stack = [(j, 0) for j in succ(i)]
        seen = set()
        while stack:
            j, d = stack.pop()
            if (j, d) in seen or d >= 12: continue
            seen.add((j, d))
            c = ins[j]
            if c.kind == "label":
                for k in succ(j): stack.append((k, d))
                continue
            if c.kind not in ("nop", "branch", "end"):
                n = need(p, c)
                if n > d:
                    problems.append(f"hazard: need {n} have {d}: [{i}] {p.text}  ->  [{j}] {c.text}")
            for k in succ(j): stack.append((k, d + c.ws))
    problems = sorted(set(problems))
    if verbose:
        for p in problems[:50]: print(p)
        print(f"lint: {len(ins)} instrs, {len(problems)} hazards")
    return problems


STAMP_BASE = 64
WS_STAMP = 128 << 20
class Stamps:
    def __init__(self, a, on, kidx=0, base=64):
        self.a = a; self.on = on; self.n = 0; self.kidx = kidx; self.base = base
    def stamp(self, real=False):
        if not self.on: return
        r = self.base + 2 * self.n; self.n += 1
        self.a.e(f"{'s_memrealtime' if real else 's_memtime'} s[{r}:{r+1}]")
    def at(self, i, real=False):
        if not self.on: return
        import os
        if os.environ.get("ALLREAL"): real = True
        r = self.base + 2 * i; self.n = max(self.n, i + 1)
        self.a.e(f"{'s_memrealtime' if real else 's_memtime'} s[{r}:{r+1}]")
    def dump(self, ws_lo, swave, nmax=16):
        if not self.on: return
        a = self.a
        a.e("s_waitcnt lgkmcnt(0) vmcnt(0)")
        a.e(f"s_add_u32 s8, s{ws_lo}, {WS_STAMP + self.kidx * (1 << 20)}")
        a.e(f"s_addc_u32 s9, s{ws_lo+1}, 0")
        a.e("s_and_b32 s9, s9, 0xffff")
        a.e("s_mov_b32 s10, 1048576")
        a.e("s_mov_b32 s11, 0x20000")
        a.e("s_lshl_b32 s12, s2, 3")
        a.e(f"s_add_u32 s12, s12, s{swave}")
        a.e("s_lshl_b32 s12, s12, 6")
        a.e("v_mov_b32 v0, 0")
        for i in range(self.n):
            a.e(f"v_mov_b32 v1, s{self.base + 2*i}")
            a.e(f"buffer_store_dword v1, v0, s[8:11], s12 offen offset:{4*i}")
        a.e("s_waitcnt vmcnt(0)")
```

```python
from asmlib import *

WS_KV = 0
WS_CTX = 32 << 20
WS_WOF = 48 << 20
WS_KVB = 56 << 20
WS_QB = 60 << 20
MF = "v_mfma_f32_16x16x32_bf16"

def interleave(ms, fill, lead=0):
    out = []
    n = len(ms) - lead; k = 0
    for i, m in enumerate(ms):
        out.append(m)
        if i < lead: continue
        tgt = (len(fill) * (i - lead + 1) + n - 1) // n
        while k < min(tgt, len(fill)):
            out.append(fill[k]); k += 1
    return out

def wg_decode(a, sH, sRT, sT0, sT1):
    a.e(f"s_and_b32 s{sT0}, s2, 7")
    a.e(f"s_lshl_b32 s{sT0}, s{sT0}, 2")
    a.e(f"s_lshr_b32 s{sT1}, s2, 3")
    a.e(f"s_and_b32 s{sT1}, s{sT1}, 3")
    a.e(f"s_add_u32 s{sH}, s{sT0}, s{sT1}")
    a.e(f"s_lshr_b32 s{sRT}, s2, 5")

def act_dma_offsets(a, vD, vL, vT, srow, stride):
    a.e(f"v_lshrrev_b32 v{vT}, 3, v{vL}")
    a.e(f"v_add_u32 v{vT}, s{srow}, v{vT}")
    a.e(f"v_mul_u32_u24 v{vT}, {stride}, v{vT}")
    a.e(f"v_and_b32 v{vT+1}, 7, v{vL}")
    a.e(f"v_lshrrev_b32 v{vT+2}, 4, v{vL}")
    a.e(f"v_xor_b32 v{vT+3}, v{vT+1}, v{vT+2}")
    a.e(f"v_xor_b32 v{vT+4}, 4, v{vT+3}")
    for i in range(4):
        src = vT + 3 if i % 2 == 0 else vT + 4
        a.e(f"v_lshl_add_u32 v{vD+i}, v{src}, 4, v{vT}")
        if i:
            a.e(f"v_add_u32 v{vD+i}, {i*(8*stride-1024)}, v{vD+i}")

def w_dma_offsets(a, vD, vL, vT, skrow, scol, idxs):
    a.e(f"v_lshrrev_b32 v{vT+2}, 4, v{vL}")
    a.e(f"v_add_u32 v{vT}, s{skrow}, v{vT+2}")
    a.e(f"v_lshlrev_b32 v{vT}, 13, v{vT}")
    a.e(f"v_add_u32 v{vT}, s{scol}, v{vT}")
    a.e(f"v_and_b32 v{vT+1}, 15, v{vL}")
    a.e(f"v_lshlrev_b32 v{vT+3}, 1, v{vT+2}")
    a.e(f"v_xor_b32 v{vT+1}, v{vT+1}, v{vT+3}")
    a.e(f"v_xor_b32 v{vT+3}, 8, v{vT+1}")
    for n, (i, hi) in enumerate(idxs):
        src = vT + 3 if hi else vT + 1
        a.e(f"v_lshl_add_u32 v{vD+n}, v{src}, 4, v{vT}")
        if i:
            a.e(f"v_add_u32 v{vD+n}, {i*4*8192 - n*1024}, v{vD+n}")

def act_read_addr(a, vR, vL, vT, sbase):
    a.e(f"v_and_b32 v{vT}, 15, v{vL}")
    a.e(f"v_lshrrev_b32 v{vT+1}, 4, v{vL}")
    a.e(f"v_bfe_u32 v{vT+2}, v{vL}, 1, 3")
    a.e(f"v_xor_b32 v{vT+2}, v{vT+2}, v{vT+1}")
    a.e(f"v_lshlrev_b32 v{vT}, 7, v{vT}")
    a.e(f"v_add_u32 v{vT}, s{sbase}, v{vT}")
    a.e(f"v_lshl_add_u32 v{vR}, v{vT+2}, 4, v{vT}")
    a.e(f"v_xor_b32 v{vT+2}, 4, v{vT+2}")
    a.e(f"v_lshl_add_u32 v{vR+1}, v{vT+2}, 4, v{vT}")

def w_read_addr(a, vR, vL, vT, sbase, sdt0, sT):
    a.e(f"v_bfe_u32 v{vT}, v{vL}, 2, 2")
    a.e(f"v_lshrrev_b32 v{vT+1}, 4, v{vL}")
    a.e(f"v_lshl_add_u32 v{vT+2}, v{vT+1}, 3, v{vT}")
    a.e(f"v_lshlrev_b32 v{vT+2}, 8, v{vT+2}")
    a.e(f"v_and_b32 v{vT+3}, 3, v{vL}")
    a.e(f"v_lshl_add_u32 v{vT+2}, v{vT+3}, 3, v{vT+2}")
    a.e(f"v_add_u32 v{vT+2}, s{sbase}, v{vT+2}")
    a.e(f"v_and_b32 v{vT+1}, 1, v{vT+1}")
    a.e(f"v_lshl_or_b32 v{vT}, v{vT+1}, 2, v{vT}")
    for d in range(4):
        a.e(f"s_add_u32 s{sT}, s{sdt0}, {d}")
        a.e(f"v_xor_b32 v{vT+1}, s{sT}, v{vT}")
        a.e(f"v_lshl_add_u32 v{vR+d}, v{vT+1}, 5, v{vT+2}")

def gen_k1(a, name="k1_kernel", diag=False):
    kernel_begin(a, name)
    st = Stamps(a, diag, 0, 84)
    S_C, S_W, S_O = 8, 12, 16
    sW, sH, sRT = 20, 21, 22
    sKC, sKW = 23, 24
    sM0C, sM0W = 25, 26
    sIT = 27
    sT0, sT1, sT2 = 28, 29, 30
    vL = 1; vDC = 2; vDW = 6; vRC = 10; vRW = 12; vST = 16; vT = 17
    CF = 32
    WA, WB = 48, 64
    ACC = 128
    A1BASE = 60 if not diag else 60
    a.e("s_cmp_ge_u32 s2, 256")
    a.e(f"s_cbranch_scc1 {name}_end")
    st.at(0); st.at(1, True)
    a.e("s_load_dwordx2 s[4:5], s[0:1], 56")
    a.e("s_load_dwordx4 s[32:35], s[0:1], 72")
    a.e("s_load_dwordx2 s[6:7], s[0:1], 112")
    a.e("s_load_dwordx2 s[38:39], s[0:1], 88")
    a.e("s_load_dwordx8 s[48:55], s[0:1], 0")
    a.e(f"v_lshrrev_b32 v{vT}, 6, v0")
    a.e(f"v_and_b32 v{vL}, 63, v0")
    a.e(f"v_readfirstlane_b32 s{sW}, v{vT}")
    wg_decode(a, sH, sRT, sT0, sT1)
    a.e(f"s_lshl_b32 s{sT0}, s{sRT}, 8")
    a.e(f"s_lshl_b32 s{sT1}, s{sW}, 5")
    a.e(f"s_add_u32 s{sT0}, s{sT0}, s{sT1}")
    act_dma_offsets(a, vDC, vL, vT, sT0, 1024)
    a.e(f"s_and_b32 s{sT0}, s{sW}, 3")
    a.e(f"s_lshl_b32 s{sT0}, s{sT0}, 4")
    a.e(f"s_lshl_b32 s{sT1}, s{sH}, 8")
    w_dma_offsets(a, vDW, vL, vT, sT0, sT1, [(0, 0), (1, 0), (2, 1), (3, 1)])
    a.e(f"s_lshl_b32 s{sM0C}, s{sW}, 12")
    a.e(f"s_add_u32 s{sM0W}, s{sM0C}, 32768")
    a.e(f"s_mov_b32 s{sKC}, 0")
    a.e(f"s_mov_b32 s{sKW}, 0")
    a.e("s_waitcnt lgkmcnt(0)")
    srd(a, S_C, 4, 2048 * 1024)
    a.e(f"s_cmp_lt_u32 s{sW}, 4")
    a.e("s_cselect_b32 s36, s32, s34")
    a.e("s_cselect_b32 s37, s33, s35")
    srd(a, S_W, 36, 512 * 8192)
    srd(a, S_O, 6, 32 << 20)
    def dma_c(i):
        return f"buffer_load_dwordx4 v{vDC+i}, s[{S_C}:{S_C+3}], s{sKC} offen offset:{i*1024} lds"
    def dma_w(i):
        return f"buffer_load_dwordx4 v{vDW+i}, s[{S_W}:{S_W+3}], s{sKW} offen offset:{i*1024} lds"
    def dma_adv():
        return [f"s_add_u32 s{sKC}, s{sKC}, 128", f"s_add_u32 s{sKW}, s{sKW}, {64*8192}",
                f"s_xor_b32 s{sM0C}, s{sM0C}, 0x10000", f"s_xor_b32 s{sM0W}, s{sM0W}, 0x10000"]
    def dma_stage():
        return ([f"s_mov_b32 m0, s{sM0C}", "s_nop 0"] + [dma_c(i) for i in range(4)] +
                [f"s_mov_b32 m0, s{sM0W}", "s_nop 0"] + [dma_w(i) for i in range(4)] + dma_adv())
    for x in dma_stage(): a.e(x)
    import k3
    S_WO, S_WF = 40, 44
    srd(a, S_WO, 38, 4096 * 1152)
    a.e(f"s_add_u32 s38, s6, {WS_WOF}"); a.e("s_addc_u32 s39, s7, 0")
    srd(a, S_WF, 38, 8 * 128 * 4608)
    k3.gen_wof(a, sW, vL, 131072, 2, (sT0, sT1, sT2), 22, S_WO, S_WF, 0)
    A1S = k3.a1_srds(a, A1BASE, 6, 48)
    sRB, sScr = 56, 57
    a.e(f"s_and_b32 s{sRB}, s2, 7"); a.e(f"s_lshl_b32 s{sRB}, s{sRB}, 5")
    a.e(f"s_lshr_b32 s{sT0}, s2, 3"); a.e(f"s_add_u32 s{sRB}, s{sRB}, s{sT0}")
    a.e(f"s_lshl_b32 s{sScr}, s{sW}, 10"); a.e(f"s_add_u32 s{sScr}, s{sScr}, {131072 + 18432}")
    k3.gen_a1(a, 0, vL, 32, 68, sRB, sW, sScr, (sT0, sT1, sT2), A1S)
    sC8, sScr2 = 58, 59
    a.e(f"s_mov_b32 s{sC8}, 8"); a.e(f"s_mov_b32 s{sScr2}, {131072 + 18432 + 8192}")
    a.e(f"s_cmp_lg_u32 s{sW}, 7"); a.e(f"s_cbranch_scc1 {name}_a1x0")
    k3.gen_a1(a, 0, vL, 92, 68, sRB, sC8, sScr2, (sT0, sT1, sT2), A1S)
    a.label(f"{name}_a1x0")
    a.e(f"s_and_b32 s{sT0}, s{sW}, 1")
    a.e(f"s_lshl_b32 s{sT0}, s{sT0}, 14")
    act_read_addr(a, vRC, vL, vT, sT0)
    a.e(f"s_lshr_b32 s{sT0}, s{sW}, 2")
    a.e(f"s_lshl_b32 s{sT0}, s{sT0}, 14")
    a.e(f"s_add_u32 s{sT0}, s{sT0}, 32768")
    a.e(f"s_and_b32 s{sT1}, s{sW}, 2")
    a.e(f"s_lshl_b32 s{sT1}, s{sT1}, 1")
    w_read_addr(a, vRW, vL, vT, sT0, sT1, sT2)
    a.e(f"s_lshl_b32 s{sT0}, s{sH}, 20")
    a.e(f"s_lshl_b32 s{sT1}, s{sRT}, 17")
    a.e(f"s_add_u32 s{sT0}, s{sT0}, s{sT1}")
    a.e(f"s_and_b32 s{sT1}, s{sW}, 1")
    a.e(f"s_lshl_b32 s{sT1}, s{sT1}, 16")
    a.e(f"s_add_u32 s{sT0}, s{sT0}, s{sT1}")
    a.e(f"v_lshlrev_b32 v{vST}, 4, v{vL}")
    a.e(f"v_add_u32 v{vST}, s{sT0}, v{vST}")
    for i in range(128):
        a.e(f"v_mov_b32 v{ACC+i}, 0")
    for x in dma_stage(): a.e(x)

    def rd_w(W, ks2):
        r = []
        for d in range(4):
            r.append(f"ds_read_b64_tr_b16 {v(W+4*d,2)}, v{vRW+d} offset:{ks2*8192}")
            r.append(f"ds_read_b64_tr_b16 {v(W+4*d+2,2)}, v{vRW+d} offset:{ks2*8192+1024}")
        return r
    def rd_c(t, ks2):
        return f"ds_read_b128 {v(CF+4*(t%4),4)}, v{vRC+ks2} offset:{t*2048}"
    def mf(W, t, d, isK):
        acc = v(ACC + (t*4+d)*4, 4); cf = v(CF+4*(t%4), 4); wf = v(W+4*d, 4)
        return f"{MF} {acc}, {wf}, {cf}, {acc}" if isK else f"{MF} {acc}, {cf}, {wf}, {acc}"

    st.at(2)
    a.e("s_waitcnt vmcnt(8)")
    a.e("s_barrier")
    st.at(3)
    if diag: a.e("s_waitcnt lgkmcnt(0)")
    k3.gen_wof(a, sW, vL, 131072, 2, (sT0, sT1, sT2), 22, S_WO, S_WF, 1)
    k3.gen_a1(a, 1, vL, 32, 68, sRB, sW, sScr, (sT0, sT1, sT2), A1S)
    a.e(f"s_cmp_lg_u32 s{sW}, 7"); a.e(f"s_cbranch_scc1 {name}_a1x1")
    k3.gen_a1(a, 1, vL, 92, 68, sRB, sC8, sScr2, (sT0, sT1, sT2), A1S)
    a.label(f"{name}_a1x1")
    a.e("s_nop 1")
    for x in rd_w(WA, 0): a.e(x)
    for t in range(3): a.e(rd_c(t, 0))
    a.e(f"s_mov_b32 s{sIT}, 0")
    a.e(f"s_cmp_lt_u32 s{sW}, 4")
    a.e(f"s_cbranch_scc0 {name}_vloop")
    for isK in (True, False):
        tag = "k" if isK else "v"
        a.label(f"{name}_{tag}loop")
        wn = rd_w(WB, 1)
        for t in range(8):
            a.e(f"s_waitcnt lgkmcnt({[2,4,6,6,6,4,2,2][t]})")
            ms = [mf(WA, t, d, isK) for d in range(4)]
            nt = t + 3
            a.e(ms[0])
            if t < 4: a.e(wn[2*t])
            a.e(ms[1]); a.e(ms[2])
            if t < 4: a.e(wn[2*t+1])
            a.e(ms[3])
            a.e(rd_c(nt % 8, 0 if nt < 8 else 1))
        for t in range(5):
            a.e("s_waitcnt lgkmcnt(2)")
            for d in range(4): a.e(mf(WB, t, d, isK))
            a.e(rd_c(t + 3, 1))
        a.e("s_waitcnt lgkmcnt(2)")
        for d in range(4): a.e(mf(WB, 5, d, isK))
        a.e("s_waitcnt lgkmcnt(0) vmcnt(0)")
        a.e("s_barrier")
        for r in [vRC, vRC+1, vRW, vRW+1, vRW+2, vRW+3]:
            a.e(f"v_xor_b32 v{r}, 0x10000, v{r}")
        wn = rd_w(WA, 0)
        ms = [mf(WB, 6, d, isK) for d in range(4)]
        for d in range(4):
            a.e(ms[d]); a.e(wn[2*d]); a.e(wn[2*d+1])
        a.e(rd_c(0, 0)); a.e(rd_c(1, 0))
        lab = a.uid(f"{name}_nodma")
        a.e(f"s_cmp_ge_u32 s{sIT}, 6")
        a.e(f"s_cbranch_scc1 {lab}")
        for x in dma_stage(): a.e(x)
        a.label(lab)
        for d in range(4): a.e(mf(WB, 7, d, isK))
        a.e(rd_c(2, 0))
        a.e(f"s_add_u32 s{sIT}, s{sIT}, 1")
        a.e(f"s_cmp_lt_u32 s{sIT}, 8")
        a.e(f"s_cbranch_scc1 {name}_{tag}loop")
        st.at(4)
        a.e("s_waitcnt lgkmcnt(0)")
        a.e(f"s_and_b32 s{sT1}, s{sW}, 2")
        if isK:
            a.e(f"s_lshl_b32 s{sT0}, s{sT1}, 10")
        else:
            a.e(f"s_lshl_b32 s{sT0}, s{sT1}, 11")
            a.e(f"s_add_u32 s{sT0}, s{sT0}, 16384")
        a.e("s_nop 7")
        k = 0
        def pack(P, t0, t1):
            a.e(f"v_cvt_pk_bf16_f32 v{P}, v{t0}, v{t0+1}")
            a.e(f"v_cvt_pk_bf16_f32 v{P+1}, v{t0+2}, v{t0+3}")
            a.e(f"v_cvt_pk_bf16_f32 v{P+2}, v{t1}, v{t1+1}")
            a.e(f"v_cvt_pk_bf16_f32 v{P+3}, v{t1+2}, v{t1+3}")
        for n in range(16):
            P = 32 + (k % 8) * 4; k += 1
            if isK:
                t = n >> 1; x = n & 1
                pack(P, ACC + (t*4 + 2*x)*4, ACC + (t*4 + 2*x + 1)*4)
                off = (t >> 2) * 32768 + (t & 3) * 4096 + x * 1024
            else:
                y = n >> 2; d = n & 3
                pack(P, ACC + (2*y*4 + d)*4, ACC + ((2*y+1)*4 + d)*4)
                off = (y >> 1) * 32768 + (y & 1) * 8192 + d * 1024
            a.e(f"s_add_u32 s{sT1}, s{sT0}, {off}")
            a.e(f"buffer_store_dwordx4 {v(P,4)}, v{vST}, s[{S_O}:{S_O+3}], s{sT1} offen")
        st.at(5)
        if diag: a.e("s_waitcnt vmcnt(0)")
        st.at(6); st.at(7, True)
        st.dump(6, sW)
        a.e("s_endpgm")
    a.label(f"{name}_end")
    a.e("s_endpgm")
    kernel_desc(a, name, 256, 102)
```

```python
from asmlib import *
from k1 import MF, WS_CTX, WS_WOF, WS_KVB, WS_QB

NCONV = 144
EOFF = 4608; OOFF = EOFF + 4160; CROW = OOFF + 4160
K3_LDS = 61440

def gen_a1(a, part, vL, V, VT, sRB, sCX, sScr, tS, srds):
    S_Q, S_K, S_V, S_SK, S_U, S_QT = srds
    t0, t1, t2 = tS
    KR = V; VR = V + 16; WR = V + 20; A = VT; T = VT + 8
    if part == 0:
        a.e(f"v_lshrrev_b32 v{T}, 3, v{vL}")
        a.e(f"s_lshl_b32 s{t0}, s{sRB}, 3")
        a.e(f"v_add_u32 v{T}, s{t0}, v{T}")
        a.e(f"v_mul_u32_u24 v{T}, 1152, v{T}")
        a.e(f"v_and_b32 v{T+1}, 7, v{vL}")
        a.e(f"v_lshl_add_u32 v{T}, v{T+1}, 4, v{T}")
        a.e(f"s_lshl_b32 s{t0}, s{sCX}, 7")
        a.e(f"v_add_u32 v{T}, s{t0}, v{T}")
        for j in range(1, 4): a.e(f"v_add_u32 v{T+1+j}, {(-1152*j) & 0xffffffff}, v{T}")
        a.e(f"v_lshlrev_b32 v{T+1}, 6, v{T+1}")
        a.e(f"s_lshl_b32 s{t0}, s{sCX}, 9")
        a.e(f"s_mov_b32 m0, s{sScr}")
        a.e(f"buffer_load_dwordx4 {v(KR,4)}, v{T}, s[{S_K}:{S_K+3}], 0 offen")
        a.e(f"buffer_load_dwordx4 v{T}, s[{S_Q}:{S_Q+3}], 0 offen lds")
        for j in range(1, 4): a.e(f"buffer_load_dwordx4 {v(KR+4*j,4)}, v{T+1+j}, s[{S_K}:{S_K+3}], 0 offen")
        a.e(f"buffer_load_dwordx4 {v(VR,4)}, v{T}, s[{S_V}:{S_V+3}], 0 offen")
        for j in range(4): a.e(f"buffer_load_dwordx4 {v(WR+4*j,4)}, v{T+1}, s[{S_SK}:{S_SK+3}], s{t0} offen offset:{16*j}")
    else:
        a.e(f"v_bfe_u32 v{T}, v{vL}, 2, 2")
        a.e(f"v_lshrrev_b32 v{T+1}, 4, v{vL}")
        a.e(f"v_lshlrev_b32 v{T+1}, 5, v{T+1}")
        a.e(f"v_and_b32 v{T+2}, 3, v{vL}")
        a.e(f"v_lshl_add_u32 v{T+1}, v{T+2}, 3, v{T+1}")
        a.e(f"v_add_u32 v{T+1}, s{sScr}, v{T+1}")
        a.e(f"v_lshl_add_u32 v{T+2}, v{T}, 7, v{T+1}")
        a.e(f"ds_read_b64_tr_b16 {v(T+4,2)}, v{T+2}")
        a.e(f"ds_read_b64_tr_b16 {v(T+6,2)}, v{T+2} offset:512")
        a.e(f"v_sub_u32 v{T}, 3, v{T}")
        a.e(f"v_lshl_add_u32 v{T+2}, v{T}, 7, v{T+1}")
        a.e(f"v_lshlrev_b32 v{T+1}, 4, v{vL}")
        a.e(f"v_add_u32 v{T+1}, s{sScr}, v{T+1}")
        a.e(f"v_lshlrev_b32 v{T+3}, 12, v{vL}")
        a.e(f"s_mov_b32 s{t0}, 0x05040100")
        a.e(f"s_mov_b32 s{t1}, 0x07060302")
        for c in range(8):
            d = c >> 1; sel = t1 if c & 1 else t0
            a.e(f"v_perm_b32 v{T+8}, v{KR+4+d}, v{KR+d}, s{sel}")
            a.e(f"v_perm_b32 v{T+9}, v{KR+12+d}, v{KR+8+d}, s{sel}")
            a.e(f"v_dot2_f32_bf16 v{A+c}, v{T+8}, v{WR+2*c}, 0")
            a.e(f"v_and_b32 v{T+8}, 0xffff0000, v{VR+d}" if c & 1 else f"v_lshlrev_b32 v{T+8}, 16, v{VR+d}")
            a.e("s_nop 0")
            a.e(f"v_dot2_f32_bf16 v{A+c}, v{T+9}, v{WR+2*c+1}, v{A+c}")
            a.e("s_nop 2")
            a.e(f"v_mul_f32 v{A+c}, v{A+c}, v{T+8}")
        for d in range(4): a.e(f"v_cvt_pk_bf16_f32 v{KR+d}, v{A+2*d}, v{A+2*d+1}")
        a.e(f"s_lshl_b32 s{t0}, s{sCX}, 18")
        a.e(f"s_lshl_b32 s{t1}, s{sRB}, 4")
        a.e(f"s_add_u32 s{t2}, s{t0}, s{t1}")
        a.e("s_waitcnt lgkmcnt(0)")
        a.e(f"buffer_store_dwordx4 {v(T+4,4)}, v{T+3}, s[{S_QT}:{S_QT+3}], s{t2} offen")
        a.e(f"ds_write_b128 v{T+1}, {v(KR,4)}")
        a.e(f"s_sub_u32 s{t1}, 4080, s{t1}")
        a.e(f"s_add_u32 s{t2}, s{t0}, s{t1}")
        a.e("s_waitcnt lgkmcnt(0)")
        a.e(f"ds_read_b64_tr_b16 {v(KR+4,2)}, v{T+2} offset:512")
        a.e(f"ds_read_b64_tr_b16 {v(KR+6,2)}, v{T+2}")
        a.e("s_waitcnt lgkmcnt(0)")
        a.e(f"buffer_store_dwordx4 {v(KR+4,4)}, v{T+3}, s[{S_U}:{S_U+3}], s{t2} offen")

def a1_srds(a, base, ws_lo, tmp):
    srd(a, base, tmp, 2048 * 1152); srd(a, base + 4, tmp + 2, 2048 * 1152); srd(a, base + 8, tmp + 4, 2048 * 1152)
    srd(a, base + 12, tmp + 6, 576 * 8)
    a.e(f"s_add_u32 s{tmp}, s{ws_lo}, {WS_KVB}"); a.e(f"s_addc_u32 s{tmp+1}, s{ws_lo+1}, 0")
    srd(a, base + 16, tmp, 576 * 4096)
    a.e(f"s_add_u32 s{tmp}, s{ws_lo}, {WS_QB}"); a.e(f"s_addc_u32 s{tmp+1}, s{ws_lo+1}, 0")
    srd(a, base + 20, tmp, 576 * 4096)
    return tuple(base + 4 * i for i in range(6))

def gen_wof(a, sW, vL, lds_base, sB, tmpS, tmpV, S_WO, S_WF, part):
    t0, t1, t2 = tmpS
    V = tmpV
    if part == 0:
        a.e(f"s_lshr_b32 s{t0}, s{sB}, 1")
        a.e(f"s_mul_i32 s{t0}, s{t0}, {32*1152}")
        a.e(f"s_and_b32 s{t1}, s{sB}, 1")
        a.e(f"s_mul_i32 s{t1}, s{t1}, 576")
        a.e(f"s_add_u32 s{t0}, s{t0}, s{t1}")
        a.e(f"s_lshl_b32 s{t1}, s{sW}, 6")
        for n in range(3):
            a.e(f"v_add_u32 v{V}, s{t1}, v{vL}")
            if n: a.e(f"v_add_u32 v{V}, {512*n}, v{V}")
            a.e(f"v_mul_u32_u24 v{V+1}, 1821, v{V}")
            a.e(f"v_lshrrev_b32 v{V+1}, 16, v{V+1}")
            a.e(f"v_mul_u32_u24 v{V+2}, 36, v{V+1}")
            a.e(f"v_sub_u32 v{V+2}, v{V}, v{V+2}")
            a.e(f"v_mul_u32_u24 v{V+1}, 1152, v{V+1}")
            a.e(f"v_lshl_add_u32 v{V+3+n}, v{V+2}, 4, v{V+1}")
        for n in (2, 0, 1):
            if n == 2:
                lab = a.uid("wof_d3")
                a.e(f"s_cmp_ge_u32 s{sW}, 2")
                a.e(f"s_cbranch_scc1 {lab}")
            a.e(f"s_lshl_b32 s{t1}, s{sW}, 10")
            a.e(f"s_add_u32 m0, s{t1}, {lds_base + n*8192}")
            a.e("s_nop 0")
            a.e(f"buffer_load_dwordx4 v{V+3+n}, s[{S_WO}:{S_WO+3}], s{t0} offen lds")
            if n == 2: a.label(lab)
    else:
        a.e(f"v_lshrrev_b32 v{V}, 2, v{vL}")
        a.e(f"v_mul_u32_u24 v{V}, 576, v{V}")
        a.e(f"v_and_b32 v{V+1}, 3, v{vL}")
        a.e(f"v_lshl_add_u32 v{V}, v{V+1}, 3, v{V}")
        a.e(f"v_lshlrev_b32 v{V+1}, 4, v{vL}")
        a.e(f"v_lshrrev_b32 v{V+2}, 4, v{vL}")
        a.e(f"v_and_b32 v{V+3}, 15, v{vL}")
        a.e(f"v_lshl_add_u32 v{V+2}, v{V+2}, 3, v{V+3}")
        a.e(f"v_lshlrev_b32 v{V+2}, 4, v{V+2}")
        a.e(f"v_cmp_gt_u32 vcc, 8, v{V+3}")
        a.e(f"v_mov_b32 v{V+3}, 0x7ff00000")
        a.e("s_nop 0")
        a.e(f"v_cndmask_b32 v{V+2}, v{V+3}, v{V+2}, vcc")
        for n in range(3):
            lab = a.uid("wof_skip")
            a.e(f"s_add_u32 s{t0}, s{sW}, {8*n}")
            if n == 2:
                a.e(f"s_cmp_ge_u32 s{t0}, 20")
                a.e(f"s_cbranch_scc1 {lab}")
            a.e(f"s_mul_i32 s{t1}, s{t0}, 52")
            a.e(f"s_lshr_b32 s{t1}, s{t1}, 8")
            a.e(f"s_mul_i32 s{t2}, s{t1}, 5")
            a.e(f"s_sub_u32 s{t0}, s{t0}, s{t2}")
            a.e(f"s_mul_i32 s{t2}, s{t1}, 144")
            a.e(f"s_lshl_b32 vcc_lo, s{t0}, 5")
            a.e(f"s_add_u32 s{t2}, s{t2}, vcc_lo")
            a.e(f"s_add_u32 s{t2}, s{t2}, {lds_base}")
            a.e(f"v_add_u32 v{V+4}, s{t2}, v{V}")
            a.e(f"ds_read_b64_tr_b16 {v(V+6,2)}, v{V+4}")
            a.e(f"ds_read_b64_tr_b16 {v(V+8,2)}, v{V+4} offset:{16*576}")
            a.e(f"s_and_b32 s{t2}, s{sB}, 1")
            a.e(f"s_lshl_b32 s{t2}, s{t2}, 2")
            a.e(f"s_add_u32 s{t1}, s{t1}, s{t2}")
            a.e(f"s_lshl_b32 s{t1}, s{t1}, 7")
            a.e(f"s_lshr_b32 s{t2}, s{sB}, 1")
            a.e(f"s_add_u32 s{t1}, s{t1}, s{t2}")
            a.e(f"s_mul_i32 s{t1}, s{t1}, 4608")
            a.e(f"s_lshl_b32 s{t2}, s{t0}, 10")
            a.e(f"s_add_u32 s{t1}, s{t1}, s{t2}")
            a.e(f"s_cmp_eq_u32 s{t0}, 4")
            a.e("s_cselect_b64 vcc, -1, 0")
            a.e(f"v_cndmask_b32 v{V+5}, v{V+1}, v{V+2}, vcc")
            a.e("s_waitcnt lgkmcnt(0)")
            a.e(f"buffer_store_dwordx4 {v(V+6,4)}, v{V+5}, s[{S_WF}:{S_WF+3}], s{t1} offen")
            a.e("s_nop 1")
            a.label(lab)

def gen_k3(a, name="k3_kernel", diag=False, kidx=2):
    kernel_begin(a, name)
    st = Stamps(a, diag, kidx)
    sW = 24; sT0, sT1, sT2 = 25, 26, 27
    vL = 1; vT = 2
    a.e(f"s_cmp_ge_u32 s2, {256 + NCONV}")
    a.e(f"s_cbranch_scc1 {name}_end")
    st.at(0); st.at(1, True)
    a.e("s_load_dwordx2 s[6:7], s[0:1], 112")
    a.e("s_load_dwordx2 s[4:5], s[0:1], 96")
    a.e(f"v_lshrrev_b32 v{vT}, 6, v0")
    a.e(f"v_and_b32 v{vL}, 63, v0")
    a.e(f"v_readfirstlane_b32 s{sW}, v{vT}")
    a.e(f"s_cmp_lt_u32 s2, {NCONV}")
    a.e(f"s_cbranch_scc1 {name}_conv")
    S_CT, S_WF, S_OUT = 8, 12, 16
    sMT, sNT, sKC, sKW, sIT = 28, 29, 30, 31, 32
    vC = 4
    vWf = 8; vWh = 9; vO = 10; vRed = 11
    ACC = 176; STG = 32
    a.e(f"s_sub_u32 s{sT0}, s2, {NCONV}")
    a.e(f"s_and_b32 s{sMT}, s{sT0}, 7")
    a.e(f"s_lshl_b32 s{sMT}, s{sMT}, 2")
    a.e(f"s_lshr_b32 s{sT1}, s{sT0}, 3")
    a.e(f"s_and_b32 s{sT1}, s{sT1}, 3")
    a.e(f"s_add_u32 s{sMT}, s{sMT}, s{sT1}")
    a.e(f"s_lshr_b32 s{sNT}, s{sT0}, 5")
    a.e(f"v_lshlrev_b32 v{vWf}, 4, v{vL}")
    for i in range(4):
        a.e(f"v_add_u32 v{vC+i}, {i*131072}, v{vWf}")
    a.e(f"v_lshrrev_b32 v{vT}, 4, v{vL}")
    a.e(f"v_and_b32 v{vT+1}, 7, v{vL}")
    a.e(f"v_lshl_add_u32 v{vWh}, v{vT}, 3, v{vT+1}")
    a.e(f"v_lshlrev_b32 v{vWh}, 4, v{vWh}")
    a.e(f"v_add_u32 v{vWh}, 4096, v{vWh}")
    a.e(f"s_lshl_b32 s{sKC}, s{sMT}, 19")
    a.e(f"s_lshl_b32 s{sT0}, s{sW}, 15")
    a.e(f"s_add_u32 s{sKC}, s{sKC}, s{sT0}")
    a.e(f"s_lshl_b32 s{sKW}, s{sNT}, 7")
    a.e(f"s_lshl_b32 s{sT0}, s{sW}, 5")
    a.e(f"s_add_u32 s{sKW}, s{sKW}, s{sT0}")
    a.e(f"s_mul_i32 s{sKW}, s{sKW}, 4608")
    a.e("s_waitcnt lgkmcnt(0)")
    a.e(f"s_add_u32 s20, s6, {WS_CTX}"); a.e("s_addc_u32 s21, s7, 0")
    srd(a, S_CT, 20, 16 << 20)
    a.e(f"s_add_u32 s20, s6, {WS_WOF}"); a.e("s_addc_u32 s21, s7, 0")
    srd(a, S_WF, 20, 8 * 128 * 4608)
    srd(a, S_OUT, 4, 2048 * 2304)
    def loads(sg):
        B = STG + 36 * sg
        r = []
        for j in range(4):
            r.append(f"buffer_load_dwordx4 {v(B+16+4*j,4)}, v{vWf}, s[{S_WF}:{S_WF+3}], s{sKW} offen offset:{j*1024}")
        r.append(f"buffer_load_dwordx4 {v(B+32,4)}, v{vWh}, s[{S_WF}:{S_WF+3}], s{sKW} offen")
        for i in range(4):
            r.append(f"buffer_load_dwordx4 {v(B+4*i,4)}, v{vC+i}, s[{S_CT}:{S_CT+3}], s{sKC} offen")
        r.append(f"s_add_u32 s{sKC}, s{sKC}, 1024")
        r.append(f"s_add_u32 s{sKW}, s{sKW}, 4608")
        return r
    for sg in range(3):
        for x in loads(sg): a.e(x)
    for i in range(80): a.e(f"v_mov_b32 v{ACC+i}, 0")
    a.e(f"s_mov_b32 s{sIT}, 0")
    st.at(2)
    a.label(f"{name}_oloop")
    for sg in range(4):
        B = STG + 36 * sg
        ld = loads((sg + 3) % 4)
        ms = [f"{MF} {v(ACC+(i*5+j)*4,4)}, {v(B+16+4*j,4)}, {v(B+4*i,4)}, {v(ACC+(i*5+j)*4,4)}" for i in range(4) for j in range(5)]
        a.e("s_waitcnt vmcnt(18)")
        k = 0
        for n, m in enumerate(ms):
            a.e(m)
            if n % 2 == 0 and k < len(ld):
                a.e(ld[k]); k += 1
        while k < len(ld):
            a.e(ld[k]); k += 1
    a.e(f"s_add_u32 s{sIT}, s{sIT}, 1")
    a.e(f"s_cmp_lt_u32 s{sIT}, 8")
    a.e(f"s_cbranch_scc1 {name}_oloop")
    st.at(3)
    a.e(f"v_lshlrev_b32 v{vRed}, 4, v{vL}")
    a.e("s_nop 4")
    for i in range(4):
        lab = a.uid(f"{name}_own")
        a.e(f"s_sub_u32 s{sT0}, s{sW}, {i+1}")
        a.e(f"s_and_b32 s{sT0}, s{sT0}, 3")
        a.e(f"s_cmp_eq_u32 s{sT0}, 3")
        a.e(f"s_cbranch_scc1 {lab}")
        a.e(f"s_mul_i32 s{sT0}, s{sT0}, 5120")
        a.e(f"s_add_u32 s{sT0}, s{sT0}, {i*15360}")
        a.e(f"v_add_u32 v{vT}, s{sT0}, v{vRed}")
        for j in range(5):
            a.e(f"ds_write_b128 v{vT}, {v(ACC+(i*5+j)*4,4)} offset:{j*1024}")
        a.label(lab)
    a.e("s_waitcnt vmcnt(0)")
    for i in range(4):
        lab = a.uid(f"{name}_mv")
        a.e(f"s_cmp_lg_u32 s{sW}, {i}")
        a.e(f"s_cbranch_scc1 {lab}")
        for r in range(20): a.e(f"v_mov_b32 v{32+r}, v{ACC+i*20+r}")
        a.label(lab)
    a.e(f"s_mul_i32 s{sT0}, s{sW}, 15360")
    a.e(f"v_add_u32 v{vT}, s{sT0}, v{vRed}")
    a.e(f"s_lshl_b32 s{sT0}, s{sMT}, 6")
    a.e(f"s_lshl_b32 s{sT1}, s{sW}, 4")
    a.e(f"s_add_u32 s{sT0}, s{sT0}, s{sT1}")
    a.e(f"v_and_b32 v{vO}, 15, v{vL}")
    a.e(f"v_add_u32 v{vO}, s{sT0}, v{vO}")
    a.e(f"v_mul_u32_u24 v{vO}, 2304, v{vO}")
    a.e(f"v_lshrrev_b32 v{vT+1}, 4, v{vL}")
    a.e(f"v_lshl_add_u32 v{vO}, v{vT+1}, 3, v{vO}")
    a.e(f"s_mul_i32 s{sT0}, s{sNT}, 144")
    a.e(f"s_add_u32 s{sT0}, s{sT0}, 1152")
    a.e(f"v_cmp_gt_u32 vcc, 32, v{vL}")
    a.e(f"v_mov_b32 v{vT+1}, 0x7ff00000")
    a.e("s_waitcnt lgkmcnt(0)")
    a.e("s_barrier")
    a.e(f"v_cndmask_b32 v{vRed}, v{vT+1}, v{vO}, vcc")
    for sl in range(3):
        for j in range(5):
            a.e(f"ds_read_b128 {v(64+(sl*5+j)*4,4)}, v{vT} offset:{sl*5120+j*1024}")
    for j in range(5):
        a.e(f"s_waitcnt lgkmcnt({4-j})")
        for r in range(4):
            a.e(f"v_add_f32 v{32+4*j+r}, v{32+4*j+r}, v{64+4*j+r}")
            a.e(f"v_add_f32 v{84+4*j+r}, v{84+4*j+r}, v{104+4*j+r}")
        for r in range(4):
            a.e(f"v_add_f32 v{32+4*j+r}, v{32+4*j+r}, v{84+4*j+r}")
        a.e(f"v_cvt_pk_bf16_f32 v{128+2*j}, v{32+4*j}, v{33+4*j}")
        a.e(f"v_cvt_pk_bf16_f32 v{129+2*j}, v{34+4*j}, v{35+4*j}")
        a.e(f"buffer_store_dwordx2 {v(128+2*j,2)}, v{vO if j < 4 else vRed}, s[{S_OUT}:{S_OUT+3}], s{sT0} offen offset:{32*j}")
    st.at(4)
    if diag: a.e("s_waitcnt vmcnt(0)")
    st.at(5); st.at(6, True)
    st.dump(6, sW)
    a.e("s_endpgm")

    a.label(f"{name}_conv")
    S_U, S_QT, S_H, S_OUT = 8, 12, 16, 20
    sCG, sCH, sD, sH0, sLB = 28, 29, 30, 31, 32
    a.e("s_load_dwordx4 s[40:43], s[0:1], 32")
    a.e("s_and_b32 s28, s2, 7")
    a.e("s_mul_i32 s28, s28, 18")
    a.e(f"s_lshr_b32 s{sT0}, s2, 3")
    a.e(f"s_add_u32 s{sCG}, s28, s{sT0}")
    a.e(f"s_lshl_b32 s{sCH}, s{sCG}, 2")
    a.e(f"s_add_u32 s{sCH}, s{sCH}, s{sW}")
    a.e(f"s_mul_i32 s{sLB}, s{sW}, {CROW}")
    a.e(f"s_lshl_b32 s{sT2}, s{sCH}, 12")
    v16 = 4
    a.e(f"v_lshlrev_b32 v{v16}, 4, v{vL}")
    a.e("s_waitcnt lgkmcnt(0)")
    a.e(f"s_add_u32 s36, s6, {WS_KVB}"); a.e("s_addc_u32 s37, s7, 0")
    srd(a, S_U, 36, 576 * 4096)
    a.e(f"s_add_u32 s36, s6, {WS_QB}"); a.e("s_addc_u32 s37, s7, 0")
    srd(a, S_QT, 36, 576 * 4096)
    srd(a, S_H, 40, 576 * 4096)
    srd(a, S_OUT, 4, 2048 * 2304)
    a.e(f"s_add_u32 m0, s{sLB}, {EOFF + 32}")
    a.e(f"s_add_u32 s{sT1}, s{sT2}, 2")
    for i in range(4): a.e(f"buffer_load_dwordx4 v{v16}, s[{S_H}:{S_H+3}], s{sT2} offen offset:{i*1024} lds")
    a.e(f"s_add_u32 m0, s{sLB}, {OOFF + 32}")
    a.e("s_nop 0")
    for i in range(4): a.e(f"buffer_load_dwordx4 v{v16}, s[{S_H}:{S_H+3}], s{sT1} offen offset:{i*1024} lds")
    a.e(f"s_mov_b32 m0, s{sLB}")
    a.e("s_nop 0")
    for i in range(4): a.e(f"buffer_load_dwordx4 v{v16}, s[{S_U}:{S_U+3}], s{sT2} offen offset:{i*1024} lds")
    a.e(f"s_add_u32 s40, s40, s{sT2}"); a.e("s_addc_u32 s41, s41, 0")
    a.e(f"s_lshr_b32 s{sT0}, s{sCH}, 1"); a.e(f"s_lshl_b32 s{sT0}, s{sT0}, 2")
    a.e(f"s_add_u32 s42, s42, s{sT0}"); a.e("s_addc_u32 s43, s43, 0")
    a.e(f"s_load_dword s{sH0}, s[40:41], 0")
    a.e(f"s_load_dword s{sD}, s[42:43], 0")
    vAa, vBa, vKa, vYa, vQo = 8, 12, 13, 14, 15
    a.e(f"v_and_b32 v{vT}, 15, v{vL}")
    a.e(f"v_lshrrev_b32 v{vT+1}, 4, v{vL}")
    a.e(f"v_lshl_add_u32 v16, v{vT+1}, 3, v{vT}")
    a.e("v_add_u32 v16, 1, v16")
    a.e("v_and_b32 v17, 1, v16")
    a.e("v_and_b32 v16, 0xfe, v16")
    a.e("v_lshlrev_b32 v16, 1, v16")
    a.e(f"v_mul_u32_u24 v17, {OOFF - EOFF}, v17")
    a.e(f"s_add_u32 s{sT0}, s{sLB}, {EOFF}")
    a.e(f"v_add3_u32 v{vAa}, v16, v17, s{sT0}")
    for i in range(1, 4): a.e(f"v_add_u32 v{vAa+i}, {1024*i}, v{vAa}")
    a.e(f"v_lshlrev_b32 v17, 5, v{vT}")
    a.e(f"v_lshlrev_b32 v18, 4, v{vT+1}")
    a.e("v_sub_u32 v19, v18, v17")
    a.e(f"s_add_u32 s{sT1}, s{sLB}, {4064 - 3584}")
    a.e(f"v_add_u32 v{vBa}, s{sT1}, v19")
    a.e(f"v_lshlrev_b32 v18, 3, v{vT+1}")
    a.e(f"v_add_u32 v{vQo}, v17, v18")
    a.e(f"s_add_u32 s{sT1}, s{sLB}, {4088 - 3584}")
    a.e(f"v_sub_u32 v{vKa}, s{sT1}, v{vQo}")
    a.e(f"v_add_u32 v{vYa}, s{sT0}, v{vQo}")
    QR = 224; KVR = 240; ACC = 192
    BUF = [64, 128]
    for j in range(8):
        a.e(f"buffer_load_dwordx2 {v(QR+2*j,2)}, v{vQo}, s[{S_QT}:{S_QT+3}], s{sT2} offen offset:{512*j}")
    for i in range(4): a.e(f"v_mov_b32 v{20+i}, 0")
    a.e(f"v_and_b32 v16, 31, v{vL}")
    a.e(f"v_lshlrev_b32 v16, 4, v16")
    a.e(f"v_add_u32 v16, s{sLB}, v16")
    a.e(f"ds_write_b128 v16, {v(20,4)} offset:4096")
    a.e(f"v_and_b32 v16, 7, v{vL}")
    a.e(f"v_cmp_eq_u32 vcc, 7, v16")
    a.e(f"v_lshlrev_b32 v16, 2, v16")
    a.e(f"v_add_u32 v16, s{sT0}, v16")
    a.e("ds_write_b32 v16, v20")
    for i in range(32): a.e(f"v_mov_b32 v{ACC+i}, 0")
    a.e("s_waitcnt lgkmcnt(0)")
    a.e(f"s_lshl_b32 s{sH0}, s{sH0}, 16")
    a.e(f"v_mov_b32 v17, s{sH0}")
    a.e("v_cndmask_b32 v17, v20, v17, vcc")
    a.e(f"ds_write_b32 v16, v17 offset:{OOFF - EOFF}")
    a.e(f"s_lshl_b32 s{sT0}, s{sD}, 16")
    a.e(f"s_and_b32 s{sT1}, s{sD}, 0xffff0000")
    a.e(f"s_bitcmp0_b32 s{sCH}, 0")
    a.e(f"s_cselect_b32 s{sD}, s{sT0}, s{sT1}")
    st.at(2)
    a.e("s_waitcnt vmcnt(8) lgkmcnt(0)")
    st.at(3)
    if diag: a.e("s_waitcnt lgkmcnt(0)")
    def creads(buf, r):
        B = BUF[buf]; o = []
        for m in range(8):
            d0 = (512 * (m & 1) + 64 * r) // 4
            o.append(f"ds_read2_b32 {v(B+4*m,2)}, v{vAa+(m>>1)} offset0:{d0} offset1:{d0+1}")
            o.append(f"ds_read2_b32 {v(B+4*m+2,2)}, v{vAa+(m>>1)} offset0:{d0+2} offset1:{d0+3}")
            o.append(f"ds_read_b128 {v(B+32+4*m,4)}, v{vBa} offset:{512*(7-m)+64*r}")
        return o
    for x in creads(0, 0): a.e(x)
    for r in range(8):
        B = BUF[r % 2]
        pairs = sorted([(m, j - m) for j in range(8) for m in range(j + 1)], key=lambda p: (max(p), p[0] + p[1]))
        ms = [f"{MF} {v(ACC+4*(m+n),4)}, {v(B+4*m,4)}, {v(B+32+4*n,4)}, {v(ACC+4*(m+n),4)}" for (m, n) in pairs]
        rd = creads((r + 1) % 2, r + 1) if r < 7 else [f"ds_read_b64 {v(KVR+2*j,2)}, v{vKa} offset:{512*(7-j)}" for j in range(8)]
        a.e("s_waitcnt lgkmcnt(0)")
        k_ = 0
        for n, m in enumerate(ms):
            a.e(m)
            if k_ < len(rd):
                a.e(rd[k_]); k_ += 1
    st.at(4)
    a.e("s_waitcnt lgkmcnt(0) vmcnt(0)")
    a.e("s_nop 3")
    for j in range(8):
        a.e(f"v_and_b32 v24, 0xffff0000, v{KVR+1+2*j}")
        a.e(f"v_lshlrev_b32 v25, 16, v{KVR+1+2*j}")
        a.e(f"v_and_b32 v26, 0xffff0000, v{KVR+2*j}")
        a.e(f"v_lshlrev_b32 v27, 16, v{KVR+2*j}")
        for rr in range(4): a.e(f"v_fmac_f32 v{ACC+4*j+rr}, s{sD}, v{24+rr}")
        a.e(f"v_lshlrev_b32 v24, 16, v{QR+2*j}")
        a.e(f"v_and_b32 v25, 0xffff0000, v{QR+2*j}")
        a.e(f"v_lshlrev_b32 v26, 16, v{QR+2*j+1}")
        a.e(f"v_and_b32 v27, 0xffff0000, v{QR+2*j+1}")
        for rr in range(4): a.e(f"v_mul_f32 v{ACC+4*j+rr}, v{ACC+4*j+rr}, v{24+rr}")
        Pq = 28 + 2 * (j & 1)
        a.e(f"v_cvt_pk_bf16_f32 v{Pq}, v{ACC+4*j}, v{ACC+4*j+1}")
        a.e(f"v_cvt_pk_bf16_f32 v{Pq+1}, v{ACC+4*j+2}, v{ACC+4*j+3}")
        a.e(f"ds_write_b64 v{vYa}, {v(Pq,2)} offset:{512*j}")
    a.e(f"v_bfe_u32 v16, v{vL}, 2, 2")
    a.e(f"v_mul_u32_u24 v16, {CROW}, v16")
    a.e(f"v_lshrrev_b32 v17, 4, v{vL}")
    a.e("v_lshl_add_u32 v16, v17, 5, v16")
    a.e(f"v_and_b32 v17, 3, v{vL}")
    a.e("v_lshl_add_u32 v16, v17, 3, v16")
    a.e(f"s_lshl_b32 s{sT0}, s{sW}, 10")
    a.e(f"s_add_u32 s{sT0}, s{sT0}, {EOFF}")
    a.e(f"v_add_u32 v16, s{sT0}, v16")
    a.e(f"s_lshl_b32 s{sT0}, s{sW}, 9")
    a.e(f"v_add_u32 v17, s{sT0}, v{vL}")
    a.e("v_mul_u32_u24 v17, 2304, v17")
    a.e(f"s_lshl_b32 s{sT0}, s{sCG}, 3")
    a.e("s_waitcnt lgkmcnt(0)")
    a.e("s_barrier")
    st.at(5)
    for i in range(8): a.e(f"ds_read_b64_tr_b16 {v(32+2*i,2)}, v16 offset:{128*i}")
    for i in range(8):
        a.e(f"s_waitcnt lgkmcnt({7-i})")
        a.e(f"buffer_store_dwordx2 {v(32+2*i,2)}, v17, s[{S_OUT}:{S_OUT+3}], s{sT0} offen")
        a.e(f"s_add_u32 s{sT0}, s{sT0}, {64*2304}")
    st.at(6)
    if diag: a.e("s_waitcnt vmcnt(0)")
    st.at(7); st.at(8, True)
    st.dump(6, sW)
    a.label(f"{name}_end")
    a.e("s_endpgm")
    kernel_desc(a, name, 256, 102 if diag else 64)
```

```python
import sys
from asmlib import *
import k1, k2, k3, ka
HDR = open("concat_heads__ssm_conv_h3__compressed_kv_cla__prompt.s.ref").read().split("; Override launch")[0]
def build(launches, gens, path):
    a = Asm()
    a.raw(HDR.rstrip("\n"))
    for (k, g, b, l) in launches:
        a.raw(f"; @launch kernel={k} grid=({g},1,1) block=({b},1,1) lds={l}")
    a.raw('.amdgcn_target "amdgcn-amd-amdhsa--gfx950"')
    for g in gens: g(a)
    t = a.text()
    lint(t)
    open(path, "w").write(t)
LA = ("ka_kernel", 256, 512, 163840)
L3 = ("k3_kernel", 256 + k3.NCONV, 256, k3.K3_LDS)
FINAL = "concat_heads__ssm_conv_h3__compressed_kv_cla__prompt.s"
if __name__ == "__main__":
    build([LA], [ka.gen_ka], "all.s")
    build([LA], [lambda a: ka.gen_ka(a, diag=True)], "alldiag.s")
    import shutil; shutil.copy("all.s", FINAL)
```

```python
from asmlib import *
from k1 import MF, WS_KV, WS_CTX, wg_decode, act_dma_offsets, act_read_addr, w_read_addr

QSCALE = 0x3e0293ee
NEG = 0xf149f2ca
TTHR = 0x41800000

def gen_k2(a, name="k2_kernel", diag=False, X=()):
    kernel_begin(a, name)
    st = Stamps(a, diag, 1)
    S_X, S_WQ, S_KV, S_CT = 8, 12, 16, 20
    sW, sH, sP = 24, 25, 26
    sG, sWL = 27, 28
    sI = 29
    sN = 30
    sKoff, sVoff = 31, 32
    sKt, sVt = 33, 34
    sM0K, sM0V = 35, 36
    sTA = 37
    sBase = 38
    sTile = 39
    sT0, sT1, sT2 = 40, 41, 42
    sKX, sKW = 43, 44
    sTH = 45
    sMSK = 46
    sRET = 54
    vL = 1; vDMA = 2; vKR = 3; vVR = 4; vTHR = 5; vNEG = 6; vMX = 7
    vL16 = 8
    vT = 10
    vDX = 26; vDW = 30; vRX = 32; vRW = 34
    vLS = 40; vM = 42
    FR = 72; NB = 8
    C = 104; P = 112; S = 128; Q = 160; O = 192
    XS = [0, 131072, 65536]; WSL = [32768, 49152, 98304]
    KRING = 0; VRING = 65536; QA_OFF = 98304; QB_OFF = 131072

    a.e("s_cmp_ge_u32 s2, 256")
    a.e(f"s_cbranch_scc1 {name}_end")
    st.at(0); st.at(1, True)
    a.e("s_load_dwordx2 s[4:5], s[0:1], 48")
    a.e("s_load_dwordx2 s[56:57], s[0:1], 64")
    a.e("s_load_dwordx2 s[6:7], s[0:1], 112")
    a.e(f"v_lshrrev_b32 v{vT}, 6, v0")
    a.e(f"v_and_b32 v{vL}, 63, v0")
    a.e(f"v_readfirstlane_b32 s{sW}, v{vT}")
    wg_decode(a, sH, sP, sT0, sT1)
    a.e(f"s_lshr_b32 s{sG}, s{sW}, 2")
    a.e(f"s_and_b32 s{sWL}, s{sW}, 3")
    a.e(f"s_sub_u32 s{sT0}, 15, s{sP}")
    a.e(f"s_cmp_eq_u32 s{sG}, 0")
    a.e(f"s_cselect_b32 s{sT0}, s{sT0}, s{sP}")
    a.e(f"s_lshl_b32 s{sT0}, s{sT0}, 7")
    a.e(f"s_lshl_b32 s{sT1}, s{sWL}, 5")
    a.e(f"s_add_u32 s{sT0}, s{sT0}, s{sT1}")
    act_dma_offsets(a, vDX, vL, vT, sT0, 1152)
    a.e(f"v_lshrrev_b32 v{vT+2}, 4, v{vL}")
    a.e(f"s_lshl_b32 s{sT0}, s{sW}, 3")
    a.e(f"v_add_u32 v{vT}, s{sT0}, v{vT+2}")
    a.e(f"v_lshlrev_b32 v{vT}, 13, v{vT}")
    a.e(f"s_lshl_b32 s{sT1}, s{sH}, 8")
    a.e(f"v_add_u32 v{vT}, s{sT1}, v{vT}")
    a.e(f"v_and_b32 v{vT+1}, 15, v{vL}")
    a.e(f"v_lshlrev_b32 v{vT+3}, 1, v{vT+2}")
    a.e(f"v_xor_b32 v{vT+1}, v{vT+1}, v{vT+3}")
    a.e(f"s_and_b32 s{sT0}, s{sW}, 1")
    a.e(f"s_lshl_b32 s{sT0}, s{sT0}, 3")
    a.e(f"v_xor_b32 v{vT+1}, s{sT0}, v{vT+1}")
    a.e(f"v_lshl_add_u32 v{vDW}, v{vT+1}, 4, v{vT}")
    a.e(f"v_add_u32 v{vDW+1}, {4*8192-1024}, v{vDW}")
    a.e("s_waitcnt lgkmcnt(0)")
    srd(a, S_X, 4, 2048 * 1152)
    srd(a, S_WQ, 56, 576 * 8192)
    srd(a, S_KV, 6, 32 << 20)
    a.e(f"s_add_u32 s58, s6, {WS_CTX}")
    a.e("s_addc_u32 s59, s7, 0")
    srd(a, S_CT, 58, 16 << 20)

    def qdma(stage):
        sl = stage % 3
        r = [f"s_lshl_b32 s{sT0}, s{sW}, 12", f"s_add_u32 m0, s{sT0}, {XS[sl]}", f"s_mov_b32 s{sKX}, {stage*128}"]
        r += [f"buffer_load_dwordx4 v{vDX+i}, s[{S_X}:{S_X+3}], s{sKX} offen offset:{i*1024} lds" for i in range(4)]
        r += [f"s_lshl_b32 s{sT0}, s{sW}, 11", f"s_add_u32 m0, s{sT0}, {WSL[sl]}", f"s_mov_b32 s{sKW}, {stage*64*8192}"]
        r += [f"buffer_load_dwordx4 v{vDW+i}, s[{S_WQ}:{S_WQ+3}], s{sKW} offen offset:{i*1024} lds" for i in range(2)]
        return r
    for x in qdma(0): a.e(x)
    a.e(f"s_lshr_b32 s{sT0}, s{sW}, 1")
    a.e(f"s_lshl_b32 s{sT0}, s{sT0}, 13")
    act_read_addr(a, vRX, vL, vT, sT0)
    a.e(f"s_mov_b32 s{sT0}, {WSL[0]}")
    a.e(f"s_and_b32 s{sT1}, s{sW}, 1")
    a.e(f"s_lshl_b32 s{sT1}, s{sT1}, 2")
    w_read_addr(a, vRW, vL, vT, sT0, sT1, sT2)
    for x in qdma(1): a.e(x)
    for i in range(64): a.e(f"v_mov_b32 v{O+i}, 0")
    a.e(f"v_lshlrev_b32 v{vL16}, 4, v{vL}")
    a.e(f"s_lshl_b32 s{sT0}, s{sWL}, 12")
    a.e(f"v_add_u32 v{vDMA}, s{sT0}, v{vL16}")
    a.e(f"s_lshl_b32 s{sT1}, s{sG}, 14")
    a.e(f"v_add_u32 v{vKR}, s{sT1}, v{vL16}")
    a.e(f"v_add_u32 v{vVR}, {VRING}, v{vKR}")
    a.e(f"s_add_u32 s{sM0K}, s{sT0}, s{sT1}")
    a.e(f"s_add_u32 s{sM0V}, s{sM0K}, {VRING}")
    a.e(f"s_lshl_b32 s{sBase}, s{sH}, 20")
    a.e(f"s_lshl_b32 s{sT1}, s{sG}, 15")
    a.e(f"s_add_u32 s{sBase}, s{sBase}, s{sT1}")
    a.e(f"s_mov_b32 s{sKoff}, s{sBase}")
    a.e(f"s_add_u32 s{sVoff}, s{sBase}, 16384")
    a.e(f"s_mov_b32 s{sKt}, 0")
    a.e(f"s_mov_b32 s{sVt}, 0")
    a.e(f"s_sub_u32 s{sTA}, 16, s{sP}")
    a.e(f"s_sub_u32 s{sI}, 15, s{sP}")
    a.e(f"s_mov_b32 s{sTile}, 0")
    a.e(f"s_mov_b32 s{sTH}, {TTHR}")
    a.e(f"v_mov_b32 v{vNEG}, {NEG}")
    a.e(f"s_lshl_b32 s{sT0}, s{sWL}, 5")
    a.e(f"s_lshl_b32 s{sT1}, s{sG}, 6")
    a.e(f"s_sub_u32 s{sT0}, s{sT0}, s{sT1}")
    a.e(f"v_and_b32 v{vT}, 15, v{vL}")
    a.e(f"v_add_u32 v{vT}, s{sT0}, v{vT}")
    a.e(f"v_lshrrev_b32 v{vT+1}, 4, v{vL}")
    a.e(f"v_lshlrev_b32 v{vT+1}, 2, v{vT+1}")
    a.e(f"v_sub_u32 v{vTHR}, v{vT}, v{vT+1}")
    for x in qdma(2): a.e(x)

    def kv_dma(isK):
        off, tt, m0 = (sKoff, sKt, sM0K) if isK else (sVoff, sVt, sM0V)
        r = [f"s_mov_b32 m0, s{m0}", "s_nop 0"]
        r += [f"buffer_load_dwordx4 v{vDMA}, s[{S_KV}:{S_KV+3}], s{off} offen offset:{i*1024} lds" for i in range(4)]
        return r
    def kv_adv(isK):
        off, tt, m0 = (sKoff, sKt, sM0K) if isK else (sVoff, sVt, sM0V)
        return [f"s_xor_b32 s{m0}, s{m0}, 0x8000",
                f"s_add_u32 s{tt}, s{tt}, 1",
                f"s_add_u32 s{off}, s{off}, 65536",
                f"s_add_u32 s{sT2}, s{sBase}, {0 if isK else 16384}",
                f"s_cmp_eq_u32 s{tt}, s{sTA}",
                f"s_cselect_b32 s{off}, s{sT2}, s{off}",
                f"s_cmp_ge_u32 s{tt}, 17",
                f"s_cselect_b32 s{off}, 0x7ff00000, s{off}"]

    SETS = [72, 104]
    def q_reads(F, ks2):
        r = []
        for d in range(4):
            r.append(f"ds_read_b64_tr_b16 {v(F+16+4*d,2)}, v{vRW+d} offset:{ks2*8192}")
            r.append(f"ds_read_b64_tr_b16 {v(F+16+4*d+2,2)}, v{vRW+d} offset:{ks2*8192+1024}")
            r.append(f"ds_read_b128 {v(F+4*d,4)}, v{vRX+ks2} offset:{d*2048}")
        return r
    def q_mfmas(F):
        return [f"{MF} {v(O+(t*4+d)*4,4)}, {v(F+16+4*d,4)}, {v(F+4*t,4)}, {v(O+(t*4+d)*4,4)}" for t in range(4) for d in range(4)]
    def spread(ms, fill, upto):
        out = []; k = 0
        for i, m in enumerate(ms):
            out.append(m)
            tgt = min(len(fill), (len(fill) * (i + 1) + upto - 1) // upto)
            while k < tgt:
                out.append(fill[k]); k += 1
        return out
    st.at(2)
    a.e("s_waitcnt vmcnt(12)")
    a.e("s_barrier")
    st.at(3)
    if diag: a.e("s_waitcnt lgkmcnt(0)")
    for x in q_reads(SETS[0], 0): a.e(x)
    for it in range(9):
        a.e("s_waitcnt lgkmcnt(0)")
        for x in spread(q_mfmas(SETS[0]), q_reads(SETS[1], 1), 12): a.e(x)
        if it < 8:
            a.e(f"s_waitcnt lgkmcnt(0) vmcnt({12 if it < 6 else (6 if it == 6 else 4)})".replace("vmcnt(12)", "vmcnt(6)"))
            a.e("s_barrier")
            dx = XS[(it+1) % 3] - XS[it % 3]; dw = WSL[(it+1) % 3] - WSL[it % 3]
            for r in (vRX, vRX+1): a.e(f"v_add_u32 v{r}, {dx & 0xffffffff}, v{r}")
            for r in range(vRW, vRW+4): a.e(f"v_add_u32 v{r}, {dw & 0xffffffff}, v{r}")
            if it < 6: dm = qdma(it + 3)
            else: dm = kv_dma(True) + kv_adv(True)
            rd = q_reads(SETS[0], 0)
            ms = q_mfmas(SETS[1])
            for x in spread(ms[:8], rd, 8): a.e(x)
            for x in spread(ms[8:], dm, 8): a.e(x)
        else:
            a.e("s_waitcnt lgkmcnt(0)")
            a.e("s_barrier")
            dm = kv_dma(False) + kv_adv(False)
            for x in spread(q_mfmas(SETS[1]), dm, 16): a.e(x)
    st.at(4)
    a.e(f"s_lshr_b32 s{sT0}, s{sW}, 1")
    a.e(f"s_and_b32 s{sT1}, s{sT0}, 1")
    a.e(f"s_lshl_b32 s{sT1}, s{sT1}, 14")
    a.e(f"s_lshl_b32 s{sT0}, s{sG}, 15")
    a.e(f"s_add_u32 s{sT0}, s{sT0}, s{sT1}")
    a.e(f"s_and_b32 s{sT1}, s{sW}, 1")
    a.e(f"s_lshl_b32 s{sT1}, s{sT1}, 11")
    a.e(f"s_add_u32 s{sT0}, s{sT0}, s{sT1}")
    a.e(f"s_add_u32 s{sT0}, s{sT0}, {QA_OFF}")
    a.e(f"v_add_u32 v{vT}, s{sT0}, v{vL16}")
    a.e(f"s_mov_b32 s{sT1}, {QSCALE}")
    a.e("s_nop 2")
    for t in range(4):
        for x in range(2):
            PK = FR + ((t*2+x) % 4) * 4
            t0 = O + (t*4 + 2*x)*4
            for j in range(8): a.e(f"v_mul_f32 v{t0+j}, s{sT1}, v{t0+j}")
            for j in range(4): a.e(f"v_cvt_pk_bf16_f32 v{PK+j}, v{t0+2*j}, v{t0+2*j+1}")
            a.e(f"ds_write_b128 v{vT}, {v(PK,4)} offset:{t*4096 + x*1024}")
    a.e("s_waitcnt lgkmcnt(0) vmcnt(8)")
    a.e("s_barrier")
    a.e(f"s_lshl_b32 s{sT0}, s{sWL}, 13")
    a.e(f"s_add_u32 s{sT0}, s{sT0}, {QA_OFF}")
    a.e(f"v_add_u32 v{vT}, s{sT0}, v{vL16}")
    for f in range(8):
        a.e(f"ds_read_b128 {v(Q+4*f,4)}, v{vT} offset:{f*1024}")
    st.at(5)

    def Sr(buf, kt, qt): return S + buf*16 + (kt*2+qt)*4
    def Pr(buf, qt): return P + buf*8 + qt*4
    def Or(dt, qt): return O + (dt*2+qt)*4
    def slot_k(b, n):
        kt, ds = n >> 2, n & 3
        rd = lambda f: f"ds_read_b128 {v(f,4)}, v{vKR} offset:{((2*b+kt)*4+ds)*1024}"
        def ms(f, czero=False):
            r = []
            for qt in range(2):
                c = ("0" if czero else v(C+4*qt,4)) if ds == 0 else v(Sr(b,kt,qt),4)
                r.append(f"{MF} {v(Sr(b,kt,qt),4)}, {v(f,4)}, {v(Q+(qt*4+ds)*4,4)}, {c}")
            return r
        return rd, ms
    def slot_v(b, dt):
        rd = lambda f: f"ds_read_b128 {v(f,4)}, v{vVR} offset:{(b*8+dt)*1024}"
        def ms(f):
            return [f"{MF} {v(Or(dt,qt),4)}, {v(f,4)}, {v(Pr(b,qt),4)}, {v(Or(dt,qt),4)}" for qt in range(2)]
        return rd, ms
    def mask_code(buf, t):
        r = []
        items = [(kt, qt, rr) for kt in range(2) for qt in range(2) for rr in range(4)]
        for base in range(0, 16, 4):
            for n, (kt, qt, rr) in enumerate(items[base:base+4]):
                r.append(f"v_cmp_le_i32 s[{sMSK+2*n}:{sMSK+2*n+1}], {16*kt+rr-16*qt+32*t}, v{vTHR}")
            for n, (kt, qt, rr) in enumerate(items[base:base+4]):
                x = Sr(buf,kt,qt)+rr
                r.append(f"v_cndmask_b32 v{x}, v{vNEG}, v{x}, s[{sMSK+2*n}:{sMSK+2*n+1}]")
        return r
    def max_code(buf):
        b0 = S + buf*16
        r = [f"v_max3_f32 v{vMX}, v{b0}, v{b0+1}, v{b0+2}"]
        for i in range(6): r.append(f"v_max3_f32 v{vMX}, v{vMX}, v{b0+3+2*i}, v{b0+4+2*i}")
        r.append(f"v_max_f32 v{vMX}, v{vMX}, v{b0+15}")
        return r
    def exp_code(buf):
        r = []
        pend = []
        for qt in range(2):
            for kt in range(2):
                x = Sr(buf,kt,qt)
                for rr in range(4):
                    r.append(f"v_exp_f32 v{x+rr}, v{x+rr}")
                    if pend: r.append(pend.pop(0))
                    if pend and rr % 2 == 1: r.append(pend.pop(0))
                pend += [f"v_add_f32 v{vLS+qt}, v{vLS+qt}, v{x}", f"v_add_f32 v{vLS+qt}, v{vLS+qt}, v{x+1}",
                         f"v_cvt_pk_bf16_f32 v{Pr(buf,qt)+2*kt}, v{x}, v{x+1}",
                         f"v_add_f32 v{vLS+qt}, v{vLS+qt}, v{x+2}", f"v_add_f32 v{vLS+qt}, v{vLS+qt}, v{x+3}",
                         f"v_cvt_pk_bf16_f32 v{Pr(buf,qt)+2*kt+1}, v{x+2}, v{x+3}"]
        r += pend
        return r
    def xlane(op, x, t):
        return [f"v_mov_b32 v{t}, v{x}", "s_nop 1", f"v_permlane16_swap_b32 v{x}, v{t}", f"{op} v{x}, v{x}, v{t}",
                f"v_mov_b32 v{t}, v{x}", "s_nop 1", f"v_permlane32_swap_b32 v{x}, v{t}", f"{op} v{x}, v{x}, v{t}"]
    rare_sites = []
    def emit_rare(lab, ret, sbuf, pbuf):
        a.label(lab)
        a.e("s_nop 7")
        for qt in range(2):
            d = vT + qt; f = vT + 2 + qt
            x0, x1 = Sr(sbuf,0,qt), Sr(sbuf,1,qt)
            a.e(f"v_max3_f32 v{d}, v{x0}, v{x0+1}, v{x0+2}")
            a.e(f"v_max3_f32 v{d}, v{d}, v{x0+3}, v{x1}")
            a.e(f"v_max3_f32 v{d}, v{d}, v{x1+1}, v{x1+2}")
            a.e(f"v_max3_f32 v{d}, v{d}, v{x1+3}, 0")
            for x in xlane("v_max_f32", d, vT + 4): a.e(x)
            a.e(f"v_ceil_f32 v{d}, v{d}")
            a.e(f"v_cvt_i32_f32 v{f}, v{d}")
            a.e(f"v_sub_u32 v{f}, 0, v{f}")
            a.e(f"v_max_i32 v{f}, -200, v{f}".replace("-200", "0xffffff38"))
            a.e(f"v_ldexp_f32 v{f}, 1.0, v{f}")
            for kt in range(2):
                for rr in range(4): a.e(f"v_sub_f32 v{Sr(sbuf,kt,qt)+rr}, v{Sr(sbuf,kt,qt)+rr}, v{d}")
            for rr in range(4): a.e(f"v_sub_f32 v{C+4*qt+rr}, v{C+4*qt+rr}, v{d}")
            a.e(f"v_add_f32 v{vM+qt}, v{vM+qt}, v{d}")
            a.e(f"v_mul_f32 v{vLS+qt}, v{vLS+qt}, v{f}")
            for dt in range(8):
                for rr in range(4): a.e(f"v_mul_f32 v{Or(dt,qt)+rr}, v{Or(dt,qt)+rr}, v{f}")
            for rr in range(4):
                p = Pr(pbuf,qt)+rr
                a.e(f"v_lshlrev_b32 v{vT+4}, 16, v{p}")
                a.e(f"v_and_b32 v{vT+5}, 0xffff0000, v{p}")
                a.e(f"v_mul_f32 v{vT+4}, v{vT+4}, v{f}")
                a.e(f"v_mul_f32 v{vT+5}, v{vT+5}, v{f}")
                a.e(f"v_cvt_pk_bf16_f32 v{p}, v{vT+4}, v{vT+5}")
        a.e("s_nop 1")
        a.e(f"s_branch {ret}")

    D = 5
    def run_slots(slots, fills, nxt, sync_after=None, sync=None):
        n = len(slots)
        for sidx, (rd, ms) in enumerate(slots):
            f = FR + 4 * (sidx % NB)
            if sync_after is None:
                out = min(D - 1, n - 1 - sidx + len(nxt[:max(0, sidx + D - n)]))
            else:
                out = min(D - 1, n - 1 - sidx) if sidx <= sync_after else None
            if out is not None: a.e(f"s_waitcnt lgkmcnt({out})")
            m = ms(f)
            fl = fills.get(sidx, [])
            h = (len(fl) + 1) // 2
            a.e(m[0])
            for x in fl[:h]: a.e(x)
            a.e(m[1])
            for x in fl[h:]: a.e(x)
            t = sidx + D
            if t < n:
                a.e(slots[t][0](FR + 4 * (t % NB)))
            elif sync_after is None:
                if t - n < len(nxt): a.e(nxt[t - n][0](FR + 4 * (t % NB)))
            elif sidx == sync_after:
                for x in sync: a.e(x)
                for tt in range(n, sidx + D + 1):
                    a.e(nxt[tt - n][0](FR + 4 * (tt % NB)))
            elif sidx > sync_after:
                a.e(nxt[t - n][0](FR + 4 * (t % NB)))
    def distribute(fills, items, lo, hi):
        n = hi - lo
        for i in range(n):
            c0 = len(items) * i // n; c1 = len(items) * (i + 1) // n
            fills.setdefault(lo + i, []).extend(items[c0:c1])
    toggles = [f"v_xor_b32 v{vKR}, 0x8000, v{vKR}", f"v_xor_b32 v{vVR}, 0x8000, v{vVR}"]
    vslots = lambda b: [slot_v(b, dt) for dt in range(8)]
    kslots = lambda b: [slot_k(b, n) for n in range(8)]

    if "prio" in X:
        a.e(f"s_cmp_eq_u32 s{sG}, 0"); a.e(f"s_cbranch_scc1 {name}_np"); a.e("s_setprio 1"); a.label(f"{name}_np")
    a.label(f"{name}_tile")
    k0 = kslots(0); k1s = kslots(1)
    for t in range(D): a.e(k0[t][0](FR + 4 * t))
    for i in range(64): a.e(f"v_mov_b32 v{O+i}, 0")
    a.e(f"v_mov_b32 v{vLS}, 0"); a.e(f"v_mov_b32 v{vLS+1}, 0")
    z = [(rd, (lambda ms: (lambda f: ms(f, True)))(ms)) for rd, ms in k0]
    run_slots(z, {}, k1s)
    lab = a.uid(f"{name}_nm")
    a.e(f"s_cmp_lg_u32 s{sI}, 0")
    a.e("s_nop 6")
    a.e(f"s_cbranch_scc1 {lab}")
    for x in mask_code(0, 0): a.e(x)
    a.label(lab)
    for qt in range(2):
        d = vM + qt
        x0, x1 = Sr(0,0,qt), Sr(0,1,qt)
        a.e(f"v_max3_f32 v{d}, v{x0}, v{x0+1}, v{x0+2}")
        a.e(f"v_max3_f32 v{d}, v{d}, v{x0+3}, v{x1}")
        a.e(f"v_max3_f32 v{d}, v{d}, v{x1+1}, v{x1+2}")
        a.e(f"v_max_f32 v{d}, v{d}, v{x1+3}")
        for x in xlane("v_max_f32", d, vT + 4): a.e(x)
        for rr in range(4): a.e(f"v_sub_f32 v{C+4*qt+rr}, 0, v{d}")
        for kt in range(2):
            for rr in range(4): a.e(f"v_sub_f32 v{Sr(0,kt,qt)+rr}, v{Sr(0,kt,qt)+rr}, v{d}")
    fills = {}
    distribute(fills, exp_code(0), 0, 8)
    labA = a.uid(f"{name}_wa"); labB = a.uid(f"{name}_wb")
    sync = ["s_waitcnt lgkmcnt(0)", f"s_cmp_eq_u32 s{sTile}, 0", f"s_cbranch_scc1 {labA}", "s_waitcnt vmcnt(4)", f"s_branch {labB}",
            labA + ":", "s_waitcnt vmcnt(0)", labB + ":", "s_barrier", f"v_xor_b32 v{vKR}, 0x8000, v{vKR}"]
    _e = a.e
    def e2(x):
        if x.endswith(":"): a.label(x[:-1])
        else: _e(x)
    a.e = e2
    run_slots(k1s, fills, vslots(0), sync_after=4, sync=sync)
    a.e(f"s_mov_b32 s{sN}, 0")
    a.e(f"s_cmp_eq_u32 s{sI}, 0")
    a.e(f"s_cbranch_scc1 {name}_tail")

    def check(sbuf, pbuf):
        lab = a.uid(f"{name}_rare"); ret = a.uid(f"{name}_ret")
        rare_sites.append((lab, ret, sbuf, pbuf))
        return [f"v_cmp_lt_f32 vcc, s{sTH}, v{vMX}", f"s_cbranch_vccnz {lab}", ret + ":"]
    dma_all = kv_dma(True) + kv_dma(False)
    dma_adv = kv_adv(True) + kv_adv(False)
    a.label(f"{name}_loop")
    slots = vslots(0) + kslots(0) + vslots(1) + kslots(1)
    fills = {}
    if "nomax" not in X: distribute(fills, max_code(1), 2, 5)
    if "nochk" not in X: fills.setdefault(4, []).extend(check(1, 0))
    if "noexp" not in X: distribute(fills, exp_code(1), 5 if "nomax" not in X else 2, 16)
    mlab = a.uid(f"{name}_mask"); mret = a.uid(f"{name}_mret")
    fills.setdefault(18, []).extend([f"s_add_u32 s{sN}, s{sN}, 1", f"s_cmp_eq_u32 s{sN}, s{sI}", f"s_cbranch_scc1 {mlab}", mret + ":"])
    if "nomax" not in X: distribute(fills, max_code(0), 19, 21)
    if "nochk" not in X: fills.setdefault(20, []).extend(check(0, 1))
    if "noexp" not in X: distribute(fills, exp_code(0), 21 if "nomax" not in X else 19, 32)
    fills2 = {}
    if "nodma" not in X:
        if "dmaspread" in X:
            distribute(fills2, dma_all[:2], 0, 1)
            for i in range(4): distribute(fills2, [dma_all[2+i]], 1+3*i, 2+3*i)
            distribute(fills2, dma_all[6:8], 12, 13)
            for i in range(4): distribute(fills2, [dma_all[8+i]], 13+2*i, 14+2*i)
        else:
            distribute(fills2, dma_all[:6], 0, 4)
            distribute(fills2, dma_all[6:], 6, 11)
    distribute(fills2, dma_adv, *((21, 27) if "dmaspread" in X else (11, 15)))
    for k_, v_ in fills2.items(): fills[k_] = v_ + fills.get(k_, [])
    sync = ["s_waitcnt lgkmcnt(0) vmcnt(0)"] + (["s_barrier"] if "nobar" not in X else []) + toggles
    run_slots(slots, fills, vslots(0), sync_after=28, sync=sync)
    a.e(f"s_cmp_lt_u32 s{sN}, s{sI}")
    a.e(f"s_cbranch_scc1 {name}_loop")
    a.label(f"{name}_tail")
    slots = vslots(0) + vslots(1)
    fills = {}
    distribute(fills, dma_all[:6], 0, 2)
    distribute(fills, mask_code(1, 1) + max_code(1), 2, 4)
    fills.setdefault(3, []).extend(check(1, 0))
    distribute(fills, exp_code(1), 4, 8)
    fills.setdefault(7, []).append("s_nop 1")
    distribute(fills, dma_all[6:] + dma_adv, 8, 16)
    run_slots(slots, fills, [])
    st.at(6)
    a.e(f"s_lshl_b32 s{sT0}, s{sWL}, 13")
    a.e(f"s_add_u32 s{sT0}, s{sT0}, {QB_OFF}")
    a.e(f"v_add_u32 v{vT}, s{sT0}, v{vL16}")
    for f in range(8):
        a.e(f"ds_read_b128 {v(Q+4*f,4)}, v{vT} offset:{f*1024}")
    for qt in range(2):
        for x in xlane("v_add_f32", vLS + qt, vT + 4): a.e(x)
    a.e(f"v_readfirstlane_b32 s{sT0}, v{vVR}")
    a.e(f"s_and_b32 s{sT0}, s{sT0}, 0x18000")
    a.e(f"s_cmp_eq_u32 s{sG}, 0")
    a.e(f"s_cselect_b32 s{sT1}, {QB_OFF}, s{sT0}")
    a.e(f"s_cselect_b32 s{sT2}, s{sT0}, {QB_OFF}")
    a.e(f"s_lshl_b32 s{sT0}, s{sWL}, 13")
    a.e(f"s_add_u32 s{sT1}, s{sT1}, s{sT0}")
    a.e(f"s_add_u32 s{sT2}, s{sT2}, s{sT0}")
    vOWN, vPAR = vT + 6, vT + 7
    a.e(f"v_add_u32 v{vOWN}, s{sT1}, v{vL16}")
    a.e(f"v_add_u32 v{vPAR}, s{sT2}, v{vL16}")
    a.e("s_waitcnt lgkmcnt(0)")
    a.e("s_barrier")
    a.e(f"ds_write_b128 v{vPAR}, {v(vLS,4)}")
    a.e("s_waitcnt lgkmcnt(0)")
    a.e("s_barrier")
    X = vT + 10
    a.e(f"ds_read_b128 {v(X,4)}, v{vOWN}")
    a.e("s_waitcnt lgkmcnt(0)")
    for qt in range(2):
        mm = vT + 4; e0 = vT + 5; e1 = vT + 8
        a.e(f"v_max_f32 v{mm}, v{vM+qt}, v{X+2+qt}")
        a.e(f"v_sub_f32 v{e0}, v{vM+qt}, v{mm}")
        a.e(f"v_sub_f32 v{e1}, v{X+2+qt}, v{mm}")
        a.e(f"v_exp_f32 v{e0}, v{e0}")
        a.e(f"v_exp_f32 v{e1}, v{e1}")
        a.e("s_nop 0")
        a.e(f"v_mul_f32 v{mm}, v{e0}, v{vLS+qt}")
        a.e(f"v_fmac_f32 v{mm}, v{e1}, v{X+qt}")
        a.e(f"v_rcp_f32 v{mm}, v{mm}")
        a.e("s_nop 0")
        a.e(f"v_mul_f32 v{vT+qt}, v{e0}, v{mm}")
    for dt in range(8):
        for qt in range(2):
            for rr in range(4): a.e(f"v_mul_f32 v{Or(dt,qt)+rr}, v{Or(dt,qt)+rr}, v{vT+qt}")
    lg1 = a.uid(f"{name}_g1"); lgd = a.uid(f"{name}_gd")
    a.e(f"s_lshl_b32 s{sT0}, s{sI}, 3")
    a.e(f"s_lshl_b32 s{sT1}, s{sWL}, 1")
    a.e(f"s_add_u32 s{sT0}, s{sT0}, s{sT1}")
    a.e(f"s_lshl_b32 s{sT0}, s{sT0}, 17")
    a.e(f"s_lshl_b32 s{sT1}, s{sH}, 12")
    a.e(f"s_add_u32 s{sT0}, s{sT0}, s{sT1}")
    a.e(f"s_lshl_b32 s{sT1}, s{sG}, 11")
    a.e(f"s_add_u32 s{sT0}, s{sT0}, s{sT1}")
    a.e(f"s_add_u32 s{sT1}, s{sT0}, 131072")
    a.e(f"s_cmp_eq_u32 s{sG}, 0")
    a.e(f"s_cbranch_scc0 {lg1}")
    for g in range(2):
        keep = O + 32 * g; send = O + 32 * (1 - g)
        if g == 1: a.label(lg1)
        for n in range(8): a.e(f"ds_write_b128 v{vOWN}, {v(send+4*n,4)} offset:{n*1024}")
        a.e("s_waitcnt lgkmcnt(0)")
        a.e("s_barrier")
        for n in range(8): a.e(f"ds_read_b128 {v(FR+4*n,4)}, v{vPAR} offset:{n*1024}")
        for xx in range(2):
            for qt in range(2):
                n0 = (2*xx)*2 + qt; n1 = (2*xx+1)*2 + qt
                a.e(f"s_waitcnt lgkmcnt({7 - n1})")
                for n in (n0, n1):
                    for rr in range(4): a.e(f"v_add_f32 v{keep+4*n+rr}, v{keep+4*n+rr}, v{FR+4*n+rr}")
                PK = S + (xx*2+qt)*4
                a.e(f"v_cvt_pk_bf16_f32 v{PK}, v{keep+4*n0}, v{keep+4*n0+1}")
                a.e(f"v_cvt_pk_bf16_f32 v{PK+1}, v{keep+4*n0+2}, v{keep+4*n0+3}")
                a.e(f"v_cvt_pk_bf16_f32 v{PK+2}, v{keep+4*n1}, v{keep+4*n1+1}")
                a.e(f"v_cvt_pk_bf16_f32 v{PK+3}, v{keep+4*n1+2}, v{keep+4*n1+3}")
                a.e(f"buffer_store_dwordx4 {v(PK,4)}, v{vL16}, s[{S_CT}:{S_CT+3}], s{sT1 if qt else sT0} offen offset:{xx*1024}")
        if g == 0: a.e(f"s_branch {lgd}")
    a.label(lgd)
    a.e(f"v_xor_b32 v{vVR}, 0x8000, v{vVR}")
    a.e(f"s_cmp_eq_u32 s{sTile}, 0")
    a.e(f"s_mov_b32 s{sTile}, 1")
    a.e(f"s_mov_b32 s{sI}, s{sP}")
    if diag:
        l2 = a.uid("dg")
        a.e(f"s_cbranch_scc0 {l2}")
        st.at(7)
        a.e("s_waitcnt lgkmcnt(0)")
        a.e(f"s_branch {name}_tile")
        a.label(l2)
    else:
        a.e(f"s_cbranch_scc1 {name}_tile")
    st.at(8)
    if diag: a.e("s_waitcnt vmcnt(0)")
    st.at(9); st.at(10, True)
    st.dump(6, sW)
    a.e("s_endpgm")
    a.label(mlab)
    for x in mask_code(0, 0): a.e(x)
    a.e(f"s_branch {mret}")
    for lab, ret, sb, pb in rare_sites: emit_rare(lab, ret, sb, pb)
    a.label(f"{name}_end")
    a.e("s_endpgm")
    a.e = _e
    kernel_desc(a, name, 256, 102 if diag else 64)
```

```python
from asmlib import *
from k1 import MF, WS_KV, WS_CTX, WS_WOF, WS_KVB, WS_QB, wg_decode, act_dma_offsets, w_dma_offsets, act_read_addr, w_read_addr

QSCALE = 0x3e0293ee
NEG = 0xf149f2ca
LTHR = 0x4e800000
OOB = 0x7ff00000
WS_FLAG = 64 << 20

def gen_ka(a, name="ka_kernel", diag=False, X=(), code_end="k3_kernel_end"):
    kernel_begin(a, name)
    st = Stamps(a, diag, 0, 76)
    _at = st.at
    pst = (lambda i: (_at(i), a.e("s_waitcnt lgkmcnt(0)"))) if "prost" in X else (lambda i: None)
    if "qst" in X or "phst" in X or "phst2" in X: st.at = lambda i, real=False: _at(i, real) if (i < 2 or i == 12) else None
    if "prost" in X: st.at = lambda i, real=False: _at(i, real) if (i < 4 or i == 12) else None
    if "kvst" in X:
        _at = st.at
        st.at = lambda i, real=False: _at(i, real) if (i < 4 or i == 12) else None
    _e = a.e
    def e2(x):
        if x.endswith(":"): a.label(x[:-1])
        else: _e(x)
    a.e = e2
    S_C, S_W, S_KV, S_X, S_WQ, S_CT = 8, 12, 16, 20, 24, 28
    sW, sH, sP, sG, sWL = 32, 33, 34, 35, 36
    sT0, sT1, sT2 = 37, 38, 39
    sIT, sKC, sKW, sM0C, sM0W = 40, 41, 42, 43, 44
    sRole, sA, sB = 45, 46, 47
    S_S = 48
    S_DBG = 72
    sI, sN, sKoff, sVoff, sKt, sVt, sM0K, sM0V = 40, 41, 42, 43, 44, 45, 46, 47
    sTA, sJump, sSeg, sR, sTH, sTile, sKX, sKWq = 48, 49, 50, 51, 52, 53, 54, 55
    sMSK = 56
    vL = 1; vL16 = 2; vDUM = 3
    vDC = 4; vDW = 8; vRC = 12; vRW = 14; vST = 18; vT = 19
    vDX = 28; vDWq = 124
    CF = 32; WA, WB = 48, 64; ACC = 128
    XS = [0, 131072, 65536]; WSL = [32768, 49152, 98304]
    VRING = 65536; QTMP = 98304; QSTASH = 131072

    a.e("s_cmp_ge_u32 s2, 256")
    a.e(f"s_cbranch_scc1 {name}_end")
    st.at(0); st.at(1, True)
    a.e("s_load_dwordx8 s[60:67], s[0:1], 48")
    a.e("s_load_dwordx2 s[68:69], s[0:1], 80")
    a.e("s_memrealtime s[70:71]")
    a.e("s_load_dwordx4 s[4:7], s[0:1], 104")
    a.e(f"v_lshrrev_b32 v{vT}, 6, v0")
    a.e(f"v_and_b32 v{vL}, 63, v0")
    a.e(f"v_readfirstlane_b32 s{sW}, v{vT}")
    a.e(f"v_lshlrev_b32 v{vL16}, 4, v{vL}")
    wg_decode(a, sH, sP, sT0, sT1)
    a.e(f"s_lshr_b32 s{sG}, s{sW}, 2")
    a.e(f"s_and_b32 s{sWL}, s{sW}, 3")
    a.e(f"s_lshl_b32 s{sT0}, s{sP}, 8")
    a.e(f"s_lshl_b32 s{sT1}, s{sW}, 5")
    a.e(f"s_add_u32 s{sT0}, s{sT0}, s{sT1}")
    act_dma_offsets(a, vDC, vL, vT, sT0, 1024)
    a.e(f"s_lshl_b32 s{sT0}, s{sWL}, 4")
    a.e(f"s_lshl_b32 s{sT1}, s{sH}, 8")
    w_dma_offsets(a, vDW, vL, vT, sT0, sT1, [(0, 0), (1, 0), (2, 1), (3, 1)])
    a.e(f"s_lshl_b32 s{sM0C}, s{sW}, 12")
    a.e(f"s_add_u32 s{sM0W}, s{sM0C}, 32768")
    a.e(f"s_mov_b32 s{sKC}, 0")
    a.e(f"s_mov_b32 s{sKW}, 0")
    pst(4)
    a.e("s_waitcnt lgkmcnt(0)")
    pst(5)
    srd(a, S_C, 62, 2048 * 1024)
    a.e(f"s_cmp_lt_u32 s{sW}, 4")
    a.e("s_cselect_b32 s46, s66, s68")
    a.e("s_cselect_b32 s47, s67, s69")
    srd(a, S_W, 46, 512 * 8192)
    dma_c = lambda i: f"buffer_load_dwordx4 v{vDC+i}, s[{S_C}:{S_C+3}], s{sKC} offen offset:{i*1024} lds"
    dma_w = lambda i: f"buffer_load_dwordx4 v{vDW+i}, s[{S_W}:{S_W+3}], s{sKW} offen offset:{i*1024} lds"
    dma_adv = [f"s_add_u32 s{sKC}, s{sKC}, 128", f"s_add_u32 s{sKW}, s{sKW}, {64*8192}",
               f"s_xor_b32 s{sM0C}, s{sM0C}, 0x10000", f"s_xor_b32 s{sM0W}, s{sM0W}, 0x10000"]
    a.e(f"s_mov_b32 m0, s{sM0C}"); a.e("s_nop 0")
    for i in range(4): a.e(dma_c(i))
    a.e(f"s_mov_b32 m0, s{sM0W}"); a.e("s_nop 0")
    for i in range(4): a.e(dma_w(i))
    for x in dma_adv: a.e(x)
    pst(6)
    a.e(f"s_add_u32 s{S_KV}, s6, {WS_KV}"); a.e(f"s_addc_u32 s{S_KV+1}, s7, 0")
    srd(a, S_KV, S_KV, 32 << 20)
    srd(a, S_X, 60, 2048 * 1152)
    srd(a, S_WQ, 64, 576 * 8192)
    a.e("s_barrier")
    pst(7)
    sGW = 3; TB = 46; TS = 54; vTCH = 123; vTHI = 122; vTLO = 121
    def touch_base(parts, R, RS):
        base = 0
        a.e(f"s_mov_b32 s{R}, s6"); a.e(f"s_mov_b32 s{R+1}, s7"); a.e(f"s_mov_b32 s{sT0}, 0"); a.e(f"s_mov_b32 s{RS}, 1024")
        for (lo, start, n, wt) in parts:
            a.e(f"s_sub_u32 s{sT1}, s{sGW}, {base}"); a.e(f"s_lshl_b32 s{sT2}, s{sT1}, {16 if wt == 1 else 13}")
            if start: a.e(f"s_add_u32 s{sT2}, s{sT2}, {start}")
            if wt == 1: a.e(f"s_add_u32 s{sT2}, s{sT2}, s59")
            if wt >= 2:
                a.e(f"s_mul_i32 s58, s59, {8 * n}"); a.e(f"s_add_u32 s{sT2}, s{sT2}, s58")
            a.e(f"s_cmp_lt_u32 s{sT1}, {n}")
            a.e(f"s_cselect_b32 s{sT0}, s{sT2}, s{sT0}"); a.e(f"s_cselect_b32 s{R}, s{lo}, s{R}"); a.e(f"s_cselect_b32 s{R+1}, s{lo+1}, s{R+1}")
            if wt == 1: a.e(f"s_cselect_b32 s{RS}, 8192, s{RS}")
            base += n
        a.e(f"s_add_u32 s{R}, s{R}, s{sT0}"); a.e(f"s_addc_u32 s{R+1}, s{R+1}, 0")
    def touch(R, RS):
        return [f"v_mad_u32_u24 v{vTCH}, v{vTHI}, s{RS}, v{vTLO}", f"global_load_dword v{vDUM}, v{vTCH}, s[{R}:{R+1}]"]
    a.e(f"s_lshr_b32 s{sGW}, s2, 3"); a.e(f"s_lshl_b32 s{sT0}, s{sW}, 5"); a.e(f"s_add_u32 s{sGW}, s{sGW}, s{sT0}")
    a.e("s_and_b32 s59, s2, 7"); a.e("s_lshl_b32 s59, s59, 10")
    a.e(f"v_lshrrev_b32 v{vTHI}, 3, v{vL}"); a.e(f"v_and_b32 v{vTLO}, 7, v{vL}"); a.e(f"v_lshlrev_b32 v{vTLO}, 7, v{vTLO}")
    PX, PC, PWQ, PWK, PWV = 60, 62, 64, 66, 68
    WW = lambda r0, n: [(PWK, r0*8192, n // 8, 1), (PWV, r0*8192, n // 8, 1)]
    PF = [x for x in X if x.startswith("pf")]
    PF = PF[0] if PF else "pfD"
    if PF == "pfA":
        P0 = [WW(64, 192), [(PC, 0, 256, 0)]]; EV = [WW(256, 256) + [(PWQ, 0, 72, 1)], [(PX, 0, 256, 0)], [(PX, 256*8192, 32, 0)], []]
    elif PF == "pf0":
        P0 = [[], []]; EV = [[], [], [], []]
    elif PF == "pfB":
        P0 = [WW(64, 192), [(PC, 0, 32, 2)]]; EV = [WW(256, 256), [(PWQ, 0, 72, 1), (PX, 0, 36, 3)], [], []]
    elif PF == "pfC":
        P0 = [WW(64, 128), []]; EV = [WW(192, 160), WW(352, 160), [(PWQ, 0, 72, 1), (PX, 0, 36, 3)], []]
    elif PF == "pfD":
        P0 = [[(PC, 0, 32, 2)], WW(64, 128)]; EV = [WW(192, 160), WW(352, 160), [(PWQ, 0, 72, 1), (PX, 0, 36, 3)], []]
    for parts in P0:
        touch_base(parts, 28, 30)
        for x in touch(28, 30): a.e(x)
    a.e(f"v_lshlrev_b32 v{vTCH}, 7, v{vL}")
    a.e("s_getpc_b64 s[28:29]")
    a.e(f"{name}_pc:")
    a.e(f"s_sub_u32 s28, s28, {name}_pc - {name}"); a.e("s_subb_u32 s29, s29, 0")
    a.e("s_and_b32 s29, s29, 0xffff"); a.e(f"s_mov_b32 s30, {code_end} - {name}"); a.e("s_mov_b32 s31, 0x20000")
    a.e(f"s_sub_u32 s{sT0}, s{sGW}, 192"); a.e(f"s_lshl_b32 s{sT0}, s{sT0}, 13")
    a.e(f"s_min_u32 s{sT0}, s{sT0}, {OOB}")
    a.e(f"buffer_load_dword v{vDUM}, v{vTCH}, s[28:31], s{sT0} offen")
    srd(a, 72, 4, 256)
    a.e("s_or_b32 s70, s70, 1")
    a.e("v_mov_b32 v126, s70"); a.e("v_mov_b32 v127, 0"); a.e(f"v_mov_b32 v{vT}, 0")
    a.e(f"s_cmp_eq_u32 s{sW}, 7"); a.e(f"s_cselect_b32 s{sT0}, 0, {OOB}")
    a.e("s_mov_b64 exec, 1")
    a.e(f"buffer_atomic_cmpswap v[126:127], v{vT}, s[72:75], s{sT0} offen sc0 sc1")
    a.e("s_mov_b64 exec, -1")
    NPF = 4
    for i, parts in enumerate(EV):
        touch_base(parts, TB + 2 * i, TS + i)
    pst(8)
    a.e(f"s_and_b32 s{sT0}, s{sW}, 1"); a.e(f"s_lshl_b32 s{sT0}, s{sT0}, 14")
    act_read_addr(a, vRC, vL, vT, sT0)
    a.e(f"s_lshl_b32 s{sT0}, s{sG}, 14"); a.e(f"s_add_u32 s{sT0}, s{sT0}, 32768")
    a.e(f"s_and_b32 s{sT1}, s{sW}, 2"); a.e(f"s_lshl_b32 s{sT1}, s{sT1}, 1")
    w_read_addr(a, vRW, vL, vT, sT0, sT1, sT2)
    a.e(f"s_lshl_b32 s{sT0}, s{sH}, 20"); a.e(f"s_lshl_b32 s{sT1}, s{sP}, 17"); a.e(f"s_add_u32 s{sT0}, s{sT0}, s{sT1}")
    a.e(f"s_and_b32 s{sT1}, s{sW}, 1"); a.e(f"s_lshl_b32 s{sT1}, s{sT1}, 16"); a.e(f"s_add_u32 s{sT0}, s{sT0}, s{sT1}")
    a.e(f"v_add_u32 v{vST}, s{sT0}, v{vL16}")
    a.e(f"s_sub_u32 s{sT0}, 15, s{sP}"); a.e(f"s_cmp_eq_u32 s{sG}, 0"); a.e(f"s_cselect_b32 s{sT0}, s{sT0}, s{sP}")
    a.e(f"s_lshl_b32 s{sT0}, s{sT0}, 7"); a.e(f"s_lshl_b32 s{sT1}, s{sWL}, 5"); a.e(f"s_add_u32 s{sT0}, s{sT0}, s{sT1}")
    act_dma_offsets(a, vDX, vL, vT, sT0, 1152)
    a.e(f"v_lshrrev_b32 v{vT+2}, 4, v{vL}"); a.e(f"s_lshl_b32 s{sT0}, s{sW}, 3"); a.e(f"v_add_u32 v{vT}, s{sT0}, v{vT+2}")
    a.e(f"v_lshlrev_b32 v{vT}, 13, v{vT}"); a.e(f"s_lshl_b32 s{sT1}, s{sH}, 8"); a.e(f"v_add_u32 v{vT}, s{sT1}, v{vT}")
    a.e(f"v_and_b32 v{vT+1}, 15, v{vL}"); a.e(f"v_lshlrev_b32 v{vT+3}, 1, v{vT+2}"); a.e(f"v_xor_b32 v{vT+1}, v{vT+1}, v{vT+3}")
    a.e(f"s_and_b32 s{sT0}, s{sW}, 1"); a.e(f"s_lshl_b32 s{sT0}, s{sT0}, 3"); a.e(f"v_xor_b32 v{vT+1}, s{sT0}, v{vT+1}")
    a.e(f"v_lshl_add_u32 v{vDWq}, v{vT+1}, 4, v{vT}"); a.e(f"v_add_u32 v{vDWq+1}, {4*8192-1024}, v{vDWq}")
    pst(9)
    for i in range(128): a.e(f"v_mov_b32 v{ACC+i}, 0")
    pst(10)

    def rd_w(W, ks2):
        r = []
        for d in range(4):
            r.append(f"ds_read_b64_tr_b16 {v(W+4*d,2)}, v{vRW+d} offset:{ks2*8192}")
            r.append(f"ds_read_b64_tr_b16 {v(W+4*d+2,2)}, v{vRW+d} offset:{ks2*8192+1024}")
        return r
    rd_c = lambda t, ks2: f"ds_read_b128 {v(CF+4*(t%4),4)}, v{vRC+ks2} offset:{t*2048}"
    def mf(W, t, d, isK):
        acc = v(ACC + (t*4+d)*4, 4); cf = v(CF+4*(t%4), 4); wf = v(W+4*d, 4)
        return f"{MF} {acc}, {wf}, {cf}, {acc}" if isK else f"{MF} {acc}, {cf}, {wf}, {acc}"
    def qdma(stage):
        sl = stage % 3
        r = [f"s_lshl_b32 s{sT0}, s{sW}, 12", f"s_add_u32 m0, s{sT0}, {XS[sl]}", f"s_mov_b32 s{sT1}, {stage*128}"]
        r += [f"buffer_load_dwordx4 v{vDX+i}, s[{S_X}:{S_X+3}], s{sT1} offen offset:{i*1024} lds" for i in range(4)]
        r += [f"s_lshl_b32 s{sT0}, s{sW}, 11", f"s_add_u32 m0, s{sT0}, {WSL[sl]}", f"s_mov_b32 s{sT1}, {stage*64*8192}"]
        r += [f"buffer_load_dwordx4 v{vDWq+i}, s[{S_WQ}:{S_WQ+3}], s{sT1} offen offset:{i*1024} lds" for i in range(2)]
        return r

    ool = []
    st.at(2)
    a.e(f"s_waitcnt vmcnt({NPF})")
    a.e("s_barrier")
    st.at(3)
    if diag: a.e("s_waitcnt lgkmcnt(0)")
    for x in rd_w(WA, 0): a.e(x)
    for t in range(3): a.e(rd_c(t, 0))
    a.e(f"s_mov_b32 s{sIT}, 0")
    a.e(f"s_cmp_lt_u32 s{sW}, 4")
    a.e(f"s_cbranch_scc0 {name}_vloop")
    def kv_iter(isK, last, tag):
        wn = rd_w(WB, 1)
        if last: dm = qdma(0) + qdma(1)
        else: dm = [f"s_mov_b32 m0, s{sM0C}"] + [dma_c(i) for i in range(4)] + [f"s_mov_b32 m0, s{sM0W}"] + [dma_w(i) for i in range(4)] + dma_adv
        per = {}
        if last:
            for t in range(8): per[t] = dm[len(dm)*t//8: len(dm)*(t+1)//8]
        else:
            per = {0: dm[0:1], 1: dm[1:2], 2: dm[2:3], 3: dm[3:4], 4: dm[4:6], 5: dm[6:7], 6: dm[7:8], 7: dm[8:9], 8: dm[9:10], 9: dm[10:]}
        for t in range(8):
            a.e(f"s_waitcnt lgkmcnt({[2,4,6,6,6,4,2,2][t]})")
            ms = [mf(WA, t, d, isK) for d in range(4)]
            nt = t + 3
            a.e(ms[0])
            if t < 4: a.e(wn[2*t])
            a.e(ms[1])
            for x in per.get(t, []): a.e(x)
            a.e(ms[2])
            if t < 4: a.e(wn[2*t+1])
            a.e(ms[3])
            a.e(rd_c(nt % 8, 0 if nt < 8 else 1))
        for t in range(6):
            a.e("s_waitcnt lgkmcnt(2)")
            ms = [mf(WB, t, d, isK) for d in range(4)]
            a.e(ms[0]); a.e(ms[1])
            for x in per.get(8 + t, []): a.e(x)
            a.e(ms[2]); a.e(ms[3])
            if t < 5: a.e(rd_c(t + 3, 1))
            if not last and t == 2:
                for x in touch(TB, TS): a.e(x)
            if not last and t == 3:
                for i in range(3):
                    a.e(f"s_mov_b64 s[{TB+2*i}:{TB+2*i+1}], s[{TB+2*i+2}:{TB+2*i+3}]"); a.e(f"s_mov_b32 s{TS+i}, s{TS+i+1}")
        a.e(f"s_waitcnt lgkmcnt(0) vmcnt({6 if last else 1})")
        a.e("s_barrier")
        if not last:
            for r in [vRC, vRC+1, vRW, vRW+1, vRW+2, vRW+3]: a.e(f"v_xor_b32 v{r}, 0x10000, v{r}")
            wn = rd_w(WA, 0)
            for d in range(4):
                a.e(mf(WB, 6, d, isK)); a.e(wn[2*d]); a.e(wn[2*d+1])
            a.e(rd_c(0, 0)); a.e(rd_c(1, 0))
            for d in range(4): a.e(mf(WB, 7, d, isK))
            a.e(rd_c(2, 0))
        else:
            dm = qdma(2)
            ms = [mf(WB, 6 + (n >> 2), n & 3, isK) for n in range(8)]
            for n in range(8):
                a.e(ms[n])
                for x in dm[len(dm)*n//8: len(dm)*(n+1)//8]: a.e(x)
    SC1 = " sc1" if "plain" not in X else ""
    sSB = 66; sNonce = 69; S_FL = 72
    PKR = lambda n: (32 + 4 * n) if n < 8 else (160 + 4 * (n - 8))
    def kv_store(n):
        return [f"s_add_u32 s68, s{sSB + ((n >> 1) & 1)}, {((n >> 2) & 1) * 8192 + (n >> 3) * 32768}",
                f"buffer_store_dwordx4 {v(PKR(n),4)}, v{vST}, s[{S_KV}:{S_KV+3}], s68 offen offset:{(n & 1) * 1024}{SC1}"]
    for isK in (True, False):
        tag = "k" if isK else "v"
        a.label(f"{name}_{tag}loop")
        kv_iter(isK, False, tag)
        if "kvst" in X:
            for i in range(7):
                l_ = a.uid("kvst"); a.e(f"s_cmp_lg_u32 s{sIT}, {i}"); a.e(f"s_cbranch_scc1 {l_}"); _at(4 + i); a.e("s_waitcnt lgkmcnt(0)"); a.e(l_ + ":")
        a.e(f"s_add_u32 s{sIT}, s{sIT}, 1"); a.e(f"s_cmp_lt_u32 s{sIT}, 7"); a.e(f"s_cbranch_scc1 {name}_{tag}loop")
        kv_iter(isK, True, tag)
        st.at(4)
        if "kvst" in X: _at(11)
        a.e(f"s_and_b32 s{sT1}, s{sW}, 2")
        if isK:
            a.e(f"s_lshl_b32 s{sSB}, s{sT1}, 10"); a.e(f"s_add_u32 s{sSB+1}, s{sSB}, 4096")
        else:
            a.e(f"s_lshl_b32 s{sSB}, s{sT1}, 11"); a.e(f"s_add_u32 s{sSB}, s{sSB}, 16384"); a.e(f"s_add_u32 s{sSB+1}, s{sSB}, 2048")
        for n in range(16):
            P = PKR(n)
            if isK:
                t = n >> 1; x = n & 1
                t0, t1 = ACC + (t*4 + 2*x)*4, ACC + (t*4 + 2*x + 1)*4
            else:
                y = n >> 2; d = n & 3
                t0, t1 = ACC + (2*y*4 + d)*4, ACC + ((2*y+1)*4 + d)*4
            a.e(f"v_cvt_pk_bf16_f32 v{P}, v{t0}, v{t0+1}"); a.e(f"v_cvt_pk_bf16_f32 v{P+1}, v{t0+2}, v{t0+3}")
            a.e(f"v_cvt_pk_bf16_f32 v{P+2}, v{t1}, v{t1+1}"); a.e(f"v_cvt_pk_bf16_f32 v{P+3}, v{t1+2}, v{t1+3}")
        if isK: a.e(f"s_branch {name}_qproj")
    a.label(f"{name}_qproj")
    st.at(5)

    vRX = 12; vRWq = 14
    a.e(f"s_add_u32 s58, s6, {WS_CTX}"); a.e("s_addc_u32 s59, s7, 0")
    srd(a, S_CT, 58, 16 << 20)
    a.e(f"s_add_u32 s58, s6, {WS_FLAG}"); a.e("s_addc_u32 s59, s7, 0")
    srd(a, S_FL, 58, 256 * 128)
    a.e(f"v_readfirstlane_b32 s{sNonce}, v126")
    a.e(f"s_cmp_eq_u32 s{sNonce}, 0"); a.e(f"s_cselect_b32 s{sNonce}, s70, s{sNonce}")
    vDMA = 4; vKR = 5; vVR = 6; vTHR = 7; vNEG = 8; vPOLL = 9; vMT = 10
    vLS = 40; vM = 42; vLP = 44; vE = 46; NE = 8
    FR = 72; NB = 8
    C = 104; P = 112; S = 128; Q = 160; O = 192
    a.e(f"s_lshr_b32 s{sT0}, s{sW}, 1"); a.e(f"s_lshl_b32 s{sT0}, s{sT0}, 13")
    act_read_addr(a, vRX, vL, vT, sT0)
    a.e(f"s_mov_b32 s{sT0}, {WSL[0]}"); a.e(f"s_and_b32 s{sT1}, s{sW}, 1"); a.e(f"s_lshl_b32 s{sT1}, s{sT1}, 2")
    w_read_addr(a, vRWq, vL, vT, sT0, sT1, sT2)
    SETS = [64, 128]
    def q_reads(F, ks2):
        r = []
        for d in range(4):
            r.append(f"ds_read_b64_tr_b16 {v(F+16+4*d,2)}, v{vRWq+d} offset:{ks2*8192}")
            r.append(f"ds_read_b64_tr_b16 {v(F+16+4*d+2,2)}, v{vRWq+d} offset:{ks2*8192+1024}")
            r.append(f"ds_read_b128 {v(F+4*d,4)}, v{vRX+ks2} offset:{d*2048}")
        return r
    def q_mfmas(F, first=False):
        return [f"{MF} {v(O+(t*4+d)*4,4)}, {v(F+16+4*d,4)}, {v(F+4*t,4)}, {'0' if first else v(O+(t*4+d)*4,4)}" for t in range(4) for d in range(4)]
    def spread(ms, fill, upto):
        out = []; k = 0
        for i, m in enumerate(ms):
            out.append(m)
            tgt = min(len(fill), (len(fill) * (i + 1) + upto - 1) // upto)
            while k < tgt:
                out.append(fill[k]); k += 1
        return out
    for x in q_reads(SETS[0], 0): a.e(x)
    a.e(f"s_lshl_b32 s{sT0}, s{sWL}, 12"); a.e(f"v_add_u32 v{vDMA}, s{sT0}, v{vL16}")
    a.e(f"s_lshl_b32 s{sT1}, s{sG}, 14"); a.e(f"v_add_u32 v{vKR}, s{sT1}, v{vL16}"); a.e(f"v_add_u32 v{vVR}, {VRING}, v{vKR}")
    a.e(f"s_add_u32 s{sM0K}, s{sT0}, s{sT1}"); a.e(f"s_add_u32 s{sM0V}, s{sM0K}, {VRING}")
    a.e(f"s_lshl_b32 s{sKoff}, s{sH}, 20"); a.e(f"s_add_u32 s{sVoff}, s{sKoff}, 16384"); a.e(f"s_add_u32 s{sJump}, s{sKoff}, {17*32768}")
    a.e(f"s_mov_b32 s{sKt}, 0"); a.e(f"s_mov_b32 s{sVt}, 0")
    a.e(f"s_lshl_b32 s{sT0}, s{sP}, 1"); a.e(f"s_add_u32 s{sT0}, s{sT0}, 2"); a.e(f"s_sub_u32 s{sT1}, 15, s{sP}")
    a.e(f"s_cmp_eq_u32 s{sG}, 0")
    a.e(f"s_cselect_b32 s{sTA}, s{sT0}, 99"); a.e(f"s_cselect_b32 s{sI}, s{sT0}, 17"); a.e(f"s_cselect_b32 s{sTile}, s{sP}, s{sT1}")
    a.e(f"s_cselect_b32 s{sSeg}, 0, 1")
    a.e(f"s_sub_u32 s{sI}, s{sI}, 1")
    a.e(f"s_lshl_b32 s{sR}, s{sTile}, 2"); a.e(f"s_sub_u32 s{sR}, 0, s{sR}")
    a.e(f"s_mov_b32 s{sTH}, {LTHR}"); a.e(f"v_mov_b32 v{vNEG}, {NEG}")
    a.e(f"s_lshl_b32 s{sT0}, s{sWL}, 5"); a.e(f"v_and_b32 v{vT}, 15, v{vL}"); a.e(f"v_add_u32 v{vT}, s{sT0}, v{vT}")
    a.e(f"v_lshrrev_b32 v{vT+1}, 4, v{vL}"); a.e(f"v_lshlrev_b32 v{vT+1}, 2, v{vT+1}"); a.e(f"v_sub_u32 v{vTHR}, v{vT}, v{vT+1}")
    a.e(f"s_lshl_b32 s{sT0}, s{sH}, 10"); a.e(f"v_and_b32 v{vMT}, 7, v{vL}"); a.e(f"v_lshl_add_u32 v{vMT}, v{vMT}, 7, s{sT0}")
    def kv_dma(isK):
        off, m0 = (sKoff, sM0K) if isK else (sVoff, sM0V)
        return [f"s_mov_b32 m0, s{m0}", "s_nop 0"] + [f"buffer_load_dwordx4 v{vDMA}, s[{S_KV}:{S_KV+3}], s{off} offen offset:{i*1024}{'' if 'inv' in X else ' sc1'} lds" for i in range(4)]
    def kv_adv(isK):
        off, tt, m0 = (sKoff, sKt, sM0K) if isK else (sVoff, sVt, sM0V)
        return [f"s_xor_b32 s{m0}, s{m0}, 0x8000", f"s_add_u32 s{tt}, s{tt}, 1", f"s_add_u32 s{off}, s{off}, 32768",
                f"s_add_u32 s{sT2}, s{sJump}, {0 if isK else 16384}", f"s_cmp_eq_u32 s{tt}, s{sTA}", f"s_cselect_b32 s{off}, s{sT2}, s{off}",
                f"s_cmp_ge_u32 s{tt}, 17", f"s_cselect_b32 s{off}, {OOB}, s{off}"]
    NA = [2, 2, 2, 2] + [0] * 6; NBs = [2, 2, 2, 2] + [0] * 6
    if "st5" in X: NA = [2, 2, 2, 2, 2] + [0] * 5; NBs = [1, 1, 1, 1, 2] + [0] * 5
    if "st3" in X: NA = [3, 3, 3] + [0] * 7; NBs = [3, 2, 2] + [0] * 7
    lastst = max(i for i in range(9) if NA[i] + NBs[i])
    sdone = [0]
    def add_stores(fl, n, marks):
        out = []; nm = 0; marks = list(marks[:n])
        for x in fl:
            out.append(x)
            if x.startswith("v_mfma"):
                nm += 1
                if marks and nm == marks[0]:
                    marks.pop(0); out += kv_store(sdone[0]); sdone[0] += 1
        return out
    for it in range(9):
        if "qst" in X: _at(2 + it)
        a.e("s_waitcnt lgkmcnt(0)")
        fl = add_stores(spread(q_mfmas(SETS[0], it == 0), q_reads(SETS[1], 1), 12), NA[it], [4, 12] if NA[it] < 3 else [3, 8, 13])
        for x in fl: a.e(x)
        if it < 8:
            if it == 7:
                lw = a.uid(f"{name}_nw7"); lp = a.uid(f"{name}_poll")
                a.e("s_waitcnt vmcnt(0)")
                a.e(f"s_cmp_lg_u32 s{sW}, 7"); a.e(f"s_cbranch_scc1 {lw}")
                a.e(f"s_mov_b32 s{sT1}, 0")
                a.e(f"{lp}:")
                a.e(f"v_cmp_ne_u32 vcc, s{sNonce}, v{vPOLL}")
                a.e(f"s_add_u32 s{sT1}, s{sT1}, 1")
                a.e(f"s_cbranch_vccz {lw}")
                a.e(f"s_cmp_ge_u32 s{sT1}, 0x40000"); a.e(f"s_cbranch_scc1 {lw}")
                a.e("s_sleep 1")
                a.e(f"buffer_load_dword v{vPOLL}, v{vMT}, s[{S_FL}:{S_FL+3}], 0 offen sc1")
                a.e("s_waitcnt vmcnt(0)")
                a.e(f"s_branch {lp}")
                a.e(f"{lw}:")
                a.e("s_waitcnt lgkmcnt(0)")
            else:
                a.e(f"s_waitcnt lgkmcnt(0) vmcnt({6 + NA[it] + (NA[it-1] + NBs[it-1] if it else 0)})")
            a.e("s_barrier")
            dx = XS[(it+1) % 3] - XS[it % 3]; dw = WSL[(it+1) % 3] - WSL[it % 3]
            for r in (vRX, vRX+1): a.e(f"v_add_u32 v{r}, {dx & 0xffffffff}, v{r}")
            for r in range(vRWq, vRWq+4): a.e(f"v_add_u32 v{r}, {dw & 0xffffffff}, v{r}")
            sig = []
            if it == lastst + 2:
                ls = a.uid(f"{name}_sig")
                sig = [f"s_cmp_lg_u32 s{sW}, 7", f"s_cbranch_scc1 {ls}", f"v_mov_b32 v{vPOLL}, s{sNonce}", f"s_lshl_b32 s{sT0}, s{sP}, 7", "s_mov_b64 exec, 1",
                       f"buffer_store_dword v{vPOLL}, v{vMT}, s[{S_FL}:{S_FL+3}], s{sT0} offen sc1", "s_mov_b64 exec, -1", ls + ":"]
            if it == 6:
                ls = a.uid(f"{name}_pl")
                sig += [f"s_cmp_lg_u32 s{sW}, 7", f"s_cbranch_scc1 {ls}", f"buffer_load_dword v{vPOLL}, v{vMT}, s[{S_FL}:{S_FL+3}], 0 offen sc1", ls + ":"]
            if it < 6: dm = qdma(it + 3)
            elif it == 6: dm = []
            else: dm = kv_dma(True) + kv_adv(True) + kv_dma(True) + kv_adv(True)
            for x in sig: a.e(x)
            ms = q_mfmas(SETS[1])
            for x in add_stores(spread(ms[:8], q_reads(SETS[0], 0), 8), NBs[it], [2, 6, 8]): a.e(x)
            for x in spread(ms[8:], dm, 8): a.e(x)
        else:
            a.e("s_waitcnt lgkmcnt(0)")
            a.e("s_barrier")
            for x in spread(q_mfmas(SETS[1]), kv_dma(False) + kv_adv(False), 16): a.e(x)
    st.at(6)
    if "qst" in X: _at(11)
    a.e(f"s_lshr_b32 s{sT0}, s{sW}, 1"); a.e(f"s_and_b32 s{sT1}, s{sT0}, 1"); a.e(f"s_lshl_b32 s{sT1}, s{sT1}, 14")
    a.e(f"s_lshl_b32 s{sT0}, s{sG}, 15"); a.e(f"s_sub_u32 s{sT0}, s{sT1}, s{sT0}")
    a.e(f"s_and_b32 s{sT1}, s{sW}, 1"); a.e(f"s_lshl_b32 s{sT1}, s{sT1}, 11"); a.e(f"s_add_u32 s{sT0}, s{sT0}, s{sT1}")
    a.e(f"s_add_u32 s{sT0}, s{sT0}, {QSTASH}"); a.e(f"v_add_u32 v{vT}, s{sT0}, v{vL16}")
    a.e(f"s_mov_b32 s{sT1}, {QSCALE}")
    a.e("s_nop 2")
    for t in range(4):
        for x in range(2):
            PK = FR + ((t*2+x) % 4) * 4
            t0 = O + (t*4 + 2*x)*4
            for j in range(8): a.e(f"v_mul_f32 v{t0+j}, s{sT1}, v{t0+j}")
            for j in range(4): a.e(f"v_cvt_pk_bf16_f32 v{PK+j}, v{t0+2*j}, v{t0+2*j+1}")
            a.e(f"ds_write_b128 v{vT}, {v(PK,4)} offset:{t*4096 + x*1024}")
    a.e("s_waitcnt lgkmcnt(0) vmcnt(8)")
    a.e("s_barrier")
    a.e(f"s_lshl_b32 s{sT0}, s{sWL}, 13"); a.e(f"s_lshl_b32 s{sT1}, s{sG}, 15"); a.e(f"s_add_u32 s{sT0}, s{sT0}, s{sT1}")
    a.e(f"s_add_u32 s{sT0}, s{sT0}, {QTMP}"); a.e(f"v_add_u32 v{vT}, s{sT0}, v{vL16}")
    for f in range(8): a.e(f"ds_read_b128 {v(Q+4*f,4)}, v{vT} offset:{f*1024}")
    if "noprio" not in X:
        a.e(f"s_cmp_eq_u32 s{sG}, 0"); a.e(f"s_cbranch_scc1 {name}_np"); a.e("s_setprio 1"); a.label(f"{name}_np")
    st.at(7)

    Sr = lambda buf, kt, qt: S + buf*16 + (kt*2+qt)*4
    Pr = lambda buf, qt: P + buf*8 + qt*4
    Or = lambda dt, qt: O + (dt*2+qt)*4
    def slot_k(b, n):
        kt, ds = n >> 2, n & 3
        rd = lambda f: f"ds_read_b128 {v(f,4)}, v{vKR} offset:{((2*b+kt)*4+ds)*1024}"
        def ms(f, czero=False):
            return [f"{MF} {v(Sr(b,kt,qt),4)}, {v(f,4)}, {v(Q+(qt*4+ds)*4,4)}, " + (("0" if czero else v(C+4*qt,4)) if ds == 0 else v(Sr(b,kt,qt),4)) for qt in range(2)]
        return rd, ms
    def slot_v(b, dt):
        rd = lambda f: f"ds_read_b128 {v(f,4)}, v{vVR} offset:{(b*8+dt)*1024}"
        ms = lambda f: [f"{MF} {v(Or(dt,qt),4)}, {v(f,4)}, {v(Pr(b,qt),4)}, {v(Or(dt,qt),4)}" for qt in range(2)]
        return rd, ms
    def mask_block(buf, ret):
        a.e(f"s_lshl_b32 s{sT0}, s{sR}, 5"); a.e(f"v_subrev_u32 v{vMT}, s{sT0}, v{vTHR}")
        items = [(kt, qt, rr) for kt in range(2) for qt in range(2) for rr in range(4)]
        for base in range(0, 16, 4):
            for n, (kt, qt, rr) in enumerate(items[base:base+4]):
                a.e(f"v_cmp_le_i32 s[{sMSK+2*n}:{sMSK+2*n+1}], {16*kt+rr-16*qt}, v{vMT}")
            for n, (kt, qt, rr) in enumerate(items[base:base+4]):
                x = Sr(buf,kt,qt)+rr
                a.e(f"v_cndmask_b32 v{x}, v{vNEG}, v{x}, s[{sMSK+2*n}:{sMSK+2*n+1}]")
        a.e(f"s_branch {ret}")
    def mask_hook(buf):
        h = a.uid(f"{name}_mask"); r = a.uid(f"{name}_mret")
        ool.append((h, lambda: mask_block(buf, r)))
        return [f"s_cmp_ge_i32 s{sR}, 0", f"s_cbranch_scc1 {h}", r + ":", f"s_add_u32 s{sR}, s{sR}, 1"]
    def exp_code(buf):
        r = []; pend = []; k = 0
        for qt in range(2):
            for kt in range(2):
                x = Sr(buf,kt,qt)
                for hf in range(2):
                    e0 = vE + (k % NE); e1 = vE + ((k + 1) % NE); k += 2
                    r.append(f"v_exp_f32 v{e0}, v{x+2*hf}")
                    if pend: r.append(pend.pop(0))
                    r.append(f"v_exp_f32 v{e1}, v{x+2*hf+1}")
                    if pend: r.append(pend.pop(0))
                    if pend: r.append(pend.pop(0))
                    if kt == 0 and hf == 0: pend.append(f"v_add_f32 v{vLP+qt}, v{e0}, v{e1}")
                    else: pend += [f"v_add_f32 v{vLP+qt}, v{vLP+qt}, v{e0}"]
                    pend.append(f"v_cvt_pk_bf16_f32 v{Pr(buf,qt)+2*kt+hf}, v{e0}, v{e1}")
                    if not (kt == 0 and hf == 0): pend.append(f"v_add_f32 v{vLP+qt}, v{vLP+qt}, v{e1}")
        return r + ["s_nop 0"] + pend
    lacc = [f"v_add_f32 v{vLS}, v{vLS}, v{vLP}", f"v_add_f32 v{vLS+1}, v{vLS+1}, v{vLP+1}"]
    def xlane(op, x, t):
        return [f"v_mov_b32 v{t}, v{x}", "s_nop 1", f"v_permlane16_swap_b32 v{x}, v{t}", f"{op} v{x}, v{x}, v{t}",
                f"v_mov_b32 v{t}, v{x}", "s_nop 1", f"v_permlane32_swap_b32 v{x}, v{t}", f"{op} v{x}, v{x}, v{t}"]
    def rare_block(sbuf, other, ret):
        a.e("s_nop 7")
        for qt in range(2):
            d = vT + qt; f = vT + 2 + qt
            x0, x1 = Sr(sbuf,0,qt), Sr(sbuf,1,qt)
            a.e(f"v_max3_f32 v{d}, v{x0}, v{x0+1}, v{x0+2}"); a.e(f"v_max3_f32 v{d}, v{d}, v{x0+3}, v{x1}")
            a.e(f"v_max3_f32 v{d}, v{d}, v{x1+1}, v{x1+2}"); a.e(f"v_max3_f32 v{d}, v{d}, v{x1+3}, 0")
            for x in xlane("v_max_f32", d, vT + 4): a.e(x)
            a.e(f"v_sub_f32 v{f}, 0, v{d}"); a.e(f"v_exp_f32 v{f}, v{f}")
            for b_ in ([sbuf, 1 - sbuf] if other else [sbuf]):
                for kt in range(2):
                    for rr in range(4): a.e(f"v_sub_f32 v{Sr(b_,kt,qt)+rr}, v{Sr(b_,kt,qt)+rr}, v{d}")
            for rr in range(4): a.e(f"v_sub_f32 v{C+4*qt+rr}, v{C+4*qt+rr}, v{d}")
            a.e(f"v_add_f32 v{vM+qt}, v{vM+qt}, v{d}"); a.e(f"v_mul_f32 v{vLS+qt}, v{vLS+qt}, v{f}")
            for dt in range(8):
                for rr in range(4): a.e(f"v_mul_f32 v{Or(dt,qt)+rr}, v{Or(dt,qt)+rr}, v{f}")
        for x in exp_code(sbuf): a.e(x)
        a.e("s_nop 1")
        a.e(f"s_branch {ret}")
    def check(sbuf, other):
        h = a.uid(f"{name}_rare"); r = a.uid(f"{name}_ret")
        ool.append((h, lambda: rare_block(sbuf, other, r)))
        return [f"v_add_f32 v{vT}, v{vLP}, v{vLP+1}", f"v_cmp_nge_f32 vcc, s{sTH}, v{vT}", f"s_cbranch_vccnz {h}", r + ":"]
    D = 5
    def run_slots(slots, fills, nxt, sync_after=None, sync=None, post={}):
        n = len(slots)
        for sidx, (rd, ms) in enumerate(slots):
            f = FR + 4 * (sidx % NB)
            if sync_after is None: out = min(D - 1, n - 1 - sidx + len(nxt[:max(0, sidx + D - n)]))
            else: out = min(D - 1, n - 1 - sidx) if sidx <= sync_after else None
            if out is not None: a.e(f"s_waitcnt lgkmcnt({out})")
            m = ms(f); fl = fills.get(sidx, []); h = (len(fl) + 1) // 2
            a.e(m[0])
            for x in fl[:h]: a.e(x)
            a.e(m[1])
            for x in fl[h:]: a.e(x)
            t = sidx + D
            if t < n: a.e(slots[t][0](FR + 4 * (t % NB)))
            elif sync_after is None:
                if t - n < len(nxt): a.e(nxt[t - n][0](FR + 4 * (t % NB)))
            elif sidx == sync_after:
                for x in sync: a.e(x)
                for tt in range(n, sidx + D + 1): a.e(nxt[tt - n][0](FR + 4 * (tt % NB)))
            elif sidx > sync_after: a.e(nxt[t - n][0](FR + 4 * (t % NB)))
            for x in post.get(sidx, []): a.e(x)
    def distribute(fills, items, lo, hi):
        n = hi - lo
        for i in range(n):
            fills.setdefault(lo + i, []).extend(items[len(items) * i // n: len(items) * (i + 1) // n])
    toggles = [f"v_xor_b32 v{vKR}, 0x8000, v{vKR}", f"v_xor_b32 v{vVR}, 0x8000, v{vVR}"]
    vslots = lambda b: [slot_v(b, dt) for dt in range(8)]
    kslots = lambda b: [slot_k(b, n) for n in range(8)]

    sNext, sEv = 64, 65
    sRole, sA, sB = 66, 67, 68
    SK, SV, SQ, SSK = 8, 12, 20, 24
    SU, SQT = 8, 12
    KR, VR, QR, WR, TP, PR = 54, 28, 11, 36, 68, 46
    wrow = lambda r: (11 + r) if r < 8 else ((28 + r - 8) if r < 20 else (54 + r - 20))
    PH_LOAD, PH_COMP = 11, 13
    def role():
        ld = a.uid(f"{name}_rd")
        a.e(f"s_and_b32 s{sA}, s2, 7"); a.e(f"s_lshl_b32 s{sA}, s{sA}, 4"); a.e(f"s_lshr_b32 s{sT0}, s2, 4"); a.e(f"s_add_u32 s{sA}, s{sA}, s{sT0}")
        a.e(f"s_bfe_u32 s{sT0}, s2, 0x10003")
        a.e(f"s_sub_u32 s{sT1}, 5, s{sT0}")
        a.e(f"s_mul_i32 s{sB}, s{sT0}, 5"); a.e(f"s_add_u32 s{sB}, s{sB}, s{sW}")
        a.e(f"s_mov_b32 s{sRole}, 1")
        a.e(f"s_cmp_lt_u32 s{sW}, s{sT1}"); a.e(f"s_cbranch_scc1 {ld}")
        a.e(f"s_lshl_b32 s{sT0}, s{sT0}, 2"); a.e(f"s_add_u32 s{sT0}, s{sT0}, s{sW}"); a.e(f"s_sub_u32 s{sT0}, s{sT0}, 5")
        a.e(f"s_and_b32 s{sT1}, s{sA}, 1"); a.e(f"s_mul_i32 s{sB}, s{sT1}, 5"); a.e(f"s_add_u32 s{sB}, s{sB}, s{sT0}")
        a.e(f"s_sub_u32 s{sT1}, 5, s{sT1}"); a.e(f"s_lshr_b32 s{sA}, s{sA}, 1")
        a.e(f"s_cmp_lt_u32 s{sT0}, s{sT1}"); a.e(f"s_cselect_b32 s{sRole}, 2, 0")
        a.e(f"{ld}:")
    def side_hook(ret):
        lL = a.uid(f"{name}_evL"); lC = a.uid(f"{name}_evC"); l2 = a.uid(f"{name}_sl2"); l3 = a.uid(f"{name}_sc2"); lT = a.uid(f"{name}_evT")
        a.e(f"s_cmp_lg_u32 s{sEv}, 0"); a.e(f"s_cbranch_scc1 {lC}")
        a.e(f"{lL}:")
        a.e(f"s_add_u32 s{sNext}, s{sNext}, 2"); a.e(f"s_mov_b32 s{sEv}, 1")
        a.e("s_load_dwordx8 s[56:63], s[0:1], 0"); a.e("s_load_dwordx2 s[70:71], s[0:1], 88")
        role()
        a.e(f"v_lshrrev_b32 v{vT}, 5, v{vL}"); a.e(f"v_and_b32 v{vT+1}, 31, v{vL}")
        a.e("s_waitcnt lgkmcnt(0)")
        a.e(f"s_cmp_eq_u32 s{sRole}, 0"); a.e(f"s_cbranch_scc1 {ret}")
        a.e(f"s_cmp_eq_u32 s{sRole}, 2"); a.e(f"s_cbranch_scc1 {l2}")
        srd(a, SQ, 56, 2048*1152); srd(a, SK, 58, 2048*1152); srd(a, SV, 60, 2048*1152); srd(a, SSK, 62, 576*8)
        a.e(f"s_lshl_b32 s{sT0}, s{sA}, 4"); a.e(f"v_lshl_add_u32 v{vT}, v{vT}, 3, s{sT0}")
        a.e(f"v_mul_u32_u24 v{vT}, 1152, v{vT}"); a.e(f"v_lshl_add_u32 v{vT}, v{vT+1}, 2, v{vT}")
        a.e(f"s_lshl_b32 s{sT0}, s{sB}, 7"); a.e(f"v_add_u32 v{vT}, s{sT0}, v{vT}")
        a.e(f"v_add_u32 v{vT+2}, {(-3456) & 0xffffffff}, v{vT}"); a.e(f"v_add_u32 v{vT+3}, 4608, v{vT}")
        a.e(f"v_lshlrev_b32 v{vT+1}, 4, v{vT+1}"); a.e(f"s_lshl_b32 s{sT0}, s{sB}, 9")
        for i in range(3): a.e(f"buffer_load_dword v{KR+i}, v{vT+2}, s[{SK}:{SK+3}], 0 offen offset:{i*1152}")
        for R_, S_ in ((KR + 3, SK), (VR, SV), (QR, SQ)):
            for i in range(8): a.e(f"buffer_load_dword v{R_+i}, v{vT if i < 4 else vT+3}, s[{S_}:{S_+3}], 0 offen offset:{(i%4)*1152}")
        a.e(f"buffer_load_dwordx4 {v(WR,4)}, v{vT+1}, s[{SSK}:{SSK+3}], s{sT0} offen")
        a.e(f"s_branch {ret}")
        a.e(f"{l2}:")
        srd(a, SQ, 70, 4096*1152)
        a.e(f"s_lshl_b32 s{sT0}, s{sA}, 6"); a.e(f"v_lshl_add_u32 v{vT}, v{vT}, 5, s{sT0}")
        a.e(f"v_mul_u32_u24 v{vT}, 1152, v{vT}"); a.e(f"v_lshl_add_u32 v{vT}, v{vT+1}, 2, v{vT}")
        a.e(f"s_lshl_b32 s{sT0}, s{sB}, 7")
        for i in range(32):
            a.e(f"buffer_load_dword v{wrow(i)}, v{vT}, s[{SQ}:{SQ+3}], s{sT0} offen offset:{(i%4)*1152}")
            if i % 4 == 3: a.e(f"s_add_u32 s{sT0}, s{sT0}, 4608")
        a.e(f"s_branch {ret}")
        a.e(f"{lC}:")
        a.e(f"s_mov_b32 s{sNext}, 99")
        a.e(f"s_cmp_eq_u32 s{sRole}, 0"); a.e(f"s_cbranch_scc1 {ret}")
        a.e(f"v_lshrrev_b32 v{vT}, 5, v{vL}"); a.e(f"v_and_b32 v{vT+1}, 31, v{vL}")
        a.e(f"s_mov_b32 s{sT1}, 0x05040100"); a.e(f"s_mov_b32 s{sT2}, 0x07060302")
        a.e(f"s_cmp_eq_u32 s{sRole}, 2"); a.e(f"s_cbranch_scc1 {l3}")
        a.e(f"s_add_u32 s70, s6, {WS_KVB}"); a.e("s_addc_u32 s71, s7, 0"); srd(a, SU, 70, 576*4096)
        a.e(f"s_add_u32 s70, s6, {WS_QB}"); a.e("s_addc_u32 s71, s7, 0"); srd(a, SQT, 70, 576*4096)
        a.e(f"s_lshl_b32 s{sT0}, s{sA}, 5"); a.e(f"v_lshl_add_u32 v{vT}, v{vT}, 4, s{sT0}")
        a.e(f"v_lshlrev_b32 v{vT+1}, 13, v{vT+1}")
        a.e(f"v_sub_u32 v{vT+2}, 4080, v{vT}"); a.e(f"v_add_u32 v{vT+2}, v{vT+2}, v{vT+1}"); a.e(f"v_add_u32 v{vT}, v{vT}, v{vT+1}")
        a.e(f"s_lshl_b32 s{sT0}, s{sB}, 18")
        for c in range(2):
            sel = sT2 if c else sT1
            for i in range(4): a.e(f"v_perm_b32 v{TP+i}, v{QR+2*i+1}, v{QR+2*i}, s{sel}")
            a.e(f"buffer_store_dwordx4 {v(TP,4)}, v{vT}, s[{SQT}:{SQT+3}], s{sT0} offen")
            AC = vT + 3
            for hf in (1, 0):
                for i in range(6):
                    j = 4 * hf - 2 + i
                    a.e(f"v_perm_b32 v{PR+i}, v{KR+j+2}, v{KR+j+3}, s{sel}")
                for i in range(4): a.e(f"v_dot2_f32_bf16 v{AC+i}, v{PR+2+i}, v{WR+2*c}, 0")
                for i in range(4): a.e(f"v_dot2_f32_bf16 v{AC+i}, v{PR+i}, v{WR+2*c+1}, v{AC+i}")
                for i in range(4):
                    a.e(f"v_and_b32 v{PR+i}, 0xffff0000, v{VR+4*hf+i}" if c else f"v_lshlrev_b32 v{PR+i}, 16, v{VR+4*hf+i}")
                for i in range(4): a.e(f"v_mul_f32 v{AC+i}, v{AC+i}, v{PR+i}")
                o = TP + (0 if hf else 2)
                a.e(f"v_cvt_pk_bf16_f32 v{o}, v{AC+3}, v{AC+2}"); a.e(f"v_cvt_pk_bf16_f32 v{o+1}, v{AC+1}, v{AC}")
            a.e(f"buffer_store_dwordx4 {v(TP,4)}, v{vT+2}, s[{SU}:{SU+3}], s{sT0} offen")
            a.e(f"s_add_u32 s{sT0}, s{sT0}, 4096"); a.e("s_nop 0")
        a.e(f"s_branch {ret}")
        a.e(f"{l3}:")
        a.e(f"s_add_u32 s70, s6, {WS_WOF}"); a.e("s_addc_u32 s71, s7, 0"); srd(a, SU, 70, 8*128*4608)
        a.e(f"s_lshl_b32 s{sT0}, s{sB}, 6"); a.e(f"v_lshl_add_u32 v{vT+1}, v{vT+1}, 1, s{sT0}")
        a.e(f"v_mul_u32_u24 v{vT+2}, 911, v{vT+1}"); a.e(f"v_lshrrev_b32 v{vT+2}, 16, v{vT+2}")
        a.e(f"v_mul_u32_u24 v{vT+3}, 72, v{vT+2}"); a.e(f"v_sub_u32 v{vT+1}, v{vT+1}, v{vT+3}")
        a.e(f"v_lshl_add_u32 v{vT}, v{vT+2}, 7, v{vT}"); a.e(f"s_lshl_b32 s{sT0}, s{sA}, 1"); a.e(f"v_add_u32 v{vT}, s{sT0}, v{vT}")
        a.e(f"v_mul_u32_u24 v{vT}, 4608, v{vT}")
        a.e(f"v_lshrrev_b32 v{vT+2}, 4, v{vT+1}"); a.e(f"v_lshl_add_u32 v{vT}, v{vT+2}, 10, v{vT}")
        a.e(f"v_and_b32 v{vT+1}, 15, v{vT+1}"); a.e(f"v_lshl_add_u32 v{vT}, v{vT+1}, 4, v{vT}")
        a.e(f"v_lshrrev_b32 v{vT+2}, 2, v{vT+2}"); a.e(f"v_lshrrev_b32 v{vT+2}, v{vT+2}, 1"); a.e(f"v_lshlrev_b32 v{vT+2}, 7, v{vT+2}")
        a.e(f"v_add_u32 v{vT+2}, 128, v{vT+2}")
        for g in range(4):
            for c in range(2):
                sel = sT2 if c else sT1
                o = 48 if c else TP
                for i, r in enumerate((4*g, 4*g+2, 16+4*g, 16+4*g+2)):
                    a.e(f"v_perm_b32 v{o+i}, v{wrow(r+1)}, v{wrow(r)}, s{sel}")
                a.e(f"buffer_store_dwordx4 {v(o,4)}, v{vT}, s[{SU}:{SU+3}], 0 offen offset:{16*c}")
            if g < 3: a.e(f"v_add_u32 v{vT}, v{vT}, v{vT+2}")
        a.e(f"s_branch {ret}")
    a.e(f"s_lshr_b32 s{sT0}, s2, 3"); a.e(f"s_mul_i32 s{sT1}, s{sT0}, 37"); a.e(f"s_lshr_b32 s{sT1}, s{sT1}, 8"); a.e(f"s_mul_i32 s{sT1}, s{sT1}, 7")
    a.e(f"s_sub_u32 s{sT0}, s{sT0}, s{sT1}"); a.e(f"s_lshl_b32 s{sNext}, s{sT0}, 1"); a.e(f"s_add_u32 s{sNext}, s{sNext}, 1"); a.e(f"s_mov_b32 s{sEv}, 0")
    if "noside" in X: a.e(f"s_mov_b32 s{sNext}, 99")

    a.label(f"{name}_seg")
    k0 = kslots(0); k1s = kslots(1)
    for t in range(D): a.e(k0[t][0](FR + 4 * t))
    zero = [f"v_mov_b32 v{O+i}, 0" for i in range(64)] + [f"v_mov_b32 v{vLS}, 0", f"v_mov_b32 v{vLS+1}, 0"]
    fills = {}; distribute(fills, zero, 0, 8)
    run_slots([(rd, (lambda ms: (lambda f: ms(f, True)))(ms)) for rd, ms in k0], fills, k1s)
    a.e("s_nop 3")
    for x in mask_hook(0): a.e(x)
    for qt in range(2):
        d = vM + qt; x0, x1 = Sr(0,0,qt), Sr(0,1,qt)
        a.e(f"v_max3_f32 v{d}, v{x0}, v{x0+1}, v{x0+2}"); a.e(f"v_max3_f32 v{d}, v{d}, v{x0+3}, v{x1}")
        a.e(f"v_max3_f32 v{d}, v{d}, v{x1+1}, v{x1+2}"); a.e(f"v_max_f32 v{d}, v{d}, v{x1+3}")
    for x0_, x1_ in zip(xlane("v_max_f32", vM, vT + 4), xlane("v_max_f32", vM + 1, vT + 5)):
        a.e(x0_)
        if not x1_.startswith("s_nop"): a.e(x1_)
    for qt in range(2):
        for rr in range(4): a.e(f"v_sub_f32 v{C+4*qt+rr}, 0, v{vM+qt}")
    sub0 = [f"v_sub_f32 v{Sr(0,kt,qt)+rr}, v{Sr(0,kt,qt)+rr}, v{vM+qt}" for qt in range(2) for kt in range(2) for rr in range(4)]
    fills = {}; distribute(fills, sub0 + exp_code(0), 0, 8)
    labA = a.uid(f"{name}_wa")
    sync = ["s_waitcnt lgkmcnt(0)", f"s_cmp_lg_u32 s{sKt}, 2", f"s_cbranch_scc1 {labA}", "s_waitcnt vmcnt(0)", labA + ":", "s_waitcnt vmcnt(8)",
            "s_barrier", f"v_xor_b32 v{vKR}, 0x8000, v{vKR}"]
    run_slots(k1s, fills, vslots(0), sync_after=4, sync=sync)
    a.e(f"s_mov_b32 s{sN}, 0")
    a.e(f"s_cmp_eq_u32 s{sI}, 0")
    a.e(f"s_cbranch_scc1 {name}_tail")
    dK, dV = kv_dma(True), kv_dma(False)
    a.label(f"{name}_loop")
    if "phst" in X or "phst2" in X:
        for i in range(10):
            l_ = a.uid("phst"); a.e(f"s_cmp_lg_u32 s{sVt}, {i + (1 if 'phst' in X else 7)}"); a.e(f"s_cbranch_scc1 {l_}"); _at(2 + i); a.e("s_waitcnt lgkmcnt(0)"); a.e(l_ + ":")
    hk = a.uid(f"{name}_side"); hr = a.uid(f"{name}_sret")
    ool.append((hk, lambda: side_hook(hr)))
    a.e(f"s_cmp_eq_u32 s{sVt}, s{sNext}"); a.e(f"s_cbranch_scc1 {hk}"); a.e(f"{hr}:")
    slots = vslots(0) + kslots(0) + vslots(1) + kslots(1)
    fills = {}; post = {}
    fills[0] = list(lacc); fills[16] = list(lacc)
    post[1] = mask_hook(1); post[17] = mask_hook(0)
    distribute(fills, exp_code(1), 2, 16); post[15] = check(1, True)
    distribute(fills, exp_code(0), 18, 32); post[31] = check(0, True)
    f2 = {0: dK[:2], 1: [dK[2]], 4: [dK[3]], 7: [dK[4]], 10: [dK[5]], 12: dV[:2], 13: [dV[2]], 15: [dV[3]], 17: [dV[4]], 19: [dV[5]]}
    distribute(f2, kv_adv(True) + kv_adv(False) + [f"s_add_u32 s{sN}, s{sN}, 1"], 21, 27)
    for k_, v_ in f2.items(): fills[k_] = v_ + fills.get(k_, [])
    run_slots(slots, fills, vslots(0), sync_after=28, sync=["s_waitcnt lgkmcnt(0) vmcnt(0)", "s_barrier"] + toggles, post=post)
    a.e(f"s_cmp_lt_u32 s{sN}, s{sI}")
    a.e(f"s_cbranch_scc1 {name}_loop")
    a.label(f"{name}_tail")
    nd = a.uid(f"{name}_nd")
    a.e(f"s_cmp_lg_u32 s{sSeg}, 0"); a.e(f"s_cbranch_scc1 {nd}")
    for x in dK + dV + kv_adv(True) + kv_adv(False): a.e(x)
    a.e(f"{nd}:")
    fills = {0: list(lacc), 8: list(lacc)}; post = {1: mask_hook(1), 7: check(1, False) + ["s_nop 0"]}
    distribute(fills, exp_code(1), 2, 8)
    run_slots(vslots(0) + vslots(1), fills, [], post=post)
    for x0_, x1_ in zip(xlane("v_add_f32", vLS, vT + 4), xlane("v_add_f32", vLS + 1, vT + 5)):
        a.e(x0_)
        if not x1_.startswith("s_nop"): a.e(x1_)
    a.e(f"s_lshl_b32 s{sT0}, s{sTile}, 3"); a.e(f"s_lshl_b32 s{sT1}, s{sWL}, 1"); a.e(f"s_add_u32 s{sT0}, s{sT0}, s{sT1}")
    a.e(f"s_lshl_b32 s{sT0}, s{sT0}, 17"); a.e(f"s_lshl_b32 s{sT1}, s{sH}, 12"); a.e(f"s_add_u32 s{sT0}, s{sT0}, s{sT1}")
    a.e(f"s_cmp_lg_u32 s{sSeg}, 0"); a.e(f"s_cbranch_scc1 {name}_final")
    a.e(f"s_lshl_b32 s{sT1}, s{sWL}, 13"); a.e(f"s_add_u32 s{sT1}, s{sT1}, {QSTASH}"); a.e(f"v_add_u32 v{vT+6}, s{sT1}, v{vL16}")
    for f in range(8): a.e(f"ds_read_b128 {v(Q+4*f,4)}, v{vT+6} offset:{f*1024}")
    a.e(f"v_rcp_f32 v{vT}, v{vLS}"); a.e(f"v_rcp_f32 v{vT+1}, v{vLS+1}")
    a.e(f"s_add_u32 s{sT1}, s{sT0}, 131072")
    for x in range(4):
        for qt in range(2):
            PK = S + ((x*2+qt) % 8) * 4
            for dt in (2*x, 2*x+1):
                for rr in range(4): a.e(f"v_mul_f32 v{Or(dt,qt)+rr}, v{Or(dt,qt)+rr}, v{vT+qt}")
            a.e(f"v_cvt_pk_bf16_f32 v{PK}, v{Or(2*x,qt)}, v{Or(2*x,qt)+1}"); a.e(f"v_cvt_pk_bf16_f32 v{PK+1}, v{Or(2*x,qt)+2}, v{Or(2*x,qt)+3}")
            a.e(f"v_cvt_pk_bf16_f32 v{PK+2}, v{Or(2*x+1,qt)}, v{Or(2*x+1,qt)+1}"); a.e(f"v_cvt_pk_bf16_f32 v{PK+3}, v{Or(2*x+1,qt)+2}, v{Or(2*x+1,qt)+3}")
            a.e(f"buffer_store_dwordx4 {v(PK,4)}, v{vL16}, s[{S_CT}:{S_CT+3}], s{sT1 if qt else sT0} offen offset:{x*1024}")
    a.e(f"v_xor_b32 v{vVR}, 0x8000, v{vVR}")
    a.e(f"s_mov_b32 s{sSeg}, 1")
    a.e(f"s_sub_u32 s{sTile}, 15, s{sP}")
    a.e(f"s_lshl_b32 s{sT0}, s{sP}, 1"); a.e(f"s_sub_u32 s{sI}, 14, s{sT0}")
    a.e(f"s_lshl_b32 s{sR}, s{sTile}, 2"); a.e(f"s_sub_u32 s{sR}, 34, s{sR}")
    st.at(8)
    if diag: a.e("s_waitcnt lgkmcnt(0)")
    a.e(f"s_branch {name}_seg")
    a.label(f"{name}_final")
    st.at(9)
    vOWN, vPAR, vOM, vPM = vT + 6, vT + 7, vT + 8, vT
    a.e(f"s_lshl_b32 s{sT1}, s{sW}, 13"); a.e(f"v_add_u32 v{vOWN}, s{sT1}, v{vL16}"); a.e(f"v_xor_b32 v{vPAR}, 0x8000, v{vOWN}")
    a.e(f"s_lshl_b32 s{sT1}, s{sW}, 10"); a.e(f"s_add_u32 s{sT1}, s{sT1}, {QSTASH}"); a.e(f"v_add_u32 v{vOM}, s{sT1}, v{vL16}"); a.e(f"v_xor_b32 v{vPM}, 0x1000, v{vOM}")
    a.e(f"ds_write_b128 v{vOM}, {v(vLS,4)}")
    a.e(f"s_lshl_b32 s{sT1}, s{sG}, 11"); a.e(f"s_add_u32 s{sT0}, s{sT0}, s{sT1}"); a.e(f"s_add_u32 s{sT1}, s{sT0}, 131072")
    lg1 = a.uid(f"{name}_g1"); lgd = a.uid(f"{name}_gd")
    a.e(f"s_cmp_eq_u32 s{sG}, 0"); a.e(f"s_cbranch_scc0 {lg1}")
    XM = 56
    for g in range(2):
        keep = O + 32 * g; send = O + 32 * (1 - g)
        if g == 1: a.label(lg1)
        for n in range(8): a.e(f"ds_write_b128 v{vOWN}, {v(send+4*n,4)} offset:{n*1024}")
        a.e("s_waitcnt lgkmcnt(0)")
        a.e("s_barrier")
        a.e(f"ds_read_b128 {v(XM,4)}, v{vPM}")
        for n in range(8): a.e(f"ds_read_b128 {v(FR+4*n,4)}, v{vPAR} offset:{n*1024}")
        a.e("s_waitcnt lgkmcnt(8)")
        for qt in range(2):
            mm = vE + 4*qt; e0 = mm + 1; e1 = mm + 2
            a.e(f"v_max_f32 v{mm}, v{vM+qt}, v{XM+2+qt}"); a.e(f"v_sub_f32 v{e0}, v{vM+qt}, v{mm}"); a.e(f"v_sub_f32 v{e1}, v{XM+2+qt}, v{mm}")
            a.e(f"v_exp_f32 v{e0}, v{e0}"); a.e(f"v_exp_f32 v{e1}, v{e1}"); a.e("s_nop 0")
            a.e(f"v_mul_f32 v{mm}, v{e0}, v{vLS+qt}"); a.e(f"v_fmac_f32 v{mm}, v{e1}, v{XM+qt}"); a.e(f"v_rcp_f32 v{mm}, v{mm}"); a.e("s_nop 0")
            a.e(f"v_mul_f32 v{e0}, v{e0}, v{mm}"); a.e(f"v_mul_f32 v{e1}, v{e1}, v{mm}")
        for xx in range(2):
            for qt in range(2):
                n0 = (2*xx)*2 + qt; n1 = (2*xx+1)*2 + qt
                for n in (n0, n1):
                    for rr in range(4): a.e(f"v_mul_f32 v{keep+4*n+rr}, v{keep+4*n+rr}, v{vE+4*qt+1}")
                a.e(f"s_waitcnt lgkmcnt({7 - n1})")
                for n in (n0, n1):
                    for rr in range(4): a.e(f"v_fmac_f32 v{keep+4*n+rr}, v{FR+4*n+rr}, v{vE+4*qt+2}")
                PK = S + (xx*2+qt)*4
                a.e(f"v_cvt_pk_bf16_f32 v{PK}, v{keep+4*n0}, v{keep+4*n0+1}"); a.e(f"v_cvt_pk_bf16_f32 v{PK+1}, v{keep+4*n0+2}, v{keep+4*n0+3}")
                a.e(f"v_cvt_pk_bf16_f32 v{PK+2}, v{keep+4*n1}, v{keep+4*n1+1}"); a.e(f"v_cvt_pk_bf16_f32 v{PK+3}, v{keep+4*n1+2}, v{keep+4*n1+3}")
                a.e(f"buffer_store_dwordx4 {v(PK,4)}, v{vL16}, s[{S_CT}:{S_CT+3}], s{sT1 if qt else sT0} offen offset:{xx*1024}")
        if g == 0: a.e(f"s_branch {lgd}")
    a.label(lgd)
    st.at(10)
    if diag: a.e("s_waitcnt vmcnt(0)")
    st.at(11); st.at(12, True)
    st.dump(6, sW)
    a.label(f"{name}_end")
    a.e("s_endpgm")
    i = 0
    while i < len(ool):
        lab, fn = ool[i]; a.label(lab); fn(); i += 1
    a.e = _e
    kernel_desc(a, name, 256, 102)
```

```python
import sys
import k1, k3, ka, build
OFF = int(sys.argv[1]) << 20
for m in (k1, k3, ka):
    for n in ("WS_KV", "WS_CTX", "WS_WOF", "WS_KVB", "WS_QB", "WS_FLAG"):
        if hasattr(m, n): setattr(m, n, getattr(m, n) + OFF)
build.build([build.LA, build.L3], [ka.gen_ka, k3.gen_k3], f"all_off{sys.argv[1]}.s")
```

```python
from asmlib import *
import ko
from k1 import MF, WS_KV, WS_CTX, WS_WOF, WS_KVB, WS_QB, wg_decode, act_dma_offsets, w_dma_offsets, act_read_addr, w_read_addr

QSCALE = 0x3e0293ee
NEG = 0xf149f2ca
LTHR = 0x4e800000
OOB = 0x7ff00000
WS_FLAG = 64 << 20

def gen_ka(a, name="ka_kernel", diag=False, X=(), code_end=None):
    kernel_begin(a, name)
    code_end = f"{name}_code_end"
    st = Stamps(a, diag, 0, 76)
    _at = st.at
    pst = (lambda i: (_at(i), a.e("s_waitcnt lgkmcnt(0)"))) if "prost" in X else (lambda i: None)
    if "qst" in X or "phst" in X or "phst2" in X: st.at = lambda i, real=False: _at(i, real) if (i < 2 or i == 12) else None
    if "gst" in X: st.at = lambda i, real=False: _at(i, real) if (i < 3 or i == 12) else None
    if "prost" in X: st.at = lambda i, real=False: _at(i, real) if (i < 4 or i == 12) else None
    if "kvst" in X:
        _at = st.at
        st.at = lambda i, real=False: _at(i, real) if (i < 4 or i == 12) else None
    _e = a.e
    def e2(x):
        if x.endswith(":"): a.label(x[:-1])
        else: _e(x)
    a.e = e2
    S_C, S_W, S_KV, S_X, S_WQ, S_CT = 8, 12, 16, 20, 24, 28
    sW, sH, sP, sG, sWL = 32, 33, 34, 35, 36
    sT0, sT1, sT2 = 37, 38, 39
    sIT, sKC, sKW, sM0C, sM0W = 40, 41, 42, 43, 44
    sRole, sA, sB = 45, 46, 47
    S_S = 48
    S_DBG = 72
    sI, sN, sKoff, sVoff, sKt, sVt, sM0K, sM0V = 40, 41, 42, 43, 44, 45, 46, 47
    sTA, sJump, sSeg, sR, sTH, sTile, sKX, sKWq = 48, 49, 50, 51, 52, 53, 54, 55
    sMSK = 56
    vL = 1; vL16 = 2; vDUM = 3
    vDC = 4; vDW = 8; vRC = 12; vRW = 14; vST = 18; vT = 19
    vDX = 28; vDWq = 124
    CF = 32; WA, WB = 48, 64; ACC = 128
    XS = [0, 131072, 65536]; WSL = [32768, 49152, 98304]
    VRING = 65536; QTMP = 98304; QSTASH = 131072

    a.e("s_cmp_ge_u32 s2, 256")
    a.e(f"s_cbranch_scc1 {name}_end")
    st.at(0); st.at(1, True)
    a.e("s_load_dwordx8 s[60:67], s[0:1], 48")
    a.e("s_load_dwordx2 s[68:69], s[0:1], 80")
    a.e("s_memrealtime s[70:71]")
    a.e("s_load_dwordx4 s[4:7], s[0:1], 104")
    a.e(f"v_lshrrev_b32 v{vT}, 6, v0")
    a.e(f"v_and_b32 v{vL}, 63, v0")
    a.e(f"v_readfirstlane_b32 s{sW}, v{vT}")
    a.e(f"v_lshlrev_b32 v{vL16}, 4, v{vL}")
    wg_decode(a, sH, sP, sT0, sT1)
    a.e(f"s_lshr_b32 s{sG}, s{sW}, 2")
    a.e(f"s_and_b32 s{sWL}, s{sW}, 3")
    a.e(f"s_lshl_b32 s{sT0}, s{sP}, 8")
    a.e(f"s_lshl_b32 s{sT1}, s{sW}, 5")
    a.e(f"s_add_u32 s{sT0}, s{sT0}, s{sT1}")
    act_dma_offsets(a, vDC, vL, vT, sT0, 1024)
    a.e(f"s_lshl_b32 s{sT0}, s{sWL}, 4")
    a.e(f"s_lshl_b32 s{sT1}, s{sH}, 8")
    w_dma_offsets(a, vDW, vL, vT, sT0, sT1, [(0, 0), (1, 0), (2, 1), (3, 1)])
    a.e(f"s_lshl_b32 s{sM0C}, s{sW}, 12")
    a.e(f"s_add_u32 s{sM0W}, s{sM0C}, 32768")
    a.e(f"s_mov_b32 s{sKC}, 0")
    a.e(f"s_mov_b32 s{sKW}, 0")
    pst(4)
    a.e("s_waitcnt lgkmcnt(0)")
    pst(5)
    srd(a, S_C, 62, 2048 * 1024)
    a.e(f"s_cmp_lt_u32 s{sW}, 4")
    a.e("s_cselect_b32 s46, s66, s68")
    a.e("s_cselect_b32 s47, s67, s69")
    srd(a, S_W, 46, 512 * 8192)
    S_W2 = 28
    dma_c = lambda i, so=sKC: f"buffer_load_dwordx4 v{vDC+i}, s[{S_C}:{S_C+3}], s{so} offen offset:{i*1024} lds"
    dma_w = lambda i, S=S_W: f"buffer_load_dwordx4 v{vDW+i}, s[{S}:{S+3}], s{sKW} offen offset:{i*1024} lds"
    dma_adv = [f"s_add_u32 s{sKC}, s{sKC}, 128", f"s_add_u32 s{sKW}, s{sKW}, {64*8192}",
               f"s_xor_b32 s{sM0C}, s{sM0C}, 0x10000", f"s_xor_b32 s{sM0W}, s{sM0W}, 0x10000"]
    a.e(f"s_mov_b32 m0, s{sM0C}"); a.e("s_nop 0")
    for i in range(4): a.e(dma_c(i))
    a.e(f"s_mov_b32 m0, s{sM0W}"); a.e("s_nop 0")
    for i in range(4): a.e(dma_w(i))
    for x in dma_adv: a.e(x)
    pst(6)
    a.e(f"s_add_u32 s{S_KV}, s6, {WS_KV}"); a.e(f"s_addc_u32 s{S_KV+1}, s7, 0")
    srd(a, S_KV, S_KV, 32 << 20)
    srd(a, S_X, 60, 2048 * 1152)
    srd(a, S_WQ, 64, 576 * 8192)
    srd(a, S_W2, 68, 512 * 8192)
    srd(a, 72, 4, 256)
    a.e("s_barrier")
    pst(7)
    sGW = 3
    PX, PC, PWQ, PWK, PWV = 60, 62, 64, 66, 68
    def touch(parts, R=46):
        base = 0; RS = R + 2
        a.e(f"s_mov_b32 s{R}, s6"); a.e(f"s_mov_b32 s{R+1}, s7"); a.e(f"s_mov_b32 s{sT0}, 0"); a.e(f"s_mov_b32 s{RS}, 1024")
        for (lo, start, n, wt) in parts:
            a.e(f"s_sub_u32 s{sT1}, s{sGW}, {base}"); a.e(f"s_lshl_b32 s{sT2}, s{sT1}, {16 if wt == 1 else 13}")
            if start: a.e(f"s_add_u32 s{sT2}, s{sT2}, {start}")
            if wt == 1: a.e(f"s_add_u32 s{sT2}, s{sT2}, s59")
            if wt >= 2:
                a.e(f"s_mul_i32 s58, s59, {8 * n}"); a.e(f"s_add_u32 s{sT2}, s{sT2}, s58")
            a.e(f"s_cmp_lt_u32 s{sT1}, {n}")
            a.e(f"s_cselect_b32 s{sT0}, s{sT2}, s{sT0}"); a.e(f"s_cselect_b32 s{R}, s{lo}, s{R}"); a.e(f"s_cselect_b32 s{R+1}, s{lo+1}, s{R+1}")
            if wt == 1: a.e(f"s_cselect_b32 s{RS}, 8192, s{RS}")
            base += n
        a.e(f"s_add_u32 s{R}, s{R}, s{sT0}"); a.e(f"s_addc_u32 s{R+1}, s{R+1}, 0")
        a.e(f"v_lshrrev_b32 v{vT}, 3, v{vL}"); a.e(f"v_and_b32 v{vT+1}, 7, v{vL}"); a.e(f"v_lshlrev_b32 v{vT+1}, 7, v{vT+1}")
        a.e(f"v_mad_u32_u24 v{vT}, v{vT}, s{RS}, v{vT+1}"); a.e(f"global_load_dword v{vDUM}, v{vT}, s[{R}:{R+1}]")
    WW = lambda r0, n: [(PWK, r0*8192, n // 8, 1), (PWV, r0*8192, n // 8, 1)]
    a.e(f"s_cmp_lt_u32 s{sW}, 4"); a.e(f"s_cbranch_scc1 {name}_nop0")
    a.e(f"s_lshr_b32 s{sGW}, s2, 3"); a.e(f"s_lshl_b32 s{sT0}, s{sWL}, 5"); a.e(f"s_add_u32 s{sGW}, s{sGW}, s{sT0}")
    a.e("s_and_b32 s59, s2, 7"); a.e("s_lshl_b32 s59, s59, 10")
    touch([(PC, 0, 32, 2)] + WW(64, 128))
    a.e("s_getpc_b64 s[28:29]")
    a.e(f"{name}_pc:")
    a.e(f"s_sub_u32 s28, s28, {name}_pc - {name}"); a.e("s_subb_u32 s29, s29, 0")
    a.e("s_and_b32 s29, s29, 0xffff"); a.e(f"s_mov_b32 s30, {code_end} - {name}"); a.e("s_mov_b32 s31, 0x20000")
    a.e(f"s_sub_u32 s{sT0}, s{sGW}, 64"); a.e(f"s_lshl_b32 s{sT0}, s{sT0}, 13"); a.e(f"s_min_u32 s{sT0}, s{sT0}, {OOB}")
    a.e(f"v_lshlrev_b32 v{vT}, 7, v{vL}")
    a.e(f"buffer_load_dword v{vDUM}, v{vT}, s[28:31], s{sT0} offen")
    a.e("s_or_b32 s70, s70, 1")
    a.e("v_mov_b32 v126, s70"); a.e("v_mov_b32 v127, 0"); a.e(f"v_mov_b32 v{vT}, 0")
    a.e(f"s_cmp_eq_u32 s{sW}, 7"); a.e(f"s_cselect_b32 s{sT0}, 0, {OOB}")
    a.e("s_mov_b64 exec, 1")
    a.e(f"buffer_atomic_cmpswap v[126:127], v{vT}, s[72:75], s{sT0} offen sc0 sc1")
    a.e("s_mov_b64 exec, -1")
    a.label(f"{name}_nop0")
    pst(8)
    a.e(f"s_and_b32 s{sT0}, s{sW}, 1"); a.e(f"s_lshl_b32 s{sT0}, s{sT0}, 14")
    act_read_addr(a, vRC, vL, vT, sT0)
    a.e(f"s_lshl_b32 s{sT0}, s{sG}, 14"); a.e(f"s_add_u32 s{sT0}, s{sT0}, 32768")
    a.e(f"s_and_b32 s{sT1}, s{sW}, 2"); a.e(f"s_lshl_b32 s{sT1}, s{sT1}, 1")
    w_read_addr(a, vRW, vL, vT, sT0, sT1, sT2)
    a.e(f"s_lshl_b32 s{sT0}, s{sH}, 20"); a.e(f"s_lshl_b32 s{sT1}, s{sP}, 17"); a.e(f"s_add_u32 s{sT0}, s{sT0}, s{sT1}")
    a.e(f"s_and_b32 s{sT1}, s{sW}, 1"); a.e(f"s_lshl_b32 s{sT1}, s{sT1}, 16"); a.e(f"s_add_u32 s{sT0}, s{sT0}, s{sT1}")
    a.e(f"v_add_u32 v{vST}, s{sT0}, v{vL16}")
    a.e(f"s_sub_u32 s{sT0}, 15, s{sP}"); a.e(f"s_cmp_eq_u32 s{sG}, 0"); a.e(f"s_cselect_b32 s{sT0}, s{sT0}, s{sP}")
    a.e(f"s_lshl_b32 s{sT0}, s{sT0}, 7"); a.e(f"s_lshl_b32 s{sT1}, s{sWL}, 5"); a.e(f"s_add_u32 s{sT0}, s{sT0}, s{sT1}")
    act_dma_offsets(a, vDX, vL, vT, sT0, 1152)
    a.e(f"v_lshrrev_b32 v{vT+2}, 4, v{vL}"); a.e(f"s_lshl_b32 s{sT0}, s{sW}, 3"); a.e(f"v_add_u32 v{vT}, s{sT0}, v{vT+2}")
    a.e(f"v_lshlrev_b32 v{vT}, 13, v{vT}"); a.e(f"s_lshl_b32 s{sT1}, s{sH}, 8"); a.e(f"v_add_u32 v{vT}, s{sT1}, v{vT}")
    a.e(f"v_and_b32 v{vT+1}, 15, v{vL}"); a.e(f"v_lshlrev_b32 v{vT+3}, 1, v{vT+2}"); a.e(f"v_xor_b32 v{vT+1}, v{vT+1}, v{vT+3}")
    a.e(f"s_and_b32 s{sT0}, s{sW}, 1"); a.e(f"s_lshl_b32 s{sT0}, s{sT0}, 3"); a.e(f"v_xor_b32 v{vT+1}, s{sT0}, v{vT+1}")
    a.e(f"v_lshl_add_u32 v{vDWq}, v{vT+1}, 4, v{vT}"); a.e(f"v_add_u32 v{vDWq+1}, {4*8192-1024}, v{vDWq}")
    pst(9)
    for i in range(128): a.e(f"v_mov_b32 v{ACC+i}, 0")
    pst(10)

    def rd_w(W, ks2):
        r = []
        for d in range(4):
            r.append(f"ds_read_b64_tr_b16 {v(W+4*d,2)}, v{vRW+d} offset:{ks2*8192}")
            r.append(f"ds_read_b64_tr_b16 {v(W+4*d+2,2)}, v{vRW+d} offset:{ks2*8192+1024}")
        return r
    rd_c = lambda t, ks2: f"ds_read_b128 {v(CF+4*(t%4),4)}, v{vRC+ks2} offset:{t*2048}"
    def mf(W, t, d, isK):
        acc = v(ACC + (t*4+d)*4, 4); cf = v(CF+4*(t%4), 4); wf = v(W+4*d, 4)
        return f"{MF} {acc}, {wf}, {cf}, {acc}" if isK else f"{MF} {acc}, {cf}, {wf}, {acc}"
    def qdma(stage):
        sl = stage % 3
        r = [f"s_lshl_b32 s{sT0}, s{sW}, 12", f"s_add_u32 m0, s{sT0}, {XS[sl]}", f"s_mov_b32 s{sT1}, {stage*128}"]
        r += [f"buffer_load_dwordx4 v{vDX+i}, s[{S_X}:{S_X+3}], s{sT1} offen offset:{i*1024} lds" for i in range(4)]
        r += [f"s_lshl_b32 s{sT0}, s{sW}, 11", f"s_add_u32 m0, s{sT0}, {WSL[sl]}", f"s_mov_b32 s{sT1}, {stage*64*8192}"]
        r += [f"buffer_load_dwordx4 v{vDWq+i}, s[{S_WQ}:{S_WQ+3}], s{sT1} offen offset:{i*1024} lds" for i in range(2)]
        return r

    ool = []
    def t_ssm():
        a.e("s_load_dwordx2 s[52:53], s[0:1], 32"); a.e("s_waitcnt lgkmcnt(0)"); touch([(52, 0, 36, 2)])
    SCH = {0: [lambda: touch(WW(192, 160))], 1: [lambda: touch(WW(352, 160))], 2: [lambda: touch([(PWQ, 0, 72, 1), (PX, 0, 36, 2)])], 5: [t_ssm]}
    a.e(f"s_cmp_lt_u32 s{sW}, 4"); a.e(f"s_cbranch_scc0 {name}_w3"); a.e("s_waitcnt vmcnt(0)"); a.label(f"{name}_w3")
    NPF = 3
    a.e(f"s_waitcnt vmcnt({NPF})")
    a.e("s_barrier")
    for x in rd_w(WA, 0): a.e(x)
    for t in range(3): a.e(rd_c(t, 0))
    a.e(f"s_mov_b32 s{sIT}, 0")
    a.e(f"s_cmp_lt_u32 s{sW}, 4")
    a.e(f"s_cbranch_scc0 {name}_vloop")
    def kv_iter(isK, last, tag):
        wn = rd_w(WB, 1)
        per = {}
        if last:
            dm = qdma(0) + qdma(1)
            for t in range(8): per[t] = dm[len(dm)*t//8: len(dm)*(t+1)//8]
        elif isK:
            dm = ([f"s_mov_b32 m0, s{sM0C}", f"s_add_u32 s45, s{sKC}, 131072"] + [dma_c(i) for i in range(4)] + [f"s_mov_b32 m0, s{sM0W}", "s_nop 0"] + [dma_w(i) for i in range(4)]
                  + [f"s_add_u32 m0, s{sM0C}, 16384", "s_nop 0"] + [dma_c(i, 45) for i in range(4)] + [f"s_add_u32 m0, s{sM0W}, 16384", "s_nop 0"] + [dma_w(i, S_W2) for i in range(4)] + dma_adv)
            for t in range(10): per[t] = dm[len(dm)*t//10: len(dm)*(t+1)//10]
        for t in range(8):
            a.e(f"s_waitcnt lgkmcnt({[2,4,6,6,6,4,2,2][t]})")
            ms = [mf(WA, t, d, isK) for d in range(4)]
            nt = t + 3
            a.e(ms[0])
            if t < 4: a.e(wn[2*t])
            a.e(ms[1])
            for x in per.get(t, []): a.e(x)
            a.e(ms[2])
            if t < 4: a.e(wn[2*t+1])
            a.e(ms[3])
            a.e(rd_c(nt % 8, 0 if nt < 8 else 1))
        for t in range(6):
            a.e("s_waitcnt lgkmcnt(2)")
            ms = [mf(WB, t, d, isK) for d in range(4)]
            a.e(ms[0]); a.e(ms[1])
            for x in per.get(8 + t, []): a.e(x)
            a.e(ms[2]); a.e(ms[3])
            if t < 5: a.e(rd_c(t + 3, 1))
            if not last and not isK and t == 0:
                r = a.uid(f"{name}_r")
                for itv, fns in SCH.items():
                    h = a.uid(f"{name}_h")
                    def hook(fns=fns, r=r):
                        for fn in fns: fn()
                        a.e(f"s_branch {r}")
                    ool.append((h, hook))
                    a.e(f"s_cmp_eq_u32 s{sIT}, {itv}"); a.e(f"s_cbranch_scc1 {h}")
                a.e(f"{r}:")
        a.e("s_waitcnt lgkmcnt(0)" + (" vmcnt(6)" if last else (" vmcnt(0)" if isK else "")))
        a.e("s_barrier")
        if not last:
            for r in [vRC, vRC+1, vRW, vRW+1, vRW+2, vRW+3]: a.e(f"v_xor_b32 v{r}, 0x10000, v{r}")
            wn = rd_w(WA, 0)
            for d in range(4):
                a.e(mf(WB, 6, d, isK)); a.e(wn[2*d]); a.e(wn[2*d+1])
            a.e(rd_c(0, 0)); a.e(rd_c(1, 0))
            for d in range(4): a.e(mf(WB, 7, d, isK))
            a.e(rd_c(2, 0))
        else:
            dm = qdma(2)
            ms = [mf(WB, 6 + (n >> 2), n & 3, isK) for n in range(8)]
            for n in range(8):
                a.e(ms[n])
                for x in dm[len(dm)*n//8: len(dm)*(n+1)//8]: a.e(x)
    SC1 = " sc1" if "plain" not in X else ""
    sSB = 66; sNonce = 69; S_FL = 72
    PKR = lambda n: (32 + 4 * n) if n < 8 else (160 + 4 * (n - 8))
    def kv_store(n):
        return [f"s_add_u32 s68, s{sSB + ((n >> 1) & 1)}, {((n >> 2) & 1) * 8192 + (n >> 3) * 32768}",
                f"buffer_store_dwordx4 {v(PKR(n),4)}, v{vST}, s[{S_KV}:{S_KV+3}], s68 offen offset:{(n & 1) * 1024}{SC1}"]
    for isK in (True, False):
        tag = "k" if isK else "v"
        a.label(f"{name}_{tag}loop")
        kv_iter(isK, False, tag)
        if "kvst" in X:
            for i in range(7):
                l_ = a.uid("kvst"); a.e(f"s_cmp_lg_u32 s{sIT}, {i}"); a.e(f"s_cbranch_scc1 {l_}"); _at(4 + i); a.e("s_waitcnt lgkmcnt(0)"); a.e(l_ + ":")
        a.e(f"s_add_u32 s{sIT}, s{sIT}, 1"); a.e(f"s_cmp_lt_u32 s{sIT}, 7"); a.e(f"s_cbranch_scc1 {name}_{tag}loop")
        kv_iter(isK, True, tag)
        if "kvend" in X: _at(4)
        if "kvst" in X: _at(11)
        a.e(f"s_and_b32 s{sT1}, s{sW}, 2")
        if isK:
            a.e(f"s_lshl_b32 s{sSB}, s{sT1}, 10"); a.e(f"s_add_u32 s{sSB+1}, s{sSB}, 4096")
        else:
            a.e(f"s_lshl_b32 s{sSB}, s{sT1}, 11"); a.e(f"s_add_u32 s{sSB}, s{sSB}, 16384"); a.e(f"s_add_u32 s{sSB+1}, s{sSB}, 2048")
        for n in range(16):
            P = PKR(n)
            if isK:
                t = n >> 1; x = n & 1
                t0, t1 = ACC + (t*4 + 2*x)*4, ACC + (t*4 + 2*x + 1)*4
            else:
                y = n >> 2; d = n & 3
                t0, t1 = ACC + (2*y*4 + d)*4, ACC + ((2*y+1)*4 + d)*4
            a.e(f"v_cvt_pk_bf16_f32 v{P}, v{t0}, v{t0+1}"); a.e(f"v_cvt_pk_bf16_f32 v{P+1}, v{t0+2}, v{t0+3}")
            a.e(f"v_cvt_pk_bf16_f32 v{P+2}, v{t1}, v{t1+1}"); a.e(f"v_cvt_pk_bf16_f32 v{P+3}, v{t1+2}, v{t1+3}")
        if isK: a.e(f"s_branch {name}_qproj")
    a.label(f"{name}_qproj")
    st.at(5)

    vRX = 12; vRWq = 14
    a.e(f"s_add_u32 s58, s6, {WS_CTX}"); a.e("s_addc_u32 s59, s7, 0")
    srd(a, S_CT, 58, 16 << 20)
    a.e(f"s_add_u32 s58, s6, {WS_FLAG}"); a.e("s_addc_u32 s59, s7, 0")
    srd(a, S_FL, 58, 65536)
    a.e(f"v_readfirstlane_b32 s{sNonce}, v126")
    a.e(f"s_cmp_eq_u32 s{sNonce}, 0"); a.e(f"s_cselect_b32 s{sNonce}, s70, s{sNonce}")
    vDMA = 4; vKR = 5; vVR = 6; vTHR = 7; vNEG = 8; vPOLL = 9; vMT = 10
    vLS = 40; vM = 42; vLP = 44; vE = 46; NE = 8
    FR = 72; NB = 8
    C = 104; P = 112; S = 128; Q = 160; O = 192
    a.e(f"s_lshr_b32 s{sT0}, s{sW}, 1"); a.e(f"s_lshl_b32 s{sT0}, s{sT0}, 13")
    act_read_addr(a, vRX, vL, vT, sT0)
    a.e(f"s_mov_b32 s{sT0}, {WSL[0]}"); a.e(f"s_and_b32 s{sT1}, s{sW}, 1"); a.e(f"s_lshl_b32 s{sT1}, s{sT1}, 2")
    w_read_addr(a, vRWq, vL, vT, sT0, sT1, sT2)
    SETS = [64, 128]
    def q_reads(F, ks2):
        r = []
        for d in range(4):
            r.append(f"ds_read_b64_tr_b16 {v(F+16+4*d,2)}, v{vRWq+d} offset:{ks2*8192}")
            r.append(f"ds_read_b64_tr_b16 {v(F+16+4*d+2,2)}, v{vRWq+d} offset:{ks2*8192+1024}")
            r.append(f"ds_read_b128 {v(F+4*d,4)}, v{vRX+ks2} offset:{d*2048}")
        return r
    def q_mfmas(F, first=False):
        return [f"{MF} {v(O+(t*4+d)*4,4)}, {v(F+16+4*d,4)}, {v(F+4*t,4)}, {'0' if first else v(O+(t*4+d)*4,4)}" for t in range(4) for d in range(4)]
    def spread(ms, fill, upto):
        out = []; k = 0
        for i, m in enumerate(ms):
            out.append(m)
            tgt = min(len(fill), (len(fill) * (i + 1) + upto - 1) // upto)
            while k < tgt:
                out.append(fill[k]); k += 1
        return out
    for x in q_reads(SETS[0], 0): a.e(x)
    a.e(f"s_lshl_b32 s{sT0}, s{sWL}, 12"); a.e(f"v_add_u32 v{vDMA}, s{sT0}, v{vL16}")
    a.e(f"s_lshl_b32 s{sT1}, s{sG}, 14"); a.e(f"v_add_u32 v{vKR}, s{sT1}, v{vL16}"); a.e(f"v_add_u32 v{vVR}, {VRING}, v{vKR}")
    a.e(f"s_add_u32 s{sM0K}, s{sT0}, s{sT1}"); a.e(f"s_add_u32 s{sM0V}, s{sM0K}, {VRING}")
    a.e(f"s_lshl_b32 s{sKoff}, s{sH}, 20"); a.e(f"s_add_u32 s{sVoff}, s{sKoff}, 16384"); a.e(f"s_add_u32 s{sJump}, s{sKoff}, {17*32768}")
    a.e(f"s_mov_b32 s{sKt}, 0"); a.e(f"s_mov_b32 s{sVt}, 0")
    a.e(f"s_lshl_b32 s{sT0}, s{sP}, 1"); a.e(f"s_add_u32 s{sT0}, s{sT0}, 2"); a.e(f"s_sub_u32 s{sT1}, 15, s{sP}")
    a.e(f"s_cmp_eq_u32 s{sG}, 0")
    a.e(f"s_cselect_b32 s{sTA}, s{sT0}, 99"); a.e(f"s_cselect_b32 s{sI}, s{sT0}, 17"); a.e(f"s_cselect_b32 s{sTile}, s{sP}, s{sT1}")
    a.e(f"s_cselect_b32 s{sSeg}, 0, 1")
    a.e(f"s_sub_u32 s{sI}, s{sI}, 1")
    a.e(f"s_lshl_b32 s{sR}, s{sTile}, 2"); a.e(f"s_sub_u32 s{sR}, 0, s{sR}")
    a.e(f"s_mov_b32 s{sTH}, {LTHR}"); a.e(f"v_mov_b32 v{vNEG}, {NEG}")
    a.e(f"s_lshl_b32 s{sT0}, s{sWL}, 5"); a.e(f"v_and_b32 v{vT}, 15, v{vL}"); a.e(f"v_add_u32 v{vT}, s{sT0}, v{vT}")
    a.e(f"v_lshrrev_b32 v{vT+1}, 4, v{vL}"); a.e(f"v_lshlrev_b32 v{vT+1}, 2, v{vT+1}"); a.e(f"v_sub_u32 v{vTHR}, v{vT}, v{vT+1}")
    a.e(f"s_lshl_b32 s{sT0}, s{sH}, 10"); a.e(f"v_and_b32 v{vMT}, 7, v{vL}"); a.e(f"v_lshl_add_u32 v{vMT}, v{vMT}, 7, s{sT0}")
    def kv_dma(isK):
        off, m0 = (sKoff, sM0K) if isK else (sVoff, sM0V)
        return [f"s_mov_b32 m0, s{m0}", "s_nop 0"] + [f"buffer_load_dwordx4 v{vDMA}, s[{S_KV}:{S_KV+3}], s{off} offen offset:{i*1024}{'' if 'inv' in X else ' sc1'} lds" for i in range(4)]
    def kv_adv(isK):
        off, tt, m0 = (sKoff, sKt, sM0K) if isK else (sVoff, sVt, sM0V)
        return [f"s_xor_b32 s{m0}, s{m0}, 0x8000", f"s_add_u32 s{tt}, s{tt}, 1", f"s_add_u32 s{off}, s{off}, 32768",
                f"s_add_u32 s{sT2}, s{sJump}, {0 if isK else 16384}", f"s_cmp_eq_u32 s{tt}, s{sTA}", f"s_cselect_b32 s{off}, s{sT2}, s{off}",
                f"s_cmp_ge_u32 s{tt}, 17", f"s_cselect_b32 s{off}, {OOB}, s{off}"]
    NA = [2, 2, 2, 2] + [0] * 6; NBs = [2, 2, 2, 2] + [0] * 6
    if "st5" in X: NA = [2, 2, 2, 2, 2] + [0] * 5; NBs = [1, 1, 1, 1, 2] + [0] * 5
    if "st3" in X: NA = [3, 3, 3] + [0] * 7; NBs = [3, 2, 2] + [0] * 7
    lastst = max(i for i in range(9) if NA[i] + NBs[i])
    sdone = [0]
    def add_stores(fl, n, marks):
        out = []; nm = 0; marks = list(marks[:n])
        for x in fl:
            out.append(x)
            if x.startswith("v_mfma"):
                nm += 1
                if marks and nm == marks[0]:
                    marks.pop(0); out += kv_store(sdone[0]); sdone[0] += 1
        return out
    for it in range(9):
        if "qst" in X: _at(2 + it)
        a.e("s_waitcnt lgkmcnt(0)")
        fl = add_stores(spread(q_mfmas(SETS[0], it == 0), q_reads(SETS[1], 1), 12), NA[it], [4, 12] if NA[it] < 3 else [3, 8, 13])
        for x in fl: a.e(x)
        if it < 8:
            if it == 7:
                lw = a.uid(f"{name}_nw7"); lp = a.uid(f"{name}_poll")
                a.e("s_waitcnt vmcnt(0)")
                a.e(f"s_cmp_lg_u32 s{sW}, 7"); a.e(f"s_cbranch_scc1 {lw}")
                a.e(f"s_mov_b32 s{sT1}, 0")
                a.e(f"{lp}:")
                a.e(f"v_cmp_ne_u32 vcc, s{sNonce}, v{vPOLL}")
                a.e(f"s_add_u32 s{sT1}, s{sT1}, 1")
                a.e(f"s_cbranch_vccz {lw}")
                a.e(f"s_cmp_ge_u32 s{sT1}, 0x40000"); a.e(f"s_cbranch_scc1 {lw}")
                a.e("s_sleep 1")
                a.e(f"buffer_load_dword v{vPOLL}, v{vMT}, s[{S_FL}:{S_FL+3}], 0 offen sc1")
                a.e("s_waitcnt vmcnt(0)")
                a.e(f"s_branch {lp}")
                a.e(f"{lw}:")
                a.e("s_waitcnt lgkmcnt(0)")
            else:
                a.e(f"s_waitcnt lgkmcnt(0) vmcnt({6 + NA[it] + (NA[it-1] + NBs[it-1] if it else 0)})")
            a.e("s_barrier")
            dx = XS[(it+1) % 3] - XS[it % 3]; dw = WSL[(it+1) % 3] - WSL[it % 3]
            for r in (vRX, vRX+1): a.e(f"v_add_u32 v{r}, {dx & 0xffffffff}, v{r}")
            for r in range(vRWq, vRWq+4): a.e(f"v_add_u32 v{r}, {dw & 0xffffffff}, v{r}")
            sig = []
            if it == lastst + 2:
                ls = a.uid(f"{name}_sig")
                sig = [f"s_cmp_lg_u32 s{sW}, 7", f"s_cbranch_scc1 {ls}", f"v_mov_b32 v{vPOLL}, s{sNonce}", f"s_lshl_b32 s{sT0}, s{sP}, 7", "s_mov_b64 exec, 1",
                       f"buffer_store_dword v{vPOLL}, v{vMT}, s[{S_FL}:{S_FL+3}], s{sT0} offen sc1",
                       "s_mov_b64 exec, -1", ls + ":"]
            if it == 6:
                ls = a.uid(f"{name}_pl")
                sig += [f"s_cmp_lg_u32 s{sW}, 7", f"s_cbranch_scc1 {ls}", f"buffer_load_dword v{vPOLL}, v{vMT}, s[{S_FL}:{S_FL+3}], 0 offen sc1", ls + ":"]
            if it < 6: dm = qdma(it + 3)
            elif it == 6: dm = []
            else: dm = kv_dma(True) + kv_adv(True) + kv_dma(True) + kv_adv(True)
            for x in sig: a.e(x)
            ms = q_mfmas(SETS[1])
            for x in add_stores(spread(ms[:8], q_reads(SETS[0], 0), 8), NBs[it], [2, 6, 8]): a.e(x)
            for x in spread(ms[8:], dm, 8): a.e(x)
        else:
            a.e("s_waitcnt lgkmcnt(0)")
            a.e("s_barrier")
            for x in spread(q_mfmas(SETS[1]), kv_dma(False) + kv_adv(False), 16): a.e(x)
    st.at(6)
    if "qst" in X: _at(11)
    a.e(f"s_lshr_b32 s{sT0}, s{sW}, 1"); a.e(f"s_and_b32 s{sT1}, s{sT0}, 1"); a.e(f"s_lshl_b32 s{sT1}, s{sT1}, 14")
    a.e(f"s_lshl_b32 s{sT0}, s{sG}, 15"); a.e(f"s_sub_u32 s{sT0}, s{sT1}, s{sT0}")
    a.e(f"s_and_b32 s{sT1}, s{sW}, 1"); a.e(f"s_lshl_b32 s{sT1}, s{sT1}, 11"); a.e(f"s_add_u32 s{sT0}, s{sT0}, s{sT1}")
    a.e(f"s_add_u32 s{sT0}, s{sT0}, {QSTASH}"); a.e(f"v_add_u32 v{vT}, s{sT0}, v{vL16}")
    a.e(f"s_mov_b32 s{sT1}, {QSCALE}")
    a.e("s_nop 2")
    for t in range(4):
        for x in range(2):
            PK = FR + ((t*2+x) % 4) * 4
            t0 = O + (t*4 + 2*x)*4
            for j in range(8): a.e(f"v_mul_f32 v{t0+j}, s{sT1}, v{t0+j}")
            for j in range(4): a.e(f"v_cvt_pk_bf16_f32 v{PK+j}, v{t0+2*j}, v{t0+2*j+1}")
            a.e(f"ds_write_b128 v{vT}, {v(PK,4)} offset:{t*4096 + x*1024}")
    a.e("s_waitcnt lgkmcnt(0) vmcnt(8)")
    a.e("s_barrier")
    a.e(f"s_lshl_b32 s{sT0}, s{sWL}, 13"); a.e(f"s_lshl_b32 s{sT1}, s{sG}, 15"); a.e(f"s_add_u32 s{sT0}, s{sT0}, s{sT1}")
    a.e(f"s_add_u32 s{sT0}, s{sT0}, {QTMP}"); a.e(f"v_add_u32 v{vT}, s{sT0}, v{vL16}")
    for f in range(8): a.e(f"ds_read_b128 {v(Q+4*f,4)}, v{vT} offset:{f*1024}")
    if "noprio" not in X:
        a.e(f"s_cmp_eq_u32 s{sG}, 0"); a.e(f"s_cbranch_scc1 {name}_np"); a.e("s_setprio 1"); a.label(f"{name}_np")
    st.at(7)

    Sr = lambda buf, kt, qt: S + buf*16 + (kt*2+qt)*4
    Pr = lambda buf, qt: P + buf*8 + qt*4
    Or = lambda dt, qt: O + (dt*2+qt)*4
    def slot_k(b, n):
        kt, ds = n >> 2, n & 3
        rd = lambda f: f"ds_read_b128 {v(f,4)}, v{vKR} offset:{((2*b+kt)*4+ds)*1024}"
        def ms(f, czero=False):
            return [f"{MF} {v(Sr(b,kt,qt),4)}, {v(f,4)}, {v(Q+(qt*4+ds)*4,4)}, " + (("0" if czero else v(C+4*qt,4)) if ds == 0 else v(Sr(b,kt,qt),4)) for qt in range(2)]
        return rd, ms
    def slot_v(b, dt):
        rd = lambda f: f"ds_read_b128 {v(f,4)}, v{vVR} offset:{(b*8+dt)*1024}"
        ms = lambda f: [f"{MF} {v(Or(dt,qt),4)}, {v(f,4)}, {v(Pr(b,qt),4)}, {v(Or(dt,qt),4)}" for qt in range(2)]
        return rd, ms
    def mask_block(buf, ret):
        a.e(f"s_lshl_b32 s{sT0}, s{sR}, 5"); a.e(f"v_subrev_u32 v{vMT}, s{sT0}, v{vTHR}")
        items = [(kt, qt, rr) for kt in range(2) for qt in range(2) for rr in range(4)]
        for base in range(0, 16, 4):
            for n, (kt, qt, rr) in enumerate(items[base:base+4]):
                a.e(f"v_cmp_le_i32 s[{sMSK+2*n}:{sMSK+2*n+1}], {16*kt+rr-16*qt}, v{vMT}")
            for n, (kt, qt, rr) in enumerate(items[base:base+4]):
                x = Sr(buf,kt,qt)+rr
                a.e(f"v_cndmask_b32 v{x}, v{vNEG}, v{x}, s[{sMSK+2*n}:{sMSK+2*n+1}]")
        a.e(f"s_branch {ret}")
    def mask_hook(buf):
        h = a.uid(f"{name}_mask"); r = a.uid(f"{name}_mret")
        ool.append((h, lambda: mask_block(buf, r)))
        return [f"s_cmp_ge_i32 s{sR}, 0", f"s_cbranch_scc1 {h}", r + ":", f"s_add_u32 s{sR}, s{sR}, 1"]
    def exp_code(buf):
        r = []; pend = []; k = 0
        for qt in range(2):
            for kt in range(2):
                x = Sr(buf,kt,qt)
                for hf in range(2):
                    e0 = vE + (k % NE); e1 = vE + ((k + 1) % NE); k += 2
                    r.append(f"v_exp_f32 v{e0}, v{x+2*hf}")
                    if pend: r.append(pend.pop(0))
                    r.append(f"v_exp_f32 v{e1}, v{x+2*hf+1}")
                    if pend: r.append(pend.pop(0))
                    if pend: r.append(pend.pop(0))
                    if kt == 0 and hf == 0: pend.append(f"v_add_f32 v{vLP+qt}, v{e0}, v{e1}")
                    else: pend += [f"v_add_f32 v{vLP+qt}, v{vLP+qt}, v{e0}"]
                    pend.append(f"v_cvt_pk_bf16_f32 v{Pr(buf,qt)+2*kt+hf}, v{e0}, v{e1}")
                    if not (kt == 0 and hf == 0): pend.append(f"v_add_f32 v{vLP+qt}, v{vLP+qt}, v{e1}")
        return r + ["s_nop 0"] + pend
    lacc = [f"v_add_f32 v{vLS}, v{vLS}, v{vLP}", f"v_add_f32 v{vLS+1}, v{vLS+1}, v{vLP+1}"]
    def xlane(op, x, t):
        return [f"v_mov_b32 v{t}, v{x}", "s_nop 1", f"v_permlane16_swap_b32 v{x}, v{t}", f"{op} v{x}, v{x}, v{t}",
                f"v_mov_b32 v{t}, v{x}", "s_nop 1", f"v_permlane32_swap_b32 v{x}, v{t}", f"{op} v{x}, v{x}, v{t}"]
    def rare_block(sbuf, other, ret):
        a.e("s_nop 7")
        for qt in range(2):
            d = vT + qt; f = vT + 2 + qt
            x0, x1 = Sr(sbuf,0,qt), Sr(sbuf,1,qt)
            a.e(f"v_max3_f32 v{d}, v{x0}, v{x0+1}, v{x0+2}"); a.e(f"v_max3_f32 v{d}, v{d}, v{x0+3}, v{x1}")
            a.e(f"v_max3_f32 v{d}, v{d}, v{x1+1}, v{x1+2}"); a.e(f"v_max3_f32 v{d}, v{d}, v{x1+3}, 0")
            for x in xlane("v_max_f32", d, vT + 4): a.e(x)
            a.e(f"v_sub_f32 v{f}, 0, v{d}"); a.e(f"v_exp_f32 v{f}, v{f}")
            for b_ in ([sbuf, 1 - sbuf] if other else [sbuf]):
                for kt in range(2):
                    for rr in range(4): a.e(f"v_sub_f32 v{Sr(b_,kt,qt)+rr}, v{Sr(b_,kt,qt)+rr}, v{d}")
            for rr in range(4): a.e(f"v_sub_f32 v{C+4*qt+rr}, v{C+4*qt+rr}, v{d}")
            a.e(f"v_add_f32 v{vM+qt}, v{vM+qt}, v{d}"); a.e(f"v_mul_f32 v{vLS+qt}, v{vLS+qt}, v{f}")
            for dt in range(8):
                for rr in range(4): a.e(f"v_mul_f32 v{Or(dt,qt)+rr}, v{Or(dt,qt)+rr}, v{f}")
        for x in exp_code(sbuf): a.e(x)
        a.e("s_nop 1")
        a.e(f"s_branch {ret}")
    def check(sbuf, other):
        h = a.uid(f"{name}_rare"); r = a.uid(f"{name}_ret")
        ool.append((h, lambda: rare_block(sbuf, other, r)))
        return [f"v_add_f32 v{vT}, v{vLP}, v{vLP+1}", f"v_cmp_nge_f32 vcc, s{sTH}, v{vT}", f"s_cbranch_vccnz {h}", r + ":"]
    D = 5
    def run_slots(slots, fills, nxt, sync_after=None, sync=None, post={}):
        n = len(slots)
        for sidx, (rd, ms) in enumerate(slots):
            f = FR + 4 * (sidx % NB)
            if sync_after is None: out = min(D - 1, n - 1 - sidx + len(nxt[:max(0, sidx + D - n)]))
            else: out = min(D - 1, n - 1 - sidx) if sidx <= sync_after else None
            if out is not None: a.e(f"s_waitcnt lgkmcnt({out})")
            m = ms(f); fl = fills.get(sidx, []); h = (len(fl) + 1) // 2
            a.e(m[0])
            for x in fl[:h]: a.e(x)
            a.e(m[1])
            for x in fl[h:]: a.e(x)
            t = sidx + D
            if t < n: a.e(slots[t][0](FR + 4 * (t % NB)))
            elif sync_after is None:
                if t - n < len(nxt): a.e(nxt[t - n][0](FR + 4 * (t % NB)))
            elif sidx == sync_after:
                for x in sync: a.e(x)
                for tt in range(n, sidx + D + 1): a.e(nxt[tt - n][0](FR + 4 * (tt % NB)))
            elif sidx > sync_after: a.e(nxt[t - n][0](FR + 4 * (t % NB)))
            for x in post.get(sidx, []): a.e(x)
    def distribute(fills, items, lo, hi):
        n = hi - lo
        for i in range(n):
            fills.setdefault(lo + i, []).extend(items[len(items) * i // n: len(items) * (i + 1) // n])
    toggles = [f"v_xor_b32 v{vKR}, 0x8000, v{vKR}", f"v_xor_b32 v{vVR}, 0x8000, v{vVR}"]
    vslots = lambda b: [slot_v(b, dt) for dt in range(8)]
    kslots = lambda b: [slot_k(b, n) for n in range(8)]

    sNext, sEv = 64, 65
    sRole, sA, sB = 66, 67, 68
    SK, SV, SQ, SSK = 8, 12, 20, 24
    SU, SQT = 8, 12
    KR, VR, QR, WR, TP, PR = 54, 28, 11, 36, 68, 46
    wrow = lambda r: (11 + r) if r < 8 else ((28 + r - 8) if r < 20 else (54 + r - 20))
    def side_load(rnd):
        l2 = a.uid(f"{name}_sl2"); le = a.uid(f"{name}_sle")
        a.e("s_load_dwordx8 s[56:63], s[0:1], 0"); a.e("s_load_dwordx2 s[70:71], s[0:1], 88")
        a.e(f"s_and_b32 s{sA}, s2, 7"); a.e(f"s_lshl_b32 s{sA}, s{sA}, 3"); a.e(f"s_lshr_b32 s{sT0}, s2, 5"); a.e(f"s_add_u32 s{sA}, s{sA}, s{sT0}")
        a.e(f"s_bfe_u32 s{sT0}, s2, 0x20003")
        a.e(f"s_mul_i32 s{sT1}, s{sT0}, 9"); a.e(f"s_add_u32 s{sT1}, s{sT1}, 1"); a.e(f"s_lshr_b32 s{sT1}, s{sT1}, 1")
        a.e(f"s_add_u32 s{sB}, s{sT1}, s{sW}")
        a.e(f"s_and_b32 s{sT1}, s{sT0}, 1"); a.e(f"s_sub_u32 s{sT1}, 5, s{sT1}")
        a.e(f"s_sub_u32 s{sT2}, s{sW}, s{sT1}")
        a.e(f"s_mul_i32 s{sT0}, s{sT0}, 5"); a.e(f"s_lshr_b32 s{sT0}, s{sT0}, 1"); a.e(f"s_add_u32 s{sT0}, s{sT0}, s{sT2}")
        a.e(f"s_cmp_lt_u32 s{sW}, s{sT1}"); a.e(f"s_cselect_b32 s{sRole}, 1, 2"); a.e(f"s_cselect_b32 s{sB}, s{sB}, s{sT0}"); a.e(f"s_cselect_b32 s{sT0}, 0, s{sT0}")
        a.e(f"s_cmp_ge_u32 s{sT0}, 9"); a.e(f"s_cselect_b32 s{sRole}, 0, s{sRole}")
        a.e(f"s_cmp_eq_u32 s{sW}, 7"); a.e(f"s_cselect_b32 s{sRole}, 0, s{sRole}")
        a.e("s_waitcnt lgkmcnt(0)")
        a.e(f"s_cmp_eq_u32 s{sRole}, 0"); a.e(f"s_cbranch_scc1 {le}")
        a.e(f"s_cmp_eq_u32 s{sRole}, 2"); a.e(f"s_cbranch_scc1 {l2}")
        srd(a, SQ, 56, 2048*1152); srd(a, SK, 58, 2048*1152); srd(a, SV, 60, 2048*1152); srd(a, SSK, 62, 576*8)
        a.e(f"v_lshrrev_b32 v{vT}, 4, v{vL}"); a.e(f"v_and_b32 v{vT+1}, 15, v{vL}")
        a.e(f"s_lshl_b32 s{sT0}, s{sA}, 5"); a.e(f"v_lshl_add_u32 v{vT}, v{vT}, 3, s{sT0}")
        a.e(f"v_mul_u32_u24 v{vT}, 1152, v{vT}"); a.e(f"v_lshl_add_u32 v{vT}, v{vT+1}, 2, v{vT}")
        a.e(f"s_lshl_b32 s{sT0}, s{sB}, 6"); a.e(f"v_add_u32 v{vT}, s{sT0}, v{vT}")
        a.e(f"v_add_u32 v{vT+2}, {(-3456) & 0xffffffff}, v{vT}"); a.e(f"v_add_u32 v{vT+3}, 4608, v{vT}")
        a.e(f"v_lshlrev_b32 v{vT+1}, 4, v{vT+1}"); a.e(f"s_lshl_b32 s{sT0}, s{sB}, 8")
        for i in range(3): a.e(f"buffer_load_dword v{KR+i}, v{vT+2}, s[{SK}:{SK+3}], 0 offen offset:{i*1152}")
        for R_, S_ in ((KR + 3, SK), (VR, SV), (QR, SQ)):
            for i in range(8): a.e(f"buffer_load_dword v{R_+i}, v{vT if i < 4 else vT+3}, s[{S_}:{S_+3}], 0 offen offset:{(i%4)*1152}")
        a.e(f"buffer_load_dwordx4 {v(WR,4)}, v{vT+1}, s[{SSK}:{SSK+3}], s{sT0} offen")
        a.e(f"s_branch {le}")
        a.e(f"{l2}:")
        srd(a, SQ, 70, 4096*1152)
        a.e(f"v_lshrrev_b32 v{vT}, 5, v{vL}"); a.e(f"v_and_b32 v{vT+1}, 31, v{vL}")
        a.e(f"s_lshl_b32 s{sT0}, s{sA}, 6"); a.e(f"v_lshl_add_u32 v{vT}, v{vT}, 5, s{sT0}")
        a.e(f"v_mul_u32_u24 v{vT}, 1152, v{vT}"); a.e(f"v_lshl_add_u32 v{vT}, v{vT+1}, 2, v{vT}")
        a.e(f"s_lshl_b32 s{sT0}, s{sB}, 7")
        for i in range(32):
            a.e(f"buffer_load_dword v{wrow(i)}, v{vT}, s[{SQ}:{SQ+3}], s{sT0} offen offset:{(i%4)*1152}")
            if i % 4 == 3: a.e(f"s_add_u32 s{sT0}, s{sT0}, 4608")
        a.e(f"{le}:")
    SSC = " sc1"
    def side_compute(rnd):
        l3 = a.uid(f"{name}_sc2"); le = a.uid(f"{name}_sce")
        a.e(f"s_cmp_eq_u32 s{sRole}, 0"); a.e(f"s_cbranch_scc1 {le}")
        a.e(f"s_mov_b32 s{sT1}, 0x05040100"); a.e(f"s_mov_b32 s{sT2}, 0x07060302")
        a.e(f"s_cmp_eq_u32 s{sRole}, 2"); a.e(f"s_cbranch_scc1 {l3}")
        a.e(f"v_lshrrev_b32 v{vT}, 4, v{vL}"); a.e(f"v_and_b32 v{vT+1}, 15, v{vL}")
        a.e(f"s_add_u32 s70, s6, {WS_KVB}"); a.e("s_addc_u32 s71, s7, 0"); srd(a, SU, 70, 576*4096)
        a.e(f"s_add_u32 s70, s6, {WS_QB}"); a.e("s_addc_u32 s71, s7, 0"); srd(a, SQT, 70, 576*4096)
        a.e(f"s_lshl_b32 s{sT0}, s{sA}, 6"); a.e(f"v_lshl_add_u32 v{vT}, v{vT}, 4, s{sT0}")
        a.e(f"v_lshlrev_b32 v{vT+1}, 13, v{vT+1}")
        a.e(f"v_sub_u32 v{vT+2}, 4080, v{vT}"); a.e(f"v_add_u32 v{vT+2}, v{vT+2}, v{vT+1}"); a.e(f"v_add_u32 v{vT}, v{vT}, v{vT+1}")
        a.e(f"s_lshl_b32 s{sT0}, s{sB}, 17")
        for c in range(2):
            sel = sT2 if c else sT1
            for i in range(4): a.e(f"v_perm_b32 v{TP+i}, v{QR+2*i+1}, v{QR+2*i}, s{sel}")
            a.e(f"buffer_store_dwordx4 {v(TP,4)}, v{vT}, s[{SQT}:{SQT+3}], s{sT0} offen{SSC}")
            AC = vT + 3
            for hf in (1, 0):
                for i in range(6):
                    j = 4 * hf - 2 + i
                    a.e(f"v_perm_b32 v{PR+i}, v{KR+j+2}, v{KR+j+3}, s{sel}")
                for i in range(4): a.e(f"v_dot2_f32_bf16 v{AC+i}, v{PR+2+i}, v{WR+2*c}, 0")
                for i in range(4): a.e(f"v_dot2_f32_bf16 v{AC+i}, v{PR+i}, v{WR+2*c+1}, v{AC+i}")
                for i in range(4):
                    a.e(f"v_and_b32 v{PR+i}, 0xffff0000, v{VR+4*hf+i}" if c else f"v_lshlrev_b32 v{PR+i}, 16, v{VR+4*hf+i}")
                for i in range(4): a.e(f"v_mul_f32 v{AC+i}, v{AC+i}, v{PR+i}")
                o = TP + (0 if hf else 2)
                a.e(f"v_cvt_pk_bf16_f32 v{o}, v{AC+3}, v{AC+2}"); a.e(f"v_cvt_pk_bf16_f32 v{o+1}, v{AC+1}, v{AC}")
            a.e(f"buffer_store_dwordx4 {v(TP,4)}, v{vT+2}, s[{SU}:{SU+3}], s{sT0} offen{SSC}")
            a.e(f"s_add_u32 s{sT0}, s{sT0}, 4096"); a.e("s_nop 0")
        a.e(f"s_branch {le}")
        a.e(f"{l3}:")
        a.e(f"v_lshrrev_b32 v{vT}, 5, v{vL}"); a.e(f"v_and_b32 v{vT+1}, 31, v{vL}")
        a.e(f"s_add_u32 s70, s6, {WS_WOF}"); a.e("s_addc_u32 s71, s7, 0"); srd(a, SU, 70, 4*128*9216)
        a.e(f"s_lshl_b32 s{sT0}, s{sB}, 6"); a.e(f"v_lshl_add_u32 v{vT+1}, v{vT+1}, 1, s{sT0}"); a.e(f"v_add_u32 v{vT+1}, v{vT+1}, v{vT}")
        a.e(f"v_mul_u32_u24 v{vT+2}, 911, v{vT+1}"); a.e(f"v_lshrrev_b32 v{vT+2}, 17, v{vT+2}")
        a.e(f"v_mul_u32_u24 v{vT+3}, 144, v{vT+2}"); a.e(f"v_sub_u32 v{vT+1}, v{vT+1}, v{vT+3}")
        a.e(f"v_lshlrev_b32 v{vT}, 7, v{vT+2}"); a.e(f"s_lshl_b32 s{sT0}, s{sA}, 1"); a.e(f"v_add_u32 v{vT}, s{sT0}, v{vT}")
        a.e(f"v_mul_u32_u24 v{vT}, 9216, v{vT}")
        a.e(f"v_lshrrev_b32 v{vT+2}, 4, v{vT+1}"); a.e(f"v_lshl_add_u32 v{vT}, v{vT+2}, 10, v{vT}")
        a.e(f"v_and_b32 v{vT+1}, 15, v{vT+1}"); a.e(f"v_lshl_add_u32 v{vT}, v{vT+1}, 4, v{vT}")
        a.e(f"s_mov_b32 s{sT0}, 9216")
        for g in range(4):
            for c in range(2):
                o = 48 if c else TP
                for i, r in enumerate((4*g, 4*g+2, 16+4*g, 16+4*g+2)):
                    a.e(f"v_perm_b32 v{o+i}, v{wrow(r+1)}, v{wrow(r)}, s{sT2 if c else sT1}")
            a.e("s_nop 0")
            for i in range(4): a.e(f"v_permlane32_swap_b32 v{TP+i}, v{48+i}")
            a.e(f"buffer_store_dwordx4 {v(TP,4)}, v{vT}, s[{SU}:{SU+3}], 0 offen offset:{256*g}{SSC}")
            a.e(f"buffer_store_dwordx4 {v(48,4)}, v{vT}, s[{SU}:{SU+3}], s{sT0} offen offset:{256*g}{SSC}")
            a.e("s_nop 0")
        a.e(f"{le}:")
    def flag_store(off_code):
        a.e(f"v_mov_b32 v{vT}, s{sNonce}"); a.e(f"v_mov_b32 v{vT+1}, 0")
        for x in off_code: a.e(x)
        a.e("s_mov_b64 exec, 1")
        a.e(f"buffer_store_dword v{vT}, v{vT+1}, s[{S_FL}:{S_FL+3}], s{sT1} offen sc1")
        a.e("s_mov_b64 exec, -1")
    def side_hook(ret):
        L = [a.uid(f"{name}_ev") for _ in range(5)]
        for e in range(1, 5):
            a.e(f"s_cmp_eq_u32 s{sEv}, {e}"); a.e(f"s_cbranch_scc1 {L[e]}")
        a.e(f"s_add_u32 s{sNext}, s{sNext}, 2"); a.e(f"s_mov_b32 s{sEv}, 1")
        side_load(1)
        a.e(f"s_branch {ret}")
        a.e(L[1] + ":")
        a.e(f"s_mov_b32 s{sEv}, 2"); a.e(f"s_add_u32 s{sNext}, s{sNext}, 1"); a.e(f"s_cmp_eq_u32 s{sW}, 7"); a.e(f"s_cselect_b32 s{sNext}, s{sNext}, 99")
        side_compute(1)
        a.e(f"s_branch {ret}")
        a.e(L[2] + ":")
        a.e(L[3] + ":")
        a.e(f"s_mov_b32 s{sEv}, 4")
        a.e(f"s_lshl_b32 s{sT1}, s{sP}, 1"); a.e(f"s_add_u32 s{sT1}, s{sT1}, 4"); a.e(f"s_add_u32 s{sNext}, s{sNext}, 1"); a.e(f"s_max_u32 s{sNext}, s{sNext}, s{sT1}")
        flag_store([f"s_lshl_b32 s{sT1}, s2, 2", f"s_add_u32 s{sT1}, s{sT1}, 32768"])
        a.e(f"s_branch {ret}")
        a.e(L[4] + ":")
        a.e(f"s_mov_b32 s{sNext}, 99")
        flag_store([f"s_lshl_b32 s{sT1}, s{sP}, 7", f"s_lshl_b32 s{sT2}, s{sH}, 2", f"s_add_u32 s{sT1}, s{sT1}, s{sT2}", f"s_add_u32 s{sT1}, s{sT1}, 36864"])
        a.e(f"s_branch {ret}")
    a.e(f"s_and_b32 s{sT0}, s2, 7"); a.e(f"s_add_u32 s{sT0}, s{sT0}, s{sP}"); a.e(f"s_mul_i32 s{sT1}, s{sT0}, 52"); a.e(f"s_lshr_b32 s{sT1}, s{sT1}, 8"); a.e(f"s_mul_i32 s{sT1}, s{sT1}, 5")
    a.e(f"s_sub_u32 s{sT0}, s{sT0}, s{sT1}"); a.e(f"s_lshl_b32 s{sNext}, s{sT0}, 1"); a.e(f"s_add_u32 s{sNext}, s{sNext}, 1"); a.e(f"s_mov_b32 s{sEv}, 0")

    a.label(f"{name}_seg")
    k0 = kslots(0); k1s = kslots(1)
    for t in range(D): a.e(k0[t][0](FR + 4 * t))
    zero = [f"v_mov_b32 v{O+i}, 0" for i in range(64)] + [f"v_mov_b32 v{vLS}, 0", f"v_mov_b32 v{vLS+1}, 0"]
    fills = {}; distribute(fills, zero, 0, 8)
    run_slots([(rd, (lambda ms: (lambda f: ms(f, True)))(ms)) for rd, ms in k0], fills, k1s)
    a.e("s_nop 3")
    for x in mask_hook(0): a.e(x)
    for qt in range(2):
        d = vM + qt; x0, x1 = Sr(0,0,qt), Sr(0,1,qt)
        a.e(f"v_max3_f32 v{d}, v{x0}, v{x0+1}, v{x0+2}"); a.e(f"v_max3_f32 v{d}, v{d}, v{x0+3}, v{x1}")
        a.e(f"v_max3_f32 v{d}, v{d}, v{x1+1}, v{x1+2}"); a.e(f"v_max_f32 v{d}, v{d}, v{x1+3}")
    for x0_, x1_ in zip(xlane("v_max_f32", vM, vT + 4), xlane("v_max_f32", vM + 1, vT + 5)):
        a.e(x0_)
        if not x1_.startswith("s_nop"): a.e(x1_)
    for qt in range(2):
        for rr in range(4): a.e(f"v_sub_f32 v{C+4*qt+rr}, 0, v{vM+qt}")
    sub0 = [f"v_sub_f32 v{Sr(0,kt,qt)+rr}, v{Sr(0,kt,qt)+rr}, v{vM+qt}" for qt in range(2) for kt in range(2) for rr in range(4)]
    fills = {}; distribute(fills, sub0 + exp_code(0), 0, 8)
    labA = a.uid(f"{name}_wa")
    sync = ["s_waitcnt lgkmcnt(0)", f"s_cmp_lg_u32 s{sKt}, 2", f"s_cbranch_scc1 {labA}", "s_waitcnt vmcnt(0)", labA + ":", "s_waitcnt vmcnt(8)",
            "s_barrier", f"v_xor_b32 v{vKR}, 0x8000, v{vKR}"]
    run_slots(k1s, fills, vslots(0), sync_after=4, sync=sync)
    a.e(f"s_mov_b32 s{sN}, 0")
    a.e(f"s_cmp_eq_u32 s{sI}, 0")
    a.e(f"s_cbranch_scc1 {name}_tail")
    dK, dV = kv_dma(True), kv_dma(False)
    a.label(f"{name}_loop")
    if "phst" in X or "phst2" in X:
        for i in range(10):
            l_ = a.uid("phst"); a.e(f"s_cmp_lg_u32 s{sVt}, {i + (1 if 'phst' in X else 7)}"); a.e(f"s_cbranch_scc1 {l_}"); _at(2 + i); a.e("s_waitcnt lgkmcnt(0)"); a.e(l_ + ":")
    hk = a.uid(f"{name}_side"); hr = a.uid(f"{name}_sret")
    ool.append((hk, lambda: side_hook(hr)))
    a.e(f"s_cmp_eq_u32 s{sVt}, s{sNext}"); a.e(f"s_cbranch_scc1 {hk}"); a.e(f"{hr}:")
    slots = vslots(0) + kslots(0) + vslots(1) + kslots(1)
    fills = {}; post = {}
    fills[0] = list(lacc); fills[16] = list(lacc)
    post[1] = mask_hook(1); post[17] = mask_hook(0)
    distribute(fills, exp_code(1), 2, 16); post[15] = check(1, True)
    distribute(fills, exp_code(0), 18, 32); post[31] = check(0, True)
    f2 = {0: dK[:2], 1: [dK[2]], 4: [dK[3]], 7: [dK[4]], 10: [dK[5]], 12: dV[:2], 13: [dV[2]], 15: [dV[3]], 17: [dV[4]], 19: [dV[5]]}
    distribute(f2, kv_adv(True) + kv_adv(False) + [f"s_add_u32 s{sN}, s{sN}, 1"], 21, 27)
    for k_, v_ in f2.items(): fills[k_] = v_ + fills.get(k_, [])
    run_slots(slots, fills, vslots(0), sync_after=28, sync=["s_waitcnt lgkmcnt(0) vmcnt(0)", "s_barrier"] + toggles, post=post)
    a.e(f"s_cmp_lt_u32 s{sN}, s{sI}")
    a.e(f"s_cbranch_scc1 {name}_loop")
    a.label(f"{name}_tail")
    nd = a.uid(f"{name}_nd")
    a.e(f"s_cmp_lg_u32 s{sSeg}, 0"); a.e(f"s_cbranch_scc1 {nd}")
    for x in dK + dV + kv_adv(True) + kv_adv(False): a.e(x)
    a.e(f"{nd}:")
    fills = {0: list(lacc), 8: list(lacc)}; post = {1: mask_hook(1), 7: check(1, False) + ["s_nop 0"]}
    distribute(fills, exp_code(1), 2, 8)
    run_slots(vslots(0) + vslots(1), fills, [], post=post)
    for x0_, x1_ in zip(xlane("v_add_f32", vLS, vT + 4), xlane("v_add_f32", vLS + 1, vT + 5)):
        a.e(x0_)
        if not x1_.startswith("s_nop"): a.e(x1_)
    a.e(f"s_lshl_b32 s{sT0}, s{sTile}, 3"); a.e(f"s_lshl_b32 s{sT1}, s{sWL}, 1"); a.e(f"s_add_u32 s{sT0}, s{sT0}, s{sT1}")
    a.e(f"s_lshl_b32 s{sT0}, s{sT0}, 17"); a.e(f"s_lshl_b32 s{sT1}, s{sH}, 12"); a.e(f"s_add_u32 s{sT0}, s{sT0}, s{sT1}")
    a.e(f"s_cmp_lg_u32 s{sSeg}, 0"); a.e(f"s_cbranch_scc1 {name}_final")
    a.e(f"s_lshl_b32 s{sT1}, s{sWL}, 13"); a.e(f"s_add_u32 s{sT1}, s{sT1}, {QSTASH}"); a.e(f"v_add_u32 v{vT+6}, s{sT1}, v{vL16}")
    for f in range(8): a.e(f"ds_read_b128 {v(Q+4*f,4)}, v{vT+6} offset:{f*1024}")
    a.e(f"v_rcp_f32 v{vT}, v{vLS}"); a.e(f"v_rcp_f32 v{vT+1}, v{vLS+1}")
    a.e(f"s_add_u32 s{sT1}, s{sT0}, 131072")
    for x in range(4):
        for qt in range(2):
            PK = S + ((x*2+qt) % 8) * 4
            for dt in (2*x, 2*x+1):
                for rr in range(4): a.e(f"v_mul_f32 v{Or(dt,qt)+rr}, v{Or(dt,qt)+rr}, v{vT+qt}")
            a.e(f"v_cvt_pk_bf16_f32 v{PK}, v{Or(2*x,qt)}, v{Or(2*x,qt)+1}"); a.e(f"v_cvt_pk_bf16_f32 v{PK+1}, v{Or(2*x,qt)+2}, v{Or(2*x,qt)+3}")
            a.e(f"v_cvt_pk_bf16_f32 v{PK+2}, v{Or(2*x+1,qt)}, v{Or(2*x+1,qt)+1}"); a.e(f"v_cvt_pk_bf16_f32 v{PK+3}, v{Or(2*x+1,qt)+2}, v{Or(2*x+1,qt)+3}")
            a.e(f"buffer_store_dwordx4 {v(PK,4)}, v{vL16}, s[{S_CT}:{S_CT+3}], s{sT1 if qt else sT0} offen offset:{x*1024} sc1")
    a.e(f"v_xor_b32 v{vVR}, 0x8000, v{vVR}")
    a.e(f"s_mov_b32 s{sSeg}, 1")
    a.e(f"s_sub_u32 s{sTile}, 15, s{sP}")
    a.e(f"s_lshl_b32 s{sT0}, s{sP}, 1"); a.e(f"s_sub_u32 s{sI}, 14, s{sT0}")
    a.e(f"s_lshl_b32 s{sR}, s{sTile}, 2"); a.e(f"s_sub_u32 s{sR}, 34, s{sR}")
    a.e(f"s_branch {name}_seg")
    a.label(f"{name}_final")
    st.at(9)
    vP1, vP2, vZ = 60, 64, 65
    a.e(f"s_sub_u32 s56, 15, s{sP}"); a.e("s_bitcmp0_b32 s2, 0"); a.e(f"s_cselect_b32 s51, s{sP}, s56")
    a.e("s_lshl_b32 s54, s51, 7"); a.e(f"s_lshr_b32 s53, s{sH}, 3"); a.e("s_lshl_b32 s56, s53, 5"); a.e("s_add_u32 s54, s54, s56"); a.e("s_add_u32 s54, s54, 36864")
    a.e("s_mov_b32 s52, 32768")
    pollS = f"buffer_load_dwordx4 {v(vP1,4)}, v{vL16}, s[{S_FL}:{S_FL+3}], s52 offen sc1"
    pollC = f"buffer_load_dword v{vP2}, v{vZ}, s[{S_FL}:{S_FL+3}], s54 offen sc1"
    a.e(f"v_and_b32 v{vZ}, 7, v{vL}"); a.e(f"v_lshlrev_b32 v{vZ}, 2, v{vZ}")
    a.e(f"s_cmp_lg_u32 s{sW}, 7"); a.e(f"s_cbranch_scc1 {name}_npp"); a.e(pollS); a.e(pollC); a.label(f"{name}_npp")
    vOWN, vPAR, vOM, vPM = vT + 6, vT + 7, vT + 8, vT
    a.e(f"s_lshl_b32 s{sT1}, s{sW}, 13"); a.e(f"v_add_u32 v{vOWN}, s{sT1}, v{vL16}"); a.e(f"v_xor_b32 v{vPAR}, 0x8000, v{vOWN}")
    a.e(f"s_lshl_b32 s{sT1}, s{sW}, 10"); a.e(f"s_add_u32 s{sT1}, s{sT1}, {QSTASH}"); a.e(f"v_add_u32 v{vOM}, s{sT1}, v{vL16}"); a.e(f"v_xor_b32 v{vPM}, 0x1000, v{vOM}")
    a.e(f"ds_write_b128 v{vOM}, {v(vLS,4)}")
    a.e(f"s_lshl_b32 s{sT1}, s{sG}, 11"); a.e(f"s_add_u32 s{sT0}, s{sT0}, s{sT1}"); a.e(f"s_add_u32 s{sT1}, s{sT0}, 131072")
    lg1 = a.uid(f"{name}_g1"); lgd = a.uid(f"{name}_gd")
    a.e(f"s_cmp_eq_u32 s{sG}, 0"); a.e(f"s_cbranch_scc0 {lg1}")
    XM = 56
    for g in range(2):
        keep = O + 32 * g; send = O + 32 * (1 - g)
        if g == 1: a.label(lg1)
        for n in range(8): a.e(f"ds_write_b128 v{vOWN}, {v(send+4*n,4)} offset:{n*1024}")
        a.e("s_waitcnt lgkmcnt(0)")
        a.e("s_barrier")
        a.e(f"ds_read_b128 {v(XM,4)}, v{vPM}")
        for n in range(8): a.e(f"ds_read_b128 {v(FR+4*n,4)}, v{vPAR} offset:{n*1024}")
        a.e("s_waitcnt lgkmcnt(8)")
        for qt in range(2):
            mm = vE + 4*qt; e0 = mm + 1; e1 = mm + 2
            a.e(f"v_max_f32 v{mm}, v{vM+qt}, v{XM+2+qt}"); a.e(f"v_sub_f32 v{e0}, v{vM+qt}, v{mm}"); a.e(f"v_sub_f32 v{e1}, v{XM+2+qt}, v{mm}")
            a.e(f"v_exp_f32 v{e0}, v{e0}"); a.e(f"v_exp_f32 v{e1}, v{e1}"); a.e("s_nop 0")
            a.e(f"v_mul_f32 v{mm}, v{e0}, v{vLS+qt}"); a.e(f"v_fmac_f32 v{mm}, v{e1}, v{XM+qt}"); a.e(f"v_rcp_f32 v{mm}, v{mm}"); a.e("s_nop 0")
            a.e(f"v_mul_f32 v{e0}, v{e0}, v{mm}"); a.e(f"v_mul_f32 v{e1}, v{e1}, v{mm}")
        for xx in range(2):
            for qt in range(2):
                n0 = (2*xx)*2 + qt; n1 = (2*xx+1)*2 + qt
                for n in (n0, n1):
                    for rr in range(4): a.e(f"v_mul_f32 v{keep+4*n+rr}, v{keep+4*n+rr}, v{vE+4*qt+1}")
                a.e(f"s_waitcnt lgkmcnt({7 - n1})")
                for n in (n0, n1):
                    for rr in range(4): a.e(f"v_fmac_f32 v{keep+4*n+rr}, v{FR+4*n+rr}, v{vE+4*qt+2}")
                PK = S + (xx*2+qt)*4
                a.e(f"v_cvt_pk_bf16_f32 v{PK}, v{keep+4*n0}, v{keep+4*n0+1}"); a.e(f"v_cvt_pk_bf16_f32 v{PK+1}, v{keep+4*n0+2}, v{keep+4*n0+3}")
                a.e(f"v_cvt_pk_bf16_f32 v{PK+2}, v{keep+4*n1}, v{keep+4*n1+1}"); a.e(f"v_cvt_pk_bf16_f32 v{PK+3}, v{keep+4*n1+2}, v{keep+4*n1+3}")
                a.e(f"buffer_store_dwordx4 {v(PK,4)}, v{vL16}, s[{S_CT}:{S_CT+3}], s{sT1 if qt else sT0} offen offset:{xx*1024} sc1")
        if g == 0: a.e(f"s_branch {lgd}")
    a.label(lgd)
    st.at(10)
    sItem, sNT, sCG, sTq, sKQ = 48, 49, 50, 51, 53
    a.e("s_setprio 0")
    a.e(f"s_bfe_u32 s{sT0}, s2, 0x20001"); a.e(f"s_mul_i32 s{sCG}, s{sT0}, 36"); a.e(f"s_lshr_b32 s{sT1}, s2, 3")
    a.e(f"s_and_b32 s{sT2}, s2, 1"); a.e(f"s_lshl_b32 s{sT2}, s{sT2}, 5"); a.e(f"s_add_u32 s{sT1}, s{sT1}, s{sT2}"); a.e(f"s_add_u32 s{sCG}, s{sCG}, s{sT1}")
    a.e(f"s_cmp_lt_u32 s{sT1}, 36"); a.e(f"s_cselect_b32 s{sCG}, s{sCG}, -1")
    if "noconv" in X: a.e(f"s_mov_b32 s{sCG}, -1")
    a.e(f"s_and_b32 s{sNT}, s{sH}, 3")
    a.e(f"s_lshl_b32 s{sItem}, s{sTq}, 2"); a.e(f"s_add_u32 s{sItem}, s{sItem}, s{sNT}"); a.e(f"s_lshl_b32 s{sItem}, s{sItem}, 2"); a.e(f"s_add_u32 s{sItem}, s{sItem}, s{sKQ}")
    a.e(f"s_and_b32 s55, s{sItem}, 0xfc"); a.e("s_lshl_b32 s55, s55, 2"); a.e("s_add_u32 s55, s55, 40960")
    def spin(poll, regs, pre, first_issue, after=[]):
        lw = a.uid(f"{name}_nw"); lp = a.uid(f"{name}_sp"); lc = a.uid(f"{name}_sc"); lo = a.uid(f"{name}_so")
        a.e(f"s_cmp_lg_u32 s{sW}, 7"); a.e(f"s_cbranch_scc1 {lw}")
        for x in first_issue: a.e(x)
        a.e(f"s_mov_b32 s{sT1}, 0")
        if pre: a.e(f"s_branch {lc}")
        a.e(f"{lp}:")
        a.e(poll)
        a.e("s_waitcnt vmcnt(0)")
        a.e(f"{lc}:")
        if len(regs) == 4:
            for r in regs: a.e(f"v_xor_b32 v{r}, s{sNonce}, v{r}")
            a.e(f"v_or3_b32 v{regs[0]}, v{regs[0]}, v{regs[1]}, v{regs[2]}"); a.e(f"v_or_b32 v{regs[0]}, v{regs[0]}, v{regs[3]}")
            a.e(f"v_cmp_ne_u32 vcc, 0, v{regs[0]}")
        else:
            a.e(f"v_cmp_ne_u32 vcc, s{sNonce}, v{regs[0]}")
        a.e(f"s_add_u32 s{sT1}, s{sT1}, 1")
        a.e(f"s_cbranch_vccz {lw}")
        a.e(f"s_cmp_lt_u32 s{sT1}, 0x40000"); a.e(f"s_cbranch_scc1 {lp}")
        a.e(f"{lw}:")
        a.e("s_barrier")
    a.e("s_waitcnt vmcnt(0)")
    sigs = [f"v_mov_b32 v{vT}, s{sNonce}", f"v_mov_b32 v{vT+1}, 0", f"s_lshl_b32 s{sT2}, s{sH}, 2", f"s_add_u32 s{sT2}, s{sT2}, 36864",
            f"s_lshl_b32 s{sT0}, s{sP}, 7", f"s_add_u32 s{sT1}, s{sT2}, s{sT0}", f"s_sub_u32 s{sT0}, {15*128}, s{sT0}", f"s_add_u32 s{sT0}, s{sT0}, s{sT2}",
            "s_mov_b64 exec, 1",
            f"buffer_store_dword v{vT}, v{vT+1}, s[{S_FL}:{S_FL+3}], s{sT0} offen sc1",
            f"buffer_store_dword v{vT}, v{vT+1}, s[{S_FL}:{S_FL+3}], s{sT1} offen sc1",
            "s_mov_b64 exec, -1"]
    T3 = (sT0, sT1, sT2)
    RDY = QSTASH + 16384
    pub = [f"v_cmp_ne_u32 vcc, s{sNonce}, v{vP2}", f"v_mov_b32 v{vT}, {RDY}", "s_nop 0", "v_mov_b32 v66, vcc_lo", f"ds_write_b32 v{vT}, v66", "s_waitcnt lgkmcnt(0)"]
    spin(pollS, [vP1, vP1+1, vP1+2, vP1+3], True, pub)
    a.e(f"v_mov_b32 v{vT}, {RDY}"); a.e(f"ds_read_b32 v66, v{vT}"); a.e("s_waitcnt lgkmcnt(0)"); a.e("v_readfirstlane_b32 s56, v66")
    st.at(8)
    a.e(f"s_cmp_lt_u32 s{sW}, 4"); a.e(f"s_cbranch_scc1 {name}_convw")
    a.e(f"s_cmp_lg_u32 s{sW}, 7"); a.e(f"s_cbranch_scc1 {name}_nsg")
    for x in sigs: a.e(x)
    a.label(f"{name}_nsg")
    a.e(f"v_mov_b32 v20, v{vP2}"); a.e(f"v_mov_b32 v21, v{vZ}")
    vP2, vZ = 20, 21
    ko.gemm_setup(a, sW, sTq, sNT, sKQ, T3, vL16)
    for g in range(2):
        for x in ko.gemm_wl(g, T3, vL16, " sc1"): a.e(x)
    a.e("s_cmp_eq_u32 s56, 0"); a.e(f"s_cbranch_scc1 {name}_rdy")
    spin(f"buffer_load_dword v{vP2}, v{vZ}, s[{S_FL}:{S_FL+3}], s54 offen sc1", [vP2], False, [])
    a.label(f"{name}_rdy")
    st.at(2)
    for g in range(2):
        for x in ko.gemm_cl(g, T3, vL16, " sc1"): a.e(x)
    ko.gemm_main(a, sW, sItem, T3, vL16, " sc1", _at if "gst" in X else None)
    a.e(f"s_branch {name}_red")
    a.label(f"{name}_convw")
    a.e("s_cmp_eq_u32 s56, 0"); a.e(f"s_cbranch_scc1 {name}_rdy2"); a.e("s_barrier"); a.label(f"{name}_rdy2")
    a.e(f"s_cmp_eq_u32 s{sCG}, -1"); a.e(f"s_cbranch_scc0 {name}_conv")
    for i in range(9): a.e("s_barrier")
    a.e(f"s_branch {name}_red")
    a.label(f"{name}_conv")
    ko.gen_conv(a, name, st, sW, sCG, T3, vL, vL16, " sc1")
    a.label(f"{name}_red")
    st.at(3)
    ko.final_setup(a, sW, sTq, sNT, sKQ, sItem, T3, vL)
    a.e(f"v_and_b32 v{vZ}, 3, v{vL}"); a.e(f"v_lshlrev_b32 v{vZ}, 2, v{vZ}")
    sig2 = [f"v_mov_b32 v{vP2}, s{sNonce}", "v_mov_b32 v22, 0", f"s_lshl_b32 s{sT0}, s{sItem}, 2", f"s_add_u32 s{sT0}, s{sT0}, 40960", "s_mov_b64 exec, 1",
            f"buffer_store_dword v{vP2}, v22, s[{S_FL}:{S_FL+3}], s{sT0} offen sc1", "s_mov_b64 exec, -1"]
    spin(f"buffer_load_dword v{vP2}, v{vZ}, s[{S_FL}:{S_FL+3}], s55 offen sc1", [vP2], False, sig2)
    st.at(4)
    ko.final_reduce(a, name, sW, sTq, sNT, sKQ, sItem, T3, vL, vL16, " sc1")
    if diag: a.e("s_waitcnt vmcnt(0)")
    st.at(11); st.at(12, True)
    st.dump(6, sW)
    a.label(f"{name}_end")
    a.e("s_endpgm")
    i = 0
    while i < len(ool):
        lab, fn = ool[i]; a.label(lab); fn(); i += 1
    a.label(code_end)
    a.e("s_endpgm")
    a.e = _e
    kernel_desc(a, name, 256, 102)
```

```python
from asmlib import *
from k1 import MF, WS_CTX, WS_WOF, WS_KVB, WS_QB

EOFF = 4608; OOFF = EOFF + 4160; CROW = OOFF + 4160
OOB = 0x7ff00000

def gen_conv(a, name, st, sW, sCG, sT, vL, vL16, LD):
    sT0, sT1, sT2 = sT
    S_U, S_QT, S_H, S_OUT = 8, 12, 16, 20
    sCH, sD, sH0, sLB = 40, 41, 42, 43
    vT = 4
    a.e("s_load_dwordx4 s[24:27], s[0:1], 32")
    a.e("s_load_dwordx2 s[4:5], s[0:1], 96")
    a.e(f"s_lshl_b32 s{sCH}, s{sCG}, 2"); a.e(f"s_add_u32 s{sCH}, s{sCH}, s{sW}")
    a.e(f"s_mul_i32 s{sLB}, s{sW}, {CROW}")
    a.e(f"s_lshl_b32 s{sT2}, s{sCH}, 12")
    a.e(f"s_add_u32 s44, s6, {WS_KVB}"); a.e("s_addc_u32 s45, s7, 0"); srd(a, S_U, 44, 576 * 4096)
    a.e(f"s_add_u32 s44, s6, {WS_QB}"); a.e("s_addc_u32 s45, s7, 0"); srd(a, S_QT, 44, 576 * 4096)
    a.e(f"s_mov_b32 m0, s{sLB}"); a.e("s_nop 0")
    for i in range(4): a.e(f"buffer_load_dwordx4 v{vL16}, s[{S_U}:{S_U+3}], s{sT2} offen offset:{i*1024}{LD} lds")
    a.e("s_waitcnt lgkmcnt(0)")
    srd(a, S_H, 24, 576 * 4096); srd(a, S_OUT, 4, 2048 * 2304)
    a.e(f"s_add_u32 m0, s{sLB}, {EOFF + 32}"); a.e(f"s_add_u32 s{sT1}, s{sT2}, 2")
    for i in range(4): a.e(f"buffer_load_dwordx4 v{vL16}, s[{S_H}:{S_H+3}], s{sT2} offen offset:{i*1024} lds")
    a.e(f"s_add_u32 m0, s{sLB}, {OOFF + 32}"); a.e("s_nop 0")
    for i in range(4): a.e(f"buffer_load_dwordx4 v{vL16}, s[{S_H}:{S_H+3}], s{sT1} offen offset:{i*1024} lds")
    a.e(f"s_add_u32 s24, s24, s{sT2}"); a.e("s_addc_u32 s25, s25, 0")
    a.e(f"s_lshr_b32 s{sT0}, s{sCH}, 1"); a.e(f"s_lshl_b32 s{sT0}, s{sT0}, 2")
    a.e(f"s_add_u32 s26, s26, s{sT0}"); a.e("s_addc_u32 s27, s27, 0")
    a.e(f"s_load_dword s{sH0}, s[24:25], 0"); a.e(f"s_load_dword s{sD}, s[26:27], 0")
    vAa, vBa, vKa, vYa, vQo = 8, 12, 13, 14, 15
    a.e(f"v_and_b32 v{vT}, 15, v{vL}"); a.e(f"v_lshrrev_b32 v{vT+1}, 4, v{vL}")
    a.e(f"v_lshl_add_u32 v16, v{vT+1}, 3, v{vT}"); a.e("v_add_u32 v16, 1, v16"); a.e("v_and_b32 v17, 1, v16")
    a.e("v_and_b32 v16, 0xfe, v16"); a.e("v_lshlrev_b32 v16, 1, v16"); a.e(f"v_mul_u32_u24 v17, {OOFF - EOFF}, v17")
    a.e(f"s_add_u32 s{sT0}, s{sLB}, {EOFF}"); a.e(f"v_add3_u32 v{vAa}, v16, v17, s{sT0}")
    for i in range(1, 4): a.e(f"v_add_u32 v{vAa+i}, {1024*i}, v{vAa}")
    a.e(f"v_lshlrev_b32 v17, 5, v{vT}"); a.e(f"v_lshlrev_b32 v18, 4, v{vT+1}"); a.e("v_sub_u32 v19, v18, v17")
    a.e(f"s_add_u32 s{sT1}, s{sLB}, {4064 - 3584}"); a.e(f"v_add_u32 v{vBa}, s{sT1}, v19")
    a.e(f"v_lshlrev_b32 v18, 3, v{vT+1}"); a.e(f"v_add_u32 v{vQo}, v17, v18")
    a.e(f"s_add_u32 s{sT1}, s{sLB}, {4088 - 3584}"); a.e(f"v_sub_u32 v{vKa}, s{sT1}, v{vQo}"); a.e(f"v_add_u32 v{vYa}, s{sT0}, v{vQo}")
    QR = 224; KVR = 240; ACC = 192; BUF = [64, 128]
    for j in range(8):
        a.e(f"buffer_load_dwordx2 {v(QR+2*j,2)}, v{vQo}, s[{S_QT}:{S_QT+3}], s{sT2} offen offset:{512*j}{LD}")
    for i in range(4): a.e(f"v_mov_b32 v{20+i}, 0")
    a.e(f"v_and_b32 v16, 31, v{vL}"); a.e("v_lshlrev_b32 v16, 4, v16"); a.e(f"v_add_u32 v16, s{sLB}, v16")
    a.e(f"ds_write_b128 v16, {v(20,4)} offset:4096")
    a.e(f"v_and_b32 v16, 7, v{vL}"); a.e("v_cmp_eq_u32 vcc, 7, v16"); a.e("v_lshlrev_b32 v16, 2, v16"); a.e(f"v_add_u32 v16, s{sT0}, v16")
    a.e("ds_write_b32 v16, v20")
    a.e("s_waitcnt lgkmcnt(0)")
    a.e(f"s_lshl_b32 s{sH0}, s{sH0}, 16"); a.e(f"v_mov_b32 v17, s{sH0}"); a.e("v_cndmask_b32 v17, v20, v17, vcc")
    a.e(f"ds_write_b32 v16, v17 offset:{OOFF - EOFF}")
    a.e(f"s_lshl_b32 s{sT0}, s{sD}, 16"); a.e(f"s_and_b32 s{sT1}, s{sD}, 0xffff0000")
    a.e(f"s_bitcmp0_b32 s{sCH}, 0"); a.e(f"s_cselect_b32 s{sD}, s{sT0}, s{sT1}")
    a.e("s_waitcnt vmcnt(8) lgkmcnt(0)")
    def creads(buf, r):
        B = BUF[buf]; o = []
        for m in range(8):
            d0 = (512 * (m & 1) + 64 * r) // 4
            o.append(f"ds_read2_b32 {v(B+4*m,2)}, v{vAa+(m>>1)} offset0:{d0} offset1:{d0+1}")
            o.append(f"ds_read2_b32 {v(B+4*m+2,2)}, v{vAa+(m>>1)} offset0:{d0+2} offset1:{d0+3}")
            o.append(f"ds_read_b128 {v(B+32+4*m,4)}, v{vBa} offset:{512*(7-m)+64*r}")
        return o
    for x in creads(0, 0): a.e(x)
    for r in range(8):
        B = BUF[r % 2]
        pairs = sorted([(m, j - m) for j in range(8) for m in range(j + 1)], key=lambda p: (max(p), p[0] + p[1]))
        seen = set(); ms = []
        for (m, n) in pairs:
            c = "0" if (r == 0 and m + n not in seen) else v(ACC+4*(m+n), 4)
            seen.add(m + n)
            ms.append(f"{MF} {v(ACC+4*(m+n),4)}, {v(B+4*m,4)}, {v(B+32+4*n,4)}, {c}")
        rd = creads((r + 1) % 2, r + 1) if r < 7 else [f"ds_read_b64 {v(KVR+2*j,2)}, v{vKa} offset:{512*(7-j)}" for j in range(8)]
        a.e("s_barrier")
        a.e("s_waitcnt lgkmcnt(0)")
        k_ = 0
        for m in ms:
            a.e(m)
            if k_ < len(rd):
                a.e(rd[k_]); k_ += 1
    a.e("s_waitcnt lgkmcnt(0) vmcnt(0)")
    a.e("s_nop 3")
    for j in range(8):
        a.e(f"v_and_b32 v24, 0xffff0000, v{KVR+1+2*j}"); a.e(f"v_lshlrev_b32 v25, 16, v{KVR+1+2*j}")
        a.e(f"v_and_b32 v26, 0xffff0000, v{KVR+2*j}"); a.e(f"v_lshlrev_b32 v27, 16, v{KVR+2*j}")
        for rr in range(4): a.e(f"v_fmac_f32 v{ACC+4*j+rr}, s{sD}, v{24+rr}")
        a.e(f"v_lshlrev_b32 v24, 16, v{QR+2*j}"); a.e(f"v_and_b32 v25, 0xffff0000, v{QR+2*j}")
        a.e(f"v_lshlrev_b32 v26, 16, v{QR+2*j+1}"); a.e(f"v_and_b32 v27, 0xffff0000, v{QR+2*j+1}")
        for rr in range(4): a.e(f"v_mul_f32 v{ACC+4*j+rr}, v{ACC+4*j+rr}, v{24+rr}")
        Pq = 28 + 2 * (j & 1)
        a.e(f"v_cvt_pk_bf16_f32 v{Pq}, v{ACC+4*j}, v{ACC+4*j+1}"); a.e(f"v_cvt_pk_bf16_f32 v{Pq+1}, v{ACC+4*j+2}, v{ACC+4*j+3}")
        a.e(f"ds_write_b64 v{vYa}, {v(Pq,2)} offset:{512*j}")
    a.e(f"v_bfe_u32 v16, v{vL}, 2, 2"); a.e(f"v_mul_u32_u24 v16, {CROW}, v16")
    a.e(f"v_lshrrev_b32 v17, 4, v{vL}"); a.e("v_lshl_add_u32 v16, v17, 5, v16")
    a.e(f"v_and_b32 v17, 3, v{vL}"); a.e("v_lshl_add_u32 v16, v17, 3, v16")
    a.e(f"s_lshl_b32 s{sT0}, s{sW}, 10"); a.e(f"s_add_u32 s{sT0}, s{sT0}, {EOFF}"); a.e(f"v_add_u32 v16, s{sT0}, v16")
    a.e(f"s_lshl_b32 s{sT0}, s{sW}, 9"); a.e(f"v_add_u32 v17, s{sT0}, v{vL}"); a.e("v_mul_u32_u24 v17, 2304, v17")
    a.e(f"s_lshl_b32 s{sT0}, s{sCG}, 3")
    a.e("s_waitcnt lgkmcnt(0)")
    a.e("s_barrier")
    for i in range(8): a.e(f"ds_read_b64_tr_b16 {v(32+2*i,2)}, v16 offset:{128*i}")
    for i in range(8):
        a.e(f"s_waitcnt lgkmcnt({7-i})")
        a.e(f"buffer_store_dwordx2 {v(32+2*i,2)}, v17, s[{S_OUT}:{S_OUT+3}], s{sT0} offen")
        a.e(f"s_add_u32 s{sT0}, s{sT0}, {64*2304}")

WRING = 4 * CROW
WS_PART = 72 << 20

def gemm_setup(a, sW, sTq, sNT, sKQ, sT, vL16):
    sT0, sT1, sT2 = sT
    a.e(f"s_add_u32 s44, s6, {WS_CTX}"); a.e("s_addc_u32 s45, s7, 0"); srd(a, 8, 44, 16 << 20)
    a.e(f"s_add_u32 s44, s6, {WS_WOF}"); a.e("s_addc_u32 s45, s7, 0"); srd(a, 12, 44, 4 * 128 * 9216)
    a.e(f"s_and_b32 s43, s{sW}, 3")
    a.e(f"s_lshl_b32 s40, s{sTq}, 3"); a.e(f"s_lshl_b32 s{sT0}, s43, 1"); a.e(f"s_add_u32 s40, s40, s{sT0}"); a.e("s_lshl_b32 s40, s40, 17")
    a.e(f"s_lshl_b32 s{sT0}, s{sKQ}, 15"); a.e(f"s_add_u32 s40, s40, s{sT0}")
    a.e(f"s_lshl_b32 s41, s{sNT}, 7"); a.e(f"s_lshl_b32 s{sT0}, s{sKQ}, 5"); a.e(f"s_add_u32 s41, s41, s{sT0}"); a.e("s_add_u32 s41, s41, s43")
    a.e("s_mul_i32 s41, s41, 9216")
    a.e("s_mul_i32 s42, s43, 9216"); a.e(f"s_add_u32 s42, s42, {WRING}")
    a.e(f"v_add_u32 v4, 131072, v{vL16}")
    for sl in range(3): a.e(f"v_add_u32 v{5+sl}, {WRING + sl*36864}, v{vL16}")

def gemm_wl(g, sT, vL16, LD):
    sT0, sT1, sT2 = sT
    r = []
    for part, n in ((0, 4), (1, 4), (2, 1)):
        r += [f"s_add_u32 m0, s42, {(g % 3) * 36864 + part * 4096}", f"s_add_u32 s{sT0}, s41, {g * 36864 + part * 4096}"]
        r += [f"buffer_load_dwordx4 v{vL16}, s[12:15], s{sT0} offen offset:{i*1024}{LD} lds" for i in range(n)]
    return r
CX = 88; GACC = 184; WF = 64
def gemm_cl(g, sT, vL16, LD):
    r = [f"s_add_u32 s{sT[1]}, s40, {g * 4096}"]
    for ks in range(4):
        for i in range(2):
            r.append(f"buffer_load_dwordx4 {v(CX + (g % 3) * 32 + (ks * 2 + i) * 4, 4)}, v{4 if i else vL16}, s[8:11], s{sT[1]} offen offset:{ks*1024}{LD}")
    return r

def gemm_main(a, sW, sItem, sT, vL16, LD, gst=None):
    sT0, sT1, sT2 = sT
    NB = 6; D = 5
    for g in range(8):
        a.e(f"s_waitcnt vmcnt({[8, 17, 17, 17, 17, 17, 17, 0][g]})")
        a.e("s_barrier")
        if gst: gst(3 + g); a.e("s_waitcnt lgkmcnt(0)")
        ld = (gemm_wl(g + 2, sT, vL16, LD) + gemm_cl(g + 2, sT, vL16, LD)) if g + 2 < 8 else []
        rd = lambda n: f"ds_read_b128 {v(WF + 4 * (n % NB), 4)}, v{5 + g % 3} offset:{n * 1024}"
        for n in range(D): a.e(rd(n))
        k = 0
        for n in range(36):
            ks, j = divmod(n, 9)
            a.e(f"s_waitcnt lgkmcnt({min(D - 1, 35 - n)})")
            for i in range(2):
                acc = v(GACC + (i * 9 + j) * 4, 4)
                a.e(f"{MF} {acc}, {v(WF + 4 * (n % NB), 4)}, {v(CX + (g % 3) * 32 + (ks * 2 + i) * 4, 4)}, {'0' if (g == 0 and ks == 0) else acc}")
            if n + D < 36: a.e(rd(n + D))
            tgt = min(len(ld), (len(ld) * (n + 1) + 23) // 24)
            while k < tgt:
                a.e(ld[k]); k += 1
    if gst: gst(11)
    a.e(f"s_add_u32 s44, s6, {WS_PART}"); a.e("s_addc_u32 s45, s7, 0"); srd(a, 8, 44, 256 * 73728)
    a.e(f"s_mul_i32 s{sT0}, s{sItem}, 73728"); a.e(f"s_mul_i32 s{sT1}, s43, 18432"); a.e(f"s_add_u32 s{sT0}, s{sT0}, s{sT1}")
    for t in range(18):
        a.e(f"buffer_store_dwordx4 {v(GACC + 4 * t, 4)}, v{vL16}, s[8:11], s{sT0} offen offset:{(t % 4) * 1024} sc1")
        if t % 4 == 3: a.e(f"s_add_u32 s{sT0}, s{sT0}, 4096")
    a.e("s_waitcnt vmcnt(0)")
    a.e("s_barrier")

def final_reduce(a, name, sW, sTq, sNT, sKQ, sItem, sT, vL, vL16, LD):
    sT0, sT1, sT2 = sT
    for n in range(3):
        for q in range(4):
            a.e(f"buffer_load_dwordx4 {v(32 + (n * 4 + q) * 4, 4)}, v{vL16}, s[8:11], s{40 + n} offen{LD}")
            a.e(f"s_add_u32 s{40 + n}, s{40 + n}, 73728")
    for n in range(3):
        B = 32 + n * 16
        a.e(f"s_waitcnt vmcnt({8 - 4 * n + n})")
        for o in range(8): a.e(f"v_add_f32 v{B+o}, v{B+o}, v{B+8+o}")
        for o in range(4): a.e(f"v_add_f32 v{B+o}, v{B+o}, v{B+4+o}")
        a.e(f"v_cvt_pk_bf16_f32 v{16+2*n}, v{B}, v{B+1}"); a.e(f"v_cvt_pk_bf16_f32 v{17+2*n}, v{B+2}, v{B+3}")
        a.e(f"buffer_store_dwordx2 {v(16+2*n,2)}, v9, s[16:19], s{44 + n} offen")

def final_setup(a, sW, sTq, sNT, sKQ, sItem, sT, vL):
    sT0, sT1, sT2 = sT
    a.e("s_load_dwordx2 s[4:5], s[0:1], 96")
    a.e(f"s_add_u32 s44, s6, {WS_PART}"); a.e("s_addc_u32 s45, s7, 0"); srd(a, 8, 44, 256 * 73728)
    a.e(f"v_and_b32 v9, 15, v{vL}"); a.e("v_mul_u32_u24 v9, 2304, v9"); a.e(f"v_lshrrev_b32 v10, 4, v{vL}"); a.e("v_lshl_add_u32 v9, v10, 3, v9")
    a.e(f"s_and_b32 s47, s{sItem}, 0xfc"); a.e("s_mul_i32 s47, s47, 73728"); a.e(f"s_mul_i32 s{sT0}, s{sKQ}, 18432"); a.e(f"s_add_u32 s47, s47, s{sT0}")
    for n in range(3):
        a.e(f"s_add_u32 s{sT0}, s{sW}, {8 * n}")
        a.e(f"s_lshl_b32 s{40 + n}, s{sT0}, 10"); a.e(f"s_add_u32 s{40 + n}, s{40 + n}, s47")
        a.e(f"s_cmp_ge_u32 s{sT0}, 9"); a.e(f"s_cselect_b32 s{sT1}, 1, 0"); a.e(f"s_mul_i32 s{sT2}, s{sT1}, 9"); a.e(f"s_sub_u32 s{sT2}, s{sT0}, s{sT2}")
        a.e(f"s_lshl_b32 s{44 + n}, s{sTq}, 3"); a.e(f"s_add_u32 s{44 + n}, s{44 + n}, s{sT1}"); a.e(f"s_lshl_b32 s{sT1}, s{sKQ}, 1"); a.e(f"s_add_u32 s{44 + n}, s{44 + n}, s{sT1}")
        a.e(f"s_mul_i32 s{44 + n}, s{44 + n}, {16 * 2304}"); a.e(f"s_lshl_b32 s{sT2}, s{sT2}, 5"); a.e(f"s_add_u32 s{44 + n}, s{44 + n}, s{sT2}")
        a.e(f"s_mul_i32 s{sT2}, s{sNT}, 288"); a.e(f"s_add_u32 s{44 + n}, s{44 + n}, s{sT2}"); a.e(f"s_add_u32 s{44 + n}, s{44 + n}, 1152")
        if n == 2:
            a.e(f"s_cmp_ge_u32 s{sT0}, 18"); a.e(f"s_cselect_b32 s42, {OOB}, s42"); a.e(f"s_cselect_b32 s46, {OOB}, s46")
    a.e("s_waitcnt lgkmcnt(0)")
    srd(a, 16, 4, 2048 * 2304)
```

```python
from asmlib import *
import ko
from k1 import MF, WS_KV, WS_CTX, WS_WOF, WS_KVB, WS_QB, wg_decode, act_dma_offsets, w_dma_offsets, act_read_addr, w_read_addr

QSCALE = 0x3e0293ee
NEG = 0xf149f2ca
LTHR = 0x4e800000
OOB = 0x7ff00000
WS_FLAG = 64 << 20

def gen_ka(a, name="ka_kernel", diag=False, X=(), code_end=None):
    kernel_begin(a, name)
    code_end = f"{name}_code_end"
    st = Stamps(a, diag, 0, 76)
    _at = st.at
    pst = (lambda i: (_at(i), a.e("s_waitcnt lgkmcnt(0)"))) if "prost" in X else (lambda i: None)
    if "qst" in X or "phst" in X or "phst2" in X: st.at = lambda i, real=False: _at(i, real) if (i < 2 or i == 12) else None
    if "gst" in X: st.at = lambda i, real=False: _at(i, real) if (i < 3 or i == 12) else None
    if "g2" in X: st.at = lambda i, real=False: _at(i, real) if (i in (0, 1, 2, 3, 4, 10, 11, 12)) else None
    if "prost" in X: st.at = lambda i, real=False: _at(i, real) if (i < 4 or i == 12) else None
    if "kvst" in X:
        _at = st.at
        st.at = lambda i, real=False: _at(i, real) if (i < 4 or i == 12) else None
    _e = a.e
    def e2(x):
        if x.endswith(":"): a.label(x[:-1])
        else: _e(x)
    a.e = e2
    S_C, S_W, S_KV, S_X, S_WQ, S_CT = 8, 12, 16, 20, 24, 28
    sW, sH, sP, sG, sWL = 32, 33, 34, 35, 36
    sT0, sT1, sT2 = 37, 38, 39
    sIT, sKC, sKW, sM0C, sM0W = 40, 41, 42, 43, 44
    sRole, sA, sB = 45, 46, 47
    S_S = 48
    S_DBG = 72
    sI, sN, sKoff, sVoff, sKt, sVt, sM0K, sM0V = 40, 41, 42, 43, 44, 45, 46, 47
    sTA, sJump, sSeg, sR, sTH, sTile, sKX, sKWq = 48, 49, 50, 51, 52, 53, 54, 55
    sMSK = 56
    vL = 1; vL16 = 2; vDUM = 3
    vDC = 4; vDW = 8; vRC = 12; vRW = 14; vST = 18; vT = 19
    vDX = 28; vDWq = 124
    CF = 32; WA, WB = 48, 64; ACC = 128
    XS = [0, 131072, 65536]; WSL = [32768, 49152, 98304]
    VRING = 65536; QTMP = 98304; QSTASH = 131072

    a.e("s_cmp_ge_u32 s2, 256")
    a.e(f"s_cbranch_scc1 {name}_end")
    st.at(0); st.at(1, True)
    a.e("s_load_dwordx8 s[60:67], s[0:1], 48")
    a.e("s_load_dwordx2 s[68:69], s[0:1], 80")
    a.e("s_memrealtime s[70:71]")
    a.e("s_load_dwordx4 s[4:7], s[0:1], 104")
    a.e(f"v_lshrrev_b32 v{vT}, 6, v0")
    a.e(f"v_and_b32 v{vL}, 63, v0")
    a.e(f"v_readfirstlane_b32 s{sW}, v{vT}")
    a.e(f"v_lshlrev_b32 v{vL16}, 4, v{vL}")
    wg_decode(a, sH, sP, sT0, sT1)
    a.e(f"s_lshr_b32 s{sG}, s{sW}, 2")
    a.e(f"s_and_b32 s{sWL}, s{sW}, 3")
    a.e(f"s_lshl_b32 s{sT0}, s{sP}, 8")
    a.e(f"s_lshl_b32 s{sT1}, s{sW}, 5")
    a.e(f"s_add_u32 s{sT0}, s{sT0}, s{sT1}")
    act_dma_offsets(a, vDC, vL, vT, sT0, 1024)
    a.e(f"s_lshl_b32 s{sT0}, s{sWL}, 4")
    a.e(f"s_lshl_b32 s{sT1}, s{sH}, 8")
    w_dma_offsets(a, vDW, vL, vT, sT0, sT1, [(0, 0), (1, 0), (2, 1), (3, 1)])
    a.e(f"s_lshl_b32 s{sM0C}, s{sW}, 12")
    a.e(f"s_add_u32 s{sM0W}, s{sM0C}, 32768")
    a.e(f"s_mov_b32 s{sKC}, 0")
    a.e(f"s_mov_b32 s{sKW}, 0")
    pst(4)
    a.e("s_waitcnt lgkmcnt(0)")
    pst(5)
    srd(a, S_C, 62, 2048 * 1024)
    a.e(f"s_cmp_lt_u32 s{sW}, 4")
    a.e("s_cselect_b32 s46, s66, s68")
    a.e("s_cselect_b32 s47, s67, s69")
    srd(a, S_W, 46, 512 * 8192)
    S_W2 = 28
    dma_c = lambda i, so=sKC: f"buffer_load_dwordx4 v{vDC+i}, s[{S_C}:{S_C+3}], s{so} offen offset:{i*1024} lds"
    dma_w = lambda i, S=S_W: f"buffer_load_dwordx4 v{vDW+i}, s[{S}:{S+3}], s{sKW} offen offset:{i*1024} lds"
    dma_adv = [f"s_add_u32 s{sKC}, s{sKC}, 128", f"s_add_u32 s{sKW}, s{sKW}, {64*8192}",
               f"s_xor_b32 s{sM0C}, s{sM0C}, 0x10000", f"s_xor_b32 s{sM0W}, s{sM0W}, 0x10000"]
    a.e(f"s_mov_b32 m0, s{sM0C}"); a.e("s_nop 0")
    for i in range(4): a.e(dma_c(i))
    a.e(f"s_mov_b32 m0, s{sM0W}"); a.e("s_nop 0")
    for i in range(4): a.e(dma_w(i))
    for x in dma_adv: a.e(x)
    pst(6)
    a.e(f"s_add_u32 s{S_KV}, s6, {WS_KV}"); a.e(f"s_addc_u32 s{S_KV+1}, s7, 0")
    srd(a, S_KV, S_KV, 32 << 20)
    srd(a, S_X, 60, 2048 * 1152)
    srd(a, S_WQ, 64, 576 * 8192)
    srd(a, S_W2, 68, 512 * 8192)
    srd(a, 72, 4, 256)
    a.e("s_barrier")
    pst(7)
    a.e(f"s_mov_b32 m0, s{sM0C}"); a.e("s_nop 0")
    for i in range(4): a.e(dma_c(i))
    a.e(f"s_mov_b32 m0, s{sM0W}"); a.e("s_nop 0")
    for i in range(4): a.e(dma_w(i))
    for x in dma_adv: a.e(x)
    sGW = 3
    PX, PC, PWQ, PWK, PWV = 60, 62, 64, 66, 68
    def touch(parts, R=46):
        base = 0; RS = R + 2
        a.e(f"s_mov_b32 s{R}, s6"); a.e(f"s_mov_b32 s{R+1}, s7"); a.e(f"s_mov_b32 s{sT0}, 0"); a.e(f"s_mov_b32 s{RS}, 1024")
        for (lo, start, n, wt) in parts:
            a.e(f"s_sub_u32 s{sT1}, s{sGW}, {base}"); a.e(f"s_lshl_b32 s{sT2}, s{sT1}, {16 if wt == 1 else 13}")
            if start: a.e(f"s_add_u32 s{sT2}, s{sT2}, {start}")
            if wt == 1: a.e(f"s_add_u32 s{sT2}, s{sT2}, s59")
            if wt >= 2:
                a.e(f"s_mul_i32 s58, s59, {8 * n}"); a.e(f"s_add_u32 s{sT2}, s{sT2}, s58")
            a.e(f"s_cmp_lt_u32 s{sT1}, {n}")
            a.e(f"s_cselect_b32 s{sT0}, s{sT2}, s{sT0}"); a.e(f"s_cselect_b32 s{R}, s{lo}, s{R}"); a.e(f"s_cselect_b32 s{R+1}, s{lo+1}, s{R+1}")
            if wt == 1: a.e(f"s_cselect_b32 s{RS}, 8192, s{RS}")
            base += n
        a.e(f"s_add_u32 s{R}, s{R}, s{sT0}"); a.e(f"s_addc_u32 s{R+1}, s{R+1}, 0")
        a.e(f"v_lshrrev_b32 v{vT}, 3, v{vL}"); a.e(f"v_and_b32 v{vT+1}, 7, v{vL}"); a.e(f"v_lshlrev_b32 v{vT+1}, 7, v{vT+1}")
        a.e(f"v_mad_u32_u24 v{vT}, v{vT}, s{RS}, v{vT+1}"); a.e(f"global_load_dword v{vDUM}, v{vT}, s[{R}:{R+1}]")
    WW = lambda r0, n: [(PWK, r0*8192, n // 8, 1), (PWV, r0*8192, n // 8, 1)]
    a.e(f"s_cmp_lt_u32 s{sW}, 4"); a.e(f"s_cbranch_scc1 {name}_nop0")
    a.e(f"s_lshr_b32 s{sGW}, s2, 3"); a.e(f"s_lshl_b32 s{sT0}, s{sWL}, 5"); a.e(f"s_add_u32 s{sGW}, s{sGW}, s{sT0}")
    a.e("s_and_b32 s59, s2, 7"); a.e("s_lshl_b32 s59, s59, 10")
    touch([(PC, 0, 32, 2)] + WW(64, 128))
    a.e("s_getpc_b64 s[28:29]")
    a.e(f"{name}_pc:")
    a.e(f"s_sub_u32 s28, s28, {name}_pc - {name}"); a.e("s_subb_u32 s29, s29, 0")
    a.e("s_and_b32 s29, s29, 0xffff"); a.e(f"s_mov_b32 s30, {code_end} - {name}"); a.e("s_mov_b32 s31, 0x20000")
    a.e(f"s_sub_u32 s{sT0}, s{sGW}, 88"); a.e(f"s_lshl_b32 s{sT0}, s{sT0}, 13"); a.e(f"s_min_u32 s{sT0}, s{sT0}, {OOB}")
    a.e(f"v_lshlrev_b32 v{vT}, 7, v{vL}")
    a.e(f"buffer_load_dword v{vDUM}, v{vT}, s[28:31], s{sT0} offen")
    a.e("s_or_b32 s70, s70, 1")
    a.e("v_mov_b32 v126, s70"); a.e("v_mov_b32 v127, 0"); a.e(f"v_mov_b32 v{vT}, 0")
    a.e(f"s_cmp_eq_u32 s{sW}, 7"); a.e(f"s_cselect_b32 s{sT0}, 0, {OOB}")
    a.e("s_mov_b64 exec, 1")
    a.e(f"buffer_atomic_cmpswap v[126:127], v{vT}, s[72:75], s{sT0} offen sc0 sc1")
    a.e("s_mov_b64 exec, -1")
    a.label(f"{name}_nop0")
    pst(8)
    a.e(f"s_and_b32 s{sT0}, s{sW}, 1"); a.e(f"s_lshl_b32 s{sT0}, s{sT0}, 14")
    act_read_addr(a, vRC, vL, vT, sT0)
    a.e(f"s_lshl_b32 s{sT0}, s{sG}, 14"); a.e(f"s_add_u32 s{sT0}, s{sT0}, 32768")
    a.e(f"s_and_b32 s{sT1}, s{sW}, 2"); a.e(f"s_lshl_b32 s{sT1}, s{sT1}, 1")
    w_read_addr(a, vRW, vL, vT, sT0, sT1, sT2)
    a.e(f"s_lshl_b32 s{sT0}, s{sH}, 20"); a.e(f"s_lshl_b32 s{sT1}, s{sP}, 17"); a.e(f"s_add_u32 s{sT0}, s{sT0}, s{sT1}")
    a.e(f"s_and_b32 s{sT1}, s{sW}, 1"); a.e(f"s_lshl_b32 s{sT1}, s{sT1}, 16"); a.e(f"s_add_u32 s{sT0}, s{sT0}, s{sT1}")
    a.e(f"v_add_u32 v{vST}, s{sT0}, v{vL16}")
    a.e(f"s_sub_u32 s{sT0}, 15, s{sP}"); a.e(f"s_cmp_eq_u32 s{sG}, 0"); a.e(f"s_cselect_b32 s{sT0}, s{sT0}, s{sP}")
    a.e(f"s_lshl_b32 s{sT0}, s{sT0}, 7"); a.e(f"s_lshl_b32 s{sT1}, s{sWL}, 5"); a.e(f"s_add_u32 s{sT0}, s{sT0}, s{sT1}")
    act_dma_offsets(a, vDX, vL, vT, sT0, 1152)
    a.e(f"v_lshrrev_b32 v{vT+2}, 4, v{vL}"); a.e(f"s_lshl_b32 s{sT0}, s{sW}, 3"); a.e(f"v_add_u32 v{vT}, s{sT0}, v{vT+2}")
    a.e(f"v_lshlrev_b32 v{vT}, 13, v{vT}"); a.e(f"s_lshl_b32 s{sT1}, s{sH}, 8"); a.e(f"v_add_u32 v{vT}, s{sT1}, v{vT}")
    a.e(f"v_and_b32 v{vT+1}, 15, v{vL}"); a.e(f"v_lshlrev_b32 v{vT+3}, 1, v{vT+2}"); a.e(f"v_xor_b32 v{vT+1}, v{vT+1}, v{vT+3}")
    a.e(f"s_and_b32 s{sT0}, s{sW}, 1"); a.e(f"s_lshl_b32 s{sT0}, s{sT0}, 3"); a.e(f"v_xor_b32 v{vT+1}, s{sT0}, v{vT+1}")
    a.e(f"v_lshl_add_u32 v{vDWq}, v{vT+1}, 4, v{vT}"); a.e(f"v_add_u32 v{vDWq+1}, {4*8192-1024}, v{vDWq}")
    pst(9)
    for i in range(128): a.e(f"v_mov_b32 v{ACC+i}, 0")
    pst(10)

    def rd_w(W, ks2):
        r = []
        for d in range(4):
            r.append(f"ds_read_b64_tr_b16 {v(W+4*d,2)}, v{vRW+d} offset:{ks2*8192}")
            r.append(f"ds_read_b64_tr_b16 {v(W+4*d+2,2)}, v{vRW+d} offset:{ks2*8192+1024}")
        return r
    rd_c = lambda t, ks2: f"ds_read_b128 {v(CF+4*(t%4),4)}, v{vRC+ks2} offset:{t*2048}"
    def mf(W, t, d, isK):
        acc = v(ACC + (t*4+d)*4, 4); cf = v(CF+4*(t%4), 4); wf = v(W+4*d, 4)
        return f"{MF} {acc}, {wf}, {cf}, {acc}" if isK else f"{MF} {acc}, {cf}, {wf}, {acc}"
    def qdma(stage):
        sl = stage % 3
        r = [f"s_lshl_b32 s{sT0}, s{sW}, 12", f"s_add_u32 m0, s{sT0}, {XS[sl]}", f"s_mov_b32 s{sT1}, {stage*128}"]
        r += [f"buffer_load_dwordx4 v{vDX+i}, s[{S_X}:{S_X+3}], s{sT1} offen offset:{i*1024} lds" for i in range(4)]
        r += [f"s_lshl_b32 s{sT0}, s{sW}, 11", f"s_add_u32 m0, s{sT0}, {WSL[sl]}", f"s_mov_b32 s{sT1}, {stage*64*8192}"]
        r += [f"buffer_load_dwordx4 v{vDWq+i}, s[{S_WQ}:{S_WQ+3}], s{sT1} offen offset:{i*1024} lds" for i in range(2)]
        return r

    ool = []
    def rot():
        a.e(f"s_add_u32 s{sT0}, s{sGW}, 8"); a.e(f"s_and_b32 s{sT0}, s{sT0}, 31"); a.e(f"s_andn2_b32 s{sGW}, s{sGW}, 31"); a.e(f"s_or_b32 s{sGW}, s{sGW}, s{sT0}")
    SCH = {0: [lambda: touch(WW(192, 128))], 1: [lambda: touch(WW(320, 128))], 2: [rot, lambda: touch(WW(448, 64) + [(PX, 0, 36, 2)])],
           3: [rot, rot, lambda: touch([(PWQ, 0, 36, 1)])], 4: [rot, lambda: touch([(PWQ, 288*8192, 36, 1)])]}
    a.e(f"s_cmp_lt_u32 s{sW}, 4"); a.e(f"s_cbranch_scc0 {name}_w3"); a.e("s_waitcnt vmcnt(8)"); a.label(f"{name}_w3")
    NPF = 11
    a.e(f"s_waitcnt vmcnt({NPF})")
    a.e("s_barrier")
    for x in rd_w(WA, 0): a.e(x)
    for t in range(3): a.e(rd_c(t, 0))
    a.e(f"s_mov_b32 s{sIT}, 0")
    a.e(f"s_cmp_lt_u32 s{sW}, 4")
    a.e(f"s_cbranch_scc0 {name}_vfirst")
    def kv_iter(isK, last, tag, first=False):
        wn = rd_w(WB, 1)
        per = {}
        if last:
            dm = qdma(0) + qdma(1)
            for t in range(8): per[t] = dm[len(dm)*t//8: len(dm)*(t+1)//8]
        elif isK and not first:
            dm = ([f"s_mov_b32 m0, s{sM0C}", f"s_add_u32 s45, s{sKC}, 131072"] + [dma_c(i) for i in range(4)] + [f"s_mov_b32 m0, s{sM0W}", "s_nop 0"] + [dma_w(i) for i in range(4)]
                  + [f"s_add_u32 m0, s{sM0C}, 16384", "s_nop 0"] + [dma_c(i, 45) for i in range(4)] + [f"s_add_u32 m0, s{sM0W}, 16384", "s_nop 0"] + [dma_w(i, S_W2) for i in range(4)] + dma_adv)
            ND = 8
            for t in range(ND): per[t] = dm[len(dm)*t//ND: len(dm)*(t+1)//ND]
        for t in range(8):
            a.e(f"s_waitcnt lgkmcnt({[2,4,6,6,6,4,2,2][t]})")
            ms = [mf(WA, t, d, isK) for d in range(4)]
            nt = t + 3
            a.e(ms[0])
            if t < 4: a.e(wn[2*t])
            a.e(ms[1])
            for x in per.get(t, []): a.e(x)
            a.e(ms[2])
            if t < 4: a.e(wn[2*t+1])
            a.e(ms[3])
            a.e(rd_c(nt % 8, 0 if nt < 8 else 1))
        for t in range(6):
            a.e("s_waitcnt lgkmcnt(2)")
            ms = [mf(WB, t, d, isK) for d in range(4)]
            a.e(ms[0]); a.e(ms[1])
            for x in per.get(8 + t, []): a.e(x)
            a.e(ms[2]); a.e(ms[3])
            if t < 5: a.e(rd_c(t + 3, 1))
            if not last and not isK and t == 0:
                r = a.uid(f"{name}_r")
                for itv, fns in SCH.items():
                    if (itv == 0) != first: continue
                    h = a.uid(f"{name}_h")
                    def hook(fns=fns, r=r):
                        for fn in fns: fn()
                        a.e(f"s_branch {r}")
                    ool.append((h, hook))
                    a.e(f"s_cmp_eq_u32 s{sIT}, {itv}"); a.e(f"s_cbranch_scc1 {h}")
                a.e(f"{r}:")
        a.e("s_waitcnt lgkmcnt(0)" + (" vmcnt(6)" if last else (" vmcnt(0)" if isK else (" vmcnt(4)" if first else ""))))
        a.e("s_barrier")
        if not last:
            for r in [vRC, vRC+1, vRW, vRW+1, vRW+2, vRW+3]: a.e(f"v_xor_b32 v{r}, 0x10000, v{r}")
            wn = rd_w(WA, 0)
            for d in range(4):
                a.e(mf(WB, 6, d, isK)); a.e(wn[2*d]); a.e(wn[2*d+1])
            a.e(rd_c(0, 0)); a.e(rd_c(1, 0))
            for d in range(4): a.e(mf(WB, 7, d, isK))
            a.e(rd_c(2, 0))
        else:
            dm = qdma(2)
            ms = [mf(WB, 6 + (n >> 2), n & 3, isK) for n in range(8)]
            for n in range(8):
                a.e(ms[n])
                for x in dm[len(dm)*n//8: len(dm)*(n+1)//8]: a.e(x)
    SC1 = " sc1" if "plain" not in X else ""
    sSB = 66; sNonce = 69; S_FL = 72
    PKR = lambda n: (32 + 4 * n) if n < 8 else (160 + 4 * (n - 8))
    def kv_store(n):
        if "nost" in X: return [f"buffer_load_dword v{vDUM}, v{vL16}, s[{S_KV}:{S_KV+3}], 0 offen"]
        if "stnt" in X: return [f"s_add_u32 s68, s{sSB + ((n >> 1) & 1)}, {((n >> 2) & 1) * 8192 + (n >> 3) * 32768}",
                f"buffer_store_dwordx4 {v(PKR(n),4)}, v{vST}, s[{S_KV}:{S_KV+3}], s68 offen offset:{(n & 1) * 1024} sc1 nt"]
        return [f"s_add_u32 s68, s{sSB + ((n >> 1) & 1)}, {((n >> 2) & 1) * 8192 + (n >> 3) * 32768}",
                f"buffer_store_dwordx4 {v(PKR(n),4)}, v{vST}, s[{S_KV}:{S_KV+3}], s68 offen offset:{(n & 1) * 1024}{SC1}"]
    for isK in (True, False):
        tag = "k" if isK else "v"
        a.label(f"{name}_{tag}first")
        if isK and "kprio" in X: a.e("s_setprio 1")
        kv_iter(isK, False, tag, True)
        if "kvst" in X: _at(4); a.e("s_waitcnt lgkmcnt(0)")
        a.e(f"s_mov_b32 s{sIT}, 1")
        a.label(f"{name}_{tag}loop")
        kv_iter(isK, False, tag)
        if "kvst" in X:
            for i in range(7):
                l_ = a.uid("kvst"); a.e(f"s_cmp_lg_u32 s{sIT}, {i}"); a.e(f"s_cbranch_scc1 {l_}"); _at(4 + i); a.e("s_waitcnt lgkmcnt(0)"); a.e(l_ + ":")
        a.e(f"s_add_u32 s{sIT}, s{sIT}, 1"); a.e(f"s_cmp_lt_u32 s{sIT}, 7"); a.e(f"s_cbranch_scc1 {name}_{tag}loop")
        kv_iter(isK, True, tag)
        if "kvend" in X: _at(4)
        if "kvst" in X: _at(11)
        a.e(f"s_and_b32 s{sT1}, s{sW}, 2")
        if isK:
            a.e(f"s_lshl_b32 s{sSB}, s{sT1}, 10"); a.e(f"s_add_u32 s{sSB+1}, s{sSB}, 4096")
        else:
            a.e(f"s_lshl_b32 s{sSB}, s{sT1}, 11"); a.e(f"s_add_u32 s{sSB}, s{sSB}, 16384"); a.e(f"s_add_u32 s{sSB+1}, s{sSB}, 2048")
        for n in range(16):
            P = PKR(n)
            if isK:
                t = n >> 1; x = n & 1
                t0, t1 = ACC + (t*4 + 2*x)*4, ACC + (t*4 + 2*x + 1)*4
            else:
                y = n >> 2; d = n & 3
                t0, t1 = ACC + (2*y*4 + d)*4, ACC + ((2*y+1)*4 + d)*4
            a.e(f"v_cvt_pk_bf16_f32 v{P}, v{t0}, v{t0+1}"); a.e(f"v_cvt_pk_bf16_f32 v{P+1}, v{t0+2}, v{t0+3}")
            a.e(f"v_cvt_pk_bf16_f32 v{P+2}, v{t1}, v{t1+1}"); a.e(f"v_cvt_pk_bf16_f32 v{P+3}, v{t1+2}, v{t1+3}")
        if isK: a.e(f"s_branch {name}_qproj")
    a.label(f"{name}_qproj")
    if "kprio" in X: a.e("s_setprio 0")
    st.at(5)

    vRX = 12; vRWq = 14
    a.e(f"s_add_u32 s58, s6, {WS_CTX}"); a.e("s_addc_u32 s59, s7, 0")
    srd(a, S_CT, 58, 16 << 20)
    a.e(f"s_add_u32 s58, s6, {WS_FLAG}"); a.e("s_addc_u32 s59, s7, 0")
    srd(a, S_FL, 58, 65536)
    a.e(f"v_readfirstlane_b32 s{sNonce}, v126")
    a.e(f"s_cmp_eq_u32 s{sNonce}, 0"); a.e(f"s_cselect_b32 s{sNonce}, s70, s{sNonce}")
    vDMA = 4; vKR = 5; vVR = 6; vTHR = 7; vNEG = 8; vPOLL = 9; vMT = 10
    vLS = 40; vM = 42; vLP = 44; vE = 46; NE = 8
    FR = 72; NB = 8
    C = 104; P = 112; S = 128; Q = 160; O = 192
    a.e(f"s_lshr_b32 s{sT0}, s{sW}, 1"); a.e(f"s_lshl_b32 s{sT0}, s{sT0}, 13")
    act_read_addr(a, vRX, vL, vT, sT0)
    a.e(f"s_mov_b32 s{sT0}, {WSL[0]}"); a.e(f"s_and_b32 s{sT1}, s{sW}, 1"); a.e(f"s_lshl_b32 s{sT1}, s{sT1}, 2")
    w_read_addr(a, vRWq, vL, vT, sT0, sT1, sT2)
    SETS = [64, 128]
    def q_reads(F, ks2):
        r = []
        for d in range(4):
            r.append(f"ds_read_b64_tr_b16 {v(F+16+4*d,2)}, v{vRWq+d} offset:{ks2*8192}")
            r.append(f"ds_read_b64_tr_b16 {v(F+16+4*d+2,2)}, v{vRWq+d} offset:{ks2*8192+1024}")
            r.append(f"ds_read_b128 {v(F+4*d,4)}, v{vRX+ks2} offset:{d*2048}")
        return r
    def q_mfmas(F, first=False):
        return [f"{MF} {v(O+(t*4+d)*4,4)}, {v(F+16+4*d,4)}, {v(F+4*t,4)}, {'0' if first else v(O+(t*4+d)*4,4)}" for t in range(4) for d in range(4)]
    def spread(ms, fill, upto):
        out = []; k = 0
        for i, m in enumerate(ms):
            out.append(m)
            tgt = min(len(fill), (len(fill) * (i + 1) + upto - 1) // upto)
            while k < tgt:
                out.append(fill[k]); k += 1
        return out
    for x in q_reads(SETS[0], 0): a.e(x)
    a.e(f"s_lshl_b32 s{sT0}, s{sWL}, 12"); a.e(f"v_add_u32 v{vDMA}, s{sT0}, v{vL16}")
    a.e(f"s_lshl_b32 s{sT1}, s{sG}, 14"); a.e(f"v_add_u32 v{vKR}, s{sT1}, v{vL16}"); a.e(f"v_add_u32 v{vVR}, {VRING}, v{vKR}")
    a.e(f"s_add_u32 s{sM0K}, s{sT0}, s{sT1}"); a.e(f"s_add_u32 s{sM0V}, s{sM0K}, {VRING}")
    a.e(f"s_lshl_b32 s{sKoff}, s{sH}, 20"); a.e(f"s_add_u32 s{sVoff}, s{sKoff}, 16384"); a.e(f"s_add_u32 s{sJump}, s{sKoff}, {17*32768}")
    a.e(f"s_mov_b32 s{sKt}, 0"); a.e(f"s_mov_b32 s{sVt}, 0")
    a.e(f"s_lshl_b32 s{sT0}, s{sP}, 1"); a.e(f"s_add_u32 s{sT0}, s{sT0}, 2"); a.e(f"s_sub_u32 s{sT1}, 15, s{sP}")
    a.e(f"s_cmp_eq_u32 s{sG}, 0")
    a.e(f"s_cselect_b32 s{sTA}, s{sT0}, 99"); a.e(f"s_cselect_b32 s{sI}, s{sT0}, 17"); a.e(f"s_cselect_b32 s{sTile}, s{sP}, s{sT1}")
    a.e(f"s_cselect_b32 s{sSeg}, 0, 1")
    a.e(f"s_sub_u32 s{sI}, s{sI}, 1")
    a.e(f"s_lshl_b32 s{sR}, s{sTile}, 2"); a.e(f"s_sub_u32 s{sR}, 0, s{sR}")
    a.e(f"s_mov_b32 s{sTH}, {LTHR}"); a.e(f"v_mov_b32 v{vNEG}, {NEG}")
    a.e(f"s_lshl_b32 s{sT0}, s{sWL}, 5"); a.e(f"v_and_b32 v{vT}, 15, v{vL}"); a.e(f"v_add_u32 v{vT}, s{sT0}, v{vT}")
    a.e(f"v_lshrrev_b32 v{vT+1}, 4, v{vL}"); a.e(f"v_lshlrev_b32 v{vT+1}, 2, v{vT+1}"); a.e(f"v_sub_u32 v{vTHR}, v{vT}, v{vT+1}")
    a.e(f"s_lshl_b32 s{sT0}, s{sH}, 10"); a.e(f"v_and_b32 v{vMT}, 7, v{vL}"); a.e(f"v_lshl_add_u32 v{vMT}, v{vMT}, 7, s{sT0}")
    def kv_dma(isK):
        off, m0 = (sKoff, sM0K) if isK else (sVoff, sM0V)
        return [f"s_mov_b32 m0, s{m0}", "s_nop 0"] + [f"buffer_load_dwordx4 v{vDMA}, s[{S_KV}:{S_KV+3}], s{off} offen offset:{i*1024}{'' if 'inv' in X else ' sc1'} lds" for i in range(4)]
    def kv_adv(isK):
        off, tt, m0 = (sKoff, sKt, sM0K) if isK else (sVoff, sVt, sM0V)
        return [f"s_xor_b32 s{m0}, s{m0}, 0x8000", f"s_add_u32 s{tt}, s{tt}, 1", f"s_add_u32 s{off}, s{off}, 32768",
                f"s_add_u32 s{sT2}, s{sJump}, {0 if isK else 16384}", f"s_cmp_eq_u32 s{tt}, s{sTA}", f"s_cselect_b32 s{off}, s{sT2}, s{off}",
                f"s_cmp_ge_u32 s{tt}, 17", f"s_cselect_b32 s{off}, {OOB}, s{off}"]
    NA = [2, 2, 2, 2] + [0] * 6; NBs = [2, 2, 2, 2] + [0] * 6
    if "st5" in X: NA = [2, 2, 2, 2, 2] + [0] * 5; NBs = [1, 1, 1, 1, 2] + [0] * 5
    if "st3" in X: NA = [3, 3, 3] + [0] * 7; NBs = [3, 2, 2] + [0] * 7
    lastst = max(i for i in range(9) if NA[i] + NBs[i])
    sdone = [0]
    def add_stores(fl, n, marks):
        out = []; nm = 0; marks = list(marks[:n])
        for x in fl:
            out.append(x)
            if x.startswith("v_mfma"):
                nm += 1
                if marks and nm == marks[0]:
                    marks.pop(0); out += kv_store(sdone[0]); sdone[0] += 1
        return out
    for it in range(9):
        if "qst" in X: _at(2 + it)
        a.e("s_waitcnt lgkmcnt(0)")
        fl = add_stores(spread(q_mfmas(SETS[0], it == 0), q_reads(SETS[1], 1), 12), NA[it], [4, 12] if NA[it] < 3 else [3, 8, 13])
        for x in fl: a.e(x)
        if it < 8:
            if it == 7:
                lw = a.uid(f"{name}_nw7")
                a.e(f"s_cmp_eq_u32 s{sW}, 7"); a.e(f"s_cbranch_scc1 {lw}"); a.e("s_waitcnt vmcnt(0)"); a.e(f"{lw}:")
                a.e("s_waitcnt lgkmcnt(0) vmcnt(1)")
            else:
                a.e(f"s_waitcnt lgkmcnt(0) vmcnt({6 + NA[it] + (NA[it-1] + NBs[it-1] if it else 0)})")
            a.e("s_barrier")
            dx = XS[(it+1) % 3] - XS[it % 3]; dw = WSL[(it+1) % 3] - WSL[it % 3]
            for r in (vRX, vRX+1): a.e(f"v_add_u32 v{r}, {dx & 0xffffffff}, v{r}")
            for r in range(vRWq, vRWq+4): a.e(f"v_add_u32 v{r}, {dw & 0xffffffff}, v{r}")
            sig = []
            if it == lastst + 2:
                ls = a.uid(f"{name}_sig")
                sig = [f"s_cmp_lg_u32 s{sW}, 7", f"s_cbranch_scc1 {ls}", f"v_mov_b32 v{vPOLL}, s{sNonce}", f"s_lshl_b32 s{sT0}, s{sP}, 7", "s_mov_b64 exec, 1",
                       f"buffer_store_dword v{vPOLL}, v{vMT}, s[{S_FL}:{S_FL+3}], s{sT0} offen sc1",
                       "s_mov_b64 exec, -1", ls + ":"]
            if it == 6:
                ls = a.uid(f"{name}_pl")
                sig += [f"s_cmp_lg_u32 s{sW}, 7", f"s_cbranch_scc1 {ls}", f"buffer_load_dword v{vPOLL}, v{vMT}, s[{S_FL}:{S_FL+3}], 0 offen sc1", ls + ":"]
            if it < 6: dm = qdma(it + 3)
            elif it == 6: dm = []
            else: dm = []
            for x in sig: a.e(x)
            ms = q_mfmas(SETS[1])
            for x in add_stores(spread(ms[:8], q_reads(SETS[0], 0), 8), NBs[it], [2, 6, 8]): a.e(x)
            for x in spread(ms[8:], dm, 8): a.e(x)
        else:
            lw = a.uid(f"{name}_nw7"); lp = a.uid(f"{name}_poll")
            a.e("s_waitcnt vmcnt(0)")
            a.e(f"s_cmp_lg_u32 s{sW}, 7"); a.e(f"s_cbranch_scc1 {lw}")
            a.e(f"s_mov_b32 s{sT1}, 0")
            a.e(f"{lp}:")
            a.e(f"v_cmp_ne_u32 vcc, s{sNonce}, v{vPOLL}")
            a.e(f"s_add_u32 s{sT1}, s{sT1}, 1")
            a.e(f"s_cbranch_vccz {lw}")
            a.e(f"s_cmp_ge_u32 s{sT1}, 0x40000"); a.e(f"s_cbranch_scc1 {lw}")
            a.e("s_sleep 1")
            a.e(f"buffer_load_dword v{vPOLL}, v{vMT}, s[{S_FL}:{S_FL+3}], 0 offen sc1")
            a.e("s_waitcnt vmcnt(0)")
            a.e(f"s_branch {lp}")
            a.e(f"{lw}:")
            a.e("s_waitcnt lgkmcnt(0)")
            a.e("s_barrier")
            for x in spread(q_mfmas(SETS[1]), kv_dma(True) + kv_adv(True) + kv_dma(True) + kv_adv(True) + kv_dma(False) + kv_adv(False), 12): a.e(x)
    st.at(6)
    if "qst" in X: _at(11)
    a.e(f"s_lshr_b32 s{sT0}, s{sW}, 1"); a.e(f"s_and_b32 s{sT1}, s{sT0}, 1"); a.e(f"s_lshl_b32 s{sT1}, s{sT1}, 14")
    a.e(f"s_lshl_b32 s{sT0}, s{sG}, 15"); a.e(f"s_sub_u32 s{sT0}, s{sT1}, s{sT0}")
    a.e(f"s_and_b32 s{sT1}, s{sW}, 1"); a.e(f"s_lshl_b32 s{sT1}, s{sT1}, 11"); a.e(f"s_add_u32 s{sT0}, s{sT0}, s{sT1}")
    a.e(f"s_add_u32 s{sT0}, s{sT0}, {QSTASH}"); a.e(f"v_add_u32 v{vT}, s{sT0}, v{vL16}")
    a.e(f"s_mov_b32 s{sT1}, {QSCALE}")
    a.e("s_nop 2")
    for t in range(4):
        for x in range(2):
            PK = FR + ((t*2+x) % 4) * 4
            t0 = O + (t*4 + 2*x)*4
            for j in range(8): a.e(f"v_mul_f32 v{t0+j}, s{sT1}, v{t0+j}")
            for j in range(4): a.e(f"v_cvt_pk_bf16_f32 v{PK+j}, v{t0+2*j}, v{t0+2*j+1}")
            a.e(f"ds_write_b128 v{vT}, {v(PK,4)} offset:{t*4096 + x*1024}")
    a.e("s_waitcnt lgkmcnt(0) vmcnt(8)")
    a.e("s_barrier")
    a.e(f"s_lshl_b32 s{sT0}, s{sWL}, 13"); a.e(f"s_lshl_b32 s{sT1}, s{sG}, 15"); a.e(f"s_add_u32 s{sT0}, s{sT0}, s{sT1}")
    a.e(f"s_add_u32 s{sT0}, s{sT0}, {QTMP}"); a.e(f"v_add_u32 v{vT}, s{sT0}, v{vL16}")
    for f in range(8): a.e(f"ds_read_b128 {v(Q+4*f,4)}, v{vT} offset:{f*1024}")
    if "noprio" not in X:
        a.e(f"s_cmp_eq_u32 s{sG}, {1 if 'prio0' in X else 0}"); a.e(f"s_cbranch_scc1 {name}_np"); a.e("s_setprio 1"); a.label(f"{name}_np")
    st.at(7)

    Sr = lambda buf, kt, qt: S + buf*16 + (kt*2+qt)*4
    Pr = lambda buf, qt: P + buf*8 + qt*4
    Or = lambda dt, qt: O + (dt*2+qt)*4
    def slot_k(b, n):
        kt, ds = n >> 2, n & 3
        rd = lambda f: f"ds_read_b128 {v(f,4)}, v{vKR} offset:{((2*b+kt)*4+ds)*1024}"
        def ms(f, czero=False):
            return [f"{MF} {v(Sr(b,kt,qt),4)}, {v(f,4)}, {v(Q+(qt*4+ds)*4,4)}, " + (("0" if czero else v(C+4*qt,4)) if ds == 0 else v(Sr(b,kt,qt),4)) for qt in range(2)]
        return rd, ms
    def slot_v(b, dt):
        rd = lambda f: f"ds_read_b128 {v(f,4)}, v{vVR} offset:{(b*8+dt)*1024}"
        ms = lambda f: [f"{MF} {v(Or(dt,qt),4)}, {v(f,4)}, {v(Pr(b,qt),4)}, {v(Or(dt,qt),4)}" for qt in range(2)]
        return rd, ms
    def mask_block(buf, ret):
        a.e(f"s_lshl_b32 s{sT0}, s{sR}, 5"); a.e(f"v_subrev_u32 v{vMT}, s{sT0}, v{vTHR}")
        items = [(kt, qt, rr) for kt in range(2) for qt in range(2) for rr in range(4)]
        for base in range(0, 16, 4):
            for n, (kt, qt, rr) in enumerate(items[base:base+4]):
                a.e(f"v_cmp_le_i32 s[{sMSK+2*n}:{sMSK+2*n+1}], {16*kt+rr-16*qt}, v{vMT}")
            for n, (kt, qt, rr) in enumerate(items[base:base+4]):
                x = Sr(buf,kt,qt)+rr
                a.e(f"v_cndmask_b32 v{x}, v{vNEG}, v{x}, s[{sMSK+2*n}:{sMSK+2*n+1}]")
        a.e(f"s_branch {ret}")
    def mask_hook(buf):
        h = a.uid(f"{name}_mask"); r = a.uid(f"{name}_mret")
        ool.append((h, lambda: mask_block(buf, r)))
        return [f"s_cmp_ge_i32 s{sR}, 0", f"s_cbranch_scc1 {h}", r + ":", f"s_add_u32 s{sR}, s{sR}, 1"]
    def exp_code_pk(buf):
        r = []; pend = []; k = 0
        for qt in range(2):
            for kt in range(2):
                x = Sr(buf,kt,qt)
                for hf in range(2):
                    e0 = vE + (k % NE); e1 = e0 + 1; k += 2
                    r.append(f"v_exp_f32 v{e0}, v{x+2*hf}")
                    if pend: r.append(pend.pop(0))
                    r.append(f"v_exp_f32 v{e1}, v{x+2*hf+1}")
                    if pend: r.append(pend.pop(0))
                    if kt == 0 and hf == 1: pend.append(f"v_pk_add_f32 {v(vLQ,2)}, {v(vE + ((k - 4) % NE),2)}, {v(e0,2)}")
                    elif kt == 1: pend.append(f"v_pk_add_f32 {v(vLQ,2)}, {v(vLQ,2)}, {v(e0,2)}")
                    pend.append(f"v_cvt_pk_bf16_f32 v{Pr(buf,qt)+2*kt+hf}, v{e0}, v{e1}")
                    if kt == 1 and hf == 1: pend.append(f"v_add_f32 v{vLP+qt}, v{vLQ}, v{vLQ+1}")
        return r + ["s_nop 0"] + pend
    vLQ = 66
    def exp_code(buf):
        if "pk" in X: return exp_code_pk(buf)
        r = []; pend = []; k = 0
        for qt in range(2):
            for kt in range(2):
                x = Sr(buf,kt,qt)
                for hf in range(2):
                    e0 = vE + (k % NE); e1 = vE + ((k + 1) % NE); k += 2
                    r.append(f"v_exp_f32 v{e0}, v{x+2*hf}")
                    if pend: r.append(pend.pop(0))
                    r.append(f"v_exp_f32 v{e1}, v{x+2*hf+1}")
                    if pend: r.append(pend.pop(0))
                    if pend: r.append(pend.pop(0))
                    if kt == 0 and hf == 0: pend.append(f"v_add_f32 v{vLP+qt}, v{e0}, v{e1}")
                    else: pend += [f"v_add_f32 v{vLP+qt}, v{vLP+qt}, v{e0}"]
                    pend.append(f"v_cvt_pk_bf16_f32 v{Pr(buf,qt)+2*kt+hf}, v{e0}, v{e1}")
                    if not (kt == 0 and hf == 0): pend.append(f"v_add_f32 v{vLP+qt}, v{vLP+qt}, v{e1}")
        return r + ["s_nop 0"] + pend
    lacc = [f"v_add_f32 v{vLS}, v{vLS}, v{vLP}", f"v_add_f32 v{vLS+1}, v{vLS+1}, v{vLP+1}"]
    def xlane(op, x, t):
        return [f"v_mov_b32 v{t}, v{x}", "s_nop 1", f"v_permlane16_swap_b32 v{x}, v{t}", f"{op} v{x}, v{x}, v{t}",
                f"v_mov_b32 v{t}, v{x}", "s_nop 1", f"v_permlane32_swap_b32 v{x}, v{t}", f"{op} v{x}, v{x}, v{t}"]
    def rare_block(sbuf, other, ret):
        a.e("s_nop 7")
        for qt in range(2):
            d = vT + qt; f = vT + 2 + qt
            x0, x1 = Sr(sbuf,0,qt), Sr(sbuf,1,qt)
            a.e(f"v_max3_f32 v{d}, v{x0}, v{x0+1}, v{x0+2}"); a.e(f"v_max3_f32 v{d}, v{d}, v{x0+3}, v{x1}")
            a.e(f"v_max3_f32 v{d}, v{d}, v{x1+1}, v{x1+2}"); a.e(f"v_max3_f32 v{d}, v{d}, v{x1+3}, 0")
            for x in xlane("v_max_f32", d, vT + 4): a.e(x)
            a.e(f"v_sub_f32 v{f}, 0, v{d}"); a.e(f"v_exp_f32 v{f}, v{f}")
            for b_ in ([sbuf, 1 - sbuf] if other else [sbuf]):
                for kt in range(2):
                    for rr in range(4): a.e(f"v_sub_f32 v{Sr(b_,kt,qt)+rr}, v{Sr(b_,kt,qt)+rr}, v{d}")
            for rr in range(4): a.e(f"v_sub_f32 v{C+4*qt+rr}, v{C+4*qt+rr}, v{d}")
            a.e(f"v_add_f32 v{vM+qt}, v{vM+qt}, v{d}"); a.e(f"v_mul_f32 v{vLS+qt}, v{vLS+qt}, v{f}")
            for dt in range(8):
                for rr in range(4): a.e(f"v_mul_f32 v{Or(dt,qt)+rr}, v{Or(dt,qt)+rr}, v{f}")
        for x in exp_code(sbuf): a.e(x)
        a.e("s_nop 1")
        a.e(f"s_branch {ret}")
    def check(sbuf, other):
        h = a.uid(f"{name}_rare"); r = a.uid(f"{name}_ret")
        ool.append((h, lambda: rare_block(sbuf, other, r)))
        return [f"v_add_f32 v{vT}, v{vLP}, v{vLP+1}", f"v_cmp_nge_f32 vcc, s{sTH}, v{vT}", f"s_cbranch_vccnz {h}", r + ":"]
    D = 6 if 'd6' in X else (4 if 'd4' in X else 5)
    def run_slots(slots, fills, nxt, sync_after=None, sync=None, post={}):
        n = len(slots)
        for sidx, (rd, ms) in enumerate(slots):
            f = FR + 4 * (sidx % NB)
            if sync_after is None: out = min(D - 1, n - 1 - sidx + len(nxt[:max(0, sidx + D - n)]))
            else: out = min(D - 1, n - 1 - sidx) if sidx <= sync_after else None
            if out is not None: a.e(f"s_waitcnt lgkmcnt({out})")
            m = ms(f); fl = fills.get(sidx, []); h = (len(fl) + 1) // 2
            a.e(m[0])
            for x in fl[:h]: a.e(x)
            a.e(m[1])
            for x in fl[h:]: a.e(x)
            t = sidx + D
            if t < n: a.e(slots[t][0](FR + 4 * (t % NB)))
            elif sync_after is None:
                if t - n < len(nxt): a.e(nxt[t - n][0](FR + 4 * (t % NB)))
            elif sidx == sync_after:
                for x in sync: a.e(x)
                for tt in range(n, sidx + D + 1): a.e(nxt[tt - n][0](FR + 4 * (tt % NB)))
            elif sidx > sync_after: a.e(nxt[t - n][0](FR + 4 * (t % NB)))
            for x in post.get(sidx, []): a.e(x)
    def distribute(fills, items, lo, hi):
        n = hi - lo
        for i in range(n):
            fills.setdefault(lo + i, []).extend(items[len(items) * i // n: len(items) * (i + 1) // n])
    toggles = [f"v_xor_b32 v{vKR}, 0x8000, v{vKR}", f"v_xor_b32 v{vVR}, 0x8000, v{vVR}"]
    vslots = lambda b: [slot_v(b, dt) for dt in range(8)]
    kslots = lambda b: [slot_k(b, n) for n in range(8)]

    sNext, sEv = 64, 65
    sRole, sA, sB = 66, 67, 68
    SK, SV, SQ, SSK = 8, 12, 20, 24
    SU, SQT = 8, 12
    KR, VR, QR, WR, TP, PR = 54, 28, 11, 36, 68, 46
    wrow = lambda r: (11 + r) if r < 8 else ((28 + r - 8) if r < 20 else (54 + r - 20))
    def side_load(rnd):
        le = a.uid(f"{name}_sle")
        a.e("s_load_dwordx8 s[56:63], s[0:1], 0")
        a.e(f"s_and_b32 s{sA}, s2, 7"); a.e(f"s_lshl_b32 s{sA}, s{sA}, 3"); a.e(f"s_lshr_b32 s{sT0}, s2, 5"); a.e(f"s_add_u32 s{sA}, s{sA}, s{sT0}")
        a.e(f"s_bfe_u32 s{sT0}, s2, 0x20003")
        a.e(f"s_mul_i32 s{sT1}, s{sT0}, 9"); a.e(f"s_add_u32 s{sT1}, s{sT1}, 1"); a.e(f"s_lshr_b32 s{sT1}, s{sT1}, 1")
        a.e(f"s_add_u32 s{sB}, s{sT1}, s{sW}")
        a.e(f"s_and_b32 s{sT1}, s{sT0}, 1"); a.e(f"s_sub_u32 s{sT1}, 5, s{sT1}")
        a.e(f"s_cmp_lt_u32 s{sW}, s{sT1}"); a.e(f"s_cselect_b32 s{sRole}, 1, 0")
        a.e("s_waitcnt lgkmcnt(0)")
        a.e(f"s_cmp_eq_u32 s{sRole}, 0"); a.e(f"s_cbranch_scc1 {le}")
        srd(a, SQ, 56, 2048*1152); srd(a, SK, 58, 2048*1152); srd(a, SV, 60, 2048*1152); srd(a, SSK, 62, 576*8)
        a.e(f"v_lshrrev_b32 v{vT}, 4, v{vL}"); a.e(f"v_and_b32 v{vT+1}, 15, v{vL}")
        a.e(f"s_lshl_b32 s{sT0}, s{sA}, 5"); a.e(f"v_lshl_add_u32 v{vT}, v{vT}, 3, s{sT0}")
        a.e(f"v_mul_u32_u24 v{vT}, 1152, v{vT}"); a.e(f"v_lshl_add_u32 v{vT}, v{vT+1}, 2, v{vT}")
        a.e(f"s_lshl_b32 s{sT0}, s{sB}, 6"); a.e(f"v_add_u32 v{vT}, s{sT0}, v{vT}")
        a.e(f"v_add_u32 v{vT+2}, {(-3456) & 0xffffffff}, v{vT}"); a.e(f"v_add_u32 v{vT+3}, 4608, v{vT}")
        a.e(f"v_lshlrev_b32 v{vT+1}, 4, v{vT+1}"); a.e(f"s_lshl_b32 s{sT0}, s{sB}, 8")
        for i in range(3): a.e(f"buffer_load_dword v{KR+i}, v{vT+2}, s[{SK}:{SK+3}], 0 offen offset:{i*1152}")
        for R_, S_ in ((KR + 3, SK), (VR, SV), (QR, SQ)):
            for i in range(8): a.e(f"buffer_load_dword v{R_+i}, v{vT if i < 4 else vT+3}, s[{S_}:{S_+3}], 0 offen offset:{(i%4)*1152}")
        a.e(f"buffer_load_dwordx4 {v(WR,4)}, v{vT+1}, s[{SSK}:{SSK+3}], s{sT0} offen")
        a.e(f"{le}:")
    SSC = " sc1"
    def side_compute(rnd):
        l3 = a.uid(f"{name}_sc2"); le = a.uid(f"{name}_sce")
        a.e(f"s_cmp_eq_u32 s{sRole}, 0"); a.e(f"s_cbranch_scc1 {le}")
        a.e(f"s_mov_b32 s{sT1}, 0x05040100"); a.e(f"s_mov_b32 s{sT2}, 0x07060302")
        a.e(f"v_lshrrev_b32 v{vT}, 4, v{vL}"); a.e(f"v_and_b32 v{vT+1}, 15, v{vL}")
        a.e(f"s_add_u32 s70, s6, {WS_KVB}"); a.e("s_addc_u32 s71, s7, 0"); srd(a, SU, 70, 576*4096)
        a.e(f"s_add_u32 s70, s6, {WS_QB}"); a.e("s_addc_u32 s71, s7, 0"); srd(a, SQT, 70, 576*4096)
        a.e(f"s_lshl_b32 s{sT0}, s{sA}, 6"); a.e(f"v_lshl_add_u32 v{vT}, v{vT}, 4, s{sT0}")
        a.e(f"v_lshlrev_b32 v{vT+1}, 13, v{vT+1}")
        a.e(f"v_sub_u32 v{vT+2}, 4080, v{vT}"); a.e(f"v_add_u32 v{vT+2}, v{vT+2}, v{vT+1}"); a.e(f"v_add_u32 v{vT}, v{vT}, v{vT+1}")
        a.e(f"s_lshl_b32 s{sT0}, s{sB}, 17")
        for c in range(2):
            sel = sT2 if c else sT1
            for i in range(4): a.e(f"v_perm_b32 v{TP+i}, v{QR+2*i+1}, v{QR+2*i}, s{sel}")
            a.e(f"buffer_store_dwordx4 {v(TP,4)}, v{vT}, s[{SQT}:{SQT+3}], s{sT0} offen{SSC}")
            AC = vT + 3
            for hf in (1, 0):
                for i in range(6):
                    j = 4 * hf - 2 + i
                    a.e(f"v_perm_b32 v{PR+i}, v{KR+j+2}, v{KR+j+3}, s{sel}")
                for i in range(4): a.e(f"v_dot2_f32_bf16 v{AC+i}, v{PR+2+i}, v{WR+2*c}, 0")
                for i in range(4): a.e(f"v_dot2_f32_bf16 v{AC+i}, v{PR+i}, v{WR+2*c+1}, v{AC+i}")
                for i in range(4):
                    a.e(f"v_and_b32 v{PR+i}, 0xffff0000, v{VR+4*hf+i}" if c else f"v_lshlrev_b32 v{PR+i}, 16, v{VR+4*hf+i}")
                for i in range(4): a.e(f"v_mul_f32 v{AC+i}, v{AC+i}, v{PR+i}")
                o = TP + (0 if hf else 2)
                a.e(f"v_cvt_pk_bf16_f32 v{o}, v{AC+3}, v{AC+2}"); a.e(f"v_cvt_pk_bf16_f32 v{o+1}, v{AC+1}, v{AC}")
            a.e(f"buffer_store_dwordx4 {v(TP,4)}, v{vT+2}, s[{SU}:{SU+3}], s{sT0} offen{SSC}")
            a.e(f"s_add_u32 s{sT0}, s{sT0}, 4096"); a.e("s_nop 0")
        a.e(f"{le}:")
    def flag_store(off_code):
        a.e(f"v_mov_b32 v{vT}, s{sNonce}"); a.e(f"v_mov_b32 v{vT+1}, 0")
        for x in off_code: a.e(x)
        a.e("s_mov_b64 exec, 1")
        a.e(f"buffer_store_dword v{vT}, v{vT+1}, s[{S_FL}:{S_FL+3}], s{sT1} offen sc1")
        a.e("s_mov_b64 exec, -1")
    def side_hook(ret):
        L = [a.uid(f"{name}_ev") for _ in range(6)]
        a.e(f"s_cmp_ge_u32 s{sVt}, 13"); a.e(f"s_cbranch_scc1 {name}_evlate")
        for e in range(1, 6):
            a.e(f"s_cmp_eq_u32 s{sEv}, {e}"); a.e(f"s_cbranch_scc1 {L[e]}")
        a.e(f"s_add_u32 s{sNext}, s{sNext}, 2"); a.e(f"s_mov_b32 s{sEv}, 1")
        side_load(1)
        a.e(f"s_branch {ret}")
        a.e(L[1] + ":")
        a.e(f"s_mov_b32 s{sNext}, 99")
        side_compute(1)
        a.e(f"s_branch {ret}")
        a.e(L[2] + ":")
        a.e(L[3] + ":")
        a.e(f"s_mov_b32 s{sEv}, 4")
        a.e(f"s_lshl_b32 s{sT1}, s{sP}, 1"); a.e(f"s_add_u32 s{sT1}, s{sT1}, 4"); a.e(f"s_add_u32 s{sNext}, s{sNext}, 1"); a.e(f"s_max_u32 s{sB}, s{sNext}, s{sT1}"); a.e(f"s_min_u32 s{sNext}, s{sB}, 13")
        flag_store([f"s_lshl_b32 s{sT1}, s2, 2", f"s_add_u32 s{sT1}, s{sT1}, 32768"])
        a.e(f"s_branch {ret}")
        a.e(L[5] + ":")
        a.e("s_load_dwordx2 s[8:9], s[0:1], 88"); a.e("s_load_dwordx2 s[10:11], s[0:1], 32")
        a.e(f"s_sub_u32 s{sT0}, s{sVt}, 1"); a.e(f"s_lshl_b32 s{sT0}, s{sT0}, 8"); a.e(f"s_add_u32 s{sT0}, s{sT0}, s2")
        a.e(f"s_min_u32 s{sT0}, s{sT0}, 863"); a.e(f"s_sub_u32 s{sT1}, s{sT0}, 576")
        a.e(f"s_add_u32 s{sNext}, s{sNext}, 1"); a.e(f"s_max_u32 s{sT2}, s{sA}, 5")
        a.e(f"s_cmp_eq_u32 s{sVt}, 4"); a.e(f"s_cselect_b32 s{sNext}, s{sT2}, s{sNext}"); a.e(f"s_cselect_b32 s{sEv}, 2, 5")
        a.e(f"v_lshlrev_b32 v{vT}, 7, v{vL}")
        a.e("s_waitcnt lgkmcnt(0)")
        a.e(f"s_cmp_lt_u32 s{sT0}, 576"); a.e(f"s_cselect_b32 s{sT0}, s{sT0}, s{sT1}"); a.e("s_cselect_b32 s8, s8, s10"); a.e("s_cselect_b32 s9, s9, s11")
        a.e(f"s_lshl_b32 s{sT0}, s{sT0}, 13"); a.e(f"s_add_u32 s8, s8, s{sT0}"); a.e("s_addc_u32 s9, s9, 0")
        a.e(f"global_load_dword v{vDUM}, v{vT}, s[8:9]")
        a.e(f"s_branch {ret}")
        a.label(f"{name}_evlate")
        a.e(f"s_cmp_ge_u32 s{sVt}, 16"); a.e(f"s_cbranch_scc1 {name}_evchk")
        a.e("s_load_dwordx2 s[8:9], s[0:1], 88")
        a.e(f"s_sub_u32 s{sT0}, s{sVt}, 13"); a.e(f"s_lshl_b32 s{sT0}, s{sT0}, 5"); a.e(f"s_lshr_b32 s{sT1}, s2, 3"); a.e(f"s_add_u32 s{sT0}, s{sT0}, s{sT1}")
        a.e(f"s_min_u32 s{sT0}, s{sT0}, 71"); a.e(f"s_and_b32 s{sT1}, s2, 7"); a.e(f"s_mul_i32 s{sT1}, s{sT1}, 72"); a.e(f"s_add_u32 s{sT0}, s{sT0}, s{sT1}")
        a.e(f"s_lshl_b32 s{sT0}, s{sT0}, 13"); a.e(f"v_lshlrev_b32 v{vT}, 7, v{vL}")
        a.e("s_waitcnt lgkmcnt(0)")
        a.e(f"s_add_u32 s8, s8, s{sT0}"); a.e("s_addc_u32 s9, s9, 0")
        a.e(f"global_load_dword v{vDUM}, v{vT}, s[8:9]")
        a.label(f"{name}_evchk")
        a.e(f"s_add_u32 s{sNext}, s{sVt}, 1")
        a.e(f"s_cmp_lt_u32 s{sVt}, s{sB}"); a.e(f"s_cbranch_scc1 {ret}")
        a.e(L[4] + ":")
        a.e(f"s_mov_b32 s{sB}, 99")
        a.e(f"s_add_u32 s{sNext}, s{sVt}, 1"); a.e(f"s_max_u32 s{sNext}, s{sNext}, 13")
        flag_store([f"s_lshl_b32 s{sT1}, s{sP}, 7", f"s_lshl_b32 s{sT2}, s{sH}, 2", f"s_add_u32 s{sT1}, s{sT1}, s{sT2}", f"s_add_u32 s{sT1}, s{sT1}, 36864"])
        a.e(f"s_branch {ret}")
    a.e(f"s_and_b32 s{sT0}, s2, 7"); a.e(f"s_add_u32 s{sT0}, s{sT0}, s{sP}"); a.e(f"s_mul_i32 s{sT1}, s{sT0}, 52"); a.e(f"s_lshr_b32 s{sT1}, s{sT1}, 8"); a.e(f"s_mul_i32 s{sT1}, s{sT1}, 5")
    a.e(f"s_sub_u32 s{sT0}, s{sT0}, s{sT1}"); a.e(f"s_lshl_b32 s{sNext}, s{sT0}, 1"); a.e(f"s_add_u32 s{sNext}, s{sNext}, 1"); a.e(f"s_mov_b32 s{sEv}, 0")
    a.e(f"s_add_u32 s{sA}, s{sNext}, 3"); a.e(f"s_cmp_eq_u32 s{sW}, 7"); a.e(f"s_cselect_b32 s{sNext}, 1, s{sNext}"); a.e(f"s_cselect_b32 s{sEv}, 5, 0")

    a.label(f"{name}_seg")
    k0 = kslots(0); k1s = kslots(1)
    for t in range(D): a.e(k0[t][0](FR + 4 * t))
    zero = [f"v_mov_b32 v{O+i}, 0" for i in range(64)] + [f"v_mov_b32 v{vLS}, 0", f"v_mov_b32 v{vLS+1}, 0"]
    fills = {}; distribute(fills, zero, 0, 8)
    run_slots([(rd, (lambda ms: (lambda f: ms(f, True)))(ms)) for rd, ms in k0], fills, k1s)
    a.e("s_nop 3")
    for x in mask_hook(0): a.e(x)
    for qt in range(2):
        d = vM + qt; x0, x1 = Sr(0,0,qt), Sr(0,1,qt)
        a.e(f"v_max3_f32 v{d}, v{x0}, v{x0+1}, v{x0+2}"); a.e(f"v_max3_f32 v{d}, v{d}, v{x0+3}, v{x1}")
        a.e(f"v_max3_f32 v{d}, v{d}, v{x1+1}, v{x1+2}"); a.e(f"v_max_f32 v{d}, v{d}, v{x1+3}")
    for x0_, x1_ in zip(xlane("v_max_f32", vM, vT + 4), xlane("v_max_f32", vM + 1, vT + 5)):
        a.e(x0_)
        if not x1_.startswith("s_nop"): a.e(x1_)
    for qt in range(2):
        for rr in range(4): a.e(f"v_sub_f32 v{C+4*qt+rr}, 0, v{vM+qt}")
    sub0 = [f"v_sub_f32 v{Sr(0,kt,qt)+rr}, v{Sr(0,kt,qt)+rr}, v{vM+qt}" for qt in range(2) for kt in range(2) for rr in range(4)]
    fills = {}; distribute(fills, sub0 + exp_code(0), 0, 8)
    labA = a.uid(f"{name}_wa")
    sync = ["s_waitcnt lgkmcnt(0)", f"s_cmp_lg_u32 s{sKt}, 2", f"s_cbranch_scc1 {labA}", "s_waitcnt vmcnt(0)", labA + ":", "s_waitcnt vmcnt(8)",
            "s_barrier", f"v_xor_b32 v{vKR}, 0x8000, v{vKR}"]
    run_slots(k1s, fills, vslots(0), sync_after=4, sync=sync)
    a.e(f"s_mov_b32 s{sN}, 0")
    a.e(f"s_cmp_eq_u32 s{sI}, 0")
    a.e(f"s_cbranch_scc1 {name}_tail")
    dK, dV = kv_dma(True), kv_dma(False)
    a.label(f"{name}_loop")
    if "phst" in X or "phst2" in X:
        for i in range(10):
            l_ = a.uid("phst"); a.e(f"s_cmp_lg_u32 s{sVt}, {i + (1 if 'phst' in X else 7)}"); a.e(f"s_cbranch_scc1 {l_}"); _at(2 + i); a.e("s_waitcnt lgkmcnt(0)"); a.e(l_ + ":")
    hk = a.uid(f"{name}_side"); hr = a.uid(f"{name}_sret")
    ool.append((hk, lambda: side_hook(hr)))
    a.e(f"s_cmp_eq_u32 s{sVt}, s{sNext}"); a.e(f"s_cbranch_scc1 {hk}"); a.e(f"{hr}:")
    slots = vslots(0) + kslots(0) + vslots(1) + kslots(1)
    fills = {}; post = {}
    fills[0] = list(lacc); fills[16] = list(lacc)
    post[1] = mask_hook(1); post[17] = mask_hook(0)
    distribute(fills, exp_code(1), 2, 16); post[15] = check(1, True)
    distribute(fills, exp_code(0), 18, 32); post[31] = check(0, True)
    f2 = {0: dK[:2], 1: [dK[2]], 4: [dK[3]], 7: [dK[4]], 10: [dK[5]], 12: dV[:2], 13: [dV[2]], 15: [dV[3]], 17: [dV[4]], 19: [dV[5]]}
    if "dmaC" not in X: f2 = {0: dK[:3], 1: [dK[3]], 2: [dK[4]], 3: [dK[5]], 16: dV[:3], 17: [dV[3]], 18: [dV[4]], 19: [dV[5]]}
    if "dmaB" in X: f2 = {0: dK[:3], 2: [dK[3]], 4: [dK[4]], 6: [dK[5]], 8: dV[:3], 10: [dV[3]], 12: [dV[4]], 14: [dV[5]]}
    distribute(f2, kv_adv(True) + kv_adv(False) + [f"s_add_u32 s{sN}, s{sN}, 1"], 21, 27)
    for k_, v_ in f2.items(): fills[k_] = v_ + fills.get(k_, [])
    SA = 27 if 'sa27' in X else (29 if 'sa29' in X else (30 if 'sa30' in X else 28))
    run_slots(slots, fills, vslots(0), sync_after=SA, sync=["s_waitcnt lgkmcnt(0) vmcnt(0)", "s_barrier"] + toggles, post=post)
    a.e(f"s_cmp_lt_u32 s{sN}, s{sI}")
    a.e(f"s_cbranch_scc1 {name}_loop")
    a.label(f"{name}_tail")
    nd = a.uid(f"{name}_nd")
    a.e(f"s_cmp_lg_u32 s{sSeg}, 0"); a.e(f"s_cbranch_scc1 {nd}")
    for x in dK + dV + kv_adv(True) + kv_adv(False): a.e(x)
    a.e(f"{nd}:")
    fills = {0: list(lacc), 8: list(lacc)}; post = {1: mask_hook(1), 7: check(1, False) + ["s_nop 0"]}
    distribute(fills, exp_code(1), 2, 8)
    run_slots(vslots(0) + vslots(1), fills, [], post=post)
    for x0_, x1_ in zip(xlane("v_add_f32", vLS, vT + 4), xlane("v_add_f32", vLS + 1, vT + 5)):
        a.e(x0_)
        if not x1_.startswith("s_nop"): a.e(x1_)
    a.e(f"s_lshl_b32 s{sT0}, s{sTile}, 3"); a.e(f"s_lshl_b32 s{sT1}, s{sWL}, 1"); a.e(f"s_add_u32 s{sT0}, s{sT0}, s{sT1}")
    a.e(f"s_lshl_b32 s{sT0}, s{sT0}, 17"); a.e(f"s_lshl_b32 s{sT1}, s{sH}, 12"); a.e(f"s_add_u32 s{sT0}, s{sT0}, s{sT1}")
    a.e(f"s_cmp_lg_u32 s{sSeg}, 0"); a.e(f"s_cbranch_scc1 {name}_final")
    a.e(f"s_lshl_b32 s{sT1}, s{sWL}, 13"); a.e(f"s_add_u32 s{sT1}, s{sT1}, {QSTASH}"); a.e(f"v_add_u32 v{vT+6}, s{sT1}, v{vL16}")
    for f in range(8): a.e(f"ds_read_b128 {v(Q+4*f,4)}, v{vT+6} offset:{f*1024}")
    a.e(f"v_rcp_f32 v{vT}, v{vLS}"); a.e(f"v_rcp_f32 v{vT+1}, v{vLS+1}")
    a.e(f"s_add_u32 s{sT1}, s{sT0}, 131072")
    for x in range(4):
        for qt in range(2):
            PK = S + ((x*2+qt) % 8) * 4
            for dt in (2*x, 2*x+1):
                for rr in range(4): a.e(f"v_mul_f32 v{Or(dt,qt)+rr}, v{Or(dt,qt)+rr}, v{vT+qt}")
            a.e(f"v_cvt_pk_bf16_f32 v{PK}, v{Or(2*x,qt)}, v{Or(2*x,qt)+1}"); a.e(f"v_cvt_pk_bf16_f32 v{PK+1}, v{Or(2*x,qt)+2}, v{Or(2*x,qt)+3}")
            a.e(f"v_cvt_pk_bf16_f32 v{PK+2}, v{Or(2*x+1,qt)}, v{Or(2*x+1,qt)+1}"); a.e(f"v_cvt_pk_bf16_f32 v{PK+3}, v{Or(2*x+1,qt)+2}, v{Or(2*x+1,qt)+3}")
            a.e(f"buffer_store_dwordx4 {v(PK,4)}, v{vL16}, s[{S_CT}:{S_CT+3}], s{sT1 if qt else sT0} offen offset:{x*1024} sc1")
    a.e(f"v_xor_b32 v{vVR}, 0x8000, v{vVR}")
    a.e(f"s_mov_b32 s{sSeg}, 1")
    a.e(f"s_sub_u32 s{sTile}, 15, s{sP}")
    a.e(f"s_lshl_b32 s{sT0}, s{sP}, 1"); a.e(f"s_sub_u32 s{sI}, 14, s{sT0}")
    a.e(f"s_lshl_b32 s{sR}, s{sTile}, 2"); a.e(f"s_sub_u32 s{sR}, 34, s{sR}")
    a.e(f"s_branch {name}_seg")
    a.label(f"{name}_final")
    st.at(9)
    vP1, vP2, vZ = 60, 64, 65
    a.e("s_load_dwordx2 s[4:5], s[0:1], 88"); a.e("s_load_dwordx2 s[16:17], s[0:1], 96")
    a.e(f"s_sub_u32 s56, 15, s{sP}"); a.e(f"s_bitcmp0_b32 s{sH}, 1"); a.e(f"s_cselect_b32 s51, s{sP}, s56")
    a.e("s_lshl_b32 s54, s51, 7"); a.e(f"s_lshr_b32 s53, s{sH}, 2"); a.e("s_lshl_b32 s56, s53, 4"); a.e("s_add_u32 s54, s54, s56"); a.e("s_add_u32 s54, s54, 36864")
    a.e("s_mov_b32 s52, 32768")
    pollS = f"buffer_load_dwordx4 {v(vP1,4)}, v{vL16}, s[{S_FL}:{S_FL+3}], s52 offen sc1"
    pollC = f"buffer_load_dword v{vP2}, v{vZ}, s[{S_FL}:{S_FL+3}], s54 offen sc1"
    a.e(f"v_and_b32 v{vZ}, 3, v{vL}"); a.e(f"v_lshlrev_b32 v{vZ}, 2, v{vZ}")
    a.e(f"s_cmp_lg_u32 s{sW}, 7"); a.e(f"s_cbranch_scc1 {name}_npp"); a.e(pollS); a.e(pollC); a.label(f"{name}_npp")
    vOWN, vPAR, vOM, vPM = vT + 6, vT + 7, vT + 8, vT
    a.e(f"s_lshl_b32 s{sT1}, s{sW}, 13"); a.e(f"v_add_u32 v{vOWN}, s{sT1}, v{vL16}"); a.e(f"v_xor_b32 v{vPAR}, 0x8000, v{vOWN}")
    a.e(f"s_lshl_b32 s{sT1}, s{sW}, 10"); a.e(f"s_add_u32 s{sT1}, s{sT1}, {155648}"); a.e(f"v_add_u32 v{vOM}, s{sT1}, v{vL16}"); a.e(f"v_xor_b32 v{vPM}, 0x1000, v{vOM}")
    a.e(f"ds_write_b128 v{vOM}, {v(vLS,4)}")
    a.e(f"s_lshl_b32 s{sT1}, s{sG}, 11"); a.e(f"s_add_u32 s{sT0}, s{sT0}, s{sT1}"); a.e(f"s_add_u32 s{sT1}, s{sT0}, 131072")
    lg1 = a.uid(f"{name}_g1"); lgd = a.uid(f"{name}_gd")
    sItem, sNT, sCG, sTq, sKQ = 48, 49, 50, 51, 53
    uT0, uT1, uT2 = 66, 67, 68
    def o_setup():
        a.e(f"s_and_b32 s{uT0}, s2, 7"); a.e(f"s_mul_i32 s{sCG}, s{uT0}, 18"); a.e(f"s_and_b32 s{sNT}, s{sH}, 1")
        a.e(f"s_lshl_b32 s{uT1}, s{sP}, 1"); a.e(f"s_add_u32 s{uT1}, s{uT1}, s{sNT}")
        a.e(f"s_cmp_eq_u32 s{sP}, 3"); a.e(f"s_cselect_b32 s{uT2}, 16, 18"); a.e(f"s_add_u32 s{uT2}, s{uT2}, s{sNT}")
        a.e(f"s_bitcmp0_b32 s{sH}, 1"); a.e(f"s_cselect_b32 s{uT1}, s{uT1}, s{uT2}"); a.e(f"s_add_u32 s{sCG}, s{sCG}, s{uT1}")
        a.e(f"s_cmp_lt_u32 s{uT1}, 18"); a.e(f"s_cselect_b32 s{sCG}, s{sCG}, -1")
        if "noconv" in X: a.e(f"s_mov_b32 s{sCG}, -1")
        a.e(f"s_lshl_b32 s{sItem}, s{sTq}, 1"); a.e(f"s_add_u32 s{sItem}, s{sItem}, s{sNT}"); a.e(f"s_lshl_b32 s{sItem}, s{sItem}, 3"); a.e(f"s_add_u32 s{sItem}, s{sItem}, s{sKQ}")
        a.e(f"s_and_b32 s55, s{sItem}, 0xf8"); a.e("s_lshl_b32 s55, s55, 4"); a.e(f"s_lshr_b32 s{uT0}, s{sKQ}, 1"); a.e(f"s_lshl_b32 s{uT0}, s{uT0}, 2"); a.e(f"s_add_u32 s55, s55, s{uT0}"); a.e("s_add_u32 s55, s55, 40960")
        ko.gemm_setup(a, sW, sTq, sNT, sKQ, (uT0, uT1, uT2))
        ko.final_setup(a, sTq, sNT, sKQ, sItem, (uT0, uT1, uT2), vL)
    a.e(f"s_cmp_eq_u32 s{sG}, 0"); a.e(f"s_cbranch_scc0 {lg1}")
    XM = 56
    for g in range(2):
        keep = O + 32 * g; send = O + 32 * (1 - g)
        if g == 1: a.label(lg1)
        for n in range(8): a.e(f"ds_write_b128 v{vOWN}, {v(send+4*n,4)} offset:{n*1024}")
        a.e("s_waitcnt lgkmcnt(0)")
        o_setup()
        ko.gemm_vsetup(a, vL, vL16, 38, g == 0)
        a.e("s_barrier")
        a.e(f"ds_read_b128 {v(XM,4)}, v{vPM}")
        for n in range(8): a.e(f"ds_read_b128 {v(FR+4*n,4)}, v{vPAR} offset:{n*1024}")
        if g == 0:
            for gg in range(2):
                for x in ko.gemm_wl(gg, (uT0, uT1, uT2)): a.e(x)
        a.e("s_waitcnt lgkmcnt(8)")
        for qt in range(2):
            mm = vE + 4*qt; e0 = mm + 1; e1 = mm + 2
            a.e(f"v_max_f32 v{mm}, v{vM+qt}, v{XM+2+qt}"); a.e(f"v_sub_f32 v{e0}, v{vM+qt}, v{mm}"); a.e(f"v_sub_f32 v{e1}, v{XM+2+qt}, v{mm}")
            a.e(f"v_exp_f32 v{e0}, v{e0}"); a.e(f"v_exp_f32 v{e1}, v{e1}"); a.e("s_nop 0")
            a.e(f"v_mul_f32 v{mm}, v{e0}, v{vLS+qt}"); a.e(f"v_fmac_f32 v{mm}, v{e1}, v{XM+qt}"); a.e(f"v_rcp_f32 v{mm}, v{mm}"); a.e("s_nop 0")
            a.e(f"v_mul_f32 v{e0}, v{e0}, v{mm}"); a.e(f"v_mul_f32 v{e1}, v{e1}, v{mm}")
        for xx in range(2):
            for qt in range(2):
                n0 = (2*xx)*2 + qt; n1 = (2*xx+1)*2 + qt
                for n in (n0, n1):
                    for rr in range(4): a.e(f"v_mul_f32 v{keep+4*n+rr}, v{keep+4*n+rr}, v{vE+4*qt+1}")
                a.e(f"s_waitcnt lgkmcnt({7 - n1})")
                for n in (n0, n1):
                    for rr in range(4): a.e(f"v_fmac_f32 v{keep+4*n+rr}, v{FR+4*n+rr}, v{vE+4*qt+2}")
                PK = S + (xx*2+qt)*4
                a.e(f"v_cvt_pk_bf16_f32 v{PK}, v{keep+4*n0}, v{keep+4*n0+1}"); a.e(f"v_cvt_pk_bf16_f32 v{PK+1}, v{keep+4*n0+2}, v{keep+4*n0+3}")
                a.e(f"v_cvt_pk_bf16_f32 v{PK+2}, v{keep+4*n1}, v{keep+4*n1+1}"); a.e(f"v_cvt_pk_bf16_f32 v{PK+3}, v{keep+4*n1+2}, v{keep+4*n1+3}")
                a.e(f"buffer_store_dwordx4 {v(PK,4)}, v{vL16}, s[{S_CT}:{S_CT+3}], s{sT1 if qt else sT0} offen offset:{xx*1024} sc1")
        if g == 0: a.e(f"s_branch {lgd}")
    a.label(lgd)
    st.at(10)
    def spin(poll, regs, pre, first_issue, after=[]):
        lw = a.uid(f"{name}_nw"); lp = a.uid(f"{name}_sp"); lc = a.uid(f"{name}_sc"); lo = a.uid(f"{name}_so")
        a.e(f"s_cmp_lg_u32 s{sW}, 7"); a.e(f"s_cbranch_scc1 {lw}")
        for x in first_issue: a.e(x)
        a.e(f"s_mov_b32 s{sT1}, 0")
        if pre: a.e(f"s_branch {lc}")
        a.e(f"{lp}:")
        a.e(poll)
        a.e("s_waitcnt vmcnt(0)")
        a.e(f"{lc}:")
        if len(regs) == 4:
            for r in regs: a.e(f"v_xor_b32 v{r}, s{sNonce}, v{r}")
            a.e(f"v_or3_b32 v{regs[0]}, v{regs[0]}, v{regs[1]}, v{regs[2]}"); a.e(f"v_or_b32 v{regs[0]}, v{regs[0]}, v{regs[3]}")
            a.e(f"v_cmp_ne_u32 vcc, 0, v{regs[0]}")
        else:
            a.e(f"v_cmp_ne_u32 vcc, s{sNonce}, v{regs[0]}")
        a.e(f"s_add_u32 s{sT1}, s{sT1}, 1")
        a.e(f"s_cbranch_vccz {lw}")
        a.e(f"s_cmp_lt_u32 s{sT1}, 0x40000"); a.e(f"s_cbranch_scc1 {lp}")
        a.e(f"{lw}:")
        a.e("s_barrier")
    a.e("s_waitcnt vmcnt(0)")
    sigs = [f"v_mov_b32 v{vT}, s{sNonce}", f"v_mov_b32 v{vT+1}, 0", f"s_lshl_b32 s{sT2}, s{sH}, 2", f"s_add_u32 s{sT2}, s{sT2}, 36864",
            f"s_lshl_b32 s{sT0}, s{sP}, 7", f"s_add_u32 s{sT1}, s{sT2}, s{sT0}", f"s_sub_u32 s{sT0}, {15*128}, s{sT0}", f"s_add_u32 s{sT0}, s{sT0}, s{sT2}",
            "s_mov_b64 exec, 1",
            f"buffer_store_dword v{vT}, v{vT+1}, s[{S_FL}:{S_FL+3}], s{sT0} offen sc1",
            f"buffer_store_dword v{vT}, v{vT+1}, s[{S_FL}:{S_FL+3}], s{sT1} offen sc1",
            "s_mov_b64 exec, -1"]
    T3 = (sT0, sT1, sT2)
    RDY = 155648 - 64
    pub = [f"v_cmp_ne_u32 vcc, s{sNonce}, v{vP2}", f"v_mov_b32 v{vT}, {RDY}", "s_nop 0", "v_mov_b32 v66, vcc_lo", f"v_mov_b32 v67, s{sNonce}", f"ds_write_b64 v{vT}, v[66:67]", "s_waitcnt lgkmcnt(0)"]
    spin(pollS, [vP1, vP1+1, vP1+2, vP1+3], True, pub)
    a.e(f"v_mov_b32 v{vT}, {RDY}"); a.e(f"ds_read_b64 v[66:67], v{vT}"); a.e("s_waitcnt lgkmcnt(0)"); a.e("v_readfirstlane_b32 s66, v66"); a.e(f"v_readfirstlane_b32 s{sNonce}, v67")
    st.at(8)
    a.e(f"s_cmp_lt_u32 s{sW}, 4"); a.e(f"s_cbranch_scc1 {name}_convw")
    a.e(f"s_cmp_lg_u32 s{sW}, 7"); a.e(f"s_cbranch_scc1 {name}_nsg")
    for x in sigs: a.e(x)
    a.label(f"{name}_nsg")
    a.e(f"v_mov_b32 v20, v{vP2}"); a.e(f"v_mov_b32 v21, v{vZ}")
    vP2, vZ = 20, 21
    if "g2" in X: a.e("s_mov_b32 s57, 0"); a.label(f"{name}_g2"); _at(5); a.e("s_waitcnt lgkmcnt(0)")
    a.e("s_cmp_eq_u32 s66, 0"); a.e(f"s_cbranch_scc1 {name}_rdy")
    spin(f"buffer_load_dword v{vP2}, v{vZ}, s[{S_FL}:{S_FL+3}], s54 offen sc1", [vP2], False, [])
    a.label(f"{name}_rdy")
    st.at(2)
    for g in range(ko.NCX - 1):
        for x in ko.gemm_cl(g, T3, vL16, " sc1"): a.e(x)
    ko.gemm_main(a, sW, sItem, T3, vL16, " sc1", _at if "gst" in X else None)
    st.at(3)
    a.e(f"v_and_b32 v{vZ}, 7, v{vL}"); a.e(f"v_lshlrev_b32 v{vZ}, 4, v{vZ}")
    for x in [f"v_mov_b32 v{vP2}, s{sNonce}", "v_mov_b32 v22, 0", f"s_lshl_b32 s{sT0}, s{sItem}, 2", f"s_add_u32 s{sT0}, s{sT0}, s43", f"s_lshl_b32 s{sT0}, s{sT0}, 2",
              f"s_add_u32 s{sT0}, s{sT0}, 40960", "s_mov_b64 exec, 1",
              f"buffer_store_dword v{vP2}, v22, s[{S_FL}:{S_FL+3}], s{sT0} offen sc1", "s_mov_b64 exec, -1"]: a.e(x)
    a.e(f"s_mov_b32 s{sT1}, 0")
    a.label(f"{name}_sp3")
    a.e(f"buffer_load_dword v{vP2}, v{vZ}, s[{S_FL}:{S_FL+3}], s55 offen sc1")
    a.e("s_waitcnt vmcnt(0)")
    a.e(f"v_cmp_ne_u32 vcc, s{sNonce}, v{vP2}")
    a.e(f"s_add_u32 s{sT1}, s{sT1}, 1")
    a.e(f"s_cbranch_vccz {name}_go3")
    a.e(f"s_cmp_lt_u32 s{sT1}, 0x40000"); a.e(f"s_cbranch_scc1 {name}_sp3")
    a.label(f"{name}_go3")
    st.at(4)
    ko.final_reduce(a, vL16, " sc1")
    a.e(f"s_branch {name}_fin")
    a.label(f"{name}_convw")
    a.e("s_cmp_eq_u32 s66, 0"); a.e(f"s_cbranch_scc1 {name}_rdy2"); a.e("s_barrier"); a.label(f"{name}_rdy2")
    ko.loader(a, T3)
    a.e(f"s_cmp_eq_u32 s{sCG}, -1"); a.e(f"s_cbranch_scc1 {name}_fin")
    ko.gen_conv(a, name, st, sW, sCG, T3, vL, vL16, " sc1")
    a.label(f"{name}_fin")
    if diag: a.e("s_waitcnt vmcnt(0)")
    st.at(11); st.at(12, True)
    st.dump(6, sW)
    a.label(f"{name}_end")
    a.e("s_endpgm")
    i = 0
    while i < len(ool):
        lab, fn = ool[i]; a.label(lab); fn(); i += 1
    a.label(code_end)
    a.e("s_endpgm")
    a.e = _e
    kernel_desc(a, name, 256, 102)
```

```python
from asmlib import *
from k1 import MF, WS_CTX, WS_WOF, WS_KVB, WS_QB

EOFF = 4608; OOFF = EOFF + 4160; CROW = OOFF + 4160
OOB = 0x7ff00000

def gen_conv(a, name, st, sW, sCG, sT, vL, vL16, LD):
    sT0, sT1, sT2 = sT
    S_U, S_QT, S_H, S_OUT = 8, 12, 16, 20
    sCH, sD, sH0, sLB = 40, 41, 42, 43
    vT = 4
    a.e("s_load_dwordx4 s[24:27], s[0:1], 32")
    a.e("s_load_dwordx2 s[4:5], s[0:1], 96")
    a.e(f"s_lshl_b32 s{sCH}, s{sCG}, 2"); a.e(f"s_add_u32 s{sCH}, s{sCH}, s{sW}")
    a.e(f"s_mul_i32 s{sLB}, s{sW}, {CROW}")
    a.e(f"s_lshl_b32 s{sT2}, s{sCH}, 12")
    a.e(f"s_add_u32 s44, s6, {WS_KVB}"); a.e("s_addc_u32 s45, s7, 0"); srd(a, S_U, 44, 576 * 4096)
    a.e(f"s_add_u32 s44, s6, {WS_QB}"); a.e("s_addc_u32 s45, s7, 0"); srd(a, S_QT, 44, 576 * 4096)
    a.e(f"s_mov_b32 m0, s{sLB}"); a.e("s_nop 0")
    for i in range(4): a.e(f"buffer_load_dwordx4 v{vL16}, s[{S_U}:{S_U+3}], s{sT2} offen offset:{i*1024}{LD} lds")
    a.e("s_waitcnt lgkmcnt(0)")
    srd(a, S_H, 24, 576 * 4096); srd(a, S_OUT, 4, 2048 * 2304)
    a.e(f"s_add_u32 m0, s{sLB}, {EOFF + 32}"); a.e(f"s_add_u32 s{sT1}, s{sT2}, 2")
    for i in range(4): a.e(f"buffer_load_dwordx4 v{vL16}, s[{S_H}:{S_H+3}], s{sT2} offen offset:{i*1024} lds")
    a.e(f"s_add_u32 m0, s{sLB}, {OOFF + 32}"); a.e("s_nop 0")
    for i in range(4): a.e(f"buffer_load_dwordx4 v{vL16}, s[{S_H}:{S_H+3}], s{sT1} offen offset:{i*1024} lds")
    a.e(f"s_add_u32 s24, s24, s{sT2}"); a.e("s_addc_u32 s25, s25, 0")
    a.e(f"s_lshr_b32 s{sT0}, s{sCH}, 1"); a.e(f"s_lshl_b32 s{sT0}, s{sT0}, 2")
    a.e(f"s_add_u32 s26, s26, s{sT0}"); a.e("s_addc_u32 s27, s27, 0")
    a.e(f"s_load_dword s{sH0}, s[24:25], 0"); a.e(f"s_load_dword s{sD}, s[26:27], 0")
    vAa, vBa, vKa, vYa, vQo = 8, 12, 13, 14, 15
    a.e(f"v_and_b32 v{vT}, 15, v{vL}"); a.e(f"v_lshrrev_b32 v{vT+1}, 4, v{vL}")
    a.e(f"v_lshl_add_u32 v16, v{vT+1}, 3, v{vT}"); a.e("v_add_u32 v16, 1, v16"); a.e("v_and_b32 v17, 1, v16")
    a.e("v_and_b32 v16, 0xfe, v16"); a.e("v_lshlrev_b32 v16, 1, v16"); a.e(f"v_mul_u32_u24 v17, {OOFF - EOFF}, v17")
    a.e(f"s_add_u32 s{sT0}, s{sLB}, {EOFF}"); a.e(f"v_add3_u32 v{vAa}, v16, v17, s{sT0}")
    for i in range(1, 4): a.e(f"v_add_u32 v{vAa+i}, {1024*i}, v{vAa}")
    a.e(f"v_lshlrev_b32 v17, 5, v{vT}"); a.e(f"v_lshlrev_b32 v18, 4, v{vT+1}"); a.e("v_sub_u32 v19, v18, v17")
    a.e(f"s_add_u32 s{sT1}, s{sLB}, {4064 - 3584}"); a.e(f"v_add_u32 v{vBa}, s{sT1}, v19")
    a.e(f"v_lshlrev_b32 v18, 3, v{vT+1}"); a.e(f"v_add_u32 v{vQo}, v17, v18")
    a.e(f"s_add_u32 s{sT1}, s{sLB}, {4088 - 3584}"); a.e(f"v_sub_u32 v{vKa}, s{sT1}, v{vQo}"); a.e(f"v_add_u32 v{vYa}, s{sT0}, v{vQo}")
    QR = 224; KVR = 240; ACC = 192; BUF = [64, 128]
    for j in range(8):
        a.e(f"buffer_load_dwordx2 {v(QR+2*j,2)}, v{vQo}, s[{S_QT}:{S_QT+3}], s{sT2} offen offset:{512*j}{LD}")
    for i in range(4): a.e(f"v_mov_b32 v{20+i}, 0")
    a.e(f"v_and_b32 v16, 31, v{vL}"); a.e("v_lshlrev_b32 v16, 4, v16"); a.e(f"v_add_u32 v16, s{sLB}, v16")
    a.e(f"ds_write_b128 v16, {v(20,4)} offset:4096")
    a.e(f"v_and_b32 v16, 7, v{vL}"); a.e("v_cmp_eq_u32 vcc, 7, v16"); a.e("v_lshlrev_b32 v16, 2, v16"); a.e(f"v_add_u32 v16, s{sT0}, v16")
    a.e("ds_write_b32 v16, v20")
    a.e(f"v_mov_b32 v30, {4 * CROW}"); a.e("ds_write_b32 v30, v20")
    a.e("s_waitcnt lgkmcnt(0)")
    a.e(f"s_lshl_b32 s{sH0}, s{sH0}, 16"); a.e(f"v_mov_b32 v17, s{sH0}"); a.e("v_cndmask_b32 v17, v20, v17, vcc")
    a.e(f"ds_write_b32 v16, v17 offset:{OOFF - EOFF}")
    a.e(f"s_lshl_b32 s{sT0}, s{sD}, 16"); a.e(f"s_and_b32 s{sT1}, s{sD}, 0xffff0000")
    a.e(f"s_bitcmp0_b32 s{sCH}, 0"); a.e(f"s_cselect_b32 s{sD}, s{sT0}, s{sT1}")
    a.e("s_waitcnt lgkmcnt(0)")
    a.e("s_barrier")
    a.e("s_waitcnt vmcnt(8)")
    def creads(buf, r):
        B = BUF[buf]; o = []
        for m in range(8):
            d0 = (512 * (m & 1) + 64 * r) // 4
            o.append(f"ds_read2_b32 {v(B+4*m,2)}, v{vAa+(m>>1)} offset0:{d0} offset1:{d0+1}")
            o.append(f"ds_read2_b32 {v(B+4*m+2,2)}, v{vAa+(m>>1)} offset0:{d0+2} offset1:{d0+3}")
            o.append(f"ds_read_b128 {v(B+32+4*m,4)}, v{vBa} offset:{512*(7-m)+64*r}")
        return o
    for x in creads(0, 0): a.e(x)
    for r in range(8):
        B = BUF[r % 2]
        pairs = sorted([(m, j - m) for j in range(8) for m in range(j + 1)], key=lambda p: (max(p), p[0] + p[1]))
        seen = set(); ms = []
        for (m, n) in pairs:
            c = "0" if (r == 0 and m + n not in seen) else v(ACC+4*(m+n), 4)
            seen.add(m + n)
            ms.append(f"{MF} {v(ACC+4*(m+n),4)}, {v(B+4*m,4)}, {v(B+32+4*n,4)}, {c}")
        rd = creads((r + 1) % 2, r + 1) if r < 7 else [f"ds_read_b64 {v(KVR+2*j,2)}, v{vKa} offset:{512*(7-j)}" for j in range(8)]
        a.e("s_waitcnt lgkmcnt(0)")
        k_ = 0
        for m in ms:
            a.e(m)
            if k_ < len(rd):
                a.e(rd[k_]); k_ += 1
    a.e("s_waitcnt lgkmcnt(0) vmcnt(0)")
    a.e("s_nop 3")
    for j in range(8):
        a.e(f"v_and_b32 v24, 0xffff0000, v{KVR+1+2*j}"); a.e(f"v_lshlrev_b32 v25, 16, v{KVR+1+2*j}")
        a.e(f"v_and_b32 v26, 0xffff0000, v{KVR+2*j}"); a.e(f"v_lshlrev_b32 v27, 16, v{KVR+2*j}")
        for rr in range(4): a.e(f"v_fmac_f32 v{ACC+4*j+rr}, s{sD}, v{24+rr}")
        a.e(f"v_lshlrev_b32 v24, 16, v{QR+2*j}"); a.e(f"v_and_b32 v25, 0xffff0000, v{QR+2*j}")
        a.e(f"v_lshlrev_b32 v26, 16, v{QR+2*j+1}"); a.e(f"v_and_b32 v27, 0xffff0000, v{QR+2*j+1}")
        for rr in range(4): a.e(f"v_mul_f32 v{ACC+4*j+rr}, v{ACC+4*j+rr}, v{24+rr}")
        Pq = 28 + 2 * (j & 1)
        a.e(f"v_cvt_pk_bf16_f32 v{Pq}, v{ACC+4*j}, v{ACC+4*j+1}"); a.e(f"v_cvt_pk_bf16_f32 v{Pq+1}, v{ACC+4*j+2}, v{ACC+4*j+3}")
        a.e(f"ds_write_b64 v{vYa}, {v(Pq,2)} offset:{512*j}")
    a.e(f"v_bfe_u32 v16, v{vL}, 2, 2"); a.e(f"v_mul_u32_u24 v16, {CROW}, v16")
    a.e(f"v_lshrrev_b32 v17, 4, v{vL}"); a.e("v_lshl_add_u32 v16, v17, 5, v16")
    a.e(f"v_and_b32 v17, 3, v{vL}"); a.e("v_lshl_add_u32 v16, v17, 3, v16")
    a.e(f"s_lshl_b32 s{sT0}, s{sW}, 10"); a.e(f"s_add_u32 s{sT0}, s{sT0}, {EOFF}"); a.e(f"v_add_u32 v16, s{sT0}, v16")
    a.e(f"s_lshl_b32 s{sT0}, s{sW}, 9"); a.e(f"v_add_u32 v17, s{sT0}, v{vL}"); a.e("v_mul_u32_u24 v17, 2304, v17")
    a.e(f"s_lshl_b32 s{sT0}, s{sCG}, 3")
    a.e(f"v_mov_b32 v18, {4 * CROW}"); a.e("v_mov_b32 v19, 1")
    a.e("s_waitcnt lgkmcnt(0)")
    a.e("s_mov_b64 exec, 1"); a.e("ds_add_u32 v18, v19"); a.e("s_mov_b64 exec, -1")
    lsp = a.uid(f"{name}_csp")
    a.label(lsp)
    a.e("ds_read_b32 v19, v18"); a.e("s_waitcnt lgkmcnt(0)"); a.e(f"v_readfirstlane_b32 s{sT1}, v19")
    a.e(f"s_cmp_lt_u32 s{sT1}, 4"); a.e(f"s_cbranch_scc1 {lsp}")
    for i in range(8): a.e(f"ds_read_b64_tr_b16 {v(32+2*i,2)}, v16 offset:{128*i}")
    for i in range(8):
        a.e(f"s_waitcnt lgkmcnt({7-i})")
        a.e(f"buffer_store_dwordx2 {v(32+2*i,2)}, v17, s[{S_OUT}:{S_OUT+3}], s{sT0} offen")
        a.e(f"s_add_u32 s{sT0}, s{sT0}, {64*2304}")

WS_PART = 72 << 20
WSLOT = [65536, 102400, 0]
VW = 28; VRB = 11; VC1 = 17
CX = 48; NCX = 4; GACC = 112; WF = 24

def gemm_setup(a, sW, sTq, sC, sX, sT):
    sT0, sT1, sT2 = sT
    a.e(f"s_add_u32 s44, s6, {WS_CTX}"); a.e("s_addc_u32 s45, s7, 0"); srd(a, 8, 44, 16 << 20)
    srd(a, 12, 4, 4096 * 1152)
    a.e(f"s_and_b32 s43, s{sW}, 3")
    a.e(f"s_lshl_b32 s40, s{sTq}, 3"); a.e(f"s_lshl_b32 s{sT0}, s43, 1"); a.e(f"s_add_u32 s40, s40, s{sT0}"); a.e("s_lshl_b32 s40, s40, 17")
    a.e(f"s_lshl_b32 s{sT0}, s{sX}, 14"); a.e(f"s_add_u32 s40, s40, s{sT0}")
    a.e(f"s_lshl_b32 s41, s{sX}, 5"); a.e("s_add_u32 s41, s41, s43"); a.e(f"s_mul_i32 s41, s41, {16*1152}")
    a.e(f"s_mul_i32 s{sT0}, s{sC}, 576"); a.e(f"s_add_u32 s41, s41, s{sT0}")
    a.e("s_mul_i32 s42, s43, 9216")

def gemm_vsetup(a, vL, vL16, t, ld):
  if not ld:
    a.e(f"v_add_u32 v{VC1}, 131072, v{vL16}")
    a.e(f"v_lshrrev_b32 v{t}, 2, v{vL}"); a.e(f"v_mul_u32_u24 v{t}, 576, v{t}"); a.e(f"v_and_b32 v{t+1}, 3, v{vL}"); a.e(f"v_lshl_add_u32 v{t}, v{t+1}, 3, v{t}")
    a.e(f"v_bfe_u32 v{t+1}, v{vL}, 4, 1"); a.e(f"v_lshl_add_u32 v{VRB}, v{t+1}, 5, v{t}"); a.e(f"v_xor_b32 v{t+1}, 1, v{t+1}"); a.e(f"v_lshl_add_u32 v{VRB+1}, v{t+1}, 5, v{t}")
    for sl in (2, 1, 0):
        for par in range(2): a.e(f"v_add_u32 v{VRB+2*sl+par}, {WSLOT[sl]}, v{VRB+par}")
  else:
    for n in range(9):
        a.e(f"v_add_u32 v{t}, {64*n}, v{vL}")
        a.e(f"v_mul_u32_u24 v{t+1}, 1821, v{t}"); a.e(f"v_lshrrev_b32 v{t+1}, 16, v{t+1}")
        a.e(f"v_mul_u32_u24 v{VW+n}, 36, v{t+1}"); a.e(f"v_sub_u32 v{t}, v{t}, v{VW+n}")
        a.e(f"v_bfe_u32 v{VW+n}, v{t+1}, 2, 1"); a.e(f"v_lshlrev_b32 v{VW+n}, 1, v{VW+n}"); a.e(f"v_xor_b32 v{t}, v{t}, v{VW+n}")
        a.e(f"v_mul_u32_u24 v{t+1}, 1152, v{t+1}"); a.e(f"v_lshl_add_u32 v{VW+n}, v{t}, 4, v{t+1}")
        if n % 4: a.e(f"v_subrev_u32 v{VW+n}, {1024*(n%4)}, v{VW+n}")

def gemm_wl(g, sT):
    r = [f"s_add_u32 s{sT[0]}, s41, {g * 64 * 1152}"]
    for part, n in ((0, 4), (1, 4), (2, 1)):
        r += [f"s_add_u32 m0, s42, {WSLOT[g % 3] + part * 4096}", "s_nop 0"]
        r += [f"buffer_load_dwordx4 v{VW + 4*part + i}, s[12:15], s{sT[0]} offen offset:{i*1024} lds" for i in range(n)]
    return r
def gemm_cl(g, sT, vL16, LD):
    r = [f"s_add_u32 s{sT[1]}, s40, {g * 2048}"]
    for ks in range(2):
        for i in range(2):
            r.append(f"buffer_load_dwordx4 {v(CX + (g % NCX) * 16 + (ks * 2 + i) * 4, 4)}, v{VC1 if i else vL16}, s[8:11], s{sT[1]} offen offset:{ks*1024}{LD}")
    return r

def gemm_main(a, sW, sItem, sT, vL16, LD, gst=None):
    sT0, sT1, sT2 = sT
    NB = 6; D = 5
    for g in range(8):
        a.e(f"s_waitcnt vmcnt({4 * min(NCX - 2, 7 - g)})")
        a.e("s_barrier")
        if gst: gst(3 + g); a.e("s_waitcnt lgkmcnt(0)")
        ld = gemm_cl(g + NCX - 1, sT, vL16, LD) if g + NCX - 1 < 8 else []
        rd = lambda n: [f"ds_read_b64_tr_b16 {v(WF + 4 * (n % NB) + 2 * hh, 2)}, v{VRB + 2 * (g % 3) + (n & 1)} offset:{(n // 18) * 18432 + ((n % 18) >> 1) * 64 + hh * 9216}" for hh in range(2)]
        for n in range(D):
            for x in rd(n): a.e(x)
        k = 0
        for n in range(36):
            ks, j = divmod(n, 18)
            a.e(f"s_waitcnt lgkmcnt({2 * min(D - 1, 35 - n)})")
            for i in range(2):
                acc = v(GACC + (i * 18 + j) * 4, 4)
                a.e(f"{MF} {acc}, {v(WF + 4 * (n % NB), 4)}, {v(CX + (g % NCX) * 16 + (ks * 2 + i) * 4, 4)}, {'0' if (g == 0 and ks == 0) else acc}")
                if n + D < 36: a.e(rd(n + D)[i])
            tgt = min(len(ld), n + 1)
            while k < tgt:
                a.e(ld[k]); k += 1
    if gst: gst(11)
    a.e(f"s_add_u32 s44, s6, {WS_PART}"); a.e("s_addc_u32 s45, s7, 0"); srd(a, 8, 44, 256 * 73728)
    a.e(f"s_mul_i32 s{sT0}, s{sItem}, 73728"); a.e(f"s_mul_i32 s{sT1}, s43, 18432"); a.e(f"s_add_u32 s{sT0}, s{sT0}, s{sT1}")
    for t in range(18):
        A = GACC + 8 * t; P = 40 + 4 * (t % 8)
        for q in range(4): a.e(f"v_cvt_pk_bf16_f32 v{P+q}, v{A+2*q}, v{A+2*q+1}")
        a.e(f"buffer_store_dwordx4 {v(P, 4)}, v{vL16}, s[8:11], s{sT0} offen offset:{(t % 4) * 1024} sc1")
        if t % 4 == 3: a.e(f"s_add_u32 s{sT0}, s{sT0}, 4096")
    a.e("s_waitcnt vmcnt(0)")

def loader(a, sT):
    for g in range(7):
        if g >= 2: a.e(f"s_waitcnt vmcnt({9 if g < 7 else 0})" if g < 6 else "s_waitcnt vmcnt(0)")
        a.e("s_barrier")
        if g + 2 < 8:
            for x in gemm_wl(g + 2, sT): a.e(x)

def final_reduce(a, vL16, LD):
    for n in range(3):
        for q in range(8):
            a.e(f"buffer_load_dwordx4 {v(64 + (n * 8 + q) * 4, 4)}, v{vL16}, s[8:11], s{56 + n} offen{LD}")
            a.e(f"s_add_u32 s{56 + n}, s{56 + n}, 73728")
    for n in range(3):
        B = 64 + n * 32
        for q in range(8):
            a.e(f"s_waitcnt vmcnt({(2 - n) * 8 + 7 - q + 2 * n})")
            for d in range(4):
                if q == 0:
                    a.e(f"v_lshlrev_b32 v{40+2*d}, 16, v{B+d}"); a.e(f"v_and_b32 v{41+2*d}, 0xffff0000, v{B+d}")
                else:
                    a.e(f"v_lshlrev_b32 v48, 16, v{B+4*q+d}"); a.e(f"v_and_b32 v49, 0xffff0000, v{B+4*q+d}")
                    a.e(f"v_add_f32 v{40+2*d}, v{40+2*d}, v48"); a.e(f"v_add_f32 v{41+2*d}, v{41+2*d}, v49")
        for d in range(4): a.e(f"v_cvt_pk_bf16_f32 v{52+4*n+d}, v{40+2*d}, v{41+2*d}")
        a.e(f"buffer_store_dwordx2 {v(52+4*n,2)}, v9, s[16:19], s{61 + n} offen")
        a.e(f"buffer_store_dwordx2 {v(54+4*n,2)}, v9, s[16:19], s{61 + n} offen offset:32")

def final_setup(a, sTq, sC, sX, sItem, sT, vL):
    sT0, sT1, sT2 = sT
    a.e(f"v_and_b32 v9, 15, v{vL}"); a.e("v_mul_u32_u24 v9, 2304, v9"); a.e(f"v_lshrrev_b32 v10, 4, v{vL}"); a.e("v_lshl_add_u32 v9, v10, 3, v9")
    a.e(f"s_and_b32 s47, s{sItem}, 0xf8"); a.e("s_mul_i32 s47, s47, 73728"); a.e(f"s_mul_i32 s{sT0}, s{sX}, 9216"); a.e(f"s_add_u32 s47, s47, s{sT0}")
    a.e(f"s_lshl_b32 s46, s{sTq}, 3"); a.e(f"s_add_u32 s46, s46, s{sX}"); a.e(f"s_mul_i32 s46, s46, {16 * 2304}")
    a.e(f"s_mul_i32 s{sT2}, s{sC}, 576"); a.e(f"s_add_u32 s46, s46, s{sT2}"); a.e("s_add_u32 s46, s46, 1152")
    for n in range(3):
        a.e(f"s_add_u32 s{sT0}, s43, {4 * n}")
        a.e(f"s_lshl_b32 s{56 + n}, s{sT0}, 10"); a.e(f"s_add_u32 s{56 + n}, s{56 + n}, s47")
        a.e(f"s_lshl_b32 s{61 + n}, s{sT0}, 6"); a.e(f"s_add_u32 s{61 + n}, s{61 + n}, s46")
        if n == 2:
            a.e(f"s_cmp_ge_u32 s{sT0}, 9"); a.e(f"s_cselect_b32 s58, {OOB}, s58"); a.e(f"s_cselect_b32 s63, {OOB}, s63")
    srd(a, 16, 16, 2048 * 2304)
```

```python
import sys
from asmlib import *
import k1, k2, k3, ka
HDR = open("concat_heads__ssm_conv_h3__compressed_kv_cla__prompt.s.ref").read().split("; Override launch")[0]
def build(launches, gens, path):
    a = Asm()
    a.raw(HDR.rstrip("\n"))
    for (k, g, b, l) in launches:
        a.raw(f"; @launch kernel={k} grid=({g},1,1) block=({b},1,1) lds={l}")
    a.raw('.amdgcn_target "amdgcn-amd-amdhsa--gfx950"')
    for g in gens: g(a)
    t = a.text()
    lint(t)
    open(path, "w").write(t)
LA = ("ka_kernel", 256, 512, 163840)
L3 = ("k3_kernel", 256 + k3.NCONV, 256, k3.K3_LDS)
FINAL = "concat_heads__ssm_conv_h3__compressed_kv_cla__prompt.s"
if __name__ == "__main__":
    build([LA], [ka.gen_ka], "all.s")
    build([LA], [lambda a: ka.gen_ka(a, diag=True)], "alldiag.s")
    t = open("all.s").read()
    KN = "concat_heads__ssm_conv_h3__compressed_kv_cla__prompt_kernel"
    t = t.replace("; @launch kernel=ka_kernel ", "; @launch ")
    import re
    t = re.sub(r"\bka_kernel\b", KN, t)
    open(FINAL, "w").write(t)
```

```python
from asmlib import *
import ko
from k1 import MF, WS_KV, WS_CTX, WS_WOF, WS_KVB, WS_QB, wg_decode, act_dma_offsets, w_dma_offsets, act_read_addr, w_read_addr

QSCALE = 0x3e0293ee
NEG = 0xf149f2ca
LTHR = 0x4e800000
OOB = 0x7ff00000
WS_FLAG = 64 << 20

def gen_ka(a, name="ka_kernel", diag=False, X=(), code_end=None):
    kernel_begin(a, name)
    code_end = f"{name}_code_end"
    st = Stamps(a, diag, 0, 76)
    _at = st.at
    pst = (lambda i: (_at(i), a.e("s_waitcnt lgkmcnt(0)"))) if "prost" in X else (lambda i: None)
    if "qst" in X or "phst" in X or "phst2" in X: st.at = lambda i, real=False: _at(i, real) if (i < 2 or i == 12) else None
    if "gst" in X: st.at = lambda i, real=False: _at(i, real) if (i < 3 or i == 12) else None
    if "g2" in X: st.at = lambda i, real=False: _at(i, real) if (i in (0, 1, 2, 3, 4, 10, 11, 12)) else None
    if "prost" in X: st.at = lambda i, real=False: _at(i, real) if (i < 4 or i == 12) else None
    if "kvst" in X:
        _at = st.at
        st.at = lambda i, real=False: _at(i, real) if (i < 4 or i == 12) else None
    _e = a.e
    def e2(x):
        if x.endswith(":"): a.label(x[:-1])
        else: _e(x)
    a.e = e2
    S_C, S_W, S_KV, S_X, S_WQ, S_CT = 8, 12, 16, 20, 24, 28
    sW, sH, sP, sG, sWL = 32, 33, 34, 35, 36
    sT0, sT1, sT2 = 37, 38, 39
    sIT, sKC, sKW, sM0C, sM0W = 40, 41, 42, 43, 44
    sRole, sA, sB = 45, 46, 47
    S_S = 48
    S_DBG = 72
    sI, sN, sKoff, sVoff, sKt, sVt, sM0K, sM0V = 40, 41, 42, 43, 44, 45, 46, 47
    sTA, sJump, sSeg, sR, sTH, sTile, sKX, sKWq = 48, 49, 50, 51, 52, 53, 54, 55
    sMSK = 56
    vL = 1; vL16 = 2; vDUM = 3
    vDC = 4; vDW = 8; vRC = 12; vRW = 14; vST = 18; vT = 19
    vDX = 28; vDWq = 124
    CF = 32; WA, WB = 48, 64; ACC = 128
    XS = [0, 131072, 65536]; WSL = [32768, 49152, 98304]
    VRING = 65536; QTMP = 98304; QSTASH = 131072

    a.e("s_cmp_ge_u32 s2, 256")
    a.e(f"s_cbranch_scc1 {name}_end")
    st.at(0); st.at(1, True)
    a.e("s_load_dwordx8 s[60:67], s[0:1], 48")
    a.e("s_load_dwordx2 s[68:69], s[0:1], 80")
    a.e("s_memrealtime s[70:71]")
    a.e("s_load_dwordx4 s[4:7], s[0:1], 104")
    a.e(f"v_lshrrev_b32 v{vT}, 6, v0")
    a.e(f"v_and_b32 v{vL}, 63, v0")
    a.e(f"v_readfirstlane_b32 s{sW}, v{vT}")
    a.e(f"v_lshlrev_b32 v{vL16}, 4, v{vL}")
    wg_decode(a, sH, sP, sT0, sT1)
    a.e(f"s_lshr_b32 s{sG}, s{sW}, 2")
    a.e(f"s_and_b32 s{sWL}, s{sW}, 3")
    a.e(f"s_lshl_b32 s{sT0}, s{sP}, 8")
    a.e(f"s_lshl_b32 s{sT1}, s{sW}, 5")
    a.e(f"s_add_u32 s{sT0}, s{sT0}, s{sT1}")
    act_dma_offsets(a, vDC, vL, vT, sT0, 1024)
    a.e(f"s_lshl_b32 s{sT0}, s{sWL}, 4")
    a.e(f"s_lshl_b32 s{sT1}, s{sH}, 8")
    w_dma_offsets(a, vDW, vL, vT, sT0, sT1, [(0, 0), (1, 0), (2, 1), (3, 1)])
    a.e(f"s_lshl_b32 s{sM0C}, s{sW}, 12")
    a.e(f"s_add_u32 s{sM0W}, s{sM0C}, 32768")
    a.e(f"s_mov_b32 s{sKC}, 0")
    a.e(f"s_mov_b32 s{sKW}, 0")
    pst(4)
    a.e("s_waitcnt lgkmcnt(0)")
    pst(5)
    srd(a, S_C, 62, 2048 * 1024)
    a.e(f"s_cmp_lt_u32 s{sW}, 4")
    a.e("s_cselect_b32 s46, s66, s68")
    a.e("s_cselect_b32 s47, s67, s69")
    srd(a, S_W, 46, 512 * 8192)
    S_W2 = 28
    dma_c = lambda i, so=sKC: f"buffer_load_dwordx4 v{vDC+i}, s[{S_C}:{S_C+3}], s{so} offen offset:{i*1024} lds"
    dma_w = lambda i, S=S_W: f"buffer_load_dwordx4 v{vDW+i}, s[{S}:{S+3}], s{sKW} offen offset:{i*1024} lds"
    dma_adv = [f"s_add_u32 s{sKC}, s{sKC}, 128", f"s_add_u32 s{sKW}, s{sKW}, {64*8192}",
               f"s_xor_b32 s{sM0C}, s{sM0C}, 0x10000", f"s_xor_b32 s{sM0W}, s{sM0W}, 0x10000"]
    a.e(f"s_mov_b32 m0, s{sM0C}"); a.e("s_nop 0")
    for i in range(4): a.e(dma_c(i))
    a.e(f"s_mov_b32 m0, s{sM0W}"); a.e("s_nop 0")
    for i in range(4): a.e(dma_w(i))
    for x in dma_adv: a.e(x)
    pst(6)
    a.e(f"s_add_u32 s{S_KV}, s6, {WS_KV}"); a.e(f"s_addc_u32 s{S_KV+1}, s7, 0")
    srd(a, S_KV, S_KV, 32 << 20)
    srd(a, S_X, 60, 2048 * 1152)
    srd(a, S_WQ, 64, 576 * 8192)
    srd(a, S_W2, 68, 512 * 8192)
    srd(a, 72, 4, 256)
    a.e("s_barrier")
    pst(7)
    a.e(f"s_mov_b32 m0, s{sM0C}"); a.e("s_nop 0")
    for i in range(4): a.e(dma_c(i))
    a.e(f"s_mov_b32 m0, s{sM0W}"); a.e("s_nop 0")
    for i in range(4): a.e(dma_w(i))
    for x in dma_adv: a.e(x)
    sGW = 3
    PX, PC, PWQ, PWK, PWV = 60, 62, 64, 66, 68
    def touch(parts, R=46):
        base = 0; RS = R + 2
        a.e(f"s_mov_b32 s{R}, s6"); a.e(f"s_mov_b32 s{R+1}, s7"); a.e(f"s_mov_b32 s{sT0}, 0"); a.e(f"s_mov_b32 s{RS}, 1024")
        for (lo, start, n, wt) in parts:
            a.e(f"s_sub_u32 s{sT1}, s{sGW}, {base}"); a.e(f"s_lshl_b32 s{sT2}, s{sT1}, {16 if wt == 1 else 13}")
            if start: a.e(f"s_add_u32 s{sT2}, s{sT2}, {start}")
            if wt == 1: a.e(f"s_add_u32 s{sT2}, s{sT2}, s59")
            if wt >= 2:
                a.e(f"s_mul_i32 s58, s59, {8 * n}"); a.e(f"s_add_u32 s{sT2}, s{sT2}, s58")
            a.e(f"s_cmp_lt_u32 s{sT1}, {n}")
            a.e(f"s_cselect_b32 s{sT0}, s{sT2}, s{sT0}"); a.e(f"s_cselect_b32 s{R}, s{lo}, s{R}"); a.e(f"s_cselect_b32 s{R+1}, s{lo+1}, s{R+1}")
            if wt == 1: a.e(f"s_cselect_b32 s{RS}, 8192, s{RS}")
            base += n
        a.e(f"s_add_u32 s{R}, s{R}, s{sT0}"); a.e(f"s_addc_u32 s{R+1}, s{R+1}, 0")
        a.e(f"v_lshrrev_b32 v{vT}, 3, v{vL}"); a.e(f"v_and_b32 v{vT+1}, 7, v{vL}"); a.e(f"v_lshlrev_b32 v{vT+1}, 7, v{vT+1}")
        a.e(f"v_mad_u32_u24 v{vT}, v{vT}, s{RS}, v{vT+1}"); a.e(f"global_load_dword v{vDUM}, v{vT}, s[{R}:{R+1}]")
    WW = lambda r0, n: [(PWK, r0*8192, n // 8, 1), (PWV, r0*8192, n // 8, 1)]
    a.e(f"s_cmp_lt_u32 s{sW}, 4"); a.e(f"s_cbranch_scc1 {name}_nop0")
    a.e(f"s_lshr_b32 s{sGW}, s2, 3"); a.e(f"s_lshl_b32 s{sT0}, s{sWL}, 5"); a.e(f"s_add_u32 s{sGW}, s{sGW}, s{sT0}")
    a.e("s_and_b32 s59, s2, 7"); a.e("s_lshl_b32 s59, s59, 10")
    touch([(PC, 0, 32, 2)] + WW(64, 128))
    a.e("s_getpc_b64 s[28:29]")
    a.e(f"{name}_pc:")
    a.e(f"s_sub_u32 s28, s28, {name}_pc - {name}"); a.e("s_subb_u32 s29, s29, 0")
    a.e("s_and_b32 s29, s29, 0xffff"); a.e(f"s_mov_b32 s30, {code_end} - {name}"); a.e("s_mov_b32 s31, 0x20000")
    a.e(f"s_sub_u32 s{sT0}, s{sGW}, 88"); a.e(f"s_lshl_b32 s{sT0}, s{sT0}, 13"); a.e(f"s_min_u32 s{sT0}, s{sT0}, {OOB}")
    a.e(f"v_lshlrev_b32 v{vT}, 7, v{vL}")
    a.e(f"buffer_load_dword v{vDUM}, v{vT}, s[28:31], s{sT0} offen")
    a.e("s_or_b32 s70, s70, 1")
    a.e("v_mov_b32 v126, s70"); a.e("v_mov_b32 v127, 0"); a.e(f"v_mov_b32 v{vT}, 0")
    a.e(f"s_cmp_eq_u32 s{sW}, 7"); a.e(f"s_cselect_b32 s{sT0}, 0, {OOB}")
    a.e("s_mov_b64 exec, 1")
    a.e(f"buffer_atomic_cmpswap v[126:127], v{vT}, s[72:75], s{sT0} offen sc0 sc1")
    a.e("s_mov_b64 exec, -1")
    a.label(f"{name}_nop0")
    pst(8)
    a.e(f"s_and_b32 s{sT0}, s{sW}, 1"); a.e(f"s_lshl_b32 s{sT0}, s{sT0}, 14")
    act_read_addr(a, vRC, vL, vT, sT0)
    a.e(f"s_lshl_b32 s{sT0}, s{sG}, 14"); a.e(f"s_add_u32 s{sT0}, s{sT0}, 32768")
    a.e(f"s_and_b32 s{sT1}, s{sW}, 2"); a.e(f"s_lshl_b32 s{sT1}, s{sT1}, 1")
    w_read_addr(a, vRW, vL, vT, sT0, sT1, sT2)
    a.e(f"s_lshl_b32 s{sT0}, s{sH}, 20"); a.e(f"s_lshl_b32 s{sT1}, s{sP}, 17"); a.e(f"s_add_u32 s{sT0}, s{sT0}, s{sT1}")
    a.e(f"s_and_b32 s{sT1}, s{sW}, 1"); a.e(f"s_lshl_b32 s{sT1}, s{sT1}, 16"); a.e(f"s_add_u32 s{sT0}, s{sT0}, s{sT1}")
    a.e(f"v_add_u32 v{vST}, s{sT0}, v{vL16}")
    a.e(f"s_sub_u32 s{sT0}, 15, s{sP}"); a.e(f"s_cmp_eq_u32 s{sG}, 0"); a.e(f"s_cselect_b32 s{sT0}, s{sT0}, s{sP}")
    a.e(f"s_lshl_b32 s{sT0}, s{sT0}, 7"); a.e(f"s_lshl_b32 s{sT1}, s{sWL}, 5"); a.e(f"s_add_u32 s{sT0}, s{sT0}, s{sT1}")
    act_dma_offsets(a, vDX, vL, vT, sT0, 1152)
    a.e(f"v_lshrrev_b32 v{vT+2}, 4, v{vL}"); a.e(f"s_lshl_b32 s{sT0}, s{sW}, 3"); a.e(f"v_add_u32 v{vT}, s{sT0}, v{vT+2}")
    a.e(f"v_lshlrev_b32 v{vT}, 13, v{vT}"); a.e(f"s_lshl_b32 s{sT1}, s{sH}, 8"); a.e(f"v_add_u32 v{vT}, s{sT1}, v{vT}")
    a.e(f"v_and_b32 v{vT+1}, 15, v{vL}"); a.e(f"v_lshlrev_b32 v{vT+3}, 1, v{vT+2}"); a.e(f"v_xor_b32 v{vT+1}, v{vT+1}, v{vT+3}")
    a.e(f"s_and_b32 s{sT0}, s{sW}, 1"); a.e(f"s_lshl_b32 s{sT0}, s{sT0}, 3"); a.e(f"v_xor_b32 v{vT+1}, s{sT0}, v{vT+1}")
    a.e(f"v_lshl_add_u32 v{vDWq}, v{vT+1}, 4, v{vT}"); a.e(f"v_add_u32 v{vDWq+1}, {4*8192-1024}, v{vDWq}")
    pst(9)
    for i in range(128): a.e(f"v_mov_b32 v{ACC+i}, 0")
    pst(10)

    def rd_w(W, ks2):
        r = []
        for d in range(4):
            r.append(f"ds_read_b64_tr_b16 {v(W+4*d,2)}, v{vRW+d} offset:{ks2*8192}")
            r.append(f"ds_read_b64_tr_b16 {v(W+4*d+2,2)}, v{vRW+d} offset:{ks2*8192+1024}")
        return r
    rd_c = lambda t, ks2: f"ds_read_b128 {v(CF+4*(t%4),4)}, v{vRC+ks2} offset:{t*2048}"
    def mf(W, t, d, isK):
        acc = v(ACC + (t*4+d)*4, 4); cf = v(CF+4*(t%4), 4); wf = v(W+4*d, 4)
        return f"{MF} {acc}, {wf}, {cf}, {acc}" if isK else f"{MF} {acc}, {cf}, {wf}, {acc}"
    def qdma(stage):
        sl = stage % 3
        r = [f"s_lshl_b32 s{sT0}, s{sW}, 12", f"s_add_u32 m0, s{sT0}, {XS[sl]}", f"s_mov_b32 s{sT1}, {stage*128}"]
        r += [f"buffer_load_dwordx4 v{vDX+i}, s[{S_X}:{S_X+3}], s{sT1} offen offset:{i*1024} lds" for i in range(4)]
        r += [f"s_lshl_b32 s{sT0}, s{sW}, 11", f"s_add_u32 m0, s{sT0}, {WSL[sl]}", f"s_mov_b32 s{sT1}, {stage*64*8192}"]
        r += [f"buffer_load_dwordx4 v{vDWq+i}, s[{S_WQ}:{S_WQ+3}], s{sT1} offen offset:{i*1024} lds" for i in range(2)]
        return r

    ool = []
    def rot():
        a.e(f"s_add_u32 s{sT0}, s{sGW}, 8"); a.e(f"s_and_b32 s{sT0}, s{sT0}, 31"); a.e(f"s_andn2_b32 s{sGW}, s{sGW}, 31"); a.e(f"s_or_b32 s{sGW}, s{sGW}, s{sT0}")
    SCH = {0: [lambda: touch(WW(192, 128))], 1: [lambda: touch(WW(320, 128))], 2: [rot, lambda: touch(WW(448, 64) + [(PX, 0, 36, 2)])],
           3: [rot, rot, lambda: touch([(PWQ, 0, 36, 1)])], 4: [rot, lambda: touch([(PWQ, 288*8192, 36, 1)])]}
    if "xl2" in X:
        SCH[5] = [lambda: touch([(PX, 0, 128, 0)])]; SCH[6] = [lambda: touch([(PX, 128*8192, 128, 0)]), lambda: touch([(PX, 256*8192, 32, 0)])]
    a.e(f"s_cmp_lt_u32 s{sW}, 4"); a.e(f"s_cbranch_scc0 {name}_w3"); a.e("s_waitcnt vmcnt(8)"); a.label(f"{name}_w3")
    NPF = 11
    a.e(f"s_waitcnt vmcnt({NPF})")
    a.e("s_barrier")
    for x in rd_w(WA, 0): a.e(x)
    for t in range(3): a.e(rd_c(t, 0))
    a.e(f"s_mov_b32 s{sIT}, 0")
    a.e(f"s_cmp_lt_u32 s{sW}, 4")
    a.e(f"s_cbranch_scc0 {name}_vfirst")
    def kv_iter(isK, last, tag, first=False):
        wn = rd_w(WB, 1)
        per = {}
        if last:
            dm = qdma(0) + qdma(1)
            for t in range(8): per[t] = dm[len(dm)*t//8: len(dm)*(t+1)//8]
        elif isK and not first:
            dm = ([f"s_mov_b32 m0, s{sM0C}", f"s_add_u32 s45, s{sKC}, 131072"] + [dma_c(i) for i in range(4)] + [f"s_mov_b32 m0, s{sM0W}", "s_nop 0"] + [dma_w(i) for i in range(4)]
                  + [f"s_add_u32 m0, s{sM0C}, 16384", "s_nop 0"] + [dma_c(i, 45) for i in range(4)] + [f"s_add_u32 m0, s{sM0W}, 16384", "s_nop 0"] + [dma_w(i, S_W2) for i in range(4)] + dma_adv)
            ND = 8
            for t in range(ND): per[t] = dm[len(dm)*t//ND: len(dm)*(t+1)//ND]
        for t in range(8):
            a.e(f"s_waitcnt lgkmcnt({[2,4,6,6,6,4,2,2][t]})")
            ms = [mf(WA, t, d, isK) for d in range(4)]
            nt = t + 3
            a.e(ms[0])
            if t < 4: a.e(wn[2*t])
            a.e(ms[1])
            for x in per.get(t, []): a.e(x)
            a.e(ms[2])
            if t < 4: a.e(wn[2*t+1])
            a.e(ms[3])
            a.e(rd_c(nt % 8, 0 if nt < 8 else 1))
        for t in range(6):
            a.e("s_waitcnt lgkmcnt(2)")
            ms = [mf(WB, t, d, isK) for d in range(4)]
            a.e(ms[0]); a.e(ms[1])
            for x in per.get(8 + t, []): a.e(x)
            a.e(ms[2]); a.e(ms[3])
            if t < 5: a.e(rd_c(t + 3, 1))
            if not last and not isK and t == 0:
                r = a.uid(f"{name}_r")
                for itv, fns in SCH.items():
                    if (itv == 0) != first: continue
                    h = a.uid(f"{name}_h")
                    def hook(fns=fns, r=r):
                        for fn in fns: fn()
                        a.e(f"s_branch {r}")
                    ool.append((h, hook))
                    a.e(f"s_cmp_eq_u32 s{sIT}, {itv}"); a.e(f"s_cbranch_scc1 {h}")
                a.e(f"{r}:")
        a.e("s_waitcnt lgkmcnt(0)" + (" vmcnt(6)" if last else (" vmcnt(0)" if isK else (" vmcnt(4)" if first else ""))))
        a.e("s_barrier")
        if not last:
            for r in [vRC, vRC+1, vRW, vRW+1, vRW+2, vRW+3]: a.e(f"v_xor_b32 v{r}, 0x10000, v{r}")
            wn = rd_w(WA, 0)
            for d in range(4):
                a.e(mf(WB, 6, d, isK)); a.e(wn[2*d]); a.e(wn[2*d+1])
            a.e(rd_c(0, 0)); a.e(rd_c(1, 0))
            for d in range(4): a.e(mf(WB, 7, d, isK))
            a.e(rd_c(2, 0))
        else:
            dm = qdma(2)
            ms = [mf(WB, 6 + (n >> 2), n & 3, isK) for n in range(8)]
            for n in range(8):
                a.e(ms[n])
                for x in dm[len(dm)*n//8: len(dm)*(n+1)//8]: a.e(x)
    SC1 = " sc1" if "plain" not in X else ""
    sSB = 66; sNonce = 69; S_FL = 72
    PKR = lambda n: (32 + 4 * n) if n < 8 else (160 + 4 * (n - 8))
    def kv_store(n):
        if "nost" in X: return [f"buffer_load_dword v{vDUM}, v{vL16}, s[{S_KV}:{S_KV+3}], 0 offen"]
        if "stnt" in X: return [f"s_add_u32 s68, s{sSB + ((n >> 1) & 1)}, {((n >> 2) & 1) * 8192 + (n >> 3) * 32768}",
                f"buffer_store_dwordx4 {v(PKR(n),4)}, v{vST}, s[{S_KV}:{S_KV+3}], s68 offen offset:{(n & 1) * 1024} sc1 nt"]
        return [f"s_add_u32 s68, s{sSB + ((n >> 1) & 1)}, {((n >> 2) & 1) * 8192 + (n >> 3) * 32768}",
                f"buffer_store_dwordx4 {v(PKR(n),4)}, v{vST}, s[{S_KV}:{S_KV+3}], s68 offen offset:{(n & 1) * 1024}{SC1}"]
    for isK in (True, False):
        tag = "k" if isK else "v"
        a.label(f"{name}_{tag}first")
        if isK and "kprio" in X: a.e("s_setprio 1")
        kv_iter(isK, False, tag, True)
        if "kvst" in X: _at(4); a.e("s_waitcnt lgkmcnt(0)")
        a.e(f"s_mov_b32 s{sIT}, 1")
        a.label(f"{name}_{tag}loop")
        kv_iter(isK, False, tag)
        if "kvst" in X:
            for i in range(7):
                l_ = a.uid("kvst"); a.e(f"s_cmp_lg_u32 s{sIT}, {i}"); a.e(f"s_cbranch_scc1 {l_}"); _at(4 + i); a.e("s_waitcnt lgkmcnt(0)"); a.e(l_ + ":")
        a.e(f"s_add_u32 s{sIT}, s{sIT}, 1"); a.e(f"s_cmp_lt_u32 s{sIT}, 7"); a.e(f"s_cbranch_scc1 {name}_{tag}loop")
        kv_iter(isK, True, tag)
        if "kvend" in X: _at(4)
        if "kvst" in X: _at(11)
        a.e(f"s_and_b32 s{sT1}, s{sW}, 2")
        if isK:
            a.e(f"s_lshl_b32 s{sSB}, s{sT1}, 10"); a.e(f"s_add_u32 s{sSB+1}, s{sSB}, 4096")
        else:
            a.e(f"s_lshl_b32 s{sSB}, s{sT1}, 11"); a.e(f"s_add_u32 s{sSB}, s{sSB}, 16384"); a.e(f"s_add_u32 s{sSB+1}, s{sSB}, 2048")
        for n in range(16):
            P = PKR(n)
            if isK:
                t = n >> 1; x = n & 1
                t0, t1 = ACC + (t*4 + 2*x)*4, ACC + (t*4 + 2*x + 1)*4
            else:
                y = n >> 2; d = n & 3
                t0, t1 = ACC + (2*y*4 + d)*4, ACC + ((2*y+1)*4 + d)*4
            a.e(f"v_cvt_pk_bf16_f32 v{P}, v{t0}, v{t0+1}"); a.e(f"v_cvt_pk_bf16_f32 v{P+1}, v{t0+2}, v{t0+3}")
            a.e(f"v_cvt_pk_bf16_f32 v{P+2}, v{t1}, v{t1+1}"); a.e(f"v_cvt_pk_bf16_f32 v{P+3}, v{t1+2}, v{t1+3}")
        if isK: a.e(f"s_branch {name}_qproj")
    a.label(f"{name}_qproj")
    a.e(f"v_mov_b32 v127, 0"); a.e("buffer_load_dword v126, v127, s[72:75], 0 offen sc1")
    if "kprio" in X: a.e("s_setprio 0")
    st.at(5)

    vRX = 12; vRWq = 14
    a.e(f"s_add_u32 s58, s6, {WS_CTX}"); a.e("s_addc_u32 s59, s7, 0")
    srd(a, S_CT, 58, 16 << 20)
    a.e(f"s_add_u32 s58, s6, {WS_FLAG}"); a.e("s_addc_u32 s59, s7, 0")
    srd(a, S_FL, 58, 65536)
    vDMA = 4; vKR = 5; vVR = 6; vTHR = 7; vNEG = 8; vPOLL = 9; vMT = 10
    vLS = 40; vM = 42; vLP = 44; vE = 46; NE = 8
    FR = 72; NB = 8
    C = 104; P = 112; S = 128; Q = 160; O = 192
    a.e(f"s_lshr_b32 s{sT0}, s{sW}, 1"); a.e(f"s_lshl_b32 s{sT0}, s{sT0}, 13")
    act_read_addr(a, vRX, vL, vT, sT0)
    a.e(f"s_mov_b32 s{sT0}, {WSL[0]}"); a.e(f"s_and_b32 s{sT1}, s{sW}, 1"); a.e(f"s_lshl_b32 s{sT1}, s{sT1}, 2")
    w_read_addr(a, vRWq, vL, vT, sT0, sT1, sT2)
    SETS = [64, 128]
    def q_reads(F, ks2):
        r = []
        for d in range(4):
            r.append(f"ds_read_b64_tr_b16 {v(F+16+4*d,2)}, v{vRWq+d} offset:{ks2*8192}")
            r.append(f"ds_read_b64_tr_b16 {v(F+16+4*d+2,2)}, v{vRWq+d} offset:{ks2*8192+1024}")
            r.append(f"ds_read_b128 {v(F+4*d,4)}, v{vRX+ks2} offset:{d*2048}")
        return r
    def q_mfmas(F, first=False):
        return [f"{MF} {v(O+(t*4+d)*4,4)}, {v(F+16+4*d,4)}, {v(F+4*t,4)}, {'0' if first else v(O+(t*4+d)*4,4)}" for t in range(4) for d in range(4)]
    def spread(ms, fill, upto):
        out = []; k = 0
        for i, m in enumerate(ms):
            out.append(m)
            tgt = min(len(fill), (len(fill) * (i + 1) + upto - 1) // upto)
            while k < tgt:
                out.append(fill[k]); k += 1
        return out
    for x in q_reads(SETS[0], 0): a.e(x)
    a.e(f"s_lshl_b32 s{sT0}, s{sWL}, 12"); a.e(f"v_add_u32 v{vDMA}, s{sT0}, v{vL16}")
    a.e(f"s_lshl_b32 s{sT1}, s{sG}, 14"); a.e(f"v_add_u32 v{vKR}, s{sT1}, v{vL16}"); a.e(f"v_add_u32 v{vVR}, {VRING}, v{vKR}")
    a.e(f"s_add_u32 s{sM0K}, s{sT0}, s{sT1}"); a.e(f"s_add_u32 s{sM0V}, s{sM0K}, {VRING}")
    a.e(f"s_lshl_b32 s{sKoff}, s{sH}, 20"); a.e(f"s_add_u32 s{sVoff}, s{sKoff}, 16384"); a.e(f"s_add_u32 s{sJump}, s{sKoff}, {17*32768}")
    a.e(f"s_mov_b32 s{sKt}, 0"); a.e(f"s_mov_b32 s{sVt}, 0")
    a.e(f"s_lshl_b32 s{sT0}, s{sP}, 1"); a.e(f"s_add_u32 s{sT0}, s{sT0}, 2"); a.e(f"s_sub_u32 s{sT1}, 15, s{sP}")
    a.e(f"s_cmp_eq_u32 s{sG}, 0")
    a.e(f"s_cselect_b32 s{sTA}, s{sT0}, 99"); a.e(f"s_cselect_b32 s{sI}, s{sT0}, 17"); a.e(f"s_cselect_b32 s{sTile}, s{sP}, s{sT1}")
    a.e(f"s_cselect_b32 s{sSeg}, 0, 1")
    a.e(f"s_sub_u32 s{sI}, s{sI}, 1")
    a.e(f"s_lshl_b32 s{sR}, s{sTile}, 2"); a.e(f"s_sub_u32 s{sR}, 0, s{sR}")
    a.e(f"s_mov_b32 s{sTH}, {LTHR}"); a.e(f"v_mov_b32 v{vNEG}, {NEG}")
    a.e(f"s_lshl_b32 s{sT0}, s{sWL}, 5"); a.e(f"v_and_b32 v{vT}, 15, v{vL}"); a.e(f"v_add_u32 v{vT}, s{sT0}, v{vT}")
    a.e(f"v_lshrrev_b32 v{vT+1}, 4, v{vL}"); a.e(f"v_lshlrev_b32 v{vT+1}, 2, v{vT+1}"); a.e(f"v_sub_u32 v{vTHR}, v{vT}, v{vT+1}")
    a.e(f"s_lshl_b32 s{sT0}, s{sH}, 10"); a.e(f"v_and_b32 v{vMT}, 7, v{vL}"); a.e(f"v_lshl_add_u32 v{vMT}, v{vMT}, 7, s{sT0}")
    def kv_dma(isK):
        off, m0 = (sKoff, sM0K) if isK else (sVoff, sM0V)
        return [f"s_mov_b32 m0, s{m0}", "s_nop 0"] + [f"buffer_load_dwordx4 v{vDMA}, s[{S_KV}:{S_KV+3}], s{off} offen offset:{i*1024}{'' if 'inv' in X else ' sc1'} lds" for i in range(4)]
    def kv_adv(isK):
        off, tt, m0 = (sKoff, sKt, sM0K) if isK else (sVoff, sVt, sM0V)
        return [f"s_xor_b32 s{m0}, s{m0}, 0x8000", f"s_add_u32 s{tt}, s{tt}, 1", f"s_add_u32 s{off}, s{off}, 32768",
                f"s_add_u32 s{sT2}, s{sJump}, {0 if isK else 16384}", f"s_cmp_eq_u32 s{tt}, s{sTA}", f"s_cselect_b32 s{off}, s{sT2}, s{off}",
                f"s_cmp_ge_u32 s{tt}, 17", f"s_cselect_b32 s{off}, {OOB}, s{off}"]
    NA = [2, 2, 2, 2] + [0] * 6; NBs = [2, 2, 2, 2] + [0] * 6
    if "st5" in X: NA = [2, 2, 2, 2, 2] + [0] * 5; NBs = [1, 1, 1, 1, 2] + [0] * 5
    if "st3" in X: NA = [3, 3, 3] + [0] * 7; NBs = [3, 2, 2] + [0] * 7
    if "stA" in X: NA = [0, 2, 2, 2, 2] + [0] * 5; NBs = [2, 2, 2, 2] + [0] * 6
    lastst = max(i for i in range(9) if NA[i] + NBs[i])
    sdone = [0]
    def add_stores(fl, n, marks):
        out = []; nm = 0; marks = list(marks[:n])
        for x in fl:
            out.append(x)
            if x.startswith("v_mfma"):
                nm += 1
                if marks and nm == marks[0]:
                    marks.pop(0); out += kv_store(sdone[0]); sdone[0] += 1
        return out
    for it in range(9):
        if "qst" in X: _at(2 + it)
        a.e("s_waitcnt lgkmcnt(0)")
        fl = add_stores(spread(q_mfmas(SETS[0], it == 0), q_reads(SETS[1], 1), 12), NA[it], [4, 12] if NA[it] < 3 else [3, 8, 13])
        for x in fl: a.e(x)
        if it < 8:
            if it == 7:
                lw = a.uid(f"{name}_nw7")
                a.e(f"s_cmp_eq_u32 s{sW}, 7"); a.e(f"s_cbranch_scc1 {lw}"); a.e("s_waitcnt vmcnt(0)"); a.e(f"{lw}:")
                a.e("s_waitcnt lgkmcnt(0) vmcnt(1)")
            else:
                a.e(f"s_waitcnt lgkmcnt(0) vmcnt({6 + NA[it] + (NA[it-1] + NBs[it-1] if it else 0) + (1 if it < 2 else 0)})")
            a.e("s_barrier")
            dx = XS[(it+1) % 3] - XS[it % 3]; dw = WSL[(it+1) % 3] - WSL[it % 3]
            for r in (vRX, vRX+1): a.e(f"v_add_u32 v{r}, {dx & 0xffffffff}, v{r}")
            for r in range(vRWq, vRWq+4): a.e(f"v_add_u32 v{r}, {dw & 0xffffffff}, v{r}")
            sig = []
            if it == 2: sig = [f"v_readfirstlane_b32 s{sNonce}, v126"]
            if it == lastst + 2:
                ls = a.uid(f"{name}_sig")
                sig = [f"s_cmp_lg_u32 s{sW}, 7", f"s_cbranch_scc1 {ls}", f"v_mov_b32 v{vPOLL}, s{sNonce}", f"s_lshl_b32 s{sT0}, s{sP}, 7", "s_mov_b64 exec, 1",
                       f"buffer_store_dword v{vPOLL}, v{vMT}, s[{S_FL}:{S_FL+3}], s{sT0} offen sc1",
                       "s_mov_b64 exec, -1", ls + ":"]
            if it == 6:
                ls = a.uid(f"{name}_pl")
                sig += [f"s_cmp_lg_u32 s{sW}, 7", f"s_cbranch_scc1 {ls}", f"buffer_load_dword v{vPOLL}, v{vMT}, s[{S_FL}:{S_FL+3}], 0 offen sc1", ls + ":"]
            if it < 6: dm = qdma(it + 3)
            elif it == 6: dm = []
            else: dm = []
            for x in sig: a.e(x)
            ms = q_mfmas(SETS[1])
            for x in add_stores(spread(ms[:8], q_reads(SETS[0], 0), 8), NBs[it], [2, 6, 8]): a.e(x)
            for x in spread(ms[8:], dm, 8): a.e(x)
        else:
            lw = a.uid(f"{name}_nw7"); lp = a.uid(f"{name}_poll")
            a.e("s_waitcnt vmcnt(0)")
            a.e(f"s_cmp_lg_u32 s{sW}, 7"); a.e(f"s_cbranch_scc1 {lw}")
            a.e(f"s_mov_b32 s{sT1}, 0")
            a.e(f"{lp}:")
            a.e(f"v_cmp_ne_u32 vcc, s{sNonce}, v{vPOLL}")
            a.e(f"s_add_u32 s{sT1}, s{sT1}, 1")
            a.e(f"s_cbranch_vccz {lw}")
            a.e(f"s_cmp_ge_u32 s{sT1}, 0x40000"); a.e(f"s_cbranch_scc1 {lw}")
            a.e("s_sleep 1")
            a.e(f"buffer_load_dword v{vPOLL}, v{vMT}, s[{S_FL}:{S_FL+3}], 0 offen sc1")
            a.e("s_waitcnt vmcnt(0)")
            a.e(f"s_branch {lp}")
            a.e(f"{lw}:")
            a.e("s_waitcnt lgkmcnt(0)")
            a.e("s_barrier")
            for x in spread(q_mfmas(SETS[1]), kv_dma(True) + kv_adv(True) + kv_dma(True) + kv_adv(True) + kv_dma(False) + kv_adv(False), 12): a.e(x)
    st.at(6)
    if "qst" in X: _at(11)
    a.e(f"s_lshr_b32 s{sT0}, s{sW}, 1"); a.e(f"s_and_b32 s{sT1}, s{sT0}, 1"); a.e(f"s_lshl_b32 s{sT1}, s{sT1}, 14")
    a.e(f"s_lshl_b32 s{sT0}, s{sG}, 15"); a.e(f"s_sub_u32 s{sT0}, s{sT1}, s{sT0}")
    a.e(f"s_and_b32 s{sT1}, s{sW}, 1"); a.e(f"s_lshl_b32 s{sT1}, s{sT1}, 11"); a.e(f"s_add_u32 s{sT0}, s{sT0}, s{sT1}")
    a.e(f"s_add_u32 s{sT0}, s{sT0}, {QSTASH}"); a.e(f"v_add_u32 v{vT}, s{sT0}, v{vL16}")
    a.e(f"s_mov_b32 s{sT1}, {QSCALE}"); a.e(f"v_mov_b32 v{vT+3}, {QSCALE}"); a.e(f"v_mov_b32 v{vT+4}, {QSCALE}")
    a.e("s_nop 2")
    for t in range(4):
        for x in range(2):
            PK = FR + ((t*2+x) % 4) * 4
            t0 = O + (t*4 + 2*x)*4
            if "pkq" in X:
                for j in range(4): a.e(f"v_pk_mul_f32 {v(t0+2*j,2)}, {v(t0+2*j,2)}, {v(vT+3,2)}")
            else:
                for j in range(8): a.e(f"v_mul_f32 v{t0+j}, s{sT1}, v{t0+j}")
            for j in range(4): a.e(f"v_cvt_pk_bf16_f32 v{PK+j}, v{t0+2*j}, v{t0+2*j+1}")
            a.e(f"ds_write_b128 v{vT}, {v(PK,4)} offset:{t*4096 + x*1024}")
    a.e("s_waitcnt lgkmcnt(0) vmcnt(8)")
    a.e("s_barrier")
    a.e(f"s_lshl_b32 s{sT0}, s{sWL}, 13"); a.e(f"s_lshl_b32 s{sT1}, s{sG}, 15"); a.e(f"s_add_u32 s{sT0}, s{sT0}, s{sT1}")
    a.e(f"s_add_u32 s{sT0}, s{sT0}, {QTMP}"); a.e(f"v_add_u32 v{vT}, s{sT0}, v{vL16}")
    for f in range(8): a.e(f"ds_read_b128 {v(Q+4*f,4)}, v{vT} offset:{f*1024}")
    if "noprio" not in X:
        a.e(f"s_cmp_eq_u32 s{sG}, {1 if 'prio0' in X else 0}"); a.e(f"s_cbranch_scc1 {name}_np"); a.e("s_setprio 1"); a.label(f"{name}_np")
    st.at(7)

    Sr = lambda buf, kt, qt: S + buf*16 + (kt*2+qt)*4
    Pr = lambda buf, qt: P + buf*8 + qt*4
    Or = lambda dt, qt: O + (dt*2+qt)*4
    def slot_k(b, n):
        kt, ds = n >> 2, n & 3
        rd = lambda f: f"ds_read_b128 {v(f,4)}, v{vKR} offset:{((2*b+kt)*4+ds)*1024}"
        def ms(f, czero=False):
            return [f"{MF} {v(Sr(b,kt,qt),4)}, {v(f,4)}, {v(Q+(qt*4+ds)*4,4)}, " + (("0" if czero else v(C+4*qt,4)) if ds == 0 else v(Sr(b,kt,qt),4)) for qt in range(2)]
        return rd, ms
    def slot_v(b, dt):
        rd = lambda f: f"ds_read_b128 {v(f,4)}, v{vVR} offset:{(b*8+dt)*1024}"
        ms = lambda f: [f"{MF} {v(Or(dt,qt),4)}, {v(f,4)}, {v(Pr(b,qt),4)}, {v(Or(dt,qt),4)}" for qt in range(2)]
        return rd, ms
    def mask_block(buf, ret):
        a.e(f"s_lshl_b32 s{sT0}, s{sR}, 5"); a.e(f"v_subrev_u32 v{vMT}, s{sT0}, v{vTHR}")
        items = [(kt, qt, rr) for kt in range(2) for qt in range(2) for rr in range(4)]
        for base in range(0, 16, 4):
            for n, (kt, qt, rr) in enumerate(items[base:base+4]):
                a.e(f"v_cmp_le_i32 s[{sMSK+2*n}:{sMSK+2*n+1}], {16*kt+rr-16*qt}, v{vMT}")
            for n, (kt, qt, rr) in enumerate(items[base:base+4]):
                x = Sr(buf,kt,qt)+rr
                a.e(f"v_cndmask_b32 v{x}, v{vNEG}, v{x}, s[{sMSK+2*n}:{sMSK+2*n+1}]")
        a.e(f"s_branch {ret}")
    def mask_hook(buf):
        h = a.uid(f"{name}_mask"); r = a.uid(f"{name}_mret")
        ool.append((h, lambda: mask_block(buf, r)))
        return [f"s_cmp_ge_i32 s{sR}, 0", f"s_cbranch_scc1 {h}", r + ":", f"s_add_u32 s{sR}, s{sR}, 1"]
    def exp_code_pk(buf):
        r = []; pend = []; k = 0
        for qt in range(2):
            for kt in range(2):
                x = Sr(buf,kt,qt)
                for hf in range(2):
                    e0 = vE + (k % NE); e1 = e0 + 1; k += 2
                    r.append(f"v_exp_f32 v{e0}, v{x+2*hf}")
                    if pend: r.append(pend.pop(0))
                    r.append(f"v_exp_f32 v{e1}, v{x+2*hf+1}")
                    if pend: r.append(pend.pop(0))
                    if kt == 0 and hf == 1: pend.append(f"v_pk_add_f32 {v(vLQ,2)}, {v(vE + ((k - 4) % NE),2)}, {v(e0,2)}")
                    elif kt == 1: pend.append(f"v_pk_add_f32 {v(vLQ,2)}, {v(vLQ,2)}, {v(e0,2)}")
                    pend.append(f"v_cvt_pk_bf16_f32 v{Pr(buf,qt)+2*kt+hf}, v{e0}, v{e1}")
                    if kt == 1 and hf == 1: pend.append(f"v_add_f32 v{vLP+qt}, v{vLQ}, v{vLQ+1}")
        return r + ["s_nop 0"] + pend
    vLQ = 66
    def exp_code(buf):
        if "pk" in X: return exp_code_pk(buf)
        r = []; pend = []; k = 0
        for qt in range(2):
            for kt in range(2):
                x = Sr(buf,kt,qt)
                for hf in range(2):
                    e0 = vE + (k % NE); e1 = vE + ((k + 1) % NE); k += 2
                    r.append(f"v_exp_f32 v{e0}, v{x+2*hf}")
                    if pend: r.append(pend.pop(0))
                    r.append(f"v_exp_f32 v{e1}, v{x+2*hf+1}")
                    if pend: r.append(pend.pop(0))
                    if pend: r.append(pend.pop(0))
                    if kt == 0 and hf == 0: pend.append(f"v_add_f32 v{vLP+qt}, v{e0}, v{e1}")
                    else: pend += [f"v_add_f32 v{vLP+qt}, v{vLP+qt}, v{e0}"]
                    pend.append(f"v_cvt_pk_bf16_f32 v{Pr(buf,qt)+2*kt+hf}, v{e0}, v{e1}")
                    if not (kt == 0 and hf == 0): pend.append(f"v_add_f32 v{vLP+qt}, v{vLP+qt}, v{e1}")
        return r + ["s_nop 0"] + pend
    lacc = [f"v_add_f32 v{vLS}, v{vLS}, v{vLP}", f"v_add_f32 v{vLS+1}, v{vLS+1}, v{vLP+1}"]
    def xlane(op, x, t):
        return [f"v_mov_b32 v{t}, v{x}", "s_nop 1", f"v_permlane16_swap_b32 v{x}, v{t}", f"{op} v{x}, v{x}, v{t}",
                f"v_mov_b32 v{t}, v{x}", "s_nop 1", f"v_permlane32_swap_b32 v{x}, v{t}", f"{op} v{x}, v{x}, v{t}"]
    def rare_block(sbuf, other, ret):
        a.e("s_nop 7")
        for qt in range(2):
            d = vT + qt; f = vT + 2 + qt
            x0, x1 = Sr(sbuf,0,qt), Sr(sbuf,1,qt)
            a.e(f"v_max3_f32 v{d}, v{x0}, v{x0+1}, v{x0+2}"); a.e(f"v_max3_f32 v{d}, v{d}, v{x0+3}, v{x1}")
            a.e(f"v_max3_f32 v{d}, v{d}, v{x1+1}, v{x1+2}"); a.e(f"v_max3_f32 v{d}, v{d}, v{x1+3}, 0")
            for x in xlane("v_max_f32", d, vT + 4): a.e(x)
            a.e(f"v_sub_f32 v{f}, 0, v{d}"); a.e(f"v_exp_f32 v{f}, v{f}")
            for b_ in ([sbuf, 1 - sbuf] if other else [sbuf]):
                for kt in range(2):
                    for rr in range(4): a.e(f"v_sub_f32 v{Sr(b_,kt,qt)+rr}, v{Sr(b_,kt,qt)+rr}, v{d}")
            for rr in range(4): a.e(f"v_sub_f32 v{C+4*qt+rr}, v{C+4*qt+rr}, v{d}")
            a.e(f"v_add_f32 v{vM+qt}, v{vM+qt}, v{d}"); a.e(f"v_mul_f32 v{vLS+qt}, v{vLS+qt}, v{f}")
            for dt in range(8):
                for rr in range(4): a.e(f"v_mul_f32 v{Or(dt,qt)+rr}, v{Or(dt,qt)+rr}, v{f}")
        for x in exp_code(sbuf): a.e(x)
        a.e("s_nop 1")
        a.e(f"s_branch {ret}")
    def check(sbuf, other):
        h = a.uid(f"{name}_rare"); r = a.uid(f"{name}_ret")
        ool.append((h, lambda: rare_block(sbuf, other, r)))
        return [f"v_add_f32 v{vT}, v{vLP}, v{vLP+1}", f"v_cmp_nge_f32 vcc, s{sTH}, v{vT}", f"s_cbranch_vccnz {h}", r + ":"]
    D = 6 if 'd6' in X else (4 if 'd4' in X else 5)
    def run_slots(slots, fills, nxt, sync_after=None, sync=None, post={}):
        n = len(slots)
        for sidx, (rd, ms) in enumerate(slots):
            f = FR + 4 * (sidx % NB)
            if sync_after is None: out = min(D - 1, n - 1 - sidx + len(nxt[:max(0, sidx + D - n)]))
            else: out = min(D - 1, n - 1 - sidx) if sidx <= sync_after else None
            if out is not None: a.e(f"s_waitcnt lgkmcnt({out})")
            m = ms(f); fl = fills.get(sidx, []); h = (len(fl) + 1) // 2
            a.e(m[0])
            for x in fl[:h]: a.e(x)
            a.e(m[1])
            for x in fl[h:]: a.e(x)
            t = sidx + D
            if t < n: a.e(slots[t][0](FR + 4 * (t % NB)))
            elif sync_after is None:
                if t - n < len(nxt): a.e(nxt[t - n][0](FR + 4 * (t % NB)))
            elif sidx == sync_after:
                for x in sync: a.e(x)
                for tt in range(n, sidx + D + 1): a.e(nxt[tt - n][0](FR + 4 * (tt % NB)))
            elif sidx > sync_after: a.e(nxt[t - n][0](FR + 4 * (t % NB)))
            for x in post.get(sidx, []): a.e(x)
    def distribute(fills, items, lo, hi):
        n = hi - lo
        for i in range(n):
            fills.setdefault(lo + i, []).extend(items[len(items) * i // n: len(items) * (i + 1) // n])
    toggles = [f"v_xor_b32 v{vKR}, 0x8000, v{vKR}", f"v_xor_b32 v{vVR}, 0x8000, v{vVR}"]
    vslots = lambda b: [slot_v(b, dt) for dt in range(8)]
    kslots = lambda b: [slot_k(b, n) for n in range(8)]

    sNext, sEv = 64, 65
    sRole, sA, sB = 66, 67, 68
    SK, SV, SQ, SSK = 8, 12, 20, 24
    SU, SQT = 8, 12
    KR, VR, QR, WR, TP, PR = 54, 28, 11, 36, 68, 46
    wrow = lambda r: (11 + r) if r < 8 else ((28 + r - 8) if r < 20 else (54 + r - 20))
    def side_load(rnd):
        le = a.uid(f"{name}_sle")
        a.e("s_load_dwordx8 s[56:63], s[0:1], 0")
        a.e(f"s_and_b32 s{sA}, s2, 7"); a.e(f"s_lshl_b32 s{sA}, s{sA}, 3"); a.e(f"s_lshr_b32 s{sT0}, s2, 5"); a.e(f"s_add_u32 s{sA}, s{sA}, s{sT0}")
        a.e(f"s_bfe_u32 s{sT0}, s2, 0x20003")
        a.e(f"s_mul_i32 s{sT1}, s{sT0}, 9"); a.e(f"s_add_u32 s{sT1}, s{sT1}, 1"); a.e(f"s_lshr_b32 s{sT1}, s{sT1}, 1")
        a.e(f"s_add_u32 s{sB}, s{sT1}, s{sW}")
        a.e(f"s_and_b32 s{sT1}, s{sT0}, 1"); a.e(f"s_sub_u32 s{sT1}, 5, s{sT1}")
        a.e(f"s_cmp_lt_u32 s{sW}, s{sT1}"); a.e(f"s_cselect_b32 s{sRole}, 1, 0")
        a.e("s_waitcnt lgkmcnt(0)")
        a.e(f"s_cmp_eq_u32 s{sRole}, 0"); a.e(f"s_cbranch_scc1 {le}")
        srd(a, SQ, 56, 2048*1152); srd(a, SK, 58, 2048*1152); srd(a, SV, 60, 2048*1152); srd(a, SSK, 62, 576*8)
        a.e(f"v_lshrrev_b32 v{vT}, 4, v{vL}"); a.e(f"v_and_b32 v{vT+1}, 15, v{vL}")
        a.e(f"s_lshl_b32 s{sT0}, s{sA}, 5"); a.e(f"v_lshl_add_u32 v{vT}, v{vT}, 3, s{sT0}")
        a.e(f"v_mul_u32_u24 v{vT}, 1152, v{vT}"); a.e(f"v_lshl_add_u32 v{vT}, v{vT+1}, 2, v{vT}")
        a.e(f"s_lshl_b32 s{sT0}, s{sB}, 6"); a.e(f"v_add_u32 v{vT}, s{sT0}, v{vT}")
        a.e(f"v_add_u32 v{vT+2}, {(-3456) & 0xffffffff}, v{vT}"); a.e(f"v_add_u32 v{vT+3}, 4608, v{vT}")
        a.e(f"v_lshlrev_b32 v{vT+1}, 4, v{vT+1}"); a.e(f"s_lshl_b32 s{sT0}, s{sB}, 8")
        for i in range(3): a.e(f"buffer_load_dword v{KR+i}, v{vT+2}, s[{SK}:{SK+3}], 0 offen offset:{i*1152}")
        for R_, S_ in ((KR + 3, SK), (VR, SV), (QR, SQ)):
            for i in range(8): a.e(f"buffer_load_dword v{R_+i}, v{vT if i < 4 else vT+3}, s[{S_}:{S_+3}], 0 offen offset:{(i%4)*1152}")
        a.e(f"buffer_load_dwordx4 {v(WR,4)}, v{vT+1}, s[{SSK}:{SSK+3}], s{sT0} offen")
        a.e(f"{le}:")
    SSC = " sc1"
    def side_compute(rnd):
        l3 = a.uid(f"{name}_sc2"); le = a.uid(f"{name}_sce")
        a.e(f"s_cmp_eq_u32 s{sRole}, 0"); a.e(f"s_cbranch_scc1 {le}")
        a.e(f"s_mov_b32 s{sT1}, 0x05040100"); a.e(f"s_mov_b32 s{sT2}, 0x07060302")
        a.e(f"v_lshrrev_b32 v{vT}, 4, v{vL}"); a.e(f"v_and_b32 v{vT+1}, 15, v{vL}")
        a.e(f"s_add_u32 s70, s6, {WS_KVB}"); a.e("s_addc_u32 s71, s7, 0"); srd(a, SU, 70, 576*4096)
        a.e(f"s_add_u32 s70, s6, {WS_QB}"); a.e("s_addc_u32 s71, s7, 0"); srd(a, SQT, 70, 576*4096)
        a.e(f"s_lshl_b32 s{sT0}, s{sA}, 6"); a.e(f"v_lshl_add_u32 v{vT}, v{vT}, 4, s{sT0}")
        a.e(f"v_lshlrev_b32 v{vT+1}, 13, v{vT+1}")
        a.e(f"v_sub_u32 v{vT+2}, 4080, v{vT}"); a.e(f"v_add_u32 v{vT+2}, v{vT+2}, v{vT+1}"); a.e(f"v_add_u32 v{vT}, v{vT}, v{vT+1}")
        a.e(f"s_lshl_b32 s{sT0}, s{sB}, 17")
        for c in range(2):
            sel = sT2 if c else sT1
            for i in range(4): a.e(f"v_perm_b32 v{TP+i}, v{QR+2*i+1}, v{QR+2*i}, s{sel}")
            a.e(f"buffer_store_dwordx4 {v(TP,4)}, v{vT}, s[{SQT}:{SQT+3}], s{sT0} offen{SSC}")
            AC = vT + 3
            for hf in (1, 0):
                for i in range(6):
                    j = 4 * hf - 2 + i
                    a.e(f"v_perm_b32 v{PR+i}, v{KR+j+2}, v{KR+j+3}, s{sel}")
                for i in range(4): a.e(f"v_dot2_f32_bf16 v{AC+i}, v{PR+2+i}, v{WR+2*c}, 0")
                for i in range(4): a.e(f"v_dot2_f32_bf16 v{AC+i}, v{PR+i}, v{WR+2*c+1}, v{AC+i}")
                for i in range(4):
                    a.e(f"v_and_b32 v{PR+i}, 0xffff0000, v{VR+4*hf+i}" if c else f"v_lshlrev_b32 v{PR+i}, 16, v{VR+4*hf+i}")
                for i in range(4): a.e(f"v_mul_f32 v{AC+i}, v{AC+i}, v{PR+i}")
                o = TP + (0 if hf else 2)
                a.e(f"v_cvt_pk_bf16_f32 v{o}, v{AC+3}, v{AC+2}"); a.e(f"v_cvt_pk_bf16_f32 v{o+1}, v{AC+1}, v{AC}")
            a.e(f"buffer_store_dwordx4 {v(TP,4)}, v{vT+2}, s[{SU}:{SU+3}], s{sT0} offen{SSC}")
            a.e(f"s_add_u32 s{sT0}, s{sT0}, 4096"); a.e("s_nop 0")
        a.e(f"{le}:")
    def flag_store(off_code):
        a.e(f"v_mov_b32 v{vT}, s{sNonce}"); a.e(f"v_mov_b32 v{vT+1}, 0")
        for x in off_code: a.e(x)
        a.e("s_mov_b64 exec, 1")
        a.e(f"buffer_store_dword v{vT}, v{vT+1}, s[{S_FL}:{S_FL+3}], s{sT1} offen sc1")
        a.e("s_mov_b64 exec, -1")
    def side_hook(ret):
        L = [a.uid(f"{name}_ev") for _ in range(6)]
        for e in range(1, 6):
            a.e(f"s_cmp_eq_u32 s{sEv}, {e}"); a.e(f"s_cbranch_scc1 {L[e]}")
        a.e(f"s_add_u32 s{sNext}, s{sNext}, 2"); a.e(f"s_mov_b32 s{sEv}, 1")
        side_load(1)
        a.e(f"s_branch {ret}")
        a.e(L[1] + ":")
        a.e(f"s_mov_b32 s{sNext}, 99")
        side_compute(1)
        a.e(f"s_branch {ret}")
        a.e(L[2] + ":")
        a.e(L[3] + ":")
        a.e(f"s_mov_b32 s{sEv}, 4")
        a.e(f"s_lshl_b32 s{sT1}, s{sP}, 1"); a.e(f"s_add_u32 s{sT1}, s{sT1}, 4"); a.e(f"s_add_u32 s{sNext}, s{sNext}, 1"); a.e(f"s_max_u32 s{sNext}, s{sNext}, s{sT1}")
        flag_store([f"s_lshl_b32 s{sT1}, s2, 2", f"s_add_u32 s{sT1}, s{sT1}, 32768"])
        a.e(f"s_branch {ret}")
        a.e(L[5] + ":")
        a.e("s_load_dwordx2 s[8:9], s[0:1], 88"); a.e("s_load_dwordx2 s[10:11], s[0:1], 32")
        a.e(f"s_sub_u32 s{sT0}, s{sVt}, 1"); a.e(f"s_lshl_b32 s{sT0}, s{sT0}, 8"); a.e(f"s_add_u32 s{sT0}, s{sT0}, s2")
        a.e(f"s_min_u32 s{sT0}, s{sT0}, 863"); a.e(f"s_sub_u32 s{sT1}, s{sT0}, 576")
        a.e(f"s_add_u32 s{sNext}, s{sNext}, 1"); a.e(f"s_max_u32 s{sT2}, s{sA}, 5")
        a.e(f"s_cmp_eq_u32 s{sVt}, 4"); a.e(f"s_cselect_b32 s{sNext}, s{sT2}, s{sNext}"); a.e(f"s_cselect_b32 s{sEv}, 2, 5")
        a.e(f"v_lshlrev_b32 v{vT}, 7, v{vL}")
        a.e("s_waitcnt lgkmcnt(0)")
        a.e(f"s_cmp_lt_u32 s{sT0}, 576"); a.e(f"s_cselect_b32 s{sT0}, s{sT0}, s{sT1}"); a.e("s_cselect_b32 s8, s8, s10"); a.e("s_cselect_b32 s9, s9, s11")
        a.e(f"s_lshl_b32 s{sT0}, s{sT0}, 13"); a.e(f"s_add_u32 s8, s8, s{sT0}"); a.e("s_addc_u32 s9, s9, 0")
        a.e(f"global_load_dword v{vDUM}, v{vT}, s[8:9]")
        a.e(f"s_branch {ret}")
        a.e(L[4] + ":")
        a.e(f"s_mov_b32 s{sNext}, 99")
        flag_store([f"s_lshl_b32 s{sT1}, s{sP}, 7", f"s_lshl_b32 s{sT2}, s{sH}, 2", f"s_add_u32 s{sT1}, s{sT1}, s{sT2}", f"s_add_u32 s{sT1}, s{sT1}, 36864"])
        a.e(f"s_branch {ret}")
    a.e(f"s_and_b32 s{sT0}, s2, 7"); a.e(f"s_add_u32 s{sT0}, s{sT0}, s{sP}"); a.e(f"s_mul_i32 s{sT1}, s{sT0}, 52"); a.e(f"s_lshr_b32 s{sT1}, s{sT1}, 8"); a.e(f"s_mul_i32 s{sT1}, s{sT1}, 5")
    a.e(f"s_sub_u32 s{sT0}, s{sT0}, s{sT1}"); a.e(f"s_lshl_b32 s{sNext}, s{sT0}, 1"); a.e(f"s_add_u32 s{sNext}, s{sNext}, {3 if 'ph3' in X else 1}"); a.e(f"s_mov_b32 s{sEv}, 0")
    a.e(f"s_add_u32 s{sA}, s{sNext}, 3"); a.e(f"s_cmp_eq_u32 s{sW}, 7"); a.e(f"s_cselect_b32 s{sNext}, 1, s{sNext}"); a.e(f"s_cselect_b32 s{sEv}, 5, 0")

    a.label(f"{name}_seg")
    k0 = kslots(0); k1s = kslots(1)
    for t in range(D): a.e(k0[t][0](FR + 4 * t))
    zero = [f"v_mov_b32 v{O+i}, 0" for i in range(64)] + [f"v_mov_b32 v{vLS}, 0", f"v_mov_b32 v{vLS+1}, 0"]
    fills = {}; distribute(fills, zero, 0, 8)
    run_slots([(rd, (lambda ms: (lambda f: ms(f, True)))(ms)) for rd, ms in k0], fills, k1s)
    a.e("s_nop 3")
    for x in mask_hook(0): a.e(x)
    for qt in range(2):
        d = vM + qt; x0, x1 = Sr(0,0,qt), Sr(0,1,qt)
        a.e(f"v_max3_f32 v{d}, v{x0}, v{x0+1}, v{x0+2}"); a.e(f"v_max3_f32 v{d}, v{d}, v{x0+3}, v{x1}")
        a.e(f"v_max3_f32 v{d}, v{d}, v{x1+1}, v{x1+2}"); a.e(f"v_max_f32 v{d}, v{d}, v{x1+3}")
    for x0_, x1_ in zip(xlane("v_max_f32", vM, vT + 4), xlane("v_max_f32", vM + 1, vT + 5)):
        a.e(x0_)
        if not x1_.startswith("s_nop"): a.e(x1_)
    for qt in range(2):
        for rr in range(4): a.e(f"v_sub_f32 v{C+4*qt+rr}, 0, v{vM+qt}")
    sub0 = [f"v_sub_f32 v{Sr(0,kt,qt)+rr}, v{Sr(0,kt,qt)+rr}, v{vM+qt}" for qt in range(2) for kt in range(2) for rr in range(4)]
    fills = {}; distribute(fills, sub0 + exp_code(0), 0, 8)
    labA = a.uid(f"{name}_wa")
    sync = ["s_waitcnt lgkmcnt(0)", f"s_cmp_lg_u32 s{sKt}, 2", f"s_cbranch_scc1 {labA}", "s_waitcnt vmcnt(0)", labA + ":", "s_waitcnt vmcnt(8)",
            "s_barrier", f"v_xor_b32 v{vKR}, 0x8000, v{vKR}"]
    run_slots(k1s, fills, vslots(0), sync_after=4, sync=sync)
    a.e(f"s_mov_b32 s{sN}, 0")
    a.e(f"s_cmp_eq_u32 s{sI}, 0")
    a.e(f"s_cbranch_scc1 {name}_tail")
    dK, dV = kv_dma(True), kv_dma(False)
    a.label(f"{name}_loop")
    if "phst" in X or "phst2" in X:
        for i in range(10):
            l_ = a.uid("phst"); a.e(f"s_cmp_lg_u32 s{sVt}, {i + (1 if 'phst' in X else 7)}"); a.e(f"s_cbranch_scc1 {l_}"); _at(2 + i); a.e("s_waitcnt lgkmcnt(0)"); a.e(l_ + ":")
    hk = a.uid(f"{name}_side"); hr = a.uid(f"{name}_sret")
    ool.append((hk, lambda: side_hook(hr)))
    a.e(f"s_cmp_eq_u32 s{sVt}, s{sNext}"); a.e(f"s_cbranch_scc1 {hk}"); a.e(f"{hr}:")
    slots = vslots(0) + kslots(0) + vslots(1) + kslots(1)
    fills = {}; post = {}
    fills[0] = list(lacc); fills[16] = list(lacc)
    post[1] = mask_hook(1); post[17] = mask_hook(0)
    distribute(fills, exp_code(1), 2, 16); post[15] = check(1, True)
    distribute(fills, exp_code(0), 18, 32); post[31] = check(0, True)
    f2 = {0: dK[:2], 1: [dK[2]], 4: [dK[3]], 7: [dK[4]], 10: [dK[5]], 12: dV[:2], 13: [dV[2]], 15: [dV[3]], 17: [dV[4]], 19: [dV[5]]}
    if "dmaC" not in X: f2 = {0: dK[:3], 1: [dK[3]], 2: [dK[4]], 3: [dK[5]], 16: dV[:3], 17: [dV[3]], 18: [dV[4]], 19: [dV[5]]}
    if "dmaB" in X: f2 = {0: dK[:3], 2: [dK[3]], 4: [dK[4]], 6: [dK[5]], 8: dV[:3], 10: [dV[3]], 12: [dV[4]], 14: [dV[5]]}
    distribute(f2, kv_adv(True) + kv_adv(False) + [f"s_add_u32 s{sN}, s{sN}, 1"], 21, 27)
    for k_, v_ in f2.items(): fills[k_] = v_ + fills.get(k_, [])
    SA = 27 if 'sa27' in X else (29 if 'sa29' in X else (30 if 'sa30' in X else 28))
    run_slots(slots, fills, vslots(0), sync_after=SA, sync=["s_waitcnt lgkmcnt(0) vmcnt(0)", "s_barrier"] + toggles, post=post)
    a.e(f"s_cmp_lt_u32 s{sN}, s{sI}")
    a.e(f"s_cbranch_scc1 {name}_loop")
    a.label(f"{name}_tail")
    nd = a.uid(f"{name}_nd")
    a.e(f"s_cmp_lg_u32 s{sSeg}, 0"); a.e(f"s_cbranch_scc1 {nd}")
    for x in dK + dV + kv_adv(True) + kv_adv(False): a.e(x)
    a.e(f"{nd}:")
    fills = {0: list(lacc), 8: list(lacc)}; post = {1: mask_hook(1), 7: check(1, False) + ["s_nop 0"]}
    distribute(fills, exp_code(1), 2, 8)
    run_slots(vslots(0) + vslots(1), fills, [], post=post)
    for x0_, x1_ in zip(xlane("v_add_f32", vLS, vT + 4), xlane("v_add_f32", vLS + 1, vT + 5)):
        a.e(x0_)
        if not x1_.startswith("s_nop"): a.e(x1_)
    a.e(f"s_lshl_b32 s{sT0}, s{sTile}, 3"); a.e(f"s_lshl_b32 s{sT1}, s{sWL}, 1"); a.e(f"s_add_u32 s{sT0}, s{sT0}, s{sT1}")
    a.e(f"s_lshl_b32 s{sT0}, s{sT0}, 17"); a.e(f"s_lshl_b32 s{sT1}, s{sH}, 12"); a.e(f"s_add_u32 s{sT0}, s{sT0}, s{sT1}")
    a.e(f"s_cmp_lg_u32 s{sSeg}, 0"); a.e(f"s_cbranch_scc1 {name}_final")
    a.e(f"s_lshl_b32 s{sT1}, s{sWL}, 13"); a.e(f"s_add_u32 s{sT1}, s{sT1}, {QSTASH}"); a.e(f"v_add_u32 v{vT+6}, s{sT1}, v{vL16}")
    for f in range(8): a.e(f"ds_read_b128 {v(Q+4*f,4)}, v{vT+6} offset:{f*1024}")
    a.e(f"v_rcp_f32 v{vT}, v{vLS}"); a.e(f"v_rcp_f32 v{vT+1}, v{vLS+1}")
    a.e(f"s_add_u32 s{sT1}, s{sT0}, 131072")
    for x in range(4):
        for qt in range(2):
            PK = S + ((x*2+qt) % 8) * 4
            for dt in (2*x, 2*x+1):
                for rr in range(4): a.e(f"v_mul_f32 v{Or(dt,qt)+rr}, v{Or(dt,qt)+rr}, v{vT+qt}")
            a.e(f"v_cvt_pk_bf16_f32 v{PK}, v{Or(2*x,qt)}, v{Or(2*x,qt)+1}"); a.e(f"v_cvt_pk_bf16_f32 v{PK+1}, v{Or(2*x,qt)+2}, v{Or(2*x,qt)+3}")
            a.e(f"v_cvt_pk_bf16_f32 v{PK+2}, v{Or(2*x+1,qt)}, v{Or(2*x+1,qt)+1}"); a.e(f"v_cvt_pk_bf16_f32 v{PK+3}, v{Or(2*x+1,qt)+2}, v{Or(2*x+1,qt)+3}")
            a.e(f"buffer_store_dwordx4 {v(PK,4)}, v{vL16}, s[{S_CT}:{S_CT+3}], s{sT1 if qt else sT0} offen offset:{x*1024} sc1")
    a.e(f"v_xor_b32 v{vVR}, 0x8000, v{vVR}")
    a.e(f"s_mov_b32 s{sSeg}, 1")
    a.e(f"s_sub_u32 s{sTile}, 15, s{sP}")
    a.e(f"s_lshl_b32 s{sT0}, s{sP}, 1"); a.e(f"s_sub_u32 s{sI}, 14, s{sT0}")
    a.e(f"s_lshl_b32 s{sR}, s{sTile}, 2"); a.e(f"s_sub_u32 s{sR}, 34, s{sR}")
    a.e(f"s_branch {name}_seg")
    a.label(f"{name}_final")
    st.at(9)
    vP1, vP2, vZ = 60, 64, 65
    a.e("s_load_dwordx2 s[4:5], s[0:1], 88"); a.e("s_load_dwordx2 s[16:17], s[0:1], 96")
    a.e(f"s_lshr_b32 s53, s{sH}, 2"); a.e("s_lshl_b32 s56, s53, 4"); a.e("s_add_u32 s56, s56, 36864"); a.e(f"s_lshl_b32 s55, s{sP}, 7")
    a.e("s_add_u32 s54, s56, s55"); a.e(f"s_sub_u32 s55, {15*128}, s55"); a.e("s_add_u32 s55, s55, s56")
    a.e("s_mov_b32 s52, 32768")
    pollS = f"buffer_load_dwordx4 {v(vP1,4)}, v{vL16}, s[{S_FL}:{S_FL+3}], s52 offen sc1"
    pollC = f"buffer_load_dword v{vP2}, v{vZ}, s[{S_FL}:{S_FL+3}], s54 offen sc1"
    a.e(f"v_and_b32 v{vZ}, 3, v{vL}"); a.e(f"v_lshlrev_b32 v{vZ}, 2, v{vZ}")
    a.e(pollC)
    vOWN, vPAR, vOM, vPM = vT + 6, vT + 7, vT + 8, vT
    a.e(f"s_lshl_b32 s{sT1}, s{sW}, 13"); a.e(f"v_add_u32 v{vOWN}, s{sT1}, v{vL16}"); a.e(f"v_xor_b32 v{vPAR}, 0x8000, v{vOWN}")
    a.e(f"s_lshl_b32 s{sT1}, s{sW}, 10"); a.e(f"s_add_u32 s{sT1}, s{sT1}, {155648}"); a.e(f"v_add_u32 v{vOM}, s{sT1}, v{vL16}"); a.e(f"v_xor_b32 v{vPM}, 0x1000, v{vOM}")
    a.e(f"ds_write_b128 v{vOM}, {v(vLS,4)}")
    a.e(f"s_lshl_b32 s{sT1}, s{sG}, 11"); a.e(f"s_add_u32 s{sT0}, s{sT0}, s{sT1}"); a.e(f"s_add_u32 s{sT1}, s{sT0}, 131072")
    lg1 = a.uid(f"{name}_g1"); lgd = a.uid(f"{name}_gd")
    sItem, sNT, sCG, sTq, sKQ = 48, 49, 50, 51, 53
    uT0, uT1, uT2 = 66, 67, 68
    def o_setup():
        a.e(f"s_and_b32 s{uT0}, s2, 7"); a.e(f"s_mul_i32 s{sCG}, s{uT0}, 18"); a.e(f"s_lshr_b32 s{uT1}, s2, 3"); a.e(f"s_sub_u32 s{uT1}, s{uT1}, 7")
        a.e(f"s_add_u32 s{sCG}, s{sCG}, s{uT1}"); a.e(f"s_cmp_lt_u32 s{uT1}, 18"); a.e(f"s_cselect_b32 s{sCG}, s{sCG}, -1")
        a.e(f"s_and_b32 s51, s{sH}, 3")
        ko.gemm_setup(a, sW, sP, 51, 53, (uT0, uT1, uT2))
    a.e(f"s_cmp_eq_u32 s{sG}, 0"); a.e(f"s_cbranch_scc0 {lg1}")
    XM = 56
    for g in range(2):
        keep = O + 32 * g; send = O + 32 * (1 - g)
        if g == 1: a.label(lg1)
        for n in range(8): a.e(f"ds_write_b128 v{vOWN}, {v(send+4*n,4)} offset:{n*1024}")
        a.e("s_waitcnt lgkmcnt(0)")
        o_setup()
        ko.gemm_vsetup(a, vL, vL16, 38, g == 0)
        a.e("s_barrier")
        a.e(f"ds_read_b128 {v(XM,4)}, v{vPM}")
        for n in range(8): a.e(f"ds_read_b128 {v(FR+4*n,4)}, v{vPAR} offset:{n*1024}")
        if g == 0 and False:
            for gg in (2, 3):
                for x in ko.gemm_wl(gg, (uT0, uT1, uT2)): a.e(x)
        a.e("s_waitcnt lgkmcnt(8)")
        for qt in range(2):
            mm = vE + 4*qt; e0 = mm + 1; e1 = mm + 2
            a.e(f"v_max_f32 v{mm}, v{vM+qt}, v{XM+2+qt}"); a.e(f"v_sub_f32 v{e0}, v{vM+qt}, v{mm}"); a.e(f"v_sub_f32 v{e1}, v{XM+2+qt}, v{mm}")
            a.e(f"v_exp_f32 v{e0}, v{e0}"); a.e(f"v_exp_f32 v{e1}, v{e1}"); a.e("s_nop 0")
            a.e(f"v_mul_f32 v{mm}, v{e0}, v{vLS+qt}"); a.e(f"v_fmac_f32 v{mm}, v{e1}, v{XM+qt}"); a.e(f"v_rcp_f32 v{mm}, v{mm}"); a.e("s_nop 0")
            a.e(f"v_mul_f32 v{e0}, v{e0}, v{mm}"); a.e(f"v_mul_f32 v{e1}, v{e1}, v{mm}")
        for xx in range(2):
            for qt in range(2):
                n0 = (2*xx)*2 + qt; n1 = (2*xx+1)*2 + qt
                for n in (n0, n1):
                    for rr in range(4): a.e(f"v_mul_f32 v{keep+4*n+rr}, v{keep+4*n+rr}, v{vE+4*qt+1}")
                a.e(f"s_waitcnt lgkmcnt({7 - n1})")
                for n in (n0, n1):
                    for rr in range(4): a.e(f"v_fmac_f32 v{keep+4*n+rr}, v{FR+4*n+rr}, v{vE+4*qt+2}")
                PK = S + (xx*2+qt)*4
                a.e(f"v_cvt_pk_bf16_f32 v{PK}, v{keep+4*n0}, v{keep+4*n0+1}"); a.e(f"v_cvt_pk_bf16_f32 v{PK+1}, v{keep+4*n0+2}, v{keep+4*n0+3}")
                a.e(f"v_cvt_pk_bf16_f32 v{PK+2}, v{keep+4*n1}, v{keep+4*n1+1}"); a.e(f"v_cvt_pk_bf16_f32 v{PK+3}, v{keep+4*n1+2}, v{keep+4*n1+3}")
                a.e(f"buffer_store_dwordx4 {v(PK,4)}, v{vL16}, s[{S_CT}:{S_CT+3}], s{sT1 if qt else sT0} offen offset:{xx*1024} sc1")
        if g == 0: a.e(f"s_branch {name}_convw")
    st.at(10)
    T3 = (sT0, sT1, sT2)
    G = ko.Gemm(a, name, T3, vL16, " sc1", S_FL, sNonce, _at if "gst" in X else None)
    a.e(f"v_mov_b32 v16, v{vZ}")
    a.e("s_waitcnt vmcnt(4)")
    a.e(f"v_cmp_ne_u32 vcc, s{sNonce}, v{vP2}"); a.e("s_mov_b32 s66, vcc_lo")
    a.e(f"s_cbranch_vccnz {name}_late")
    G.first_loads(False)
    a.e("s_waitcnt vmcnt(16)")
    a.e(f"s_branch {name}_late2")
    a.label(f"{name}_late")
    a.e("s_waitcnt vmcnt(0)")
    a.label(f"{name}_late2")
    a.e("s_barrier")
    st.at(8)
    a.e(f"s_cmp_lg_u32 s{sW}, 7"); a.e(f"s_cbranch_scc1 {name}_nsg")
    for x in [f"v_mov_b32 v{vT}, s{sNonce}", f"v_mov_b32 v{vT+1}, 0", f"s_lshl_b32 s{sT2}, s{sH}, 2", f"s_and_b32 s{sT2}, s{sT2}, 15",
              f"s_add_u32 s{sT0}, s55, s{sT2}", f"s_add_u32 s{sT1}, s54, s{sT2}", "s_mov_b64 exec, 1",
              f"buffer_store_dword v{vT}, v{vT+1}, s[{S_FL}:{S_FL+3}], s{sT0} offen sc1",
              f"buffer_store_dword v{vT}, v{vT+1}, s[{S_FL}:{S_FL+3}], s{sT1} offen sc1", "s_mov_b64 exec, -1"]: a.e(x)
    a.label(f"{name}_nsg")
    a.e("s_cmp_eq_u32 s66, 0"); a.e(f"s_cbranch_scc1 {name}_rdy")
    G.spin(f"buffer_load_dword v15, v16, s[{S_FL}:{S_FL+3}], s54 offen sc1")
    G.first_loads(False)
    a.label(f"{name}_rdy")
    if True: a.e("s_barrier")
    st.at(2)
    G.first_loads(True)
    G.main(f"buffer_load_dword v15, v16, s[{S_FL}:{S_FL+3}], s55 offen sc1")
    a.e(f"s_branch {name}_fin")
    a.label(f"{name}_convw")
    if True:
        for gg in (2, 3):
            for x in ko.gemm_wl(gg, T3): a.e(x)
        a.e("s_waitcnt vmcnt(18)")
        a.e("s_barrier")
        a.e("s_waitcnt vmcnt(0)")
        a.e("s_barrier")
    else:
        a.e("s_waitcnt vmcnt(0)")
        a.e("s_barrier")
    for gg in range(2):
        for x in ko.gemm_wl(gg, T3): a.e(x)
    a.e(f"v_mov_b32 v{vT}, {ko.CNT}"); a.e(f"v_mov_b32 v{vT+1}, 0"); a.e(f"ds_write_b32 v{vT}, v{vT+1}")
    a.e("s_waitcnt vmcnt(0) lgkmcnt(0)")
    a.e("s_barrier")
    a.e(f"s_cmp_eq_u32 s{sCG}, -1"); a.e(f"s_cbranch_scc1 {name}_fin")
    a.e(f"s_mov_b32 s{sT0}, 0")
    a.label(f"{name}_ssp")
    a.e(pollS); a.e("s_waitcnt vmcnt(0)")
    for r in range(4): a.e(f"v_xor_b32 v{vP1+r}, s{sNonce}, v{vP1+r}")
    a.e(f"v_or3_b32 v{vP1}, v{vP1}, v{vP1+1}, v{vP1+2}"); a.e(f"v_or_b32 v{vP1}, v{vP1}, v{vP1+3}"); a.e(f"v_cmp_ne_u32 vcc, 0, v{vP1}")
    a.e(f"s_add_u32 s{sT0}, s{sT0}, 1"); a.e(f"s_cbranch_vccz {name}_sok")
    a.e(f"s_cmp_lt_u32 s{sT0}, 0x40000"); a.e(f"s_cbranch_scc1 {name}_ssp")
    a.label(f"{name}_sok")
    a.e("s_barrier")
    ko.gen_conv(a, name, st, sW, sCG, T3, vL, vL16, " sc1")
    a.label(f"{name}_fin")
    if diag: a.e("s_waitcnt vmcnt(0)")
    st.at(11); st.at(12, True)
    st.dump(6, sW)
    a.label(f"{name}_end")
    a.e("s_endpgm")
    i = 0
    while i < len(ool):
        lab, fn = ool[i]; a.label(lab); fn(); i += 1
    a.label(code_end)
    a.e("s_endpgm")
    a.e = _e
    kernel_desc(a, name, 256, 102)
```

```python
from asmlib import *
from k1 import MF, WS_CTX, WS_WOF, WS_KVB, WS_QB

EOFF = 4608; OOFF = EOFF + 4160; CROW = OOFF + 4160
CBASE = 73728; CNT = 155648 - 128
OOB = 0x7ff00000

def gen_conv(a, name, st, sW, sCG, sT, vL, vL16, LD, OF=''):
    sT0, sT1, sT2 = sT
    S_U, S_QT, S_H, S_OUT = 8, 12, 16, 20
    sCH, sD, sH0, sLB = 40, 41, 42, 43
    vT = 4
    a.e("s_load_dwordx4 s[24:27], s[0:1], 32")
    a.e("s_load_dwordx2 s[4:5], s[0:1], 96")
    a.e(f"s_lshl_b32 s{sCH}, s{sCG}, 2"); a.e(f"s_add_u32 s{sCH}, s{sCH}, s{sW}")
    a.e(f"s_mul_i32 s{sLB}, s{sW}, {CROW}"); a.e(f"s_add_u32 s{sLB}, s{sLB}, {CBASE}")
    a.e(f"s_lshl_b32 s{sT2}, s{sCH}, 12")
    a.e(f"s_add_u32 s44, s6, {WS_KVB}"); a.e("s_addc_u32 s45, s7, 0"); srd(a, S_U, 44, 576 * 4096)
    a.e(f"s_add_u32 s44, s6, {WS_QB}"); a.e("s_addc_u32 s45, s7, 0"); srd(a, S_QT, 44, 576 * 4096)
    a.e(f"s_mov_b32 m0, s{sLB}"); a.e("s_nop 0")
    for i in range(4): a.e(f"buffer_load_dwordx4 v{vL16}, s[{S_U}:{S_U+3}], s{sT2} offen offset:{i*1024}{LD} lds")
    a.e("s_waitcnt lgkmcnt(0)")
    srd(a, S_H, 24, 576 * 4096); srd(a, S_OUT, 4, 2048 * 2304)
    a.e(f"s_add_u32 m0, s{sLB}, {EOFF + 32}"); a.e(f"s_add_u32 s{sT1}, s{sT2}, 2")
    for i in range(4): a.e(f"buffer_load_dwordx4 v{vL16}, s[{S_H}:{S_H+3}], s{sT2} offen offset:{i*1024} lds")
    a.e(f"s_add_u32 m0, s{sLB}, {OOFF + 32}"); a.e("s_nop 0")
    for i in range(4): a.e(f"buffer_load_dwordx4 v{vL16}, s[{S_H}:{S_H+3}], s{sT1} offen offset:{i*1024} lds")
    a.e(f"s_add_u32 s24, s24, s{sT2}"); a.e("s_addc_u32 s25, s25, 0")
    a.e(f"s_lshr_b32 s{sT0}, s{sCH}, 1"); a.e(f"s_lshl_b32 s{sT0}, s{sT0}, 2")
    a.e(f"s_add_u32 s26, s26, s{sT0}"); a.e("s_addc_u32 s27, s27, 0")
    a.e(f"s_load_dword s{sH0}, s[24:25], 0"); a.e(f"s_load_dword s{sD}, s[26:27], 0")
    vAa, vBa, vKa, vYa, vQo = 8, 12, 13, 14, 15
    a.e(f"v_and_b32 v{vT}, 15, v{vL}"); a.e(f"v_lshrrev_b32 v{vT+1}, 4, v{vL}")
    a.e(f"v_lshl_add_u32 v16, v{vT+1}, 3, v{vT}"); a.e("v_add_u32 v16, 1, v16"); a.e("v_and_b32 v17, 1, v16")
    a.e("v_and_b32 v16, 0xfe, v16"); a.e("v_lshlrev_b32 v16, 1, v16"); a.e(f"v_mul_u32_u24 v17, {OOFF - EOFF}, v17")
    a.e(f"s_add_u32 s{sT0}, s{sLB}, {EOFF}"); a.e(f"v_add3_u32 v{vAa}, v16, v17, s{sT0}")
    for i in range(1, 4): a.e(f"v_add_u32 v{vAa+i}, {1024*i}, v{vAa}")
    a.e(f"v_lshlrev_b32 v17, 5, v{vT}"); a.e(f"v_lshlrev_b32 v18, 4, v{vT+1}"); a.e("v_sub_u32 v19, v18, v17")
    a.e(f"s_add_u32 s{sT1}, s{sLB}, {4064 - 3584}"); a.e(f"v_add_u32 v{vBa}, s{sT1}, v19")
    a.e(f"v_lshlrev_b32 v18, 3, v{vT+1}"); a.e(f"v_add_u32 v{vQo}, v17, v18")
    a.e(f"s_add_u32 s{sT1}, s{sLB}, {4088 - 3584}"); a.e(f"v_sub_u32 v{vKa}, s{sT1}, v{vQo}"); a.e(f"v_add_u32 v{vYa}, s{sT0}, v{vQo}")
    QR = 224; KVR = 240; ACC = 192; BUF = [64, 128]
    for j in range(8):
        a.e(f"buffer_load_dwordx2 {v(QR+2*j,2)}, v{vQo}, s[{S_QT}:{S_QT+3}], s{sT2} offen offset:{512*j}{LD}")
    for i in range(4): a.e(f"v_mov_b32 v{20+i}, 0")
    a.e(f"v_and_b32 v16, 31, v{vL}"); a.e("v_lshlrev_b32 v16, 4, v16"); a.e(f"v_add_u32 v16, s{sLB}, v16")
    a.e(f"ds_write_b128 v16, {v(20,4)} offset:4096")
    a.e(f"v_and_b32 v16, 7, v{vL}"); a.e("v_cmp_eq_u32 vcc, 7, v16"); a.e("v_lshlrev_b32 v16, 2, v16"); a.e(f"v_add_u32 v16, s{sT0}, v16")
    a.e("ds_write_b32 v16, v20")
    a.e("s_waitcnt lgkmcnt(0)")
    a.e(f"s_lshl_b32 s{sH0}, s{sH0}, 16"); a.e(f"v_mov_b32 v17, s{sH0}"); a.e("v_cndmask_b32 v17, v20, v17, vcc")
    a.e(f"ds_write_b32 v16, v17 offset:{OOFF - EOFF}")
    a.e(f"s_lshl_b32 s{sT0}, s{sD}, 16"); a.e(f"s_and_b32 s{sT1}, s{sD}, 0xffff0000")
    a.e(f"s_bitcmp0_b32 s{sCH}, 0"); a.e(f"s_cselect_b32 s{sD}, s{sT0}, s{sT1}")
    a.e("s_waitcnt vmcnt(8) lgkmcnt(0)")
    def creads(buf, r):
        B = BUF[buf]; o = []
        for m in range(8):
            d0 = (512 * (m & 1) + 64 * r) // 4
            o.append(f"ds_read2_b32 {v(B+4*m,2)}, v{vAa+(m>>1)} offset0:{d0} offset1:{d0+1}")
            o.append(f"ds_read2_b32 {v(B+4*m+2,2)}, v{vAa+(m>>1)} offset0:{d0+2} offset1:{d0+3}")
            o.append(f"ds_read_b128 {v(B+32+4*m,4)}, v{vBa} offset:{512*(7-m)+64*r}")
        return o
    for x in creads(0, 0): a.e(x)
    for r in range(8):
        B = BUF[r % 2]
        pairs = sorted([(m, j - m) for j in range(8) for m in range(j + 1)], key=lambda p: (max(p), p[0] + p[1]))
        seen = set(); ms = []
        for (m, n) in pairs:
            c = "0" if (r == 0 and m + n not in seen) else v(ACC+4*(m+n), 4)
            seen.add(m + n)
            ms.append(f"{MF} {v(ACC+4*(m+n),4)}, {v(B+4*m,4)}, {v(B+32+4*n,4)}, {c}")
        rd = creads((r + 1) % 2, r + 1) if r < 7 else [f"ds_read_b64 {v(KVR+2*j,2)}, v{vKa} offset:{512*(7-j)}" for j in range(8)]
        a.e("s_waitcnt lgkmcnt(0)")
        k_ = 0
        for m in ms:
            a.e(m)
            if k_ < len(rd):
                a.e(rd[k_]); k_ += 1
    a.e("s_waitcnt lgkmcnt(0) vmcnt(0)")
    a.e("s_nop 3")
    for j in range(8):
        a.e(f"v_and_b32 v24, 0xffff0000, v{KVR+1+2*j}"); a.e(f"v_lshlrev_b32 v25, 16, v{KVR+1+2*j}")
        a.e(f"v_and_b32 v26, 0xffff0000, v{KVR+2*j}"); a.e(f"v_lshlrev_b32 v27, 16, v{KVR+2*j}")
        for rr in range(4): a.e(f"v_fmac_f32 v{ACC+4*j+rr}, s{sD}, v{24+rr}")
        a.e(f"v_lshlrev_b32 v24, 16, v{QR+2*j}"); a.e(f"v_and_b32 v25, 0xffff0000, v{QR+2*j}")
        a.e(f"v_lshlrev_b32 v26, 16, v{QR+2*j+1}"); a.e(f"v_and_b32 v27, 0xffff0000, v{QR+2*j+1}")
        for rr in range(4): a.e(f"v_mul_f32 v{ACC+4*j+rr}, v{ACC+4*j+rr}, v{24+rr}")
        Pq = 28 + 2 * (j & 1)
        a.e(f"v_cvt_pk_bf16_f32 v{Pq}, v{ACC+4*j}, v{ACC+4*j+1}"); a.e(f"v_cvt_pk_bf16_f32 v{Pq+1}, v{ACC+4*j+2}, v{ACC+4*j+3}")
        a.e(f"ds_write_b64 v{vYa}, {v(Pq,2)} offset:{512*j}")
    a.e(f"v_bfe_u32 v16, v{vL}, 2, 2"); a.e(f"v_mul_u32_u24 v16, {CROW}, v16")
    a.e(f"v_lshrrev_b32 v17, 4, v{vL}"); a.e("v_lshl_add_u32 v16, v17, 5, v16")
    a.e(f"v_and_b32 v17, 3, v{vL}"); a.e("v_lshl_add_u32 v16, v17, 3, v16")
    a.e(f"s_lshl_b32 s{sT0}, s{sW}, 10"); a.e(f"s_add_u32 s{sT0}, s{sT0}, {CBASE + EOFF}"); a.e(f"v_add_u32 v16, s{sT0}, v16")
    a.e(f"s_lshl_b32 s{sT0}, s{sW}, 9"); a.e(f"v_add_u32 v17, s{sT0}, v{vL}"); a.e("v_mul_u32_u24 v17, 2304, v17")
    a.e(f"s_lshl_b32 s{sT0}, s{sCG}, 3")
    a.e(f"v_mov_b32 v18, {CNT}"); a.e("v_mov_b32 v19, 1")
    a.e("s_waitcnt lgkmcnt(0)")
    a.e("s_mov_b64 exec, 1"); a.e("ds_add_u32 v18, v19"); a.e("s_mov_b64 exec, -1")
    lsp = a.uid(f"{name}_csp")
    a.label(lsp)
    a.e("ds_read_b32 v19, v18"); a.e("s_waitcnt lgkmcnt(0)"); a.e(f"v_readfirstlane_b32 s{sT1}, v19")
    a.e(f"s_cmp_lt_u32 s{sT1}, 4"); a.e(f"s_cbranch_scc1 {lsp}")
    for i in range(8): a.e(f"ds_read_b64_tr_b16 {v(32+2*i,2)}, v16 offset:{128*i}")
    for i in range(8):
        a.e(f"s_waitcnt lgkmcnt({7-i})")
        a.e(f"buffer_store_dwordx2 {v(32+2*i,2)}, v17, s[{S_OUT}:{S_OUT+3}], s{sT0} offen{OF}")
        a.e(f"s_add_u32 s{sT0}, s{sT0}, {64*2304}")

WS_PART = 72 << 20
VW = 28; VRB = 11; VC1 = 17
CX = 48; GACC = [112, 184]; WF = 24
KORD = list(range(8, 16)) + list(range(8))

def gemm_setup(a, sW, sP, sC, sX, sT):
    sT0, sT1, sT2 = sT
    a.e(f"s_add_u32 s44, s6, {WS_CTX}"); a.e("s_addc_u32 s45, s7, 0"); srd(a, 8, 44, 16 << 20)
    srd(a, 12, 4, 4096 * 1152)
    a.e(f"s_add_u32 s44, s6, {WS_PART}"); a.e("s_addc_u32 s45, s7, 0"); srd(a, 20, 44, 512 * 36864)
    srd(a, 16, 16, 2048 * 2304)
    a.e(f"s_and_b32 s43, s{sW}, 3")
    a.e(f"s_lshl_b32 s41, s{sX}, 4"); a.e("s_add_u32 s41, s41, s43"); a.e(f"s_mul_i32 s41, s41, {32*1152}")
    a.e(f"s_mul_i32 s{sT0}, s{sC}, 288"); a.e(f"s_add_u32 s41, s41, s{sT0}")
    a.e("s_mul_i32 s42, s43, 9216")
    for part in range(2):
        T = 46
        if part == 0: a.e(f"s_mov_b32 s{T}, s{sP}")
        else: a.e(f"s_sub_u32 s{T}, 15, s{sP}")
        a.e(f"s_lshl_b32 s{sT0}, s{T}, 3"); a.e(f"s_lshl_b32 s{sT1}, s43, 1"); a.e(f"s_add_u32 s{sT1}, s{sT1}, s{sT0}"); a.e(f"s_lshl_b32 s{sT1}, s{sT1}, 17")
        a.e(f"s_lshl_b32 s{sT2}, s{sX}, 14"); a.e(f"s_add_u32 s{56+part}, s{sT1}, s{sT2}")
        a.e(f"s_add_u32 s{sT0}, s{sT0}, s{sX}"); a.e(f"s_mul_i32 s{48+part}, s{sT0}, {16*2304}"); a.e(f"s_mul_i32 s{sT1}, s{sC}, 288")
        a.e(f"s_add_u32 s{48+part}, s{48+part}, s{sT1}"); a.e(f"s_add_u32 s{48+part}, s{48+part}, 1152")
        a.e(f"s_lshl_b32 s{sT0}, s{T}, 2"); a.e(f"s_add_u32 s{sT0}, s{sT0}, s{sC}"); a.e(f"s_lshl_b32 s{sT0}, s{sT0}, 3")
        a.e(f"s_mul_i32 s{64+part}, s{sT0}, 36864"); a.e(f"s_mul_i32 s{sT1}, s{sX}, 4608"); a.e(f"s_add_u32 s{64+part}, s{64+part}, s{sT1}")
        a.e(f"s_lshl_b32 s{62+part}, s{sT0}, 4"); a.e(f"s_lshr_b32 s{sT1}, s{sX}, 1"); a.e(f"s_lshl_b32 s{sT1}, s{sT1}, 2")
        a.e(f"s_add_u32 s{62+part}, s{62+part}, s{sT1}"); a.e(f"s_add_u32 s{62+part}, s{62+part}, 40960")
        a.e(f"s_add_u32 s{sT0}, s{sT0}, s{sX}")
        a.e(f"s_mul_i32 s{58+part}, s{sT0}, 36864"); a.e(f"s_add_u32 s{58+part}, s{58+part}, s42")
        a.e(f"s_lshl_b32 s{60+part}, s{sT0}, 2"); a.e(f"s_add_u32 s{60+part}, s{60+part}, s43"); a.e(f"s_lshl_b32 s{60+part}, s{60+part}, 2"); a.e(f"s_add_u32 s{60+part}, s{60+part}, 40960")

def gemm_vsetup(a, vL, vL16, t, ld):
    if not ld:
        a.e(f"v_add_u32 v{VC1}, 131072, v{vL16}")
        a.e(f"v_lshrrev_b32 v{t}, 2, v{vL}"); a.e(f"v_mul_u32_u24 v{t}, 288, v{t}"); a.e(f"v_and_b32 v{t+1}, 3, v{vL}"); a.e(f"v_lshl_add_u32 v{VRB}, v{t+1}, 3, v{t}")
        a.e(f"v_add_u32 v{VRB+1}, 55296, v{VRB}"); a.e(f"v_add_u32 v{VRB+2}, 110592, v{VRB}")
        a.e(f"v_and_b32 v9, 15, v{vL}"); a.e("v_mul_u32_u24 v9, 2304, v9"); a.e(f"v_lshrrev_b32 v10, 4, v{vL}"); a.e("v_lshl_add_u32 v9, v10, 3, v9")
        a.e(f"v_lshlrev_b32 v10, 3, v{vL}")
        a.e(f"v_and_b32 v14, 7, v{vL}"); a.e("v_lshlrev_b32 v14, 4, v14")
    else:
        for n in range(9):
            a.e(f"v_add_u32 v{VW+n}, {64*n}, v{vL}")
            a.e(f"v_mul_u32_u24 v{t}, 3641, v{VW+n}"); a.e(f"v_lshrrev_b32 v{t}, 16, v{t}")
            a.e(f"v_lshlrev_b32 v{VW+n}, 4, v{VW+n}"); a.e(f"v_mul_u32_u24 v{t}, {1152-288}, v{t}"); a.e(f"v_add_u32 v{VW+n}, v{VW+n}, v{t}")
            if n % 4: a.e(f"v_subrev_u32 v{VW+n}, {1024*(n%4)}, v{VW+n}")

def gemm_wl(q, sT):
    r = [f"s_add_u32 s{sT[0]}, s41, {q * 4 * 32 * 1152}"]
    for part, n in ((0, 4), (1, 4), (2, 1)):
        r += [f"s_add_u32 m0, s42, {q * 36864 + part * 4096}", "s_nop 0"]
        r += [f"buffer_load_dwordx4 v{VW + 4*part + i}, s[12:15], s{sT[0]} offen offset:{i*1024} lds" for i in range(n)]
    return r

class Gemm:
    def __init__(self, a, name, sT, vL16, LD, S_FL, sNonce, gst=None):
        self.__dict__.update(locals()); self.vm = []
    def E(self, x, tag=None):
        self.a.e(x)
        if x.startswith("buffer_"): self.vm.append(tag)
    def wait(self, tag):
        idx = max(i for i, t in enumerate(self.vm) if t == tag)
        self.a.e(f"s_waitcnt vmcnt({len(self.vm) - 1 - idx})")
    def cl(self, s):
        part, ks = s >> 4, KORD[s & 15]; sT1 = self.sT[1]
        return [(f"s_add_u32 s{sT1}, s{56+part}, {(ks >> 2) * 4096}", None)] + [
                (f"buffer_load_dwordx4 {v(CX + (s % 8) * 8 + 4 * i, 4)}, v{VC1 if i else self.vL16}, s[8:11], s{sT1} offen offset:{(ks & 3) * 1024}{self.LD}", ("c", s)) for i in range(2)]
    def first_loads(self, book):
        for s in range(8):
            for x, t in self.cl(s):
                if book:
                    if x.startswith("buffer_"): self.vm.append(t)
                else: self.a.e(x)
    def spin(self, poll, pre=False):
        a = self.a; sT0 = self.sT[0]
        lp = a.uid(f"{self.name}_sp"); lc = a.uid(f"{self.name}_sc"); lo = a.uid(f"{self.name}_ok")
        a.e(f"s_mov_b32 s{sT0}, 0")
        if pre: a.e(f"s_branch {lc}")
        a.label(lp)
        a.e(poll); a.e("s_waitcnt vmcnt(0)")
        a.label(lc)
        a.e(f"v_cmp_ne_u32 vcc, s{self.sNonce}, v15"); a.e(f"s_add_u32 s{sT0}, s{sT0}, 1"); a.e(f"s_cbranch_vccz {lo}")
        a.e(f"s_cmp_lt_u32 s{sT0}, 0x40000"); a.e(f"s_cbranch_scc1 {lp}")
        a.label(lo)
    def main(self, pollL):
        a = self.a; E = self.E; wait = self.wait; gst = self.gst; vL16 = self.vL16; LD = self.LD; S_FL = self.S_FL
        sT0, sT1, sT2 = self.sT
        def pstores(part):
            r = []
            for i in range(2):
                for f in range(5):
                    A = GACC[part] + (i * 9 + 2 * f) * 4; P = 4 if (f + i) % 2 else 20
                    nq = 4 if f < 4 else 2
                    r.append([(f"v_cvt_pk_bf16_f32 v{P+q}, v{A+2*q}, v{A+2*q+1}", None) for q in range(nq)] +
                             ([(f"s_add_u32 s{sT2}, s{58+part}, {i * 4608 + (4096 if f == 4 else 0)}", None)] if f in (0, 4) else []) +
                             [(f"buffer_store_dwordx{nq} {v(P, nq)}, v{vL16 if f < 4 else 10}, s[20:23], s{sT2} offen offset:{(f % 4) * 1024} sc1", ("p", part))])
            return r
        def flag(part):
            for x in [f"v_mov_b32 v18, s{self.sNonce}", "v_mov_b32 v19, 0", "s_mov_b64 exec, 1"]: a.e(x)
            E(f"buffer_store_dword v18, v19, s[{S_FL}:{S_FL+3}], s{60+part} offen sc1", "f"); a.e("s_mov_b64 exec, -1")
        ppoll = lambda part: f"buffer_load_dword v15, v14, s[{S_FL}:{S_FL+3}], s{62+part} offen sc1"
        E(pollL, "pl")
        NB = 6; D = 5
        rd = lambda n: [f"ds_read_b64_tr_b16 {v(WF + 4 * (n % NB) + 2 * hh, 2)}, v{VRB + KORD[(n // 9) & 15] // 6} offset:{(KORD[(n // 9) & 15] % 6) * 9216 + (n % 9) * 32 + hh * 4608}" for hh in range(2)]
        NT = 32 * 9
        can = lambda n, cur: not (72 <= n < 144 and cur < 72)
        issued = 0; pend = []
        for n in range(NT):
            s, j = divmod(n, 9); part = s >> 4
            if n == 72:
                if gst: gst(5)
                a.e("s_barrier")
                wait("pl"); self.spin(pollL, True)
                if gst: gst(6); a.e("s_waitcnt lgkmcnt(0)")
            if n == 144 + 54: a.e("s_barrier")
            if n == 144 and gst: gst(7); a.e("s_waitcnt lgkmcnt(0)")
            if n in (0, 72):
                while issued < n + D:
                    for x in rd(issued): a.e(x)
                    issued += 1
            if j == 0: wait(("c", s))
            a.e(f"s_waitcnt lgkmcnt({2 * (issued - n - 1)})")
            nx = rd(issued) if (issued < NT and can(issued, n)) else None
            for i in range(2):
                acc = v(GACC[part] + (i * 9 + j) * 4, 4)
                a.e(f"{MF} {acc}, {v(WF + 4 * (n % NB), 4)}, {v(CX + (s % 8) * 8 + 4 * i, 4)}, {'0' if (s & 15) == 0 else acc}")
                if nx: a.e(nx[i])
            if nx: issued += 1
            if j == 8 and s + 8 < 32:
                for x, t in self.cl(s + 8): E(x, t)
            if n == 144 + 3: pend = pstores(0)
            if pend and n % 3 == 0:
                for x, t in pend.pop(0): E(x, t)
            if n == 144 + 9 * 9:
                wait(("p", 0)); flag(0)
            if n == NT - 18: E(ppoll(0), "pp")
        if gst: gst(8)
        def rloads(part):
            a.e(f"s_lshl_b32 s{sT1}, s43, 10"); a.e(f"s_add_u32 s{sT1}, s{sT1}, s{64+part}")
            a.e(f"s_add_u32 s{sT2}, s{64+part}, 4096"); a.e(f"s_cmp_eq_u32 s43, {part}"); a.e(f"s_cselect_b32 s{sT2}, s{sT2}, {OOB}")
            for q in range(8):
                E(f"buffer_load_dwordx4 {v(64 + 4 * q, 4)}, v{vL16}, s[20:23], s{sT1} offen{LD}", ("r", part, 0, q)); a.e(f"s_add_u32 s{sT1}, s{sT1}, 36864")
            for q in range(8):
                E(f"buffer_load_dwordx2 {v(96 + 2 * q, 2)}, v10, s[20:23], s{sT2} offen{LD}", ("r", part, 1, q)); a.e(f"s_add_u32 s{sT2}, s{sT2}, 36864")
        def rsum(part):
            a.e(f"s_lshl_b32 s{sT1}, s43, 6"); a.e(f"s_add_u32 s{sT1}, s{sT1}, s{48+part}")
            a.e(f"s_add_u32 s{sT2}, s{48+part}, 256"); a.e(f"s_cmp_eq_u32 s43, {part}"); a.e(f"s_cselect_b32 s{sT2}, s{sT2}, {OOB}")
            for z, (B, nd, A) in enumerate(((64, 4, 40), (96, 2, 52))):
                for q in range(8):
                    wait(("r", part, z, q))
                    for d in range(nd):
                        if q == 0:
                            a.e(f"v_lshlrev_b32 v{A+2*d}, 16, v{B+d}"); a.e(f"v_and_b32 v{A+1+2*d}, 0xffff0000, v{B+d}")
                        else:
                            a.e(f"v_dot2_f32_bf16 v{A+2*d}, v{B+nd*q+d}, s44, v{A+2*d}"); a.e(f"v_dot2_f32_bf16 v{A+1+2*d}, v{B+nd*q+d}, s45, v{A+1+2*d}")
                a.e("s_nop 2")
                O_ = 56 if nd == 4 else 60
                for d in range(nd): a.e(f"v_cvt_pk_bf16_f32 v{O_+d}, v{A+2*d}, v{A+1+2*d}")
                if nd == 4:
                    E(f"buffer_store_dwordx2 {v(56,2)}, v9, s[16:19], s{sT1} offen"); E(f"buffer_store_dwordx2 {v(58,2)}, v9, s[16:19], s{sT1} offen offset:32")
                else:
                    E(f"buffer_store_dwordx2 {v(60,2)}, v9, s[16:19], s{sT2} offen")
        a.e("s_mov_b32 s44, 0x00003f80"); a.e("s_mov_b32 s45, 0x3f800000")
        la = a.uid(f"{self.name}_ea"); lb = a.uid(f"{self.name}_eb")
        for grp in pstores(1):
            for x, t in grp: E(x, t)
        wait("pp")
        a.e(f"v_cmp_ne_u32 vcc, s{self.sNonce}, v15"); a.e(f"s_cbranch_vccnz {la}")
        save = list(self.vm)
        rloads(0)
        wait(("p", 1)); flag(1)
        rsum(0)
        a.e(f"s_branch {lb}")
        a.label(la)
        self.vm = save
        wait(("p", 1)); flag(1)
        self.spin(ppoll(0)); rloads(0); rsum(0)
        a.label(lb)
        if gst: gst(10)
        self.spin(ppoll(1))
        if gst: gst(11)
        self.vm = []
        rloads(1); rsum(1)
```

```python
import re

def v(a, n=1):
    return f"v{a}" if n == 1 else f"v[{a}:{a+n-1}]"
def s(a, n=1):
    return f"s{a}" if n == 1 else f"s[{a}:{a+n-1}]"

class Asm:
    def __init__(self):
        self.lines = []
        self._uid = 0
    def e(self, txt):
        for l in txt.strip("\n").split("\n"):
            l = l.strip()
            if l:
                self.lines.append("    " + l)
    def c(self, txt):
        self.lines.append("    ; " + txt)
    def label(self, name):
        self.lines.append(name + ":")
    def raw(self, txt):
        self.lines.append(txt)
    def uid(self, p="L"):
        self._uid += 1
        return f"{p}_{self._uid}"
    def text(self):
        return "\n".join(self.lines) + "\n"

def srd(a, d, base_lo, nbytes):
    a.e(f"s_mov_b32 s{d}, s{base_lo}")
    a.e(f"s_and_b32 s{d+1}, s{base_lo+1}, 0xffff")
    a.e(f"s_mov_b32 s{d+2}, {nbytes}")
    a.e(f"s_mov_b32 s{d+3}, 0x20000")

def kernel_begin(a, name):
    a.raw(".text")
    a.raw(f".globl {name}")
    a.raw(".p2align 8")
    a.raw(f".type {name},@function")
    a.label(name)

def kernel_desc(a, name, vgpr, sgpr=102):
    acc = (vgpr + 3) // 4 * 4
    a.raw('.section .rodata,"a"')
    a.raw(".p2align 6")
    a.raw(f".amdhsa_kernel {name}")
    a.raw(f"  .amdhsa_next_free_vgpr {vgpr}")
    a.raw(f"  .amdhsa_next_free_sgpr {sgpr}")
    a.raw(f"  .amdhsa_accum_offset {acc}")
    a.raw("  .amdhsa_group_segment_fixed_size 0")
    a.raw("  .amdhsa_kernarg_size 120")
    a.raw("  .amdhsa_user_sgpr_count 2")
    a.raw("  .amdhsa_user_sgpr_kernarg_segment_ptr 1")
    a.raw("  .amdhsa_system_sgpr_workgroup_id_x 1")
    a.raw(".end_amdhsa_kernel")

_REG = re.compile(r"^(-|abs\()?\|?([vsa])(\d+|\[(\d+):(\d+)\])\)?\|?$")
def regs_of(tok):
    tok = tok.strip()
    if tok in ("vcc", "vcc_lo", "vcc_hi"):
        return {("s", 106), ("s", 107)} if tok == "vcc" else {("s", 106 if tok == "vcc_lo" else 107)}
    if tok in ("exec", "exec_lo", "exec_hi"):
        return {("s", 126), ("s", 127)}
    if tok == "m0":
        return {("s", 124)}
    m = _REG.match(tok)
    if not m:
        return set()
    k = m.group(2)
    if m.group(4) is not None:
        return {(k, i) for i in range(int(m.group(4)), int(m.group(5)) + 1)}
    return {(k, int(m.group(3)))}

TRANS = ("v_exp_f32", "v_log_f32", "v_rcp_f32", "v_rsq_f32", "v_sqrt_f32", "v_sin_f32", "v_cos_f32", "v_rcp_iflag_f32")

class I:
    pass

def parse(line):
    t = line.split(";")[0].strip()
    if not t or t.startswith("."):
        return None
    ins = I()
    ins.text = t
    if t.endswith(":"):
        ins.kind = "label"; ins.name = t[:-1]
        return ins
    parts = t.split(None, 1)
    mn = parts[0]
    ops = []
    if len(parts) > 1:
        cur = ""; depth = 0
        for ch in parts[1]:
            if ch == "[": depth += 1
            if ch == "]": depth -= 1
            if ch == "," and depth == 0:
                ops.append(cur.strip()); cur = ""
            else:
                cur += ch
        ops.append(cur.strip())
    mods = []
    if ops:
        sp = ops[-1].split()
        if len(sp) > 1 and not ops[-1].startswith("vmcnt") and not ops[-1].startswith("lgkmcnt"):
            ops[-1] = sp[0]; mods = sp[1:]
    base = mn.replace("_e32", "").replace("_e64", "")
    ins.mn = base; ins.ops = ops; ins.mods = mods
    ins.w = set(); ins.r = set()
    ins.ws = 1
    R = [regs_of(o) for o in ops]
    if base == "s_nop":
        ins.kind = "nop"; ins.ws = int(ops[0], 0) + 1
    elif base.startswith("v_mfma"):
        ins.kind = "mfma"
        ins.w = R[0]; ins.A = R[1]; ins.B = R[2]; ins.C = R[3]
        ins.r = R[1] | R[2] | R[3]
        ins.passes = 8 if "32x32" in base else 4
    elif base.startswith("v_"):
        ins.kind = "valu"
        if base.startswith("v_cmp"):
            ins.w = R[0]; ins.r = set().union(*R[1:])
            if base.startswith("v_cmpx"): ins.w |= regs_of("exec")
        elif base in ("v_readfirstlane_b32", "v_readlane_b32"):
            ins.w = R[0]; ins.r = set().union(*R[1:])
        elif base.startswith("v_permlane32_swap") or base.startswith("v_permlane16_swap") or base.startswith("v_swap"):
            ins.w = R[0] | R[1]; ins.r = R[0] | R[1]
        elif base in ("v_add_co_u32", "v_sub_co_u32", "v_addc_co_u32", "v_subb_co_u32", "v_mad_u64_u32"):
            ins.w = R[0] | R[1]; ins.r = set().union(*R[2:])
        else:
            ins.w = R[0]; ins.r = set().union(*R[1:]) if len(R) > 1 else set()
            if base.startswith("v_fmac") or base.startswith("v_dot2c") or base == "v_writelane_b32":
                ins.r |= R[0]
            if base == "v_cndmask_b32" and len(ops) == 3:
                ins.r |= regs_of("vcc")
        ins.trans = base in TRANS
        ins.dpp = any(m.startswith("row_") or m.startswith("quad_perm") or m.startswith("wave_") for m in mods)
    elif base.startswith("ds_"):
        ins.kind = "ds"
        if base.startswith("ds_read") or base.startswith("ds_bpermute") or base.startswith("ds_permute") or base.startswith("ds_swizzle") or "_rtn" in base:
            ins.w = R[0]; ins.r = set().union(*R[1:])
        else:
            ins.r = set().union(*R)
    elif base.startswith("buffer_") or base.startswith("global_"):
        ins.kind = "vmem"
        ins.lds = "lds" in mods or "_lds_" in base
        if "_load" in base and not ins.lds:
            ins.w = R[0]; ins.r = set().union(*R[1:])
        elif base in ("buffer_inv", "buffer_wbl2"):
            pass
        else:
            ins.r = set().union(*R) if R else set()
        ins.wide_store = ("_store_dwordx4" in base or "_store_dwordx3" in base)
        if ins.wide_store:
            ins.data = R[0] if base.startswith("buffer_") else R[1]
        if ins.lds: ins.r |= regs_of("m0")
    elif base in ("s_branch",) or base.startswith("s_cbranch"):
        ins.kind = "branch"; ins.target = ops[0]; ins.uncond = base == "s_branch"
    elif base == "s_endpgm":
        ins.kind = "end"
    elif base.startswith("s_"):
        ins.kind = "salu"
        if base.startswith("s_cmp") or base in ("s_waitcnt", "s_barrier", "s_setprio", "s_sleep"):
            ins.r = set().union(*R) if R else set()
        else:
            ins.w = R[0] if R else set(); ins.r = set().union(*R[1:]) if len(R) > 1 else set()
    else:
        raise ValueError("unknown instr: " + t)
    return ins

def lint(text, verbose=True):
    ins = [x for x in (parse(l) for l in text.split("\n")) if x is not None]
    labels = {x.name: i for i, x in enumerate(ins) if x.kind == "label"}
    problems = []
    def succ(i):
        x = ins[i]
        if x.kind == "end": return []
        if x.kind == "branch":
            t = [labels[x.target]] if x.target in labels else []
            return t if x.uncond else t + [i + 1]
        return [i + 1] if i + 1 < len(ins) else []
    def vs(S): return {r for r in S if r[0] in "va"}
    def ss(S): return {r for r in S if r[0] == "s"}
    def need(p, c):
        n = 0
        if p.kind == "valu":
            pw = vs(p.w); sw = ss(p.w)
            if c.kind == "mfma" and pw & c.r: n = max(n, 2)
            if c.kind == "valu":
                if (c.mn.startswith("v_permlane") or c.dpp) and pw & c.r: n = max(n, 2)
                if c.mn in ("v_readfirstlane_b32", "v_readlane_b32") and pw & c.r: n = max(n, 1)
                if p.trans and not c.trans and pw & c.r: n = max(n, 1)
                if sw & c.r: n = max(n, 4 if c.mn in ("v_readlane_b32", "v_writelane_b32") else 2)
                if regs_of("exec") & sw and c.dpp: n = max(n, 5)
                if regs_of("exec") & sw and (c.mn.startswith("v_permlane") or c.mn.startswith("v_read")): n = max(n, 4)
            if c.kind == "mfma" and regs_of("exec") & sw: n = max(n, 4)
            if c.kind == "vmem" and sw & c.r: n = max(n, 5)
        if p.kind == "mfma":
            big = 12 if p.passes == 8 else 8
            if c.kind == "mfma":
                if p.w & (c.A | c.B): n = max(n, big)
                if p.w & c.C and not (p.w == c.C and p.passes == c.passes): n = max(n, big - 2)
                if p.w & c.w and not (p.w & c.C): n = max(n, big)
            if c.kind in ("valu", "vmem", "ds") and p.w & (c.r | c.w): n = max(n, big)
            if c.kind == "valu" and p.C & c.w: n = max(n, 7 if p.passes == 8 else 3)
        if p.kind == "salu" and regs_of("m0") & p.w and c.kind == "vmem" and c.lds: n = max(n, 1)
        if p.kind == "vmem" and getattr(p, "wide_store", False):
            if c.kind == "valu" and p.data & c.w: n = max(n, 2)
            elif c.kind in ("ds", "vmem", "mfma") and p.data & c.w: n = max(n, 1)
        return n
    for i, p in enumerate(ins):
        if p.kind in ("label", "nop", "branch", "end"): continue
        if p.kind == "salu" and not (regs_of("m0") & p.w): continue
        if p.kind == "ds": continue
        if p.kind == "vmem" and not getattr(p, "wide_store", False): continue
        stack = [(j, 0) for j in succ(i)]
        seen = set()
        while stack:
            j, d = stack.pop()
            if (j, d) in seen or d >= 12: continue
            seen.add((j, d))
            c = ins[j]
            if c.kind == "label":
                for k in succ(j): stack.append((k, d))
                continue
            if c.kind not in ("nop", "branch", "end"):
                n = need(p, c)
                if n > d:
                    problems.append(f"hazard: need {n} have {d}: [{i}] {p.text}  ->  [{j}] {c.text}")
            for k in succ(j): stack.append((k, d + c.ws))
    problems = sorted(set(problems))
    if verbose:
        for p in problems[:50]: print(p)
        print(f"lint: {len(ins)} instrs, {len(problems)} hazards")
    return problems


STAMP_BASE = 64
WS_STAMP = 128 << 20
class Stamps:
    def __init__(self, a, on, kidx=0, base=64):
        self.a = a; self.on = on; self.n = 0; self.kidx = kidx; self.base = base
    def stamp(self, real=False):
        if not self.on: return
        r = self.base + 2 * self.n; self.n += 1
        self.a.e(f"{'s_memrealtime' if real else 's_memtime'} s[{r}:{r+1}]")
    def at(self, i, real=False):
        if not self.on: return
        import os
        if os.environ.get("ALLREAL"): real = True
        r = self.base + 2 * i; self.n = max(self.n, i + 1)
        self.a.e(f"{'s_memrealtime' if real else 's_memtime'} s[{r}:{r+1}]")
    def dump_dbg(self, sNonce, idxs):
        a = self.a
        a.e("s_load_dwordx2 s[8:9], s[0:1], 104")
        a.e("s_waitcnt lgkmcnt(0) vmcnt(0)")
        a.e("s_and_b32 s9, s9, 0xffff"); a.e("s_mov_b32 s10, 256"); a.e("s_mov_b32 s11, 0x20000")
        a.e("v_mov_b32 v0, 0"); a.e("s_mov_b64 exec, 1")
        for n, i in enumerate(idxs):
            a.e(f"s_sub_u32 s12, s{self.base + 2*i}, s{sNonce}"); a.e("s_add_u32 s12, s12, 100")
            a.e("v_mov_b32 v1, s12")
            a.e(f"buffer_atomic_umax v1, v0, s[8:11], 0 offen offset:{4*(n+1)} sc1")
            a.e("s_cmp_eq_u32 s2, 100"); a.e("s_cselect_b32 s13, 0, 0x7ff00000")
            a.e(f"buffer_store_dword v1, v0, s[8:11], s13 offen offset:{4*(n+1+len(idxs))} sc1")
        a.e("s_waitcnt vmcnt(0)")
    def dump(self, ws_lo, swave, nmax=16):
        if not self.on: return
        a = self.a
        a.e("s_waitcnt lgkmcnt(0) vmcnt(0)")
        a.e(f"s_add_u32 s8, s{ws_lo}, {WS_STAMP + self.kidx * (1 << 20)}")
        a.e(f"s_addc_u32 s9, s{ws_lo+1}, 0")
        a.e("s_and_b32 s9, s9, 0xffff")
        a.e("s_mov_b32 s10, 1048576")
        a.e("s_mov_b32 s11, 0x20000")
        a.e("s_lshl_b32 s12, s2, 3")
        a.e(f"s_add_u32 s12, s12, s{swave}")
        a.e("s_lshl_b32 s12, s12, 6")
        a.e("v_mov_b32 v0, 0")
        for i in range(self.n):
            a.e(f"v_mov_b32 v1, s{self.base + 2*i}")
            a.e(f"buffer_store_dword v1, v0, s[8:11], s12 offen offset:{4*i}")
        a.e("s_waitcnt vmcnt(0)")
```

```python
from asmlib import *
import ko
from k1 import MF, WS_KV, WS_CTX, WS_WOF, WS_KVB, WS_QB, wg_decode, act_dma_offsets, w_dma_offsets, act_read_addr, w_read_addr

QSCALE = 0x3e0293ee
NEG = 0xf149f2ca
LTHR = 0x4e800000
OOB = 0x7ff00000
WS_FLAG = 64 << 20

def gen_ka(a, name="ka_kernel", diag=False, X=(), code_end=None):
    kernel_begin(a, name)
    code_end = f"{name}_code_end"
    st = Stamps(a, diag, 0, 76)
    _at = st.at
    pst = (lambda i: (_at(i), a.e("s_waitcnt lgkmcnt(0)"))) if "prost" in X else (lambda i: None)
    if "qst" in X or "phst" in X or "phst2" in X: st.at = lambda i, real=False: _at(i, real) if (i < 2 or i == 12) else None
    if "gst" in X: st.at = lambda i, real=False: _at(i, real) if (i < 3 or i == 12) else None
    if "g2" in X: st.at = lambda i, real=False: _at(i, real) if (i in (0, 1, 2, 3, 4, 10, 11, 12)) else None
    if "prost" in X: st.at = lambda i, real=False: _at(i, real) if (i < 4 or i == 12) else None
    if "kvst" in X:
        _at = st.at
        st.at = lambda i, real=False: _at(i, real) if (i < 4 or i == 12) else None
    _e = a.e
    def e2(x):
        if x.endswith(":"): a.label(x[:-1])
        else: _e(x)
    a.e = e2
    S_C, S_W, S_KV, S_X, S_WQ, S_CT = 8, 12, 16, 20, 24, 28
    sW, sH, sP, sG, sWL = 32, 33, 34, 35, 36
    sT0, sT1, sT2 = 37, 38, 39
    sIT, sKC, sKW, sM0C, sM0W = 40, 41, 42, 43, 44
    sRole, sA, sB = 45, 46, 47
    S_S = 48
    S_DBG = 72
    sI, sN, sKoff, sVoff, sKt, sVt, sM0K, sM0V = 40, 41, 42, 43, 44, 45, 46, 47
    sTA, sJump, sSeg, sR, sTH, sTile, sKX, sKWq = 48, 49, 50, 51, 52, 53, 54, 55
    sQD = 55; sHalf = 54
    sMSK = 56
    vL = 1; vL16 = 2; vDUM = 3
    vDC = 4; vDW = 8; vRC = 12; vRW = 14; vST = 18; vT = 19
    vDX = 28; vDWq = 124
    CF = 32; WA, WB = 48, 64; ACC = 128
    XS = [0, 131072, 65536]; WSL = [32768, 49152, 98304]
    VRING = 65536; QTMP = 98304; QSTASH = 131072

    a.e("s_cmp_ge_u32 s2, 256")
    a.e(f"s_cbranch_scc1 {name}_end")
    st.at(0); st.at(1, True)
    a.e("s_load_dwordx8 s[60:67], s[0:1], 48")
    a.e("s_load_dwordx2 s[68:69], s[0:1], 80")
    a.e("s_memrealtime s[70:71]")
    a.e("s_load_dwordx4 s[4:7], s[0:1], 104")
    a.e(f"v_lshrrev_b32 v{vT}, 6, v0")
    a.e(f"v_and_b32 v{vL}, 63, v0")
    a.e(f"v_readfirstlane_b32 s{sW}, v{vT}")
    a.e(f"v_lshlrev_b32 v{vL16}, 4, v{vL}")
    wg_decode(a, sH, sP, sT0, sT1)
    a.e(f"s_lshr_b32 s{sG}, s{sW}, 2")
    a.e(f"s_and_b32 s{sWL}, s{sW}, 3")
    a.e(f"s_lshl_b32 s{sT0}, s{sP}, 8")
    a.e(f"s_lshl_b32 s{sT1}, s{sW}, 5")
    a.e(f"s_add_u32 s{sT0}, s{sT0}, s{sT1}")
    act_dma_offsets(a, vDC, vL, vT, sT0, 1024)
    a.e(f"s_lshl_b32 s{sT0}, s{sWL}, 4")
    a.e(f"s_lshl_b32 s{sT1}, s{sH}, 8")
    w_dma_offsets(a, vDW, vL, vT, sT0, sT1, [(0, 0), (1, 0), (2, 1), (3, 1)])
    a.e(f"s_lshl_b32 s{sM0C}, s{sW}, 12")
    a.e(f"s_add_u32 s{sM0W}, s{sM0C}, 32768")
    a.e(f"s_mov_b32 s{sKC}, 0")
    a.e(f"s_mov_b32 s{sKW}, 0")
    pst(4)
    a.e("s_waitcnt lgkmcnt(0)")
    pst(5)
    srd(a, S_C, 62, 2048 * 1024)
    a.e(f"s_cmp_lt_u32 s{sW}, 4")
    a.e("s_cselect_b32 s46, s66, s68")
    a.e("s_cselect_b32 s47, s67, s69")
    srd(a, S_W, 46, 512 * 8192)
    S_W2 = 28
    dma_c = lambda i, so=sKC: f"buffer_load_dwordx4 v{vDC+i}, s[{S_C}:{S_C+3}], s{so} offen offset:{i*1024} lds"
    dma_w = lambda i, S=S_W: f"buffer_load_dwordx4 v{vDW+i}, s[{S}:{S+3}], s{sKW} offen offset:{i*1024} lds"
    dma_adv = [f"s_add_u32 s{sKC}, s{sKC}, 128", f"s_add_u32 s{sKW}, s{sKW}, {64*8192}",
               f"s_xor_b32 s{sM0C}, s{sM0C}, 0x10000", f"s_xor_b32 s{sM0W}, s{sM0W}, 0x10000"]
    a.e(f"s_mov_b32 m0, s{sM0C}"); a.e("s_nop 0")
    for i in range(4): a.e(dma_c(i))
    a.e(f"s_mov_b32 m0, s{sM0W}"); a.e("s_nop 0")
    for i in range(4): a.e(dma_w(i))
    for x in dma_adv: a.e(x)
    pst(6)
    a.e(f"s_add_u32 s{S_KV}, s6, {WS_KV}"); a.e(f"s_addc_u32 s{S_KV+1}, s7, 0")
    srd(a, S_KV, S_KV, 32 << 20)
    srd(a, S_X, 60, 2048 * 1152)
    srd(a, S_WQ, 64, 576 * 8192)
    srd(a, S_W2, 68, 512 * 8192)
    srd(a, 72, 4, 256)
    a.e("s_barrier")
    pst(7)
    a.e(f"s_mov_b32 m0, s{sM0C}"); a.e("s_nop 0")
    for i in range(4): a.e(dma_c(i))
    a.e(f"s_mov_b32 m0, s{sM0W}"); a.e("s_nop 0")
    for i in range(4): a.e(dma_w(i))
    for x in dma_adv: a.e(x)
    sGW = 3
    PX, PC, PWQ, PWK, PWV = 60, 62, 64, 66, 68
    def touch(parts, R=46, skip=True):
        base = 0; RS = R + 2
        a.e(f"s_mov_b32 s{R}, s6"); a.e(f"s_mov_b32 s{R+1}, s7"); a.e(f"s_mov_b32 s{sT0}, {200 << 20}"); a.e(f"s_mov_b32 s{RS}, 1024")
        for (lo, start, n, wt) in parts:
            a.e(f"s_sub_u32 s{sT1}, s{sGW}, {base}"); a.e(f"s_lshl_b32 s{sT2}, s{sT1}, {16 if wt == 1 else 13}")
            if start: a.e(f"s_add_u32 s{sT2}, s{sT2}, {start}")
            if wt == 1: a.e(f"s_add_u32 s{sT2}, s{sT2}, s59")
            if wt >= 2:
                a.e(f"s_mul_i32 s58, s59, {8 * n}"); a.e(f"s_add_u32 s{sT2}, s{sT2}, s58")
            a.e(f"s_cmp_lt_u32 s{sT1}, {n}")
            a.e(f"s_cselect_b32 s{sT0}, s{sT2}, s{sT0}"); a.e(f"s_cselect_b32 s{R}, s{lo}, s{R}"); a.e(f"s_cselect_b32 s{R+1}, s{lo+1}, s{R+1}")
            if wt == 1: a.e(f"s_cselect_b32 s{RS}, 8192, s{RS}")
            base += n
        ls = a.uid(f"{name}_tsk")
        if skip: a.e(f"s_cmp_eq_u32 s{sT0}, {200 << 20}"); a.e(f"s_cbranch_scc1 {ls}")
        a.e(f"s_add_u32 s{R}, s{R}, s{sT0}"); a.e(f"s_addc_u32 s{R+1}, s{R+1}, 0")
        a.e(f"v_lshrrev_b32 v{vT}, 3, v{vL}"); a.e(f"v_and_b32 v{vT+1}, 7, v{vL}"); a.e(f"v_lshlrev_b32 v{vT+1}, 7, v{vT+1}")
        a.e(f"v_mad_u32_u24 v{vT}, v{vT}, s{RS}, v{vT+1}"); a.e(f"global_load_dword v{vDUM}, v{vT}, s[{R}:{R+1}]")
        a.e(ls + ":")
    WW = lambda r0, n: [(PWK, r0*8192, n // 8, 1), (PWV, r0*8192, n // 8, 1)]
    a.e(f"s_cmp_lt_u32 s{sW}, 4"); a.e(f"s_cbranch_scc1 {name}_nop0")
    a.e(f"s_lshr_b32 s{sGW}, s2, 3"); a.e(f"s_lshl_b32 s{sT0}, s{sWL}, 5"); a.e(f"s_add_u32 s{sGW}, s{sGW}, s{sT0}")
    a.e("s_and_b32 s59, s2, 7"); a.e("s_lshl_b32 s59, s59, 10")
    touch([(PC, 0, 32, 2)] + WW(64, 128), skip=False)
    a.e("s_getpc_b64 s[28:29]")
    a.e(f"{name}_pc:")
    a.e(f"s_sub_u32 s28, s28, {name}_pc - {name}"); a.e("s_subb_u32 s29, s29, 0")
    a.e("s_and_b32 s29, s29, 0xffff"); a.e(f"s_mov_b32 s30, {code_end} - {name}"); a.e("s_mov_b32 s31, 0x20000")
    a.e(f"s_sub_u32 s{sT0}, s{sGW}, 88"); a.e(f"s_lshl_b32 s{sT0}, s{sT0}, 13"); a.e(f"s_min_u32 s{sT0}, s{sT0}, {OOB}")
    a.e(f"v_lshlrev_b32 v{vT}, 7, v{vL}")
    a.e(f"buffer_load_dword v{vDUM}, v{vT}, s[28:31], s{sT0} offen")
    a.e("s_or_b32 s70, s70, 1")
    a.e("v_mov_b32 v126, s70"); a.e("v_mov_b32 v127, 0"); a.e(f"v_mov_b32 v{vT}, 0")
    a.e(f"s_cmp_eq_u32 s{sW}, 7"); a.e(f"s_cselect_b32 s{sT0}, 0, {OOB}")
    a.e("s_mov_b64 exec, 1")
    a.e(f"buffer_atomic_cmpswap v[126:127], v{vT}, s[72:75], s{sT0} offen sc0 sc1")
    a.e("s_mov_b64 exec, -1")
    a.label(f"{name}_nop0")
    pst(8)
    a.e(f"s_and_b32 s{sT0}, s{sW}, 1"); a.e(f"s_lshl_b32 s{sT0}, s{sT0}, 14")
    act_read_addr(a, vRC, vL, vT, sT0)
    a.e(f"s_lshl_b32 s{sT0}, s{sG}, 14"); a.e(f"s_add_u32 s{sT0}, s{sT0}, 32768")
    a.e(f"s_and_b32 s{sT1}, s{sW}, 2"); a.e(f"s_lshl_b32 s{sT1}, s{sT1}, 1")
    w_read_addr(a, vRW, vL, vT, sT0, sT1, sT2)
    a.e(f"s_lshl_b32 s{sT0}, s{sH}, 20"); a.e(f"s_lshl_b32 s{sT1}, s{sP}, 17"); a.e(f"s_add_u32 s{sT0}, s{sT0}, s{sT1}")
    a.e(f"s_and_b32 s{sT1}, s{sW}, 1"); a.e(f"s_lshl_b32 s{sT1}, s{sT1}, 16"); a.e(f"s_add_u32 s{sT0}, s{sT0}, s{sT1}")
    a.e(f"v_add_u32 v{vST}, s{sT0}, v{vL16}")
    a.e(f"s_sub_u32 s{sT0}, 15, s{sP}"); a.e(f"s_cmp_eq_u32 s{sG}, 0"); a.e(f"s_cselect_b32 s{sT0}, s{sT0}, s{sP}")
    a.e(f"s_lshl_b32 s{sT0}, s{sT0}, 7"); a.e(f"s_lshl_b32 s{sT1}, s{sWL}, 5"); a.e(f"s_add_u32 s{sT0}, s{sT0}, s{sT1}")
    act_dma_offsets(a, vDX, vL, vT, sT0, 1152)
    a.e(f"v_lshrrev_b32 v{vT+2}, 4, v{vL}"); a.e(f"s_lshl_b32 s{sT0}, s{sW}, 3"); a.e(f"v_add_u32 v{vT}, s{sT0}, v{vT+2}")
    a.e(f"v_lshlrev_b32 v{vT}, 13, v{vT}"); a.e(f"s_lshl_b32 s{sT1}, s{sH}, 8"); a.e(f"v_add_u32 v{vT}, s{sT1}, v{vT}")
    a.e(f"v_and_b32 v{vT+1}, 15, v{vL}"); a.e(f"v_lshlrev_b32 v{vT+3}, 1, v{vT+2}"); a.e(f"v_xor_b32 v{vT+1}, v{vT+1}, v{vT+3}")
    a.e(f"s_and_b32 s{sT0}, s{sW}, 1"); a.e(f"s_lshl_b32 s{sT0}, s{sT0}, 3"); a.e(f"v_xor_b32 v{vT+1}, s{sT0}, v{vT+1}")
    a.e(f"v_lshl_add_u32 v{vDWq}, v{vT+1}, 4, v{vT}"); a.e(f"v_add_u32 v{vDWq+1}, {4*8192-1024}, v{vDWq}")
    pst(9)
    for i in range(128): a.e(f"v_mov_b32 v{ACC+i}, 0")
    pst(10)

    def rd_w(W, ks2):
        r = []
        for d in range(4):
            r.append(f"ds_read_b64_tr_b16 {v(W+4*d,2)}, v{vRW+d} offset:{ks2*8192}")
            r.append(f"ds_read_b64_tr_b16 {v(W+4*d+2,2)}, v{vRW+d} offset:{ks2*8192+1024}")
        return r
    rd_c = lambda t, ks2: f"ds_read_b128 {v(CF+4*(t%4),4)}, v{vRC+ks2} offset:{t*2048}"
    def mf(W, t, d, isK):
        acc = v(ACC + (t*4+d)*4, 4); cf = v(CF+4*(t%4), 4); wf = v(W+4*d, 4)
        return f"{MF} {acc}, {wf}, {cf}, {acc}" if isK else f"{MF} {acc}, {cf}, {wf}, {acc}"
    def qdma(stage):
        sl = stage % 3
        r = [f"s_lshl_b32 s{sT0}, s{sW}, 12", f"s_add_u32 m0, s{sT0}, {XS[sl]}", f"s_mov_b32 s{sT1}, {stage*128}"]
        r += [f"buffer_load_dwordx4 v{vDX+i}, s[{S_X}:{S_X+3}], s{sT1} offen offset:{i*1024} lds" for i in range(4)]
        r += [f"s_lshl_b32 s{sT0}, s{sW}, 11", f"s_add_u32 m0, s{sT0}, {WSL[sl]}", f"s_mov_b32 s{sT1}, {stage*64*8192}"]
        r += [f"buffer_load_dwordx4 v{vDWq+i}, s[{S_WQ}:{S_WQ+3}], s{sT1} offen offset:{i*1024} lds" for i in range(2)]
        return r

    ool = []
    def rot():
        a.e(f"s_add_u32 s{sT0}, s{sGW}, 8"); a.e(f"s_and_b32 s{sT0}, s{sT0}, 31"); a.e(f"s_andn2_b32 s{sGW}, s{sGW}, 31"); a.e(f"s_or_b32 s{sGW}, s{sGW}, s{sT0}")
    SCH = {0: [lambda: touch(WW(192, 128), skip=False)], 1: [lambda: touch(WW(320, 128))], 2: [rot, lambda: touch(WW(448, 64) + [(PX, 0, 36, 2)])],
           3: [rot, rot, lambda: touch([(PWQ, 0, 36, 1)])], 4: [rot, lambda: touch([(PWQ, 288*8192, 36, 1)])]}
    if "xl2" in X:
        SCH[5] = [lambda: touch([(PX, 0, 128, 0)])]; SCH[6] = [lambda: touch([(PX, 128*8192, 128, 0)]), lambda: touch([(PX, 256*8192, 32, 0)])]
    a.e(f"s_cmp_lt_u32 s{sW}, 4"); a.e(f"s_cbranch_scc0 {name}_w3"); a.e("s_waitcnt vmcnt(8)"); a.label(f"{name}_w3")
    NPF = 11
    a.e(f"s_waitcnt vmcnt({NPF})")
    a.e("s_barrier")
    for x in rd_w(WA, 0): a.e(x)
    for t in range(3): a.e(rd_c(t, 0))
    a.e(f"s_mov_b32 s{sIT}, 0")
    a.e(f"s_cmp_lt_u32 s{sW}, 4")
    a.e(f"s_cbranch_scc0 {name}_vfirst")
    def kv_iter(isK, last, tag, first=False):
        wn = rd_w(WB, 1)
        per = {}
        if last:
            dm = qdma(0) + qdma(1)
            for t in range(8): per[t] = dm[len(dm)*t//8: len(dm)*(t+1)//8]
        elif isK and not first:
            dm = ([f"s_mov_b32 m0, s{sM0C}", f"s_add_u32 s45, s{sKC}, 131072"] + [dma_c(i) for i in range(4)] + [f"s_mov_b32 m0, s{sM0W}", "s_nop 0"] + [dma_w(i) for i in range(4)]
                  + [f"s_add_u32 m0, s{sM0C}, 16384", "s_nop 0"] + [dma_c(i, 45) for i in range(4)] + [f"s_add_u32 m0, s{sM0W}, 16384", "s_nop 0"] + [dma_w(i, S_W2) for i in range(4)] + dma_adv)
            ND = 8
            for t in range(ND): per[t] = dm[len(dm)*t//ND: len(dm)*(t+1)//ND]
        for t in range(8):
            a.e(f"s_waitcnt lgkmcnt({[2,4,6,6,6,4,2,2][t]})")
            ms = [mf(WA, t, d, isK) for d in range(4)]
            nt = t + 3
            a.e(ms[0])
            if t < 4: a.e(wn[2*t])
            a.e(ms[1])
            for x in per.get(t, []): a.e(x)
            a.e(ms[2])
            if t < 4: a.e(wn[2*t+1])
            a.e(ms[3])
            a.e(rd_c(nt % 8, 0 if nt < 8 else 1))
        for t in range(6):
            a.e("s_waitcnt lgkmcnt(2)")
            ms = [mf(WB, t, d, isK) for d in range(4)]
            a.e(ms[0]); a.e(ms[1])
            for x in per.get(8 + t, []): a.e(x)
            a.e(ms[2]); a.e(ms[3])
            if t < 5: a.e(rd_c(t + 3, 1))
            if not last and not isK and t == 0:
                r = a.uid(f"{name}_r")
                for itv, fns in SCH.items():
                    if (itv == 0) != first: continue
                    h = a.uid(f"{name}_h")
                    def hook(fns=fns, r=r):
                        for fn in fns: fn()
                        a.e(f"s_branch {r}")
                    ool.append((h, hook))
                    a.e(f"s_cmp_eq_u32 s{sIT}, {itv}"); a.e(f"s_cbranch_scc1 {h}")
                a.e(f"{r}:")
        a.e("s_waitcnt lgkmcnt(0)" + (" vmcnt(6)" if last else (" vmcnt(0)" if isK else (" vmcnt(4)" if first else ""))))
        a.e("s_barrier")
        if not last:
            for r in [vRC, vRC+1, vRW, vRW+1, vRW+2, vRW+3]: a.e(f"v_xor_b32 v{r}, 0x10000, v{r}")
            wn = rd_w(WA, 0)
            for d in range(4):
                a.e(mf(WB, 6, d, isK)); a.e(wn[2*d]); a.e(wn[2*d+1])
            a.e(rd_c(0, 0)); a.e(rd_c(1, 0))
            for d in range(4): a.e(mf(WB, 7, d, isK))
            a.e(rd_c(2, 0))
        else:
            dm = qdma(2)
            ms = [mf(WB, 6 + (n >> 2), n & 3, isK) for n in range(8)]
            for n in range(8):
                a.e(ms[n])
                for x in dm[len(dm)*n//8: len(dm)*(n+1)//8]: a.e(x)
    SC1 = " sc1" if "plain" not in X else ""
    sSB = 66; sNonce = 69; S_FL = 72
    PKR = lambda n: (32 + 4 * n) if n < 8 else (160 + 4 * (n - 8))
    def kv_store(n):
        if "nost" in X: return [f"buffer_load_dword v{vDUM}, v{vL16}, s[{S_KV}:{S_KV+3}], 0 offen"]
        if "stnt" in X: return [f"s_add_u32 s68, s{sSB + ((n >> 1) & 1)}, {((n >> 2) & 1) * 8192 + (n >> 3) * 32768}",
                f"buffer_store_dwordx4 {v(PKR(n),4)}, v{vST}, s[{S_KV}:{S_KV+3}], s68 offen offset:{(n & 1) * 1024} sc1 nt"]
        return [f"s_add_u32 s68, s{sSB + ((n >> 1) & 1)}, {((n >> 2) & 1) * 8192 + (n >> 3) * 32768}",
                f"buffer_store_dwordx4 {v(PKR(n),4)}, v{vST}, s[{S_KV}:{S_KV+3}], s68 offen offset:{(n & 1) * 1024}{SC1}"]
    for isK in (True, False):
        tag = "k" if isK else "v"
        a.label(f"{name}_{tag}first")
        if isK and "kprio" in X: a.e("s_setprio 1")
        kv_iter(isK, False, tag, True)
        if "kvst" in X: _at(4); a.e("s_waitcnt lgkmcnt(0)")
        a.e(f"s_mov_b32 s{sIT}, 1")
        a.label(f"{name}_{tag}loop")
        kv_iter(isK, False, tag)
        if "kvst" in X:
            for i in range(7):
                l_ = a.uid("kvst"); a.e(f"s_cmp_lg_u32 s{sIT}, {i}"); a.e(f"s_cbranch_scc1 {l_}"); _at(4 + i); a.e("s_waitcnt lgkmcnt(0)"); a.e(l_ + ":")
        a.e(f"s_add_u32 s{sIT}, s{sIT}, 1"); a.e(f"s_cmp_lt_u32 s{sIT}, 7"); a.e(f"s_cbranch_scc1 {name}_{tag}loop")
        kv_iter(isK, True, tag)
        if "kvend" in X: _at(4)
        if "kvst" in X: _at(11)
        a.e(f"s_and_b32 s{sT1}, s{sW}, 2")
        if isK:
            a.e(f"s_lshl_b32 s{sSB}, s{sT1}, 10"); a.e(f"s_add_u32 s{sSB+1}, s{sSB}, 4096")
        else:
            a.e(f"s_lshl_b32 s{sSB}, s{sT1}, 11"); a.e(f"s_add_u32 s{sSB}, s{sSB}, 16384"); a.e(f"s_add_u32 s{sSB+1}, s{sSB}, 2048")
        for n in range(16):
            P = PKR(n)
            if isK:
                t = n >> 1; x = n & 1
                t0, t1 = ACC + (t*4 + 2*x)*4, ACC + (t*4 + 2*x + 1)*4
            else:
                y = n >> 2; d = n & 3
                t0, t1 = ACC + (2*y*4 + d)*4, ACC + ((2*y+1)*4 + d)*4
            a.e(f"v_cvt_pk_bf16_f32 v{P}, v{t0}, v{t0+1}"); a.e(f"v_cvt_pk_bf16_f32 v{P+1}, v{t0+2}, v{t0+3}")
            a.e(f"v_cvt_pk_bf16_f32 v{P+2}, v{t1}, v{t1+1}"); a.e(f"v_cvt_pk_bf16_f32 v{P+3}, v{t1+2}, v{t1+3}")
        if isK: a.e(f"s_branch {name}_qproj")
    a.label(f"{name}_qproj")
    if "drop5" in X:
        a.e(f"s_cmp_ge_u32 s{sP}, 5"); a.e(f"s_cselect_b32 s{sSB}, {0x70000000}, s{sSB}"); a.e(f"s_cselect_b32 s{sSB+1}, {0x70000000}, s{sSB+1}")
    a.e(f"v_mov_b32 v127, 0"); a.e("buffer_load_dword v126, v127, s[72:75], 0 offen sc1")
    if "kprio" in X: a.e("s_setprio 0")
    st.at(5)

    vRX = 12; vRWq = 14
    a.e(f"s_add_u32 s58, s6, {WS_CTX}"); a.e("s_addc_u32 s59, s7, 0")
    srd(a, S_CT, 58, 16 << 20)
    a.e(f"s_add_u32 s58, s6, {WS_FLAG}"); a.e("s_addc_u32 s59, s7, 0")
    srd(a, S_FL, 58, 65536)
    vDMA = 4; vKR = 5; vVR = 6; vTHR = 7; vNEG = 8; vPOLL = 9; vMT = 10
    vLS = 40; vM = 42; vLP = 44; vE = 46; NE = 8
    FR = 72; NB = 8
    C = 104; P = 112; S = 128; Q = 160; O = 192
    a.e(f"s_lshr_b32 s{sT0}, s{sW}, 1"); a.e(f"s_lshl_b32 s{sT0}, s{sT0}, 13")
    act_read_addr(a, vRX, vL, vT, sT0)
    a.e(f"s_mov_b32 s{sT0}, {WSL[0]}"); a.e(f"s_and_b32 s{sT1}, s{sW}, 1"); a.e(f"s_lshl_b32 s{sT1}, s{sT1}, 2")
    w_read_addr(a, vRWq, vL, vT, sT0, sT1, sT2)
    SETS = [64, 128]
    def q_reads(F, ks2):
        r = []
        for d in range(4):
            r.append(f"ds_read_b64_tr_b16 {v(F+16+4*d,2)}, v{vRWq+d} offset:{ks2*8192}")
            r.append(f"ds_read_b64_tr_b16 {v(F+16+4*d+2,2)}, v{vRWq+d} offset:{ks2*8192+1024}")
            r.append(f"ds_read_b128 {v(F+4*d,4)}, v{vRX+ks2} offset:{d*2048}")
        return r
    def q_mfmas(F, first=False):
        return [f"{MF} {v(O+(t*4+d)*4,4)}, {v(F+16+4*d,4)}, {v(F+4*t,4)}, {'0' if first else v(O+(t*4+d)*4,4)}" for t in range(4) for d in range(4)]
    def spread(ms, fill, upto):
        out = []; k = 0
        for i, m in enumerate(ms):
            out.append(m)
            tgt = min(len(fill), (len(fill) * (i + 1) + upto - 1) // upto)
            while k < tgt:
                out.append(fill[k]); k += 1
        return out
    for x in q_reads(SETS[0], 0): a.e(x)
    a.e(f"s_lshl_b32 s{sT0}, s{sWL}, 12"); a.e(f"v_add_u32 v{vDMA}, s{sT0}, v{vL16}")
    a.e(f"s_lshl_b32 s{sT1}, s{sG}, 14"); a.e(f"v_add_u32 v{vKR}, s{sT1}, v{vL16}"); a.e(f"v_add_u32 v{vVR}, {VRING}, v{vKR}")
    a.e(f"s_add_u32 s{sM0K}, s{sT0}, s{sT1}"); a.e(f"s_add_u32 s{sM0V}, s{sM0K}, {VRING}")
    a.e(f"s_lshl_b32 s{sKoff}, s{sH}, 20"); a.e(f"s_add_u32 s{sVoff}, s{sKoff}, 16384"); a.e(f"s_add_u32 s{sJump}, s{sKoff}, {17*32768}")
    a.e(f"s_mov_b32 s{sKt}, 0"); a.e(f"s_mov_b32 s{sVt}, 0")
    a.e(f"s_lshl_b32 s{sT0}, s{sP}, 1"); a.e(f"s_add_u32 s{sT0}, s{sT0}, 2"); a.e(f"s_sub_u32 s{sT1}, 15, s{sP}")
    a.e(f"s_cmp_eq_u32 s{sG}, 0")
    a.e(f"s_cselect_b32 s{sTA}, s{sT0}, 99"); a.e(f"s_cselect_b32 s{sI}, s{sT0}, 17"); a.e(f"s_cselect_b32 s{sTile}, s{sP}, s{sT1}")
    a.e(f"s_cselect_b32 s{sSeg}, 0, 1")
    a.e(f"s_cselect_b32 s{sHalf}, 1, 0")
    a.e(f"s_sub_u32 s{sI}, s{sI}, 1")
    a.e(f"s_lshl_b32 s{sR}, s{sTile}, 2"); a.e(f"s_sub_u32 s{sR}, 0, s{sR}")
    a.e(f"s_mov_b32 s{sTH}, {LTHR}"); a.e(f"v_mov_b32 v{vNEG}, {NEG}")
    a.e(f"s_lshl_b32 s{sT0}, s{sWL}, 4"); a.e(f"v_and_b32 v{vT}, 15, v{vL}")
    a.e(f"v_lshrrev_b32 v{vT+1}, 4, v{vL}"); a.e(f"v_lshlrev_b32 v{vT+1}, 2, v{vT+1}"); a.e(f"v_sub_u32 v{vT}, v{vT}, v{vT+1}")
    a.e(f"v_add_u32 v{vTHR}, s{sT0}, v{vT}"); a.e(f"s_sub_u32 s{sT0}, 112, s{sT0}"); a.e(f"v_add_u32 v0, s{sT0}, v{vT}")
    a.e(f"s_lshl_b32 s{sQD}, s{sWL}, 1"); a.e(f"s_sub_u32 s{sQD}, 7, s{sQD}")
    a.e(f"s_lshl_b32 s{sT0}, s{sH}, 10"); a.e(f"v_and_b32 v{vMT}, 7, v{vL}"); a.e(f"v_lshl_add_u32 v{vMT}, v{vMT}, 7, s{sT0}")
    def kv_dma(isK):
        off, m0 = (sKoff, sM0K) if isK else (sVoff, sM0V)
        return [f"s_mov_b32 m0, s{m0}", "s_nop 0"] + [f"buffer_load_dwordx4 v{vDMA}, s[{S_KV}:{S_KV+3}], s{off} offen offset:{i*1024}{'' if 'inv' in X else ' sc1'} lds" for i in range(4)]
    def kv_adv(isK):
        off, tt, m0 = (sKoff, sKt, sM0K) if isK else (sVoff, sVt, sM0V)
        return [f"s_xor_b32 s{m0}, s{m0}, 0x8000", f"s_add_u32 s{tt}, s{tt}, 1", f"s_add_u32 s{off}, s{off}, 32768",
                f"s_add_u32 s{sT2}, s{sJump}, {0 if isK else 16384}", f"s_cmp_eq_u32 s{tt}, s{sTA}", f"s_cselect_b32 s{off}, s{sT2}, s{off}",
                f"s_cmp_ge_u32 s{tt}, 17", f"s_cselect_b32 s{off}, {OOB}, s{off}"]
    NA = [2, 2, 2, 2] + [0] * 6; NBs = [2, 2, 2, 2] + [0] * 6
    if "st5" in X: NA = [2, 2, 2, 2, 2] + [0] * 5; NBs = [1, 1, 1, 1, 2] + [0] * 5
    if "st3" in X: NA = [3, 3, 3] + [0] * 7; NBs = [3, 2, 2] + [0] * 7
    if "stA" in X: NA = [0, 2, 2, 2, 2] + [0] * 5; NBs = [2, 2, 2, 2] + [0] * 6
    lastst = max(i for i in range(9) if NA[i] + NBs[i])
    sdone = [0]
    def add_stores(fl, n, marks):
        out = []; nm = 0; marks = list(marks[:n])
        for x in fl:
            out.append(x)
            if x.startswith("v_mfma"):
                nm += 1
                if marks and nm == marks[0]:
                    marks.pop(0); out += kv_store(sdone[0]); sdone[0] += 1
        return out
    for it in range(9):
        if "qst" in X: _at(2 + it)
        a.e("s_waitcnt lgkmcnt(0)")
        fl = add_stores(spread(q_mfmas(SETS[0], it == 0), q_reads(SETS[1], 1), 12), NA[it], [4, 12] if NA[it] < 3 else [3, 8, 13])
        for x in fl: a.e(x)
        if it < 8:
            if it == 7:
                lw = a.uid(f"{name}_nw7")
                a.e(f"s_cmp_eq_u32 s{sW}, 7"); a.e(f"s_cbranch_scc1 {lw}"); a.e("s_waitcnt vmcnt(0)"); a.e(f"{lw}:")
                a.e("s_waitcnt lgkmcnt(0) vmcnt(1)")
            else:
                a.e(f"s_waitcnt lgkmcnt(0) vmcnt({6 + NA[it] + (NA[it-1] + NBs[it-1] if it else 0) + (1 if it < 2 else 0)})")
            a.e("s_barrier")
            dx = XS[(it+1) % 3] - XS[it % 3]; dw = WSL[(it+1) % 3] - WSL[it % 3]
            for r in (vRX, vRX+1): a.e(f"v_add_u32 v{r}, {dx & 0xffffffff}, v{r}")
            for r in range(vRWq, vRWq+4): a.e(f"v_add_u32 v{r}, {dw & 0xffffffff}, v{r}")
            sig = []
            if it == 2: sig = [f"v_readfirstlane_b32 s{sNonce}, v126"]
            if it == lastst + 2:
                ls = a.uid(f"{name}_sig")
                sig = [f"s_cmp_lg_u32 s{sW}, 7", f"s_cbranch_scc1 {ls}", f"v_mov_b32 v{vPOLL}, s{sNonce}", f"s_lshl_b32 s{sT0}, s{sP}, 7", "s_mov_b64 exec, 1",
                       f"buffer_store_dword v{vPOLL}, v{vMT}, s[{S_FL}:{S_FL+3}], s{sT0} offen sc1",
                       "s_mov_b64 exec, -1", ls + ":"]
            if it == 6:
                ls = a.uid(f"{name}_pl")
                sig += [f"s_cmp_lg_u32 s{sW}, 7", f"s_cbranch_scc1 {ls}", f"buffer_load_dword v{vPOLL}, v{vMT}, s[{S_FL}:{S_FL+3}], 0 offen sc1", ls + ":"]
            if it < 6: dm = qdma(it + 3)
            elif it == 6: dm = []
            else: dm = []
            for x in sig: a.e(x)
            ms = q_mfmas(SETS[1])
            for x in add_stores(spread(ms[:8], q_reads(SETS[0], 0), 8), NBs[it], [2, 6, 8]): a.e(x)
            for x in spread(ms[8:], dm, 8): a.e(x)
        else:
            lw = a.uid(f"{name}_nw7"); lp = a.uid(f"{name}_poll")
            a.e("s_waitcnt vmcnt(0)")
            a.e(f"s_cmp_lg_u32 s{sW}, 7"); a.e(f"s_cbranch_scc1 {lw}")
            a.e(f"s_mov_b32 s{sT1}, 0")
            a.e(f"{lp}:")
            a.e(f"v_cmp_ne_u32 vcc, s{sNonce}, v{vPOLL}")
            a.e(f"s_add_u32 s{sT1}, s{sT1}, 1")
            a.e(f"s_cbranch_vccz {lw}")
            a.e(f"s_cmp_ge_u32 s{sT1}, 0x40000"); a.e(f"s_cbranch_scc1 {lw}")
            a.e(f"buffer_load_dword v{vPOLL}, v{vMT}, s[{S_FL}:{S_FL+3}], 0 offen sc1")
            a.e("s_waitcnt vmcnt(0)")
            a.e(f"s_branch {lp}")
            a.e(f"{lw}:")
            a.e("s_waitcnt lgkmcnt(0)")
            a.e("s_barrier")
            for x in spread(q_mfmas(SETS[1]), kv_dma(True) + kv_adv(True) + kv_dma(True) + kv_adv(True) + kv_dma(False) + kv_adv(False), 12): a.e(x)
    st.at(6)
    if "qst" in X: _at(11)
    a.e(f"s_lshr_b32 s{sT0}, s{sW}, 1"); a.e(f"s_and_b32 s{sT1}, s{sT0}, 1"); a.e(f"s_lshl_b32 s{sT1}, s{sT1}, 14")
    a.e(f"s_lshl_b32 s{sT0}, s{sG}, 15"); a.e(f"s_sub_u32 s{sT0}, s{sT1}, s{sT0}")
    a.e(f"s_and_b32 s{sT1}, s{sW}, 1"); a.e(f"s_lshl_b32 s{sT1}, s{sT1}, 11"); a.e(f"s_add_u32 s{sT0}, s{sT0}, s{sT1}")
    a.e(f"s_add_u32 s{sT0}, s{sT0}, {QSTASH}"); a.e(f"v_add_u32 v{vT}, s{sT0}, v{vL16}")
    a.e(f"s_mov_b32 s{sT1}, {QSCALE}"); a.e(f"v_mov_b32 v{vT+3}, {QSCALE}"); a.e(f"v_mov_b32 v{vT+4}, {QSCALE}")
    a.e("s_nop 2")
    for t in range(4):
        for x in range(2):
            PK = FR + ((t*2+x) % 4) * 4
            t0 = O + (t*4 + 2*x)*4
            if "nopkq" not in X:
                for j in range(4): a.e(f"v_pk_mul_f32 {v(t0+2*j,2)}, {v(t0+2*j,2)}, {v(vT+3,2)}")
            else:
                for j in range(8): a.e(f"v_mul_f32 v{t0+j}, s{sT1}, v{t0+j}")
            for j in range(4): a.e(f"v_cvt_pk_bf16_f32 v{PK+j}, v{t0+2*j}, v{t0+2*j+1}")
            a.e(f"ds_write_b128 v{vT}, {v(PK,4)} offset:{t*4096 + x*1024}")
    a.e("s_waitcnt lgkmcnt(0) vmcnt(8)")
    a.e("s_barrier")
    a.e(f"s_lshl_b32 s{sT0}, s{sWL}, 12"); a.e(f"s_lshl_b32 s{sT1}, s{sG}, 15"); a.e(f"s_add_u32 s{sT0}, s{sT0}, s{sT1}")
    a.e(f"s_add_u32 s{sT0}, s{sT0}, {QTMP}"); a.e(f"v_add_u32 v{vT}, s{sT0}, v{vL16}")
    a.e(f"s_lshl_b32 s{sT1}, s{sQD}, 12"); a.e(f"v_add_u32 v{vT+1}, s{sT1}, v{vT}")
    for f in range(8): a.e(f"ds_read_b128 {v(Q+4*f,4)}, v{vT + (f >> 2)} offset:{(f & 3)*1024}")
    if "noprio" not in X:
        a.e(f"s_cmp_eq_u32 s{sG}, {1 if 'prio0' in X else 0}"); a.e(f"s_cbranch_scc1 {name}_np"); a.e("s_setprio 1"); a.label(f"{name}_np")
    st.at(7)

    Sr = lambda buf, kt, qt: S + buf*16 + (kt*2+qt)*4
    Pr = lambda buf, qt: P + buf*8 + qt*4
    Or = lambda dt, qt: O + (dt*2+qt)*4
    def slot_k(b, n, qts=(0, 1)):
        kt, ds = n >> 2, n & 3
        rd = lambda f: f"ds_read_b128 {v(f,4)}, v{vKR} offset:{((2*b+kt)*4+ds)*1024}"
        def ms(f, czero=False):
            return [f"{MF} {v(Sr(b,kt,qt),4)}, {v(f,4)}, {v(Q+(qt*4+ds)*4,4)}, " + (("0" if czero else v(C+4*qt,4)) if ds == 0 else v(Sr(b,kt,qt),4)) for qt in qts]
        return rd, ms
    def slot_v(b, dt, qts=(0, 1)):
        rd = lambda f: f"ds_read_b128 {v(f,4)}, v{vVR} offset:{(b*8+dt)*1024}"
        ms = lambda f: [f"{MF} {v(Or(dt,qt),4)}, {v(f,4)}, {v(Pr(b,qt),4)}, {v(Or(dt,qt),4)}" for qt in qts]
        return rd, ms
    def mask_block(buf, ret):
        a.e(f"s_lshl_b32 s{sT0}, s{sR}, 5"); a.e(f"v_subrev_u32 v{vMT}, s{sT0}, v{vTHR}"); a.e(f"v_subrev_u32 v{vPOLL}, s{sT0}, v0")
        items = [(kt, qt, rr) for kt in range(2) for qt in range(2) for rr in range(4)]
        for base in range(0, 16, 4):
            for n, (kt, qt, rr) in enumerate(items[base:base+4]):
                a.e(f"v_cmp_le_i32 s[{sMSK+2*n}:{sMSK+2*n+1}], {16*kt+rr}, v{vPOLL if qt else vMT}")
            for n, (kt, qt, rr) in enumerate(items[base:base+4]):
                x = Sr(buf,kt,qt)+rr
                a.e(f"v_cndmask_b32 v{x}, v{vNEG}, v{x}, s[{sMSK+2*n}:{sMSK+2*n+1}]")
        a.e(f"s_branch {ret}")
    def mask_hook(buf):
        h = a.uid(f"{name}_mask"); r = a.uid(f"{name}_mret")
        ool.append((h, lambda: mask_block(buf, r)))
        return [f"s_cmp_ge_i32 s{sR}, 0", f"s_cbranch_scc1 {h}", r + ":", f"s_add_u32 s{sR}, s{sR}, 1"]
    def exp_code_pk(buf):
        r = []; pend = []; k = 0
        for qt in range(2):
            for kt in range(2):
                x = Sr(buf,kt,qt)
                for hf in range(2):
                    e0 = vE + (k % NE); e1 = e0 + 1; k += 2
                    r.append(f"v_exp_f32 v{e0}, v{x+2*hf}")
                    if pend: r.append(pend.pop(0))
                    r.append(f"v_exp_f32 v{e1}, v{x+2*hf+1}")
                    if pend: r.append(pend.pop(0))
                    if kt == 0 and hf == 1: pend.append(f"v_pk_add_f32 {v(vLQ,2)}, {v(vE + ((k - 4) % NE),2)}, {v(e0,2)}")
                    elif kt == 1: pend.append(f"v_pk_add_f32 {v(vLQ,2)}, {v(vLQ,2)}, {v(e0,2)}")
                    pend.append(f"v_cvt_pk_bf16_f32 v{Pr(buf,qt)+2*kt+hf}, v{e0}, v{e1}")
                    if kt == 1 and hf == 1: pend.append(f"v_add_f32 v{vLP+qt}, v{vLQ}, v{vLQ+1}")
        return r + ["s_nop 0"] + pend
    vLQ = 66
    def exp_code(buf, qts=(0, 1)):
        r = []; pend = []; k = 0
        for qt in qts:
            for kt in range(2):
                x = Sr(buf,kt,qt)
                for hf in range(2):
                    e0 = vE + (k % NE); e1 = vE + ((k + 1) % NE); k += 2
                    r.append(f"v_exp_f32 v{e0}, v{x+2*hf}")
                    if pend: r.append(pend.pop(0))
                    r.append(f"v_exp_f32 v{e1}, v{x+2*hf+1}")
                    if pend: r.append(pend.pop(0))
                    if pend: r.append(pend.pop(0))
                    if kt == 0 and hf == 0: pend.append(f"v_add_f32 v{vLP+qt}, v{e0}, v{e1}")
                    else: pend += [f"v_add_f32 v{vLP+qt}, v{vLP+qt}, v{e0}"]
                    pend.append(f"v_cvt_pk_bf16_f32 v{Pr(buf,qt)+2*kt+hf}, v{e0}, v{e1}")
                    if not (kt == 0 and hf == 0): pend.append(f"v_add_f32 v{vLP+qt}, v{vLP+qt}, v{e1}")
        return r + ["s_nop 0"] + pend
    lacc = [f"v_add_f32 v{vLS}, v{vLS}, v{vLP}", f"v_add_f32 v{vLS+1}, v{vLS+1}, v{vLP+1}"]
    def xlane(op, x, t):
        return [f"v_mov_b32 v{t}, v{x}", "s_nop 1", f"v_permlane16_swap_b32 v{x}, v{t}", f"{op} v{x}, v{x}, v{t}",
                f"v_mov_b32 v{t}, v{x}", "s_nop 1", f"v_permlane32_swap_b32 v{x}, v{t}", f"{op} v{x}, v{x}, v{t}"]
    def rare_block(sbuf, other, ret):
        a.e("s_nop 7")
        for qt in range(2):
            d = vT + qt; f = vT + 2 + qt
            x0, x1 = Sr(sbuf,0,qt), Sr(sbuf,1,qt)
            a.e(f"v_max3_f32 v{d}, v{x0}, v{x0+1}, v{x0+2}"); a.e(f"v_max3_f32 v{d}, v{d}, v{x0+3}, v{x1}")
            a.e(f"v_max3_f32 v{d}, v{d}, v{x1+1}, v{x1+2}"); a.e(f"v_max3_f32 v{d}, v{d}, v{x1+3}, 0")
            for x in xlane("v_max_f32", d, vT + 4): a.e(x)
            a.e(f"v_sub_f32 v{f}, 0, v{d}"); a.e(f"v_exp_f32 v{f}, v{f}")
            for b_ in ([sbuf, 1 - sbuf] if other else [sbuf]):
                for kt in range(2):
                    for rr in range(4): a.e(f"v_sub_f32 v{Sr(b_,kt,qt)+rr}, v{Sr(b_,kt,qt)+rr}, v{d}")
            for rr in range(4): a.e(f"v_sub_f32 v{C+4*qt+rr}, v{C+4*qt+rr}, v{d}")
            a.e(f"v_add_f32 v{vM+qt}, v{vM+qt}, v{d}"); a.e(f"v_mul_f32 v{vLS+qt}, v{vLS+qt}, v{f}")
            for dt in range(8):
                for rr in range(4): a.e(f"v_mul_f32 v{Or(dt,qt)+rr}, v{Or(dt,qt)+rr}, v{f}")
        for x in exp_code(sbuf): a.e(x)
        a.e("s_nop 1")
        a.e(f"s_branch {ret}")
    def check(sbuf, other, half=False):
        h = a.uid(f"{name}_rare"); r = a.uid(f"{name}_ret")
        ool.append((h, lambda: rare_block(sbuf, other, r)))
        if half: return [f"v_cmp_nge_f32 vcc, s{sTH}, v{vLP+1}", f"s_cbranch_vccnz {h}", r + ":"]
        return [f"v_add_f32 v{vT}, v{vLP}, v{vLP+1}", f"v_cmp_nge_f32 vcc, s{sTH}, v{vT}", f"s_cbranch_vccnz {h}", r + ":"]
    D = 6 if 'd6' in X else (4 if 'd4' in X else 5)
    def run_slots(slots, fills, nxt, sync_after=None, sync=None, post={}):
        n = len(slots)
        for sidx, (rd, ms) in enumerate(slots):
            f = FR + 4 * (sidx % NB)
            if sync_after is None: out = min(D - 1, n - 1 - sidx + len(nxt[:max(0, sidx + D - n)]))
            else: out = min(D - 1, n - 1 - sidx) if sidx <= sync_after else None
            if out is not None: a.e(f"s_waitcnt lgkmcnt({out})")
            m = ms(f); fl = fills.get(sidx, []); h = (len(fl) + 1) // 2
            a.e(m[0])
            for x in fl[:h]: a.e(x)
            if len(m) > 1: a.e(m[1])
            for x in fl[h:]: a.e(x)
            t = sidx + D
            if t < n: a.e(slots[t][0](FR + 4 * (t % NB)))
            elif sync_after is None:
                if t - n < len(nxt): a.e(nxt[t - n][0](FR + 4 * (t % NB)))
            elif sidx == sync_after:
                for x in sync: a.e(x)
                for tt in range(n, sidx + D + 1): a.e(nxt[tt - n][0](FR + 4 * (tt % NB)))
            elif sidx > sync_after: a.e(nxt[t - n][0](FR + 4 * (t % NB)))
            for x in post.get(sidx, []): a.e(x)
    def distribute(fills, items, lo, hi):
        n = hi - lo
        for i in range(n):
            fills.setdefault(lo + i, []).extend(items[len(items) * i // n: len(items) * (i + 1) // n])
    toggles = [f"v_xor_b32 v{vKR}, 0x8000, v{vKR}", f"v_xor_b32 v{vVR}, 0x8000, v{vVR}"]
    vslots = lambda b, qts=(0, 1): [slot_v(b, dt, qts) for dt in range(8)]
    kslots = lambda b, qts=(0, 1): [slot_k(b, n, qts) for n in range(8)]

    sNext, sEv = 64, 65
    sRole, sA, sB = 66, 67, 68
    SK, SV, SQ, SSK = 8, 12, 20, 24
    SU, SQT = 8, 12
    KR, VR, QR, WR, TP, PR = 54, 28, 11, 36, 68, 46
    wrow = lambda r: (11 + r) if r < 8 else ((28 + r - 8) if r < 20 else (54 + r - 20))
    def side_load(rnd):
        le = a.uid(f"{name}_sle")
        a.e("s_load_dwordx8 s[56:63], s[0:1], 0")
        a.e(f"s_and_b32 s{sA}, s2, 7"); a.e(f"s_lshl_b32 s{sA}, s{sA}, 3"); a.e(f"s_lshr_b32 s{sT0}, s2, 5"); a.e(f"s_add_u32 s{sA}, s{sA}, s{sT0}")
        a.e(f"s_bfe_u32 s{sT0}, s2, 0x20003")
        a.e(f"s_mul_i32 s{sT1}, s{sT0}, 9"); a.e(f"s_add_u32 s{sT1}, s{sT1}, 1"); a.e(f"s_lshr_b32 s{sT1}, s{sT1}, 1")
        a.e(f"s_add_u32 s{sB}, s{sT1}, s{sW}")
        a.e(f"s_and_b32 s{sT1}, s{sT0}, 1"); a.e(f"s_sub_u32 s{sT1}, 5, s{sT1}")
        a.e(f"s_cmp_lt_u32 s{sW}, s{sT1}"); a.e(f"s_cselect_b32 s{sRole}, 1, 0")
        a.e("s_waitcnt lgkmcnt(0)")
        a.e(f"s_cmp_eq_u32 s{sRole}, 0"); a.e(f"s_cbranch_scc1 {le}")
        srd(a, SQ, 56, 2048*1152); srd(a, SK, 58, 2048*1152); srd(a, SV, 60, 2048*1152); srd(a, SSK, 62, 576*8)
        a.e(f"v_lshrrev_b32 v{vT}, 4, v{vL}"); a.e(f"v_and_b32 v{vT+1}, 15, v{vL}")
        a.e(f"s_lshl_b32 s{sT0}, s{sA}, 5"); a.e(f"v_lshl_add_u32 v{vT}, v{vT}, 3, s{sT0}")
        a.e(f"v_mul_u32_u24 v{vT}, 1152, v{vT}"); a.e(f"v_lshl_add_u32 v{vT}, v{vT+1}, 2, v{vT}")
        a.e(f"s_lshl_b32 s{sT0}, s{sB}, 6"); a.e(f"v_add_u32 v{vT}, s{sT0}, v{vT}")
        a.e(f"v_add_u32 v{vT+2}, {(-3456) & 0xffffffff}, v{vT}"); a.e(f"v_add_u32 v{vT+3}, 4608, v{vT}")
        a.e(f"v_lshlrev_b32 v{vT+1}, 4, v{vT+1}"); a.e(f"s_lshl_b32 s{sT0}, s{sB}, 8")
        for i in range(3): a.e(f"buffer_load_dword v{KR+i}, v{vT+2}, s[{SK}:{SK+3}], 0 offen offset:{i*1152}")
        for R_, S_ in ((KR + 3, SK), (VR, SV), (QR, SQ)):
            for i in range(8): a.e(f"buffer_load_dword v{R_+i}, v{vT if i < 4 else vT+3}, s[{S_}:{S_+3}], 0 offen offset:{(i%4)*1152}")
        a.e(f"buffer_load_dwordx4 {v(WR,4)}, v{vT+1}, s[{SSK}:{SSK+3}], s{sT0} offen")
        a.e(f"{le}:")
    SSC = " sc1"
    def side_compute(rnd):
        l3 = a.uid(f"{name}_sc2"); le = a.uid(f"{name}_sce")
        a.e(f"s_cmp_eq_u32 s{sRole}, 0"); a.e(f"s_cbranch_scc1 {le}")
        a.e(f"s_mov_b32 s{sT1}, 0x05040100"); a.e(f"s_mov_b32 s{sT2}, 0x07060302")
        a.e(f"v_lshrrev_b32 v{vT}, 4, v{vL}"); a.e(f"v_and_b32 v{vT+1}, 15, v{vL}")
        a.e(f"s_add_u32 s70, s6, {WS_KVB}"); a.e("s_addc_u32 s71, s7, 0"); srd(a, SU, 70, 576*4096)
        a.e(f"s_add_u32 s70, s6, {WS_QB}"); a.e("s_addc_u32 s71, s7, 0"); srd(a, SQT, 70, 576*4096)
        a.e(f"s_lshl_b32 s{sT0}, s{sA}, 6"); a.e(f"v_lshl_add_u32 v{vT}, v{vT}, 4, s{sT0}")
        a.e(f"v_lshlrev_b32 v{vT+1}, 13, v{vT+1}")
        a.e(f"v_sub_u32 v{vT+2}, 4080, v{vT}"); a.e(f"v_add_u32 v{vT+2}, v{vT+2}, v{vT+1}"); a.e(f"v_add_u32 v{vT}, v{vT}, v{vT+1}")
        a.e(f"s_lshl_b32 s{sT0}, s{sB}, 17")
        for c in range(2):
            sel = sT2 if c else sT1
            for i in range(4): a.e(f"v_perm_b32 v{TP+i}, v{QR+2*i+1}, v{QR+2*i}, s{sel}")
            a.e(f"buffer_store_dwordx4 {v(TP,4)}, v{vT}, s[{SQT}:{SQT+3}], s{sT0} offen{SSC}")
            AC = vT + 3
            for hf in (1, 0):
                for i in range(6):
                    j = 4 * hf - 2 + i
                    a.e(f"v_perm_b32 v{PR+i}, v{KR+j+2}, v{KR+j+3}, s{sel}")
                for i in range(4): a.e(f"v_dot2_f32_bf16 v{AC+i}, v{PR+2+i}, v{WR+2*c}, 0")
                for i in range(4): a.e(f"v_dot2_f32_bf16 v{AC+i}, v{PR+i}, v{WR+2*c+1}, v{AC+i}")
                for i in range(4):
                    a.e(f"v_and_b32 v{PR+i}, 0xffff0000, v{VR+4*hf+i}" if c else f"v_lshlrev_b32 v{PR+i}, 16, v{VR+4*hf+i}")
                for i in range(4): a.e(f"v_mul_f32 v{AC+i}, v{AC+i}, v{PR+i}")
                o = TP + (0 if hf else 2)
                a.e(f"v_cvt_pk_bf16_f32 v{o}, v{AC+3}, v{AC+2}"); a.e(f"v_cvt_pk_bf16_f32 v{o+1}, v{AC+1}, v{AC}")
            a.e(f"buffer_store_dwordx4 {v(TP,4)}, v{vT+2}, s[{SU}:{SU+3}], s{sT0} offen{SSC}")
            a.e(f"s_add_u32 s{sT0}, s{sT0}, 4096"); a.e("s_nop 0")
        a.e(f"{le}:")
    def flag_store(off_code):
        a.e(f"v_mov_b32 v{vT}, s{sNonce}"); a.e(f"v_mov_b32 v{vT+1}, 0")
        for x in off_code: a.e(x)
        a.e("s_mov_b64 exec, 1")
        a.e(f"buffer_store_dword v{vT}, v{vT+1}, s[{S_FL}:{S_FL+3}], s{sT1} offen sc1")
        a.e("s_mov_b64 exec, -1")
    def side_hook(ret):
        L = [a.uid(f"{name}_ev") for _ in range(6)]
        for e in range(1, 6):
            a.e(f"s_cmp_eq_u32 s{sEv}, {e}"); a.e(f"s_cbranch_scc1 {L[e]}")
        a.e(f"s_add_u32 s{sNext}, s{sNext}, 2"); a.e(f"s_mov_b32 s{sEv}, 1")
        side_load(1)
        a.e(f"s_branch {ret}")
        a.e(L[1] + ":")
        a.e(f"s_mov_b32 s{sNext}, 99")
        side_compute(1)
        a.e(f"s_branch {ret}")
        a.e(L[2] + ":")
        a.e(L[3] + ":")
        a.e(f"s_mov_b32 s{sEv}, 4")
        a.e(f"s_lshl_b32 s{sT1}, s{sP}, 1"); a.e(f"s_add_u32 s{sT1}, s{sT1}, 4"); a.e(f"s_add_u32 s{sNext}, s{sNext}, 1"); a.e(f"s_max_u32 s{sNext}, s{sNext}, s{sT1}")
        flag_store([f"s_lshl_b32 s{sT1}, s2, 2", f"s_add_u32 s{sT1}, s{sT1}, 32768"])
        a.e(f"s_branch {ret}")
        a.e(L[5] + ":")
        a.e("s_load_dwordx2 s[8:9], s[0:1], 88"); a.e("s_load_dwordx2 s[10:11], s[0:1], 32")
        a.e(f"s_mov_b32 s{sNext}, 99"); a.e(f"v_lshlrev_b32 v{vT}, 7, v{vL}")
        a.e(f"s_lshl_b32 s{sT0}, s2, 13"); a.e(f"v_add_u32 v{vT}, s{sT0}, v{vT}")
        a.e(f"s_min_u32 s{sT1}, s2, 63"); a.e(f"s_min_u32 s{sT2}, s2, 31")
        a.e(f"s_sub_u32 s{sT1}, s{sT1}, s2"); a.e(f"s_sub_u32 s{sT2}, s{sT2}, s2")
        a.e(f"s_lshl_b32 s{sT1}, s{sT1}, 13"); a.e(f"s_lshl_b32 s{sT2}, s{sT2}, 13")
        a.e(f"v_add_u32 v{vT+1}, {256 << 13}, v{vT}"); a.e(f"v_add_u32 v{vT+2}, s{sT1}, v{vT+1}"); a.e(f"v_add_u32 v{vT+2}, {256 << 13}, v{vT+2}"); a.e(f"v_add_u32 v{vT+3}, s{sT2}, v{vT+1}")
        a.e("s_waitcnt lgkmcnt(0)")
        for r_, b_ in ((0, 8), (1, 8), (2, 8), (0, 10), (3, 10)): a.e(f"global_load_dword v{vDUM}, v{vT+r_}, s[{b_}:{b_+1}]")
        a.e(f"s_branch {ret}")
        a.e(L[4] + ":")
        a.e(f"s_mov_b32 s{sNext}, 99")
        flag_store([f"s_lshl_b32 s{sT1}, s{sP}, 7", f"s_lshl_b32 s{sT2}, s{sH}, 2", f"s_add_u32 s{sT1}, s{sT1}, s{sT2}", f"s_add_u32 s{sT1}, s{sT1}, 36864"])
        a.e(f"s_branch {ret}")
    a.e(f"s_and_b32 s{sT0}, s2, 7"); a.e(f"s_add_u32 s{sT0}, s{sT0}, s{sP}"); a.e(f"s_mul_i32 s{sT1}, s{sT0}, 52"); a.e(f"s_lshr_b32 s{sT1}, s{sT1}, 8"); a.e(f"s_mul_i32 s{sT1}, s{sT1}, 5")
    a.e(f"s_sub_u32 s{sT0}, s{sT0}, s{sT1}"); a.e(f"s_lshl_b32 s{sNext}, s{sT0}, 1"); a.e(f"s_add_u32 s{sNext}, s{sNext}, {3 if 'ph3' in X else 1}"); a.e(f"s_mov_b32 s{sEv}, 0")
    a.e(f"s_add_u32 s{sT0}, s{sNext}, 3"); a.e(f"s_cmp_eq_u32 s{sW}, 7"); a.e(f"s_cselect_b32 s{sNext}, s{sT0}, s{sNext}"); a.e(f"s_cselect_b32 s{sEv}, 2, 0")
    a.e(f"s_lshl_b32 s{sT0}, s{sP}, 1"); a.e(f"s_add_u32 s{sT0}, s{sT0}, 2"); a.e(f"s_min_u32 s{sT0}, s{sT0}, 14")
    a.e(f"s_cmp_eq_u32 s{sW}, 6"); a.e(f"s_cselect_b32 s{sNext}, s{sT0}, s{sNext}"); a.e(f"s_cselect_b32 s{sEv}, 5, s{sEv}")

    a.label(f"{name}_seg")
    k0 = kslots(0); k1s = kslots(1)
    for t in range(D): a.e(k0[t][0](FR + 4 * t))
    zero = [f"v_mov_b32 v{O+i}, 0" for i in range(64)] + [f"v_mov_b32 v{vLS}, 0", f"v_mov_b32 v{vLS+1}, 0"]
    fills = {}; distribute(fills, zero, 0, 8)
    run_slots([(rd, (lambda ms: (lambda f: ms(f, True)))(ms)) for rd, ms in k0], fills, k1s)
    a.e("s_nop 3")
    for x in mask_hook(0): a.e(x)
    for qt in range(2):
        d = vM + qt; x0, x1 = Sr(0,0,qt), Sr(0,1,qt)
        a.e(f"v_max3_f32 v{d}, v{x0}, v{x0+1}, v{x0+2}"); a.e(f"v_max3_f32 v{d}, v{d}, v{x0+3}, v{x1}")
        a.e(f"v_max3_f32 v{d}, v{d}, v{x1+1}, v{x1+2}"); a.e(f"v_max_f32 v{d}, v{d}, v{x1+3}")
    for x0_, x1_ in zip(xlane("v_max_f32", vM, vT + 4), xlane("v_max_f32", vM + 1, vT + 5)):
        a.e(x0_)
        if not x1_.startswith("s_nop"): a.e(x1_)
    for qt in range(2):
        for rr in range(4): a.e(f"v_sub_f32 v{C+4*qt+rr}, 0, v{vM+qt}")
    sub0 = [f"v_sub_f32 v{Sr(0,kt,qt)+rr}, v{Sr(0,kt,qt)+rr}, v{vM+qt}" for qt in range(2) for kt in range(2) for rr in range(4)]
    fills = {}; distribute(fills, sub0 + exp_code(0), 0, 8)
    labA = a.uid(f"{name}_wa")
    sync = ["s_waitcnt lgkmcnt(0)", f"s_cmp_lg_u32 s{sKt}, 2", f"s_cbranch_scc1 {labA}", "s_waitcnt vmcnt(0)", labA + ":", "s_waitcnt vmcnt(8)",
            "s_barrier", f"v_xor_b32 v{vKR}, 0x8000, v{vKR}"]
    run_slots(k1s, fills, vslots(0), sync_after=4, sync=sync)
    dK, dV = kv_dma(True), kv_dma(False)
    a.e(f"s_mov_b32 s{sN}, s{sHalf}")
    a.e(f"s_cmp_eq_u32 s{sI}, 0"); a.e(f"s_cbranch_scc1 {name}_tailh")
    a.e(f"s_cmp_ge_u32 s{sN}, s{sI}"); a.e(f"s_cbranch_scc1 {name}_lasth")
    def body(half):
        hk = a.uid(f"{name}_side"); hr = a.uid(f"{name}_sret")
        ool.append((hk, lambda: side_hook(hr)))
        a.e(f"s_cmp_eq_u32 s{sVt}, s{sNext}"); a.e(f"s_cbranch_scc1 {hk}"); a.e(f"{hr}:")
        q = (1,) if half else (0, 1)
        slots = vslots(0) + kslots(0, q) + vslots(1) + kslots(1, q)
        fills = {}; post = {}
        fills[0] = list(lacc); fills[16] = list(lacc)
        post[1] = mask_hook(1); post[17] = mask_hook(0)
        distribute(fills, exp_code(1), 2, 16); post[15] = check(1, True)
        distribute(fills, exp_code(0, q), 18, 32); post[31] = check(0, True, half)
        f2 = {0: dK[:3], 1: [dK[3]], 2: [dK[4]], 3: [dK[5]], 16: dV[:3], 17: [dV[3]], 18: [dV[4]], 19: [dV[5]]}
        distribute(f2, kv_adv(True) + kv_adv(False) + [f"s_add_u32 s{sN}, s{sN}, 1"], 21, 27)
        for k_, v_ in f2.items(): fills[k_] = v_ + fills.get(k_, [])
        if half: fills[0] = ["s_nop 1"] + fills[0]
        run_slots(slots, fills, vslots(0), sync_after=28, sync=["s_waitcnt lgkmcnt(0) vmcnt(0)", "s_barrier"] + toggles, post=post)
    def tail(half):
        q = (1,) if half else (0, 1)
        la = lacc[1:] if half else lacc
        fills = {0: list(la), 8: list(la)}; post = {(2 if half else 1): mask_hook(1), 7: check(1, False, half) + ["s_nop 0"]}
        distribute(fills, exp_code(1, q), 3 if half else 2, 8)
        xl = []
        for x0_, x1_ in zip(xlane("v_add_f32", vLS, vT + 4), xlane("v_add_f32", vLS + 1, vT + 5)):
            xl.append(x0_)
            if not x1_.startswith("s_nop"): xl.append(x1_)
        xl += [f"v_rcp_f32 v{vT}, v{vLS}", f"v_rcp_f32 v{vT+3}, v{vLS+1}", "s_nop 0", f"v_mov_b32 v{vT+2}, v{vT}", f"v_mov_b32 v{vT+1}, v{vT}", f"v_mov_b32 v{vT+4}, v{vT+3}",
               f"s_lshl_b32 s{sT0}, s{sTile}, 3", f"s_add_u32 s{sT0}, s{sT0}, s{sWL}",
               f"s_lshl_b32 s{sT0}, s{sT0}, 17", f"s_lshl_b32 s{sT1}, s{sH}, 12", f"s_add_u32 s{sT0}, s{sT0}, s{sT1}"]
        distribute(fills, xl, 9, 16)
        run_slots(vslots(0, q) + vslots(1, q), fills, [], post=post)
    a.label(f"{name}_loop")
    if "phst" in X or "phst2" in X:
        for i in range(10):
            l_ = a.uid("phst"); a.e(f"s_cmp_lg_u32 s{sVt}, {i + (1 if 'phst' in X else 7)}"); a.e(f"s_cbranch_scc1 {l_}"); _at(2 + i); a.e("s_waitcnt lgkmcnt(0)"); a.e(l_ + ":")
    body(False)
    a.e(f"s_cmp_lt_u32 s{sN}, s{sI}"); a.e(f"s_cbranch_scc1 {name}_loop")
    a.e(f"s_cmp_lg_u32 s{sHalf}, 0"); a.e(f"s_cbranch_scc1 {name}_lasth")
    a.label(f"{name}_tail")
    tail(False)
    a.e(f"s_branch {name}_final")
    a.label(f"{name}_lasth")
    body(True)
    a.label(f"{name}_tailh")
    nd = a.uid(f"{name}_nd")
    a.e(f"s_cmp_lg_u32 s{sSeg}, 0"); a.e(f"s_cbranch_scc1 {nd}")
    for x in dK + dV + kv_adv(True) + kv_adv(False): a.e(x)
    a.e(f"{nd}:")
    tail(True)
    a.e("s_nop 3")
    a.e(f"s_cmp_lg_u32 s{sSeg}, 0"); a.e(f"s_cbranch_scc1 {name}_final")
    a.e(f"s_lshl_b32 s{sT1}, s{sWL}, 12"); a.e(f"s_add_u32 s{sT1}, s{sT1}, {QSTASH}"); a.e(f"v_add_u32 v{vT+6}, s{sT1}, v{vL16}")
    a.e(f"s_lshl_b32 s{sT1}, s{sQD}, 12"); a.e(f"v_add_u32 v{vT+7}, s{sT1}, v{vT+6}")
    for f in range(8): a.e(f"ds_read_b128 {v(Q+4*f,4)}, v{vT + 6 + (f >> 2)} offset:{(f & 3)*1024}")
    a.e(f"s_lshl_b32 s{sT1}, s{sQD}, 17"); a.e(f"s_add_u32 s{sT1}, s{sT1}, s{sT0}")
    for x in range(4):
        for qt in range(2):
            PK = S + ((x*2+qt) % 8) * 4
            for dt in (2*x, 2*x+1):
                for rr in (0, 2): a.e(f"v_pk_mul_f32 {v(Or(dt,qt)+rr,2)}, {v(Or(dt,qt)+rr,2)}, {v(vT+1+2*qt,2)}")
            a.e(f"v_cvt_pk_bf16_f32 v{PK}, v{Or(2*x,qt)}, v{Or(2*x,qt)+1}"); a.e(f"v_cvt_pk_bf16_f32 v{PK+1}, v{Or(2*x,qt)+2}, v{Or(2*x,qt)+3}")
            a.e(f"v_cvt_pk_bf16_f32 v{PK+2}, v{Or(2*x+1,qt)}, v{Or(2*x+1,qt)+1}"); a.e(f"v_cvt_pk_bf16_f32 v{PK+3}, v{Or(2*x+1,qt)+2}, v{Or(2*x+1,qt)+3}")
            a.e(f"buffer_store_dwordx4 {v(PK,4)}, v{vL16}, s[{S_CT}:{S_CT+3}], s{sT1 if qt else sT0} offen offset:{x*1024} sc1")
    a.e(f"v_xor_b32 v{vVR}, 0x8000, v{vVR}")
    a.e(f"s_mov_b32 s{sSeg}, 1")
    a.e(f"s_sub_u32 s{sTile}, 15, s{sP}")
    a.e(f"s_lshl_b32 s{sT0}, s{sP}, 1"); a.e(f"s_sub_u32 s{sI}, 14, s{sT0}")
    a.e(f"s_lshl_b32 s{sR}, s{sTile}, 2"); a.e(f"s_sub_u32 s{sR}, 34, s{sR}")
    a.e(f"s_branch {name}_seg")
    a.label(f"{name}_final")
    st.at(9)
    vP1, vP2, vZ = 60, 64, 65
    a.e("s_load_dwordx2 s[4:5], s[0:1], 88"); a.e("s_load_dwordx2 s[16:17], s[0:1], 96")
    a.e(f"s_lshr_b32 s53, s{sH}, 2"); a.e("s_lshl_b32 s56, s53, 4"); a.e("s_add_u32 s56, s56, 36864"); a.e(f"s_lshl_b32 s71, s{sP}, 7")
    a.e("s_add_u32 s70, s56, s71"); a.e(f"s_sub_u32 s71, {15*128}, s71"); a.e("s_add_u32 s71, s71, s56")
    a.e("s_mov_b32 s52, 32768")
    pollS = f"buffer_load_dwordx4 {v(vP1,4)}, v{vL16}, s[{S_FL}:{S_FL+3}], s52 offen sc1"
    pollC = f"buffer_load_dword v{vP2}, v{vZ}, s[{S_FL}:{S_FL+3}], s70 offen sc1"
    a.e(f"v_and_b32 v{vZ}, 3, v{vL}"); a.e(f"v_lshlrev_b32 v{vZ}, 2, v{vZ}")
    a.e(pollC)
    vOWN, vPAR, vOM, vPM = vT + 6, vT + 7, vT + 8, vT
    a.e(f"s_lshl_b32 s{sT1}, s{sW}, 13"); a.e(f"v_add_u32 v{vOWN}, s{sT1}, v{vL16}"); a.e(f"v_xor_b32 v{vPAR}, 0x8000, v{vOWN}")
    a.e(f"s_lshl_b32 s{sT1}, s{sW}, 10"); a.e(f"s_add_u32 s{sT1}, s{sT1}, {155648}"); a.e(f"v_add_u32 v{vOM}, s{sT1}, v{vL16}"); a.e(f"v_xor_b32 v{vPM}, 0x1000, v{vOM}")
    a.e(f"ds_write_b128 v{vOM}, {v(vLS,4)}")
    a.e(f"s_lshl_b32 s{sT1}, s{sG}, 11"); a.e(f"s_add_u32 s{sT0}, s{sT0}, s{sT1}"); a.e(f"s_lshl_b32 s{sT1}, s{sQD}, 17"); a.e(f"s_add_u32 s{sT1}, s{sT1}, s{sT0}")
    lg1 = a.uid(f"{name}_g1"); lgd = a.uid(f"{name}_gd")
    sItem, sNT, sCG, sTq, sKQ = 48, 49, 50, 51, 53
    uT0, uT1, uT2 = 66, 67, 68
    def o_setup():
        a.e(f"s_and_b32 s{uT0}, s2, 7"); a.e(f"s_mul_i32 s{sCG}, s{uT0}, 18"); a.e(f"s_lshr_b32 s{uT1}, s2, 3"); a.e(f"s_sub_u32 s{uT1}, s{uT1}, 7")
        a.e(f"s_add_u32 s{sCG}, s{sCG}, s{uT1}"); a.e(f"s_cmp_lt_u32 s{uT1}, 18"); a.e(f"s_cselect_b32 s{sCG}, s{sCG}, -1")
        a.e(f"s_and_b32 s51, s{sH}, 3")
        ko.gemm_setup(a, sW, sP, 51, 53, (uT0, uT1, uT2))
    a.e(f"s_cmp_eq_u32 s{sG}, 0"); a.e(f"s_cbranch_scc0 {lg1}")
    XM = 56
    for g in range(2):
        keep = O + 32 * g; send = O + 32 * (1 - g)
        if g == 1: a.label(lg1)
        for n in range(8): a.e(f"ds_write_b128 v{vOWN}, {v(send+4*n,4)} offset:{n*1024}")
        a.e("s_waitcnt lgkmcnt(0)")
        o_setup()
        ko.gemm_vsetup(a, vL, vL16, 38, g == 0)
        a.e("s_barrier")
        a.e(f"ds_read_b128 {v(XM,4)}, v{vPM}")
        for n in range(8): a.e(f"ds_read_b128 {v(FR+4*n,4)}, v{vPAR} offset:{n*1024}")
        if g == 0 and False:
            for gg in (2, 3):
                for x in ko.gemm_wl(gg, (uT0, uT1, uT2)): a.e(x)
        a.e("s_waitcnt lgkmcnt(8)")
        for qt in range(2):
            mm = vE + 4*qt; e0 = mm + 1; e1 = mm + 2
            a.e(f"v_max_f32 v{mm}, v{vM+qt}, v{XM+2+qt}"); a.e(f"v_sub_f32 v{e0}, v{vM+qt}, v{mm}"); a.e(f"v_sub_f32 v{e1}, v{XM+2+qt}, v{mm}")
            a.e(f"v_exp_f32 v{e0}, v{e0}"); a.e(f"v_exp_f32 v{e1}, v{e1}"); a.e("s_nop 0")
            a.e(f"v_mul_f32 v{mm}, v{e0}, v{vLS+qt}"); a.e(f"v_fmac_f32 v{mm}, v{e1}, v{XM+qt}"); a.e(f"v_rcp_f32 v{mm}, v{mm}"); a.e("s_nop 0")
            a.e(f"v_mul_f32 v{e0}, v{e0}, v{mm}"); a.e(f"v_mul_f32 v{e1}, v{e1}, v{mm}")
        for xx in range(2):
            for qt in range(2):
                n0 = (2*xx)*2 + qt; n1 = (2*xx+1)*2 + qt
                for n in (n0, n1):
                    for rr in range(4): a.e(f"v_mul_f32 v{keep+4*n+rr}, v{keep+4*n+rr}, v{vE+4*qt+1}")
                a.e(f"s_waitcnt lgkmcnt({7 - n1})")
                for n in (n0, n1):
                    for rr in range(4): a.e(f"v_fmac_f32 v{keep+4*n+rr}, v{FR+4*n+rr}, v{vE+4*qt+2}")
                PK = S + (xx*2+qt)*4
                a.e(f"v_cvt_pk_bf16_f32 v{PK}, v{keep+4*n0}, v{keep+4*n0+1}"); a.e(f"v_cvt_pk_bf16_f32 v{PK+1}, v{keep+4*n0+2}, v{keep+4*n0+3}")
                a.e(f"v_cvt_pk_bf16_f32 v{PK+2}, v{keep+4*n1}, v{keep+4*n1+1}"); a.e(f"v_cvt_pk_bf16_f32 v{PK+3}, v{keep+4*n1+2}, v{keep+4*n1+3}")
                a.e(f"buffer_store_dwordx4 {v(PK,4)}, v{vL16}, s[{S_CT}:{S_CT+3}], s{sT1 if qt else sT0} offen offset:{xx*1024} sc1")
        if g == 0: a.e(f"s_branch {name}_convw")
    st.at(10)
    T3 = (sT0, sT1, sT2)
    G = ko.Gemm(a, name, T3, vL16, " sc1", S_FL, sNonce, _at if "gst" in X else None)
    a.e(f"v_mov_b32 v16, v{vZ}")
    a.e("s_waitcnt vmcnt(4)")
    a.e(f"v_cmp_ne_u32 vcc, s{sNonce}, v{vP2}"); a.e("s_mov_b32 s66, vcc_lo")
    a.e(f"s_cbranch_vccnz {name}_late")
    G.first_loads(False)
    a.e("s_waitcnt vmcnt(16)")
    a.e(f"s_branch {name}_late2")
    a.label(f"{name}_late")
    a.e("s_waitcnt vmcnt(0)")
    a.label(f"{name}_late2")
    a.e("s_barrier")
    st.at(8)
    a.e(f"s_cmp_lg_u32 s{sW}, 7"); a.e(f"s_cbranch_scc1 {name}_nsg")
    for x in [f"v_mov_b32 v{vT}, s{sNonce}", f"v_mov_b32 v{vT+1}, 0", f"s_lshl_b32 s{sT2}, s{sH}, 2", f"s_and_b32 s{sT2}, s{sT2}, 15",
              f"s_add_u32 s{sT0}, s71, s{sT2}", f"s_add_u32 s{sT1}, s70, s{sT2}", "s_mov_b64 exec, 1",
              f"buffer_store_dword v{vT}, v{vT+1}, s[{S_FL}:{S_FL+3}], s{sT0} offen sc1",
              f"buffer_store_dword v{vT}, v{vT+1}, s[{S_FL}:{S_FL+3}], s{sT1} offen sc1", "s_mov_b64 exec, -1"]: a.e(x)
    a.label(f"{name}_nsg")
    a.e("s_cmp_eq_u32 s66, 0"); a.e(f"s_cbranch_scc1 {name}_rdy")
    G.spin(f"buffer_load_dword v15, v16, s[{S_FL}:{S_FL+3}], s70 offen sc1")
    G.first_loads(False)
    a.label(f"{name}_rdy")
    if True: a.e("s_barrier")
    st.at(2)
    G.first_loads(True)
    G.main(f"buffer_load_dword v15, v16, s[{S_FL}:{S_FL+3}], s71 offen sc1")
    a.e(f"s_branch {name}_fin")
    a.label(f"{name}_convw")
    if True:
        for gg in (2, 3):
            for x in ko.gemm_wl(gg, T3): a.e(x)
        a.e("s_waitcnt vmcnt(18)")
        a.e("s_barrier")
        a.e("s_waitcnt vmcnt(0)")
        a.e("s_barrier")
    else:
        a.e("s_waitcnt vmcnt(0)")
        a.e("s_barrier")
    for gg in range(2):
        for x in ko.gemm_wl(gg, T3): a.e(x)
    a.e(f"v_mov_b32 v{vT}, {ko.CNT}"); a.e(f"v_mov_b32 v{vT+1}, 0"); a.e(f"ds_write_b32 v{vT}, v{vT+1}")
    a.e("s_waitcnt vmcnt(0) lgkmcnt(0)")
    a.e("s_barrier")
    a.e(f"s_cmp_eq_u32 s{sCG}, -1"); a.e(f"s_cbranch_scc1 {name}_fin")
    a.e(f"s_mov_b32 s{sT0}, 0")
    a.label(f"{name}_ssp")
    a.e(pollS); a.e("s_waitcnt vmcnt(0)")
    for r in range(4): a.e(f"v_xor_b32 v{vP1+r}, s{sNonce}, v{vP1+r}")
    a.e(f"v_or3_b32 v{vP1}, v{vP1}, v{vP1+1}, v{vP1+2}"); a.e(f"v_or_b32 v{vP1}, v{vP1}, v{vP1+3}"); a.e(f"v_cmp_ne_u32 vcc, 0, v{vP1}")
    a.e(f"s_add_u32 s{sT0}, s{sT0}, 1"); a.e(f"s_cbranch_vccz {name}_sok")
    a.e(f"s_cmp_lt_u32 s{sT0}, 0x40000"); a.e(f"s_cbranch_scc1 {name}_ssp")
    a.label(f"{name}_sok")
    a.e("s_barrier")
    ko.gen_conv(a, name, st, sW, sCG, T3, vL, vL16, " sc1")
    a.label(f"{name}_fin")
    if diag: a.e("s_waitcnt vmcnt(0)")
    st.at(11); st.at(12, True)
    if "dbgst" in X:
        a.e(f"s_cmp_lg_u32 s{sW}, 4"); a.e(f"s_cbranch_scc1 {name}_end")
        st.dump_dbg(sNonce, [1, 5, 7, 9, 10, 2, 12])
    else: st.dump(6, sW)
    a.label(f"{name}_end")
    a.e("s_endpgm")
    i = 0
    while i < len(ool):
        lab, fn = ool[i]; a.label(lab); fn(); i += 1
    a.label(code_end)
    a.e("s_endpgm")
    a.e = _e
    kernel_desc(a, name, 256, 102)
```

```python
from asmlib import *
import ko
from k1 import MF, WS_KV, WS_CTX, WS_WOF, WS_KVB, WS_QB, wg_decode, act_dma_offsets, w_dma_offsets, act_read_addr, w_read_addr

QSCALE = 0x3e0293ee
NEG = 0xf149f2ca
LTHR = 0x4e800000
OOB = 0x7ff00000
WS_FLAG = 64 << 20

def gen_ka(a, name="ka_kernel", diag=False, X=(), code_end=None):
    kernel_begin(a, name)
    code_end = f"{name}_code_end"
    st = Stamps(a, diag, 0, 76)
    _at = st.at
    pst = (lambda i: (_at(i), a.e("s_waitcnt lgkmcnt(0)"))) if "prost" in X else (lambda i: None)
    if "qst" in X or "phst" in X or "phst2" in X: st.at = lambda i, real=False: _at(i, real) if (i < 2 or i == 12) else None
    if "gst" in X: st.at = lambda i, real=False: _at(i, real) if (i < 3 or i == 12) else None
    if "g2" in X: st.at = lambda i, real=False: _at(i, real) if (i in (0, 1, 2, 3, 4, 10, 11, 12)) else None
    if "prost" in X: st.at = lambda i, real=False: _at(i, real) if (i < 4 or i == 12) else None
    if "kvst" in X:
        _at = st.at
        st.at = lambda i, real=False: _at(i, real) if (i < 4 or i == 12) else None
    _e = a.e
    def e2(x):
        if x.endswith(":"): a.label(x[:-1])
        else: _e(x)
    a.e = e2
    S_C, S_W, S_KV, S_X, S_WQ, S_CT = 8, 12, 16, 20, 24, 28
    sW, sH, sP, sG, sWL = 32, 33, 34, 35, 36
    sT0, sT1, sT2 = 37, 38, 39
    sIT, sKC, sKW, sM0C, sM0W = 40, 41, 42, 43, 44
    sRole, sA, sB = 45, 46, 47
    S_S = 48
    S_DBG = 72
    sI, sN, sKoff, sVoff, sKt, sVt, sM0K, sM0V = 40, 41, 42, 43, 44, 45, 46, 47
    sTA, sJump, sSeg, sR, sTH, sTile, sKX, sKWq = 48, 49, 50, 51, 52, 53, 54, 55
    sQD = 55; sHalf = 54
    sMSK = 56
    vL = 1; vL16 = 2; vDUM = 3
    vDC = 4; vDW = 8; vRC = 12; vRW = 14; vST = 18; vT = 19
    vDX = 28; vDWq = 124
    CF = 32; WA, WB = 48, 64; ACC = 128
    XS = [0, 131072, 65536]; WSL = [32768, 49152, 98304]
    VRING = 65536; QTMP = 98304; QSTASH = 131072

    a.e("s_cmp_ge_u32 s2, 256")
    a.e(f"s_cbranch_scc1 {name}_end")
    st.at(0); st.at(1, True)
    a.e("s_load_dwordx8 s[60:67], s[0:1], 48")
    a.e("s_load_dwordx2 s[68:69], s[0:1], 80")
    a.e("s_memrealtime s[70:71]")
    a.e("s_load_dwordx4 s[4:7], s[0:1], 104")
    a.e(f"v_lshrrev_b32 v{vT}, 6, v0")
    a.e(f"v_and_b32 v{vL}, 63, v0")
    a.e(f"v_readfirstlane_b32 s{sW}, v{vT}")
    a.e(f"v_lshlrev_b32 v{vL16}, 4, v{vL}")
    wg_decode(a, sH, sP, sT0, sT1)
    a.e(f"s_lshr_b32 s{sG}, s{sW}, 2")
    a.e(f"s_and_b32 s{sWL}, s{sW}, 3")
    a.e(f"s_lshl_b32 s{sT0}, s{sP}, 8")
    a.e(f"s_lshl_b32 s{sT1}, s{sW}, 5")
    a.e(f"s_add_u32 s{sT0}, s{sT0}, s{sT1}")
    act_dma_offsets(a, vDC, vL, vT, sT0, 1024)
    a.e(f"s_lshl_b32 s{sT0}, s{sWL}, 4")
    a.e(f"s_lshl_b32 s{sT1}, s{sH}, 8")
    w_dma_offsets(a, vDW, vL, vT, sT0, sT1, [(0, 0), (1, 0), (2, 1), (3, 1)])
    a.e(f"s_lshl_b32 s{sM0C}, s{sW}, 12")
    a.e(f"s_add_u32 s{sM0W}, s{sM0C}, 32768")
    a.e(f"s_mov_b32 s{sKC}, 0")
    a.e(f"s_mov_b32 s{sKW}, 0")
    pst(4)
    a.e("s_waitcnt lgkmcnt(0)")
    pst(5)
    srd(a, S_C, 62, 2048 * 1024)
    a.e(f"s_cmp_lt_u32 s{sW}, 4")
    a.e("s_cselect_b32 s46, s66, s68")
    a.e("s_cselect_b32 s47, s67, s69")
    srd(a, S_W, 46, 512 * 8192)
    S_W2 = 28
    dma_c = lambda i, so=sKC: f"buffer_load_dwordx4 v{vDC+i}, s[{S_C}:{S_C+3}], s{so} offen offset:{i*1024} lds"
    dma_w = lambda i, S=S_W: f"buffer_load_dwordx4 v{vDW+i}, s[{S}:{S+3}], s{sKW} offen offset:{i*1024} lds"
    dma_adv = [f"s_add_u32 s{sKC}, s{sKC}, 128", f"s_add_u32 s{sKW}, s{sKW}, {64*8192}",
               f"s_xor_b32 s{sM0C}, s{sM0C}, 0x10000", f"s_xor_b32 s{sM0W}, s{sM0W}, 0x10000"]
    if "wf" in X:
        a.e(f"s_mov_b32 m0, s{sM0W}"); a.e("s_nop 0")
        for i in range(4): a.e(dma_w(i))
    a.e(f"s_mov_b32 m0, s{sM0C}"); a.e("s_nop 0")
    for i in range(4): a.e(dma_c(i))
    if "wf" not in X:
        a.e(f"s_mov_b32 m0, s{sM0W}"); a.e("s_nop 0")
        for i in range(4): a.e(dma_w(i))
    for x in dma_adv: a.e(x)
    pst(6)
    a.e(f"s_add_u32 s{S_KV}, s6, {WS_KV}"); a.e(f"s_addc_u32 s{S_KV+1}, s7, 0")
    srd(a, S_KV, S_KV, 32 << 20)
    srd(a, S_X, 60, 2048 * 1152)
    srd(a, S_WQ, 64, 576 * 8192)
    srd(a, S_W2, 68, 512 * 8192)
    srd(a, 72, 4, 256)
    pst(8)
    a.e(f"s_and_b32 s{sT0}, s{sW}, 1"); a.e(f"s_lshl_b32 s{sT0}, s{sT0}, 14")
    act_read_addr(a, vRC, vL, vT, sT0)
    a.e(f"s_lshl_b32 s{sT0}, s{sG}, 14"); a.e(f"s_add_u32 s{sT0}, s{sT0}, 32768")
    a.e(f"s_and_b32 s{sT1}, s{sW}, 2"); a.e(f"s_lshl_b32 s{sT1}, s{sT1}, 1")
    w_read_addr(a, vRW, vL, vT, sT0, sT1, sT2)
    a.e(f"s_lshl_b32 s{sT0}, s{sH}, 20"); a.e(f"s_lshl_b32 s{sT1}, s{sP}, 17"); a.e(f"s_add_u32 s{sT0}, s{sT0}, s{sT1}")
    a.e(f"s_and_b32 s{sT1}, s{sW}, 1"); a.e(f"s_lshl_b32 s{sT1}, s{sT1}, 16"); a.e(f"s_add_u32 s{sT0}, s{sT0}, s{sT1}")
    a.e(f"v_add_u32 v{vST}, s{sT0}, v{vL16}")
    a.e(f"s_sub_u32 s{sT0}, 15, s{sP}"); a.e(f"s_cmp_eq_u32 s{sG}, 0"); a.e(f"s_cselect_b32 s{sT0}, s{sT0}, s{sP}")
    a.e(f"s_lshl_b32 s{sT0}, s{sT0}, 7"); a.e(f"s_lshl_b32 s{sT1}, s{sWL}, 5"); a.e(f"s_add_u32 s{sT0}, s{sT0}, s{sT1}")
    act_dma_offsets(a, vDX, vL, vT, sT0, 1152)
    a.e(f"v_lshrrev_b32 v{vT+2}, 4, v{vL}"); a.e(f"s_lshl_b32 s{sT0}, s{sW}, 3"); a.e(f"v_add_u32 v{vT}, s{sT0}, v{vT+2}")
    a.e(f"v_lshlrev_b32 v{vT}, 13, v{vT}"); a.e(f"s_lshl_b32 s{sT1}, s{sH}, 8"); a.e(f"v_add_u32 v{vT}, s{sT1}, v{vT}")
    a.e(f"v_and_b32 v{vT+1}, 15, v{vL}"); a.e(f"v_lshlrev_b32 v{vT+3}, 1, v{vT+2}"); a.e(f"v_xor_b32 v{vT+1}, v{vT+1}, v{vT+3}")
    a.e(f"s_and_b32 s{sT0}, s{sW}, 1"); a.e(f"s_lshl_b32 s{sT0}, s{sT0}, 3"); a.e(f"v_xor_b32 v{vT+1}, s{sT0}, v{vT+1}")
    a.e(f"v_lshl_add_u32 v{vDWq}, v{vT+1}, 4, v{vT}"); a.e(f"v_add_u32 v{vDWq+1}, {4*8192-1024}, v{vDWq}")
    pst(9)
    for i in range(128): a.e(f"v_mov_b32 v{ACC+i}, 0")
    pst(10)
    pst(11)
    kdma = ([f"s_mov_b32 m0, s{sM0C}", f"s_add_u32 s45, s{sKC}, 131072"] + [dma_c(i) for i in range(4)] + [f"s_mov_b32 m0, s{sM0W}", "s_nop 0"] + [dma_w(i) for i in range(4)]
            + [f"s_add_u32 m0, s{sM0C}, 16384", "s_nop 0"] + [dma_c(i, 45) for i in range(4)] + [f"s_add_u32 m0, s{sM0W}, 16384", "s_nop 0"] + [dma_w(i, S_W2) for i in range(4)] + dma_adv)
    sGW = 3
    PX, PC, PWQ, PWK, PWV = 60, 62, 64, 66, 68
    def touch(parts, R=46, skip=True):
        base = 0; RS = R + 2
        a.e(f"s_mov_b32 s{R}, s6"); a.e(f"s_mov_b32 s{R+1}, s7"); a.e(f"s_mov_b32 s{sT0}, {200 << 20}"); a.e(f"s_mov_b32 s{RS}, 1024")
        for (lo, start, n, wt) in parts:
            a.e(f"s_sub_u32 s{sT1}, s{sGW}, {base}"); a.e(f"s_lshl_b32 s{sT2}, s{sT1}, {16 if wt == 1 else 13}")
            if start: a.e(f"s_add_u32 s{sT2}, s{sT2}, {start}")
            if wt == 1: a.e(f"s_add_u32 s{sT2}, s{sT2}, s59")
            if wt >= 2:
                a.e(f"s_mul_i32 s58, s59, {8 * n}"); a.e(f"s_add_u32 s{sT2}, s{sT2}, s58")
            a.e(f"s_cmp_lt_u32 s{sT1}, {n}")
            a.e(f"s_cselect_b32 s{sT0}, s{sT2}, s{sT0}"); a.e(f"s_cselect_b32 s{R}, s{lo}, s{R}"); a.e(f"s_cselect_b32 s{R+1}, s{lo+1}, s{R+1}")
            if wt == 1: a.e(f"s_cselect_b32 s{RS}, 8192, s{RS}")
            base += n
        ls = a.uid(f"{name}_tsk")
        if skip: a.e(f"s_cmp_eq_u32 s{sT0}, {200 << 20}"); a.e(f"s_cbranch_scc1 {ls}")
        a.e(f"s_add_u32 s{R}, s{R}, s{sT0}"); a.e(f"s_addc_u32 s{R+1}, s{R+1}, 0")
        a.e(f"v_lshrrev_b32 v{vT}, 3, v{vL}"); a.e(f"v_and_b32 v{vT+1}, 7, v{vL}"); a.e(f"v_lshlrev_b32 v{vT+1}, 7, v{vT+1}")
        a.e(f"v_mad_u32_u24 v{vT}, v{vT}, s{RS}, v{vT+1}"); a.e(f"global_load_dword v{vDUM}, v{vT}, s[{R}:{R+1}]")
        a.e(ls + ":")
    WW = lambda r0, n: [(PWK, r0*8192, n // 8, 1), (PWV, r0*8192, n // 8, 1)]
    a.e(f"s_cmp_lt_u32 s{sW}, 4"); a.e(f"s_cbranch_scc0 {name}_vp0")
    for x in kdma: a.e(x)
    a.e(f"s_branch {name}_nop0")
    a.label(f"{name}_vp0")
    a.e(f"s_lshr_b32 s{sGW}, s2, 3"); a.e(f"s_lshl_b32 s{sT0}, s{sWL}, 5"); a.e(f"s_add_u32 s{sGW}, s{sGW}, s{sT0}")
    a.e("s_and_b32 s59, s2, 7"); a.e("s_lshl_b32 s59, s59, 10")
    touch([(PC, 0, 32, 2)] + WW(64, 128), skip=False)
    a.e("s_getpc_b64 s[28:29]")
    a.e(f"{name}_pc:")
    a.e(f"s_sub_u32 s28, s28, {name}_pc - {name}"); a.e("s_subb_u32 s29, s29, 0")
    a.e("s_and_b32 s29, s29, 0xffff"); a.e(f"s_mov_b32 s30, {code_end} - {name}"); a.e("s_mov_b32 s31, 0x20000")
    a.e(f"s_sub_u32 s{sT0}, s{sGW}, 88"); a.e(f"s_lshl_b32 s{sT0}, s{sT0}, 13"); a.e(f"s_min_u32 s{sT0}, s{sT0}, {OOB}")
    a.e(f"v_lshlrev_b32 v{vT}, 7, v{vL}")
    a.e(f"buffer_load_dword v{vDUM}, v{vT}, s[28:31], s{sT0} offen")
    a.e("s_or_b32 s70, s70, 1")
    a.e("v_mov_b32 v126, s70"); a.e("v_mov_b32 v127, 0"); a.e(f"v_mov_b32 v{vT}, 0")
    a.e(f"s_cmp_eq_u32 s{sW}, 7"); a.e(f"s_cselect_b32 s{sT0}, 0, {OOB}")
    a.e("s_mov_b64 exec, 1")
    a.e(f"buffer_atomic_cmpswap v[126:127], v{vT}, s[72:75], s{sT0} offen sc0 sc1")
    a.e("s_mov_b64 exec, -1")
    a.label(f"{name}_nop0")
    pst(7)

    def rd_w(W, ks2):
        r = []
        for d in range(4):
            r.append(f"ds_read_b64_tr_b16 {v(W+4*d,2)}, v{vRW+d} offset:{ks2*8192}")
            r.append(f"ds_read_b64_tr_b16 {v(W+4*d+2,2)}, v{vRW+d} offset:{ks2*8192+1024}")
        return r
    rd_c = lambda t, ks2: f"ds_read_b128 {v(CF+4*(t%4),4)}, v{vRC+ks2} offset:{t*2048}"
    def mf(W, t, d, isK):
        acc = v(ACC + (t*4+d)*4, 4); cf = v(CF+4*(t%4), 4); wf = v(W+4*d, 4)
        return f"{MF} {acc}, {wf}, {cf}, {acc}" if isK else f"{MF} {acc}, {cf}, {wf}, {acc}"
    def qdma(stage):
        sl = stage % 3
        r = [f"s_lshl_b32 s{sT0}, s{sW}, 12", f"s_add_u32 m0, s{sT0}, {XS[sl]}", f"s_mov_b32 s{sT1}, {stage*128}"]
        r += [f"buffer_load_dwordx4 v{vDX+i}, s[{S_X}:{S_X+3}], s{sT1} offen offset:{i*1024} lds" for i in range(4)]
        r += [f"s_lshl_b32 s{sT0}, s{sW}, 11", f"s_add_u32 m0, s{sT0}, {WSL[sl]}", f"s_mov_b32 s{sT1}, {stage*64*8192}"]
        r += [f"buffer_load_dwordx4 v{vDWq+i}, s[{S_WQ}:{S_WQ+3}], s{sT1} offen offset:{i*1024} lds" for i in range(2)]
        return r

    ool = []
    def rot():
        a.e(f"s_add_u32 s{sT0}, s{sGW}, 8"); a.e(f"s_and_b32 s{sT0}, s{sT0}, 31"); a.e(f"s_andn2_b32 s{sGW}, s{sGW}, 31"); a.e(f"s_or_b32 s{sGW}, s{sGW}, s{sT0}")
    SCH = {0: [lambda: touch(WW(192, 128), skip=False)], 1: [lambda: touch(WW(320, 128))], 2: [rot, lambda: touch(WW(448, 64) + [(PX, 0, 36, 2)])],
           3: [rot, rot, lambda: touch([(PWQ, 0, 36, 1)])], 4: [rot, lambda: touch([(PWQ, 288*8192, 36, 1)])]}
    if "xl2" in X:
        SCH[5] = [lambda: touch([(PX, 0, 128, 0)])]; SCH[6] = [lambda: touch([(PX, 128*8192, 128, 0)]), lambda: touch([(PX, 256*8192, 32, 0)])]
    a.e(f"s_cmp_lt_u32 s{sW}, 4"); a.e(f"s_cbranch_scc1 {name}_w3"); a.e("s_waitcnt vmcnt(3)"); a.label(f"{name}_w3")
    NPF = 16
    a.e(f"s_waitcnt vmcnt({NPF})")
    a.e("s_barrier")
    for x in rd_w(WA, 0): a.e(x)
    for t in range(3): a.e(rd_c(t, 0))
    a.e(f"s_mov_b32 s{sIT}, 0")
    a.e(f"s_cmp_lt_u32 s{sW}, 4")
    a.e(f"s_cbranch_scc0 {name}_vfirst")
    def kv_iter(isK, last, tag, first=False):
        wn = rd_w(WB, 1)
        per = {}
        if last:
            dm = qdma(0) + qdma(1)
            for t in range(8): per[t] = dm[len(dm)*t//8: len(dm)*(t+1)//8]
        elif isK and not first:
            dm = ([f"s_mov_b32 m0, s{sM0C}", f"s_add_u32 s45, s{sKC}, 131072"] + [dma_c(i) for i in range(4)] + [f"s_mov_b32 m0, s{sM0W}", "s_nop 0"] + [dma_w(i) for i in range(4)]
                  + [f"s_add_u32 m0, s{sM0C}, 16384", "s_nop 0"] + [dma_c(i, 45) for i in range(4)] + [f"s_add_u32 m0, s{sM0W}, 16384", "s_nop 0"] + [dma_w(i, S_W2) for i in range(4)] + dma_adv)
            ND = 8
            for t in range(ND): per[t] = dm[len(dm)*t//ND: len(dm)*(t+1)//ND]
        for t in range(8):
            a.e(f"s_waitcnt lgkmcnt({[2,4,6,6,6,4,2,2][t]})")
            ms = [mf(WA, t, d, isK) for d in range(4)]
            nt = t + 3
            a.e(ms[0])
            if t < 4: a.e(wn[2*t])
            a.e(ms[1])
            for x in per.get(t, []): a.e(x)
            a.e(ms[2])
            if t < 4: a.e(wn[2*t+1])
            a.e(ms[3])
            a.e(rd_c(nt % 8, 0 if nt < 8 else 1))
        for t in range(6):
            a.e("s_waitcnt lgkmcnt(2)")
            ms = [mf(WB, t, d, isK) for d in range(4)]
            a.e(ms[0]); a.e(ms[1])
            for x in per.get(8 + t, []): a.e(x)
            a.e(ms[2]); a.e(ms[3])
            if t < 5: a.e(rd_c(t + 3, 1))
            if not last and not isK and t == 0:
                r = a.uid(f"{name}_r")
                for itv, fns in SCH.items():
                    if (itv == 0) != first: continue
                    h = a.uid(f"{name}_h")
                    def hook(fns=fns, r=r):
                        for fn in fns: fn()
                        a.e(f"s_branch {r}")
                    ool.append((h, hook))
                    a.e(f"s_cmp_eq_u32 s{sIT}, {itv}"); a.e(f"s_cbranch_scc1 {h}")
                a.e(f"{r}:")
        a.e("s_waitcnt lgkmcnt(0)" + (" vmcnt(6)" if last else (" vmcnt(0)" if isK else "")))
        a.e("s_barrier")
        if not last:
            for r in [vRC, vRC+1, vRW, vRW+1, vRW+2, vRW+3]: a.e(f"v_xor_b32 v{r}, 0x10000, v{r}")
            wn = rd_w(WA, 0)
            for d in range(4):
                a.e(mf(WB, 6, d, isK)); a.e(wn[2*d]); a.e(wn[2*d+1])
            a.e(rd_c(0, 0)); a.e(rd_c(1, 0))
            for d in range(4): a.e(mf(WB, 7, d, isK))
            a.e(rd_c(2, 0))
        else:
            dm = qdma(2)
            ms = [mf(WB, 6 + (n >> 2), n & 3, isK) for n in range(8)]
            for n in range(8):
                a.e(ms[n])
                for x in dm[len(dm)*n//8: len(dm)*(n+1)//8]: a.e(x)
    SC1 = " sc1" if "plain" not in X else ""
    sSB = 66; sNonce = 69; S_FL = 72
    PKR = lambda n: (32 + 4 * n) if n < 8 else (160 + 4 * (n - 8))
    def kv_store(n):
        if "nost" in X: return [f"buffer_load_dword v{vDUM}, v{vL16}, s[{S_KV}:{S_KV+3}], 0 offen"]
        if "stnt" in X: return [f"s_add_u32 s68, s{sSB + ((n >> 1) & 1)}, {((n >> 2) & 1) * 8192 + (n >> 3) * 32768}",
                f"buffer_store_dwordx4 {v(PKR(n),4)}, v{vST}, s[{S_KV}:{S_KV+3}], s68 offen offset:{(n & 1) * 1024} sc1 nt"]
        return [f"s_add_u32 s68, s{sSB + ((n >> 1) & 1)}, {((n >> 2) & 1) * 8192 + (n >> 3) * 32768}",
                f"buffer_store_dwordx4 {v(PKR(n),4)}, v{vST}, s[{S_KV}:{S_KV+3}], s68 offen offset:{(n & 1) * 1024}{SC1}"]
    for isK in (True, False):
        tag = "k" if isK else "v"
        a.label(f"{name}_{tag}first")
        if isK and "kprio" in X: a.e("s_setprio 1")
        kv_iter(isK, False, tag, True)
        if "kvst" in X: _at(4); a.e("s_waitcnt lgkmcnt(0)")
        a.e(f"s_mov_b32 s{sIT}, 1")
        a.label(f"{name}_{tag}loop")
        kv_iter(isK, False, tag)
        if "kvst" in X:
            for i in range(7):
                l_ = a.uid("kvst"); a.e(f"s_cmp_lg_u32 s{sIT}, {i}"); a.e(f"s_cbranch_scc1 {l_}"); _at(4 + i); a.e("s_waitcnt lgkmcnt(0)"); a.e(l_ + ":")
        a.e(f"s_add_u32 s{sIT}, s{sIT}, 1"); a.e(f"s_cmp_lt_u32 s{sIT}, 7"); a.e(f"s_cbranch_scc1 {name}_{tag}loop")
        kv_iter(isK, True, tag)
        if "kvend" in X: _at(4)
        if "kvst" in X: _at(11)
        a.e(f"s_and_b32 s{sT1}, s{sW}, 2")
        if isK:
            a.e(f"s_lshl_b32 s{sSB}, s{sT1}, 10"); a.e(f"s_add_u32 s{sSB+1}, s{sSB}, 4096")
        else:
            a.e(f"s_lshl_b32 s{sSB}, s{sT1}, 11"); a.e(f"s_add_u32 s{sSB}, s{sSB}, 16384"); a.e(f"s_add_u32 s{sSB+1}, s{sSB}, 2048")
        for n in range(16):
            P = PKR(n)
            if isK:
                t = n >> 1; x = n & 1
                t0, t1 = ACC + (t*4 + 2*x)*4, ACC + (t*4 + 2*x + 1)*4
            else:
                y = n >> 2; d = n & 3
                t0, t1 = ACC + (2*y*4 + d)*4, ACC + ((2*y+1)*4 + d)*4
            a.e(f"v_cvt_pk_bf16_f32 v{P}, v{t0}, v{t0+1}"); a.e(f"v_cvt_pk_bf16_f32 v{P+1}, v{t0+2}, v{t0+3}")
            a.e(f"v_cvt_pk_bf16_f32 v{P+2}, v{t1}, v{t1+1}"); a.e(f"v_cvt_pk_bf16_f32 v{P+3}, v{t1+2}, v{t1+3}")
        if isK: a.e(f"s_branch {name}_qproj")
    a.label(f"{name}_qproj")
    if "drop5" in X:
        a.e(f"s_cmp_ge_u32 s{sP}, 5"); a.e(f"s_cselect_b32 s{sSB}, {0x70000000}, s{sSB}"); a.e(f"s_cselect_b32 s{sSB+1}, {0x70000000}, s{sSB+1}")
    a.e(f"v_mov_b32 v127, 0"); a.e("buffer_load_dword v126, v127, s[72:75], 0 offen sc1")
    if "kprio" in X: a.e("s_setprio 0")
    st.at(5)

    vRX = 12; vRWq = 14
    a.e(f"s_add_u32 s58, s6, {WS_CTX}"); a.e("s_addc_u32 s59, s7, 0")
    srd(a, S_CT, 58, 16 << 20)
    a.e(f"s_add_u32 s58, s6, {WS_FLAG}"); a.e("s_addc_u32 s59, s7, 0")
    srd(a, S_FL, 58, 65536)
    vDMA = 4; vKR = 5; vVR = 6; vTHR = 7; vNEG = 8; vPOLL = 9; vMT = 10
    vLS = 40; vM = 42; vLP = 44; vE = 46; NE = 8
    FR = 72; NB = 8
    C = 104; P = 112; S = 128; Q = 160; O = 192
    a.e(f"s_lshr_b32 s{sT0}, s{sW}, 1"); a.e(f"s_lshl_b32 s{sT0}, s{sT0}, 13")
    act_read_addr(a, vRX, vL, vT, sT0)
    a.e(f"s_mov_b32 s{sT0}, {WSL[0]}"); a.e(f"s_and_b32 s{sT1}, s{sW}, 1"); a.e(f"s_lshl_b32 s{sT1}, s{sT1}, 2")
    w_read_addr(a, vRWq, vL, vT, sT0, sT1, sT2)
    SETS = [64, 128]
    def q_reads(F, ks2):
        r = []
        for d in range(4):
            r.append(f"ds_read_b64_tr_b16 {v(F+16+4*d,2)}, v{vRWq+d} offset:{ks2*8192}")
            r.append(f"ds_read_b64_tr_b16 {v(F+16+4*d+2,2)}, v{vRWq+d} offset:{ks2*8192+1024}")
            r.append(f"ds_read_b128 {v(F+4*d,4)}, v{vRX+ks2} offset:{d*2048}")
        return r
    def q_mfmas(F, first=False):
        return [f"{MF} {v(O+(t*4+d)*4,4)}, {v(F+16+4*d,4)}, {v(F+4*t,4)}, {'0' if first else v(O+(t*4+d)*4,4)}" for t in range(4) for d in range(4)]
    def spread(ms, fill, upto):
        out = []; k = 0
        for i, m in enumerate(ms):
            out.append(m)
            tgt = min(len(fill), (len(fill) * (i + 1) + upto - 1) // upto)
            while k < tgt:
                out.append(fill[k]); k += 1
        return out
    for x in q_reads(SETS[0], 0): a.e(x)
    a.e(f"s_lshl_b32 s{sT0}, s{sWL}, 12"); a.e(f"v_add_u32 v{vDMA}, s{sT0}, v{vL16}")
    a.e(f"s_lshl_b32 s{sT1}, s{sG}, 14"); a.e(f"v_add_u32 v{vKR}, s{sT1}, v{vL16}"); a.e(f"v_add_u32 v{vVR}, {VRING}, v{vKR}")
    a.e(f"s_add_u32 s{sM0K}, s{sT0}, s{sT1}"); a.e(f"s_add_u32 s{sM0V}, s{sM0K}, {VRING}")
    a.e(f"s_lshl_b32 s{sKoff}, s{sH}, 20"); a.e(f"s_add_u32 s{sVoff}, s{sKoff}, 16384"); a.e(f"s_add_u32 s{sJump}, s{sKoff}, {17*32768}")
    a.e(f"s_mov_b32 s{sKt}, 0"); a.e(f"s_mov_b32 s{sVt}, 0")
    a.e(f"s_lshl_b32 s{sT0}, s{sP}, 1"); a.e(f"s_add_u32 s{sT0}, s{sT0}, 2"); a.e(f"s_sub_u32 s{sT1}, 15, s{sP}")
    a.e(f"s_cmp_eq_u32 s{sG}, 0")
    a.e(f"s_cselect_b32 s{sTA}, s{sT0}, 99"); a.e(f"s_cselect_b32 s{sI}, s{sT0}, 17"); a.e(f"s_cselect_b32 s{sTile}, s{sP}, s{sT1}")
    a.e(f"s_cselect_b32 s{sSeg}, 0, 1")
    a.e(f"s_cselect_b32 s{sHalf}, 1, 0")
    a.e(f"s_sub_u32 s{sI}, s{sI}, 1")
    a.e(f"s_lshl_b32 s{sR}, s{sTile}, 2"); a.e(f"s_sub_u32 s{sR}, 0, s{sR}")
    a.e(f"s_mov_b32 s{sTH}, {LTHR}"); a.e(f"v_mov_b32 v{vNEG}, {NEG}")
    a.e(f"s_lshl_b32 s{sT0}, s{sWL}, 4"); a.e(f"v_and_b32 v{vT}, 15, v{vL}")
    a.e(f"v_lshrrev_b32 v{vT+1}, 4, v{vL}"); a.e(f"v_lshlrev_b32 v{vT+1}, 2, v{vT+1}"); a.e(f"v_sub_u32 v{vT}, v{vT}, v{vT+1}")
    a.e(f"v_add_u32 v{vTHR}, s{sT0}, v{vT}"); a.e(f"s_sub_u32 s{sT0}, 112, s{sT0}"); a.e(f"v_add_u32 v0, s{sT0}, v{vT}")
    a.e(f"s_lshl_b32 s{sQD}, s{sWL}, 1"); a.e(f"s_sub_u32 s{sQD}, 7, s{sQD}")
    a.e(f"s_lshl_b32 s{sT0}, s{sH}, 10"); a.e(f"v_and_b32 v{vMT}, 7, v{vL}"); a.e(f"v_lshl_add_u32 v{vMT}, v{vMT}, 7, s{sT0}")
    def kv_dma(isK):
        off, m0 = (sKoff, sM0K) if isK else (sVoff, sM0V)
        return [f"s_mov_b32 m0, s{m0}", "s_nop 0"] + [f"buffer_load_dwordx4 v{vDMA}, s[{S_KV}:{S_KV+3}], s{off} offen offset:{i*1024}{'' if 'inv' in X else ' sc1'} lds" for i in range(4)]
    def kv_adv(isK):
        off, tt, m0 = (sKoff, sKt, sM0K) if isK else (sVoff, sVt, sM0V)
        return [f"s_xor_b32 s{m0}, s{m0}, 0x8000", f"s_add_u32 s{tt}, s{tt}, 1", f"s_add_u32 s{off}, s{off}, 32768",
                f"s_add_u32 s{sT2}, s{sJump}, {0 if isK else 16384}", f"s_cmp_eq_u32 s{tt}, s{sTA}", f"s_cselect_b32 s{off}, s{sT2}, s{off}",
                f"s_cmp_ge_u32 s{tt}, 17", f"s_cselect_b32 s{off}, {OOB}, s{off}"]
    NA = [2, 2, 2, 2] + [0] * 6; NBs = [2, 2, 2, 2] + [0] * 6
    if "st5" in X: NA = [2, 2, 2, 2, 2] + [0] * 5; NBs = [1, 1, 1, 1, 2] + [0] * 5
    if "st3" in X: NA = [3, 3, 3] + [0] * 7; NBs = [3, 2, 2] + [0] * 7
    if "stA" in X: NA = [0, 2, 2, 2, 2] + [0] * 5; NBs = [2, 2, 2, 2] + [0] * 6
    lastst = max(i for i in range(9) if NA[i] + NBs[i])
    sdone = [0]
    def add_stores(fl, n, marks):
        out = []; nm = 0; marks = list(marks[:n])
        for x in fl:
            out.append(x)
            if x.startswith("v_mfma"):
                nm += 1
                if marks and nm == marks[0]:
                    marks.pop(0); out += kv_store(sdone[0]); sdone[0] += 1
        return out
    for it in range(9):
        if "qst" in X: _at(2 + it)
        a.e("s_waitcnt lgkmcnt(0)")
        fl = add_stores(spread(q_mfmas(SETS[0], it == 0), q_reads(SETS[1], 1), 12), NA[it], [4, 12] if NA[it] < 3 else [3, 8, 13])
        for x in fl: a.e(x)
        if it < 8:
            if it == 7:
                lw = a.uid(f"{name}_nw7")
                a.e(f"s_cmp_eq_u32 s{sW}, 7"); a.e(f"s_cbranch_scc1 {lw}"); a.e("s_waitcnt vmcnt(0)"); a.e(f"{lw}:")
                a.e("s_waitcnt lgkmcnt(0) vmcnt(1)")
            else:
                a.e(f"s_waitcnt lgkmcnt(0) vmcnt({6 + NA[it] + (NA[it-1] + NBs[it-1] if it else 0) + (1 if it < 2 else 0)})")
            a.e("s_barrier")
            dx = XS[(it+1) % 3] - XS[it % 3]; dw = WSL[(it+1) % 3] - WSL[it % 3]
            for r in (vRX, vRX+1): a.e(f"v_add_u32 v{r}, {dx & 0xffffffff}, v{r}")
            for r in range(vRWq, vRWq+4): a.e(f"v_add_u32 v{r}, {dw & 0xffffffff}, v{r}")
            sig = []
            if it == 2: sig = [f"v_readfirstlane_b32 s{sNonce}, v126"]
            if it == lastst + 2:
                ls = a.uid(f"{name}_sig")
                sig = [f"s_cmp_lg_u32 s{sW}, 7", f"s_cbranch_scc1 {ls}", f"v_mov_b32 v{vPOLL}, s{sNonce}", f"s_lshl_b32 s{sT0}, s{sP}, 7", "s_mov_b64 exec, 1",
                       f"buffer_store_dword v{vPOLL}, v{vMT}, s[{S_FL}:{S_FL+3}], s{sT0} offen sc1",
                       "s_mov_b64 exec, -1", ls + ":"]
            if it == 6:
                ls = a.uid(f"{name}_pl")
                sig += [f"s_cmp_lg_u32 s{sW}, 7", f"s_cbranch_scc1 {ls}", f"buffer_load_dword v{vPOLL}, v{vMT}, s[{S_FL}:{S_FL+3}], 0 offen sc1", ls + ":"]
            if it < 6: dm = qdma(it + 3)
            elif it == 6: dm = []
            else: dm = []
            for x in sig: a.e(x)
            ms = q_mfmas(SETS[1])
            for x in add_stores(spread(ms[:8], q_reads(SETS[0], 0), 8), NBs[it], [2, 6, 8]): a.e(x)
            for x in spread(ms[8:], dm, 8): a.e(x)
        else:
            lw = a.uid(f"{name}_nw7"); lp = a.uid(f"{name}_poll")
            a.e("s_waitcnt vmcnt(0)")
            a.e(f"s_cmp_lg_u32 s{sW}, 7"); a.e(f"s_cbranch_scc1 {lw}")
            a.e(f"s_mov_b32 s{sT1}, 0")
            a.e(f"{lp}:")
            a.e(f"v_cmp_ne_u32 vcc, s{sNonce}, v{vPOLL}")
            a.e(f"s_add_u32 s{sT1}, s{sT1}, 1")
            a.e(f"s_cbranch_vccz {lw}")
            a.e(f"s_cmp_ge_u32 s{sT1}, 0x40000"); a.e(f"s_cbranch_scc1 {lw}")
            a.e(f"buffer_load_dword v{vPOLL}, v{vMT}, s[{S_FL}:{S_FL+3}], 0 offen sc1")
            a.e("s_waitcnt vmcnt(0)")
            a.e(f"s_branch {lp}")
            a.e(f"{lw}:")
            a.e("s_waitcnt lgkmcnt(0)")
            a.e("s_barrier")
            for x in spread(q_mfmas(SETS[1]), kv_dma(True) + kv_adv(True) + kv_dma(True) + kv_adv(True) + kv_dma(False) + kv_adv(False), 12): a.e(x)
    st.at(6)
    if "qst" in X: _at(11)
    a.e(f"s_lshr_b32 s{sT0}, s{sW}, 1"); a.e(f"s_and_b32 s{sT1}, s{sT0}, 1"); a.e(f"s_lshl_b32 s{sT1}, s{sT1}, 14")
    a.e(f"s_lshl_b32 s{sT0}, s{sG}, 15"); a.e(f"s_sub_u32 s{sT0}, s{sT1}, s{sT0}")
    a.e(f"s_and_b32 s{sT1}, s{sW}, 1"); a.e(f"s_lshl_b32 s{sT1}, s{sT1}, 11"); a.e(f"s_add_u32 s{sT0}, s{sT0}, s{sT1}")
    a.e(f"s_add_u32 s{sT0}, s{sT0}, {QSTASH}"); a.e(f"v_add_u32 v{vT}, s{sT0}, v{vL16}")
    a.e(f"s_mov_b32 s{sT1}, {QSCALE}"); a.e(f"v_mov_b32 v{vT+3}, {QSCALE}"); a.e(f"v_mov_b32 v{vT+4}, {QSCALE}")
    a.e("s_nop 2")
    for t in range(4):
        for x in range(2):
            PK = FR + ((t*2+x) % 4) * 4
            t0 = O + (t*4 + 2*x)*4
            if "nopkq" not in X:
                for j in range(4): a.e(f"v_pk_mul_f32 {v(t0+2*j,2)}, {v(t0+2*j,2)}, {v(vT+3,2)}")
            else:
                for j in range(8): a.e(f"v_mul_f32 v{t0+j}, s{sT1}, v{t0+j}")
            for j in range(4): a.e(f"v_cvt_pk_bf16_f32 v{PK+j}, v{t0+2*j}, v{t0+2*j+1}")
            a.e(f"ds_write_b128 v{vT}, {v(PK,4)} offset:{t*4096 + x*1024}")
    a.e("s_waitcnt lgkmcnt(0) vmcnt(8)")
    a.e("s_barrier")
    a.e(f"s_lshl_b32 s{sT0}, s{sWL}, 12"); a.e(f"s_lshl_b32 s{sT1}, s{sG}, 15"); a.e(f"s_add_u32 s{sT0}, s{sT0}, s{sT1}")
    a.e(f"s_add_u32 s{sT0}, s{sT0}, {QTMP}"); a.e(f"v_add_u32 v{vT}, s{sT0}, v{vL16}")
    a.e(f"s_lshl_b32 s{sT1}, s{sQD}, 12"); a.e(f"v_add_u32 v{vT+1}, s{sT1}, v{vT}")
    for f in range(8): a.e(f"ds_read_b128 {v(Q+4*f,4)}, v{vT + (f >> 2)} offset:{(f & 3)*1024}")
    if "noprio" not in X:
        a.e(f"s_cmp_eq_u32 s{sG}, {1 if 'prio0' in X else 0}"); a.e(f"s_cbranch_scc1 {name}_np"); a.e("s_setprio 1"); a.label(f"{name}_np")
    st.at(7)

    Sr = lambda buf, kt, qt: S + buf*16 + (kt*2+qt)*4
    Pr = lambda buf, qt: P + buf*8 + qt*4
    Or = lambda dt, qt: O + (dt*2+qt)*4
    def slot_k(b, n, qts=(0, 1)):
        kt, ds = n >> 2, n & 3
        rd = lambda f: f"ds_read_b128 {v(f,4)}, v{vKR} offset:{((2*b+kt)*4+ds)*1024}"
        def ms(f, czero=False):
            return [f"{MF} {v(Sr(b,kt,qt),4)}, {v(f,4)}, {v(Q+(qt*4+ds)*4,4)}, " + (("0" if czero else v(C+4*qt,4)) if ds == 0 else v(Sr(b,kt,qt),4)) for qt in qts]
        return rd, ms
    def slot_v(b, dt, qts=(0, 1)):
        rd = lambda f: f"ds_read_b128 {v(f,4)}, v{vVR} offset:{(b*8+dt)*1024}"
        ms = lambda f: [f"{MF} {v(Or(dt,qt),4)}, {v(f,4)}, {v(Pr(b,qt),4)}, {v(Or(dt,qt),4)}" for qt in qts]
        return rd, ms
    def mask_block(buf, ret):
        a.e(f"s_lshl_b32 s{sT0}, s{sR}, 5"); a.e(f"v_subrev_u32 v{vMT}, s{sT0}, v{vTHR}"); a.e(f"v_subrev_u32 v{vPOLL}, s{sT0}, v0")
        items = [(kt, qt, rr) for kt in range(2) for qt in range(2) for rr in range(4)]
        for base in range(0, 16, 4):
            for n, (kt, qt, rr) in enumerate(items[base:base+4]):
                a.e(f"v_cmp_le_i32 s[{sMSK+2*n}:{sMSK+2*n+1}], {16*kt+rr}, v{vPOLL if qt else vMT}")
            for n, (kt, qt, rr) in enumerate(items[base:base+4]):
                x = Sr(buf,kt,qt)+rr
                a.e(f"v_cndmask_b32 v{x}, v{vNEG}, v{x}, s[{sMSK+2*n}:{sMSK+2*n+1}]")
        a.e(f"s_branch {ret}")
    def mask_hook(buf):
        h = a.uid(f"{name}_mask"); r = a.uid(f"{name}_mret")
        ool.append((h, lambda: mask_block(buf, r)))
        return [f"s_cmp_ge_i32 s{sR}, 0", f"s_cbranch_scc1 {h}", r + ":", f"s_add_u32 s{sR}, s{sR}, 1"]
    def exp_code_pk(buf):
        r = []; pend = []; k = 0
        for qt in range(2):
            for kt in range(2):
                x = Sr(buf,kt,qt)
                for hf in range(2):
                    e0 = vE + (k % NE); e1 = e0 + 1; k += 2
                    r.append(f"v_exp_f32 v{e0}, v{x+2*hf}")
                    if pend: r.append(pend.pop(0))
                    r.append(f"v_exp_f32 v{e1}, v{x+2*hf+1}")
                    if pend: r.append(pend.pop(0))
                    if kt == 0 and hf == 1: pend.append(f"v_pk_add_f32 {v(vLQ,2)}, {v(vE + ((k - 4) % NE),2)}, {v(e0,2)}")
                    elif kt == 1: pend.append(f"v_pk_add_f32 {v(vLQ,2)}, {v(vLQ,2)}, {v(e0,2)}")
                    pend.append(f"v_cvt_pk_bf16_f32 v{Pr(buf,qt)+2*kt+hf}, v{e0}, v{e1}")
                    if kt == 1 and hf == 1: pend.append(f"v_add_f32 v{vLP+qt}, v{vLQ}, v{vLQ+1}")
        return r + ["s_nop 0"] + pend
    vLQ = 66
    def exp_code(buf, qts=(0, 1)):
        r = []; pend = []; k = 0
        for qt in qts:
            for kt in range(2):
                x = Sr(buf,kt,qt)
                for hf in range(2):
                    e0 = vE + (k % NE); e1 = vE + ((k + 1) % NE); k += 2
                    r.append(f"v_exp_f32 v{e0}, v{x+2*hf}")
                    if pend: r.append(pend.pop(0))
                    r.append(f"v_exp_f32 v{e1}, v{x+2*hf+1}")
                    if pend: r.append(pend.pop(0))
                    if pend: r.append(pend.pop(0))
                    if kt == 0 and hf == 0: pend.append(f"v_add_f32 v{vLP+qt}, v{e0}, v{e1}")
                    else: pend += [f"v_add_f32 v{vLP+qt}, v{vLP+qt}, v{e0}"]
                    pend.append(f"v_cvt_pk_bf16_f32 v{Pr(buf,qt)+2*kt+hf}, v{e0}, v{e1}")
                    if not (kt == 0 and hf == 0): pend.append(f"v_add_f32 v{vLP+qt}, v{vLP+qt}, v{e1}")
        return r + ["s_nop 0"] + pend
    lacc = [f"v_add_f32 v{vLS}, v{vLS}, v{vLP}", f"v_add_f32 v{vLS+1}, v{vLS+1}, v{vLP+1}"]
    def xlane(op, x, t):
        return [f"v_mov_b32 v{t}, v{x}", "s_nop 1", f"v_permlane16_swap_b32 v{x}, v{t}", f"{op} v{x}, v{x}, v{t}",
                f"v_mov_b32 v{t}, v{x}", "s_nop 1", f"v_permlane32_swap_b32 v{x}, v{t}", f"{op} v{x}, v{x}, v{t}"]
    def rare_block(sbuf, other, ret):
        a.e("s_nop 7")
        for qt in range(2):
            d = vT + qt; f = vT + 2 + qt
            x0, x1 = Sr(sbuf,0,qt), Sr(sbuf,1,qt)
            a.e(f"v_max3_f32 v{d}, v{x0}, v{x0+1}, v{x0+2}"); a.e(f"v_max3_f32 v{d}, v{d}, v{x0+3}, v{x1}")
            a.e(f"v_max3_f32 v{d}, v{d}, v{x1+1}, v{x1+2}"); a.e(f"v_max3_f32 v{d}, v{d}, v{x1+3}, 0")
            for x in xlane("v_max_f32", d, vT + 4): a.e(x)
            a.e(f"v_sub_f32 v{f}, 0, v{d}"); a.e(f"v_exp_f32 v{f}, v{f}")
            for b_ in ([sbuf, 1 - sbuf] if other else [sbuf]):
                for kt in range(2):
                    for rr in range(4): a.e(f"v_sub_f32 v{Sr(b_,kt,qt)+rr}, v{Sr(b_,kt,qt)+rr}, v{d}")
            for rr in range(4): a.e(f"v_sub_f32 v{C+4*qt+rr}, v{C+4*qt+rr}, v{d}")
            a.e(f"v_add_f32 v{vM+qt}, v{vM+qt}, v{d}"); a.e(f"v_mul_f32 v{vLS+qt}, v{vLS+qt}, v{f}")
            for dt in range(8):
                for rr in range(4): a.e(f"v_mul_f32 v{Or(dt,qt)+rr}, v{Or(dt,qt)+rr}, v{f}")
        for x in exp_code(sbuf): a.e(x)
        a.e("s_nop 1")
        a.e(f"s_branch {ret}")
    def check(sbuf, other, half=False):
        h = a.uid(f"{name}_rare"); r = a.uid(f"{name}_ret")
        ool.append((h, lambda: rare_block(sbuf, other, r)))
        if half: return [f"v_cmp_nge_f32 vcc, s{sTH}, v{vLP+1}", f"s_cbranch_vccnz {h}", r + ":"]
        return [f"v_add_f32 v{vT}, v{vLP}, v{vLP+1}", f"v_cmp_nge_f32 vcc, s{sTH}, v{vT}", f"s_cbranch_vccnz {h}", r + ":"]
    D = 6 if 'd6' in X else (4 if 'd4' in X else 5)
    def run_slots(slots, fills, nxt, sync_after=None, sync=None, post={}):
        n = len(slots)
        for sidx, (rd, ms) in enumerate(slots):
            f = FR + 4 * (sidx % NB)
            if sync_after is None: out = min(D - 1, n - 1 - sidx + len(nxt[:max(0, sidx + D - n)]))
            else: out = min(D - 1, n - 1 - sidx) if sidx <= sync_after else None
            if out is not None: a.e(f"s_waitcnt lgkmcnt({out})")
            m = ms(f); fl = fills.get(sidx, []); h = (len(fl) + 1) // 2
            a.e(m[0])
            for x in fl[:h]: a.e(x)
            if len(m) > 1: a.e(m[1])
            for x in fl[h:]: a.e(x)
            t = sidx + D
            if t < n: a.e(slots[t][0](FR + 4 * (t % NB)))
            elif sync_after is None:
                if t - n < len(nxt): a.e(nxt[t - n][0](FR + 4 * (t % NB)))
            elif sidx == sync_after:
                for x in sync: a.e(x)
                for tt in range(n, sidx + D + 1): a.e(nxt[tt - n][0](FR + 4 * (tt % NB)))
            elif sidx > sync_after: a.e(nxt[t - n][0](FR + 4 * (t % NB)))
            for x in post.get(sidx, []): a.e(x)
    def distribute(fills, items, lo, hi):
        n = hi - lo
        for i in range(n):
            fills.setdefault(lo + i, []).extend(items[len(items) * i // n: len(items) * (i + 1) // n])
    toggles = [f"v_xor_b32 v{vKR}, 0x8000, v{vKR}", f"v_xor_b32 v{vVR}, 0x8000, v{vVR}"]
    vslots = lambda b, qts=(0, 1): [slot_v(b, dt, qts) for dt in range(8)]
    kslots = lambda b, qts=(0, 1): [slot_k(b, n, qts) for n in range(8)]

    sNext, sEv = 64, 65
    sRole, sA, sB = 66, 67, 68
    SK, SV, SQ, SSK = 8, 12, 20, 24
    SU, SQT = 8, 12
    KR, VR, QR, WR, TP, PR = 54, 28, 11, 36, 68, 46
    wrow = lambda r: (11 + r) if r < 8 else ((28 + r - 8) if r < 20 else (54 + r - 20))
    def side_load(rnd):
        le = a.uid(f"{name}_sle")
        a.e("s_load_dwordx8 s[56:63], s[0:1], 0")
        a.e(f"s_and_b32 s{sA}, s2, 7"); a.e(f"s_lshl_b32 s{sA}, s{sA}, 3"); a.e(f"s_lshr_b32 s{sT0}, s2, 5"); a.e(f"s_add_u32 s{sA}, s{sA}, s{sT0}")
        a.e(f"s_bfe_u32 s{sT0}, s2, 0x20003")
        a.e(f"s_mul_i32 s{sT1}, s{sT0}, 9"); a.e(f"s_add_u32 s{sT1}, s{sT1}, 1"); a.e(f"s_lshr_b32 s{sT1}, s{sT1}, 1")
        a.e(f"s_add_u32 s{sB}, s{sT1}, s{sW}")
        a.e(f"s_and_b32 s{sT1}, s{sT0}, 1"); a.e(f"s_sub_u32 s{sT1}, 5, s{sT1}")
        a.e(f"s_cmp_lt_u32 s{sW}, s{sT1}"); a.e(f"s_cselect_b32 s{sRole}, 1, 0")
        a.e("s_waitcnt lgkmcnt(0)")
        a.e(f"s_cmp_eq_u32 s{sRole}, 0"); a.e(f"s_cbranch_scc1 {le}")
        srd(a, SQ, 56, 2048*1152); srd(a, SK, 58, 2048*1152); srd(a, SV, 60, 2048*1152); srd(a, SSK, 62, 576*8)
        a.e(f"v_lshrrev_b32 v{vT}, 4, v{vL}"); a.e(f"v_and_b32 v{vT+1}, 15, v{vL}")
        a.e(f"s_lshl_b32 s{sT0}, s{sA}, 5"); a.e(f"v_lshl_add_u32 v{vT}, v{vT}, 3, s{sT0}")
        a.e(f"v_mul_u32_u24 v{vT}, 1152, v{vT}"); a.e(f"v_lshl_add_u32 v{vT}, v{vT+1}, 2, v{vT}")
        a.e(f"s_lshl_b32 s{sT0}, s{sB}, 6"); a.e(f"v_add_u32 v{vT}, s{sT0}, v{vT}")
        a.e(f"v_add_u32 v{vT+2}, {(-3456) & 0xffffffff}, v{vT}"); a.e(f"v_add_u32 v{vT+3}, 4608, v{vT}")
        a.e(f"v_lshlrev_b32 v{vT+1}, 4, v{vT+1}"); a.e(f"s_lshl_b32 s{sT0}, s{sB}, 8")
        for i in range(3): a.e(f"buffer_load_dword v{KR+i}, v{vT+2}, s[{SK}:{SK+3}], 0 offen offset:{i*1152}")
        for R_, S_ in ((KR + 3, SK), (VR, SV), (QR, SQ)):
            for i in range(8): a.e(f"buffer_load_dword v{R_+i}, v{vT if i < 4 else vT+3}, s[{S_}:{S_+3}], 0 offen offset:{(i%4)*1152}")
        a.e(f"buffer_load_dwordx4 {v(WR,4)}, v{vT+1}, s[{SSK}:{SSK+3}], s{sT0} offen")
        a.e(f"{le}:")
    SSC = " sc1"
    def side_compute(rnd):
        l3 = a.uid(f"{name}_sc2"); le = a.uid(f"{name}_sce")
        a.e(f"s_cmp_eq_u32 s{sRole}, 0"); a.e(f"s_cbranch_scc1 {le}")
        a.e(f"s_mov_b32 s{sT1}, 0x05040100"); a.e(f"s_mov_b32 s{sT2}, 0x07060302")
        a.e(f"v_lshrrev_b32 v{vT}, 4, v{vL}"); a.e(f"v_and_b32 v{vT+1}, 15, v{vL}")
        a.e(f"s_add_u32 s70, s6, {WS_KVB}"); a.e("s_addc_u32 s71, s7, 0"); srd(a, SU, 70, 576*4096)
        a.e(f"s_add_u32 s70, s6, {WS_QB}"); a.e("s_addc_u32 s71, s7, 0"); srd(a, SQT, 70, 576*4096)
        a.e(f"s_lshl_b32 s{sT0}, s{sA}, 6"); a.e(f"v_lshl_add_u32 v{vT}, v{vT}, 4, s{sT0}")
        a.e(f"v_lshlrev_b32 v{vT+1}, 13, v{vT+1}")
        a.e(f"v_sub_u32 v{vT+2}, 4080, v{vT}"); a.e(f"v_add_u32 v{vT+2}, v{vT+2}, v{vT+1}"); a.e(f"v_add_u32 v{vT}, v{vT}, v{vT+1}")
        a.e(f"s_lshl_b32 s{sT0}, s{sB}, 17")
        for c in range(2):
            sel = sT2 if c else sT1
            for i in range(4): a.e(f"v_perm_b32 v{TP+i}, v{QR+2*i+1}, v{QR+2*i}, s{sel}")
            a.e(f"buffer_store_dwordx4 {v(TP,4)}, v{vT}, s[{SQT}:{SQT+3}], s{sT0} offen{SSC}")
            AC = vT + 3
            for hf in (1, 0):
                for i in range(6):
                    j = 4 * hf - 2 + i
                    a.e(f"v_perm_b32 v{PR+i}, v{KR+j+2}, v{KR+j+3}, s{sel}")
                for i in range(4): a.e(f"v_dot2_f32_bf16 v{AC+i}, v{PR+2+i}, v{WR+2*c}, 0")
                for i in range(4): a.e(f"v_dot2_f32_bf16 v{AC+i}, v{PR+i}, v{WR+2*c+1}, v{AC+i}")
                for i in range(4):
                    a.e(f"v_and_b32 v{PR+i}, 0xffff0000, v{VR+4*hf+i}" if c else f"v_lshlrev_b32 v{PR+i}, 16, v{VR+4*hf+i}")
                for i in range(4): a.e(f"v_mul_f32 v{AC+i}, v{AC+i}, v{PR+i}")
                o = TP + (0 if hf else 2)
                a.e(f"v_cvt_pk_bf16_f32 v{o}, v{AC+3}, v{AC+2}"); a.e(f"v_cvt_pk_bf16_f32 v{o+1}, v{AC+1}, v{AC}")
            a.e(f"buffer_store_dwordx4 {v(TP,4)}, v{vT+2}, s[{SU}:{SU+3}], s{sT0} offen{SSC}")
            a.e(f"s_add_u32 s{sT0}, s{sT0}, 4096"); a.e("s_nop 0")
        a.e(f"{le}:")
    def flag_store(off_code):
        a.e(f"v_mov_b32 v{vT}, s{sNonce}"); a.e(f"v_mov_b32 v{vT+1}, 0")
        for x in off_code: a.e(x)
        a.e("s_mov_b64 exec, 1")
        a.e(f"buffer_store_dword v{vT}, v{vT+1}, s[{S_FL}:{S_FL+3}], s{sT1} offen sc1")
        a.e("s_mov_b64 exec, -1")
    def side_hook(ret):
        L = [a.uid(f"{name}_ev") for _ in range(6)]
        for e in range(1, 6):
            a.e(f"s_cmp_eq_u32 s{sEv}, {e}"); a.e(f"s_cbranch_scc1 {L[e]}")
        a.e(f"s_add_u32 s{sNext}, s{sNext}, 2"); a.e(f"s_mov_b32 s{sEv}, 1")
        side_load(1)
        a.e(f"s_branch {ret}")
        a.e(L[1] + ":")
        a.e(f"s_mov_b32 s{sNext}, 99")
        side_compute(1)
        a.e(f"s_branch {ret}")
        a.e(L[2] + ":")
        a.e(L[3] + ":")
        a.e(f"s_mov_b32 s{sEv}, 4")
        a.e(f"s_lshl_b32 s{sT1}, s{sP}, 1"); a.e(f"s_add_u32 s{sT1}, s{sT1}, 4"); a.e(f"s_add_u32 s{sNext}, s{sNext}, 1"); a.e(f"s_max_u32 s{sNext}, s{sNext}, s{sT1}")
        flag_store([f"s_lshl_b32 s{sT1}, s2, 2", f"s_add_u32 s{sT1}, s{sT1}, 32768"])
        a.e(f"s_branch {ret}")
        a.e(L[5] + ":")
        a.e("s_load_dwordx2 s[8:9], s[0:1], 88"); a.e("s_load_dwordx2 s[10:11], s[0:1], 32")
        a.e(f"s_mov_b32 s{sNext}, 99"); a.e(f"v_lshlrev_b32 v{vT}, 7, v{vL}")
        a.e(f"s_lshl_b32 s{sT0}, s2, 13"); a.e(f"v_add_u32 v{vT}, s{sT0}, v{vT}")
        a.e(f"s_min_u32 s{sT1}, s2, 63"); a.e(f"s_min_u32 s{sT2}, s2, 31")
        a.e(f"s_sub_u32 s{sT1}, s{sT1}, s2"); a.e(f"s_sub_u32 s{sT2}, s{sT2}, s2")
        a.e(f"s_lshl_b32 s{sT1}, s{sT1}, 13"); a.e(f"s_lshl_b32 s{sT2}, s{sT2}, 13")
        a.e(f"v_add_u32 v{vT+1}, {256 << 13}, v{vT}"); a.e(f"v_add_u32 v{vT+2}, s{sT1}, v{vT+1}"); a.e(f"v_add_u32 v{vT+2}, {256 << 13}, v{vT+2}"); a.e(f"v_add_u32 v{vT+3}, s{sT2}, v{vT+1}")
        a.e("s_waitcnt lgkmcnt(0)")
        for r_, b_ in ((0, 8), (1, 8), (2, 8), (0, 10), (3, 10)): a.e(f"global_load_dword v{vDUM}, v{vT+r_}, s[{b_}:{b_+1}]")
        a.e(f"s_branch {ret}")
        a.e(L[4] + ":")
        a.e(f"s_mov_b32 s{sNext}, 99")
        flag_store([f"s_lshl_b32 s{sT1}, s{sP}, 7", f"s_lshl_b32 s{sT2}, s{sH}, 2", f"s_add_u32 s{sT1}, s{sT1}, s{sT2}", f"s_add_u32 s{sT1}, s{sT1}, 36864"])
        a.e(f"s_branch {ret}")
    a.e(f"s_and_b32 s{sT0}, s2, 7"); a.e(f"s_add_u32 s{sT0}, s{sT0}, s{sP}"); a.e(f"s_mul_i32 s{sT1}, s{sT0}, 52"); a.e(f"s_lshr_b32 s{sT1}, s{sT1}, 8"); a.e(f"s_mul_i32 s{sT1}, s{sT1}, 5")
    a.e(f"s_sub_u32 s{sT0}, s{sT0}, s{sT1}"); a.e(f"s_lshl_b32 s{sNext}, s{sT0}, 1"); a.e(f"s_add_u32 s{sNext}, s{sNext}, {3 if 'ph3' in X else 1}"); a.e(f"s_mov_b32 s{sEv}, 0")
    a.e(f"s_add_u32 s{sT0}, s{sNext}, 3"); a.e(f"s_cmp_eq_u32 s{sW}, 7"); a.e(f"s_cselect_b32 s{sNext}, s{sT0}, s{sNext}"); a.e(f"s_cselect_b32 s{sEv}, 2, 0")
    a.e(f"s_lshl_b32 s{sT0}, s{sP}, 1"); a.e(f"s_add_u32 s{sT0}, s{sT0}, 2"); a.e(f"s_min_u32 s{sT0}, s{sT0}, 14")
    a.e(f"s_cmp_eq_u32 s{sW}, 6"); a.e(f"s_cselect_b32 s{sNext}, s{sT0}, s{sNext}"); a.e(f"s_cselect_b32 s{sEv}, 5, s{sEv}")

    a.label(f"{name}_seg")
    k0 = kslots(0); k1s = kslots(1)
    for t in range(D): a.e(k0[t][0](FR + 4 * t))
    zero = [f"v_mov_b32 v{O+i}, 0" for i in range(64)] + [f"v_mov_b32 v{vLS}, 0", f"v_mov_b32 v{vLS+1}, 0"]
    fills = {}; distribute(fills, zero, 0, 8)
    run_slots([(rd, (lambda ms: (lambda f: ms(f, True)))(ms)) for rd, ms in k0], fills, k1s)
    a.e("s_nop 3")
    for x in mask_hook(0): a.e(x)
    for qt in range(2):
        d = vM + qt; x0, x1 = Sr(0,0,qt), Sr(0,1,qt)
        a.e(f"v_max3_f32 v{d}, v{x0}, v{x0+1}, v{x0+2}"); a.e(f"v_max3_f32 v{d}, v{d}, v{x0+3}, v{x1}")
        a.e(f"v_max3_f32 v{d}, v{d}, v{x1+1}, v{x1+2}"); a.e(f"v_max_f32 v{d}, v{d}, v{x1+3}")
    for x0_, x1_ in zip(xlane("v_max_f32", vM, vT + 4), xlane("v_max_f32", vM + 1, vT + 5)):
        a.e(x0_)
        if not x1_.startswith("s_nop"): a.e(x1_)
    for qt in range(2):
        for rr in range(4): a.e(f"v_sub_f32 v{C+4*qt+rr}, 0, v{vM+qt}")
    sub0 = [f"v_sub_f32 v{Sr(0,kt,qt)+rr}, v{Sr(0,kt,qt)+rr}, v{vM+qt}" for qt in range(2) for kt in range(2) for rr in range(4)]
    fills = {}; distribute(fills, sub0 + exp_code(0), 0, 8)
    labA = a.uid(f"{name}_wa")
    sync = ["s_waitcnt lgkmcnt(0)", f"s_cmp_lg_u32 s{sKt}, 2", f"s_cbranch_scc1 {labA}", "s_waitcnt vmcnt(0)", labA + ":", "s_waitcnt vmcnt(8)",
            "s_barrier", f"v_xor_b32 v{vKR}, 0x8000, v{vKR}"]
    run_slots(k1s, fills, vslots(0), sync_after=4, sync=sync)
    dK, dV = kv_dma(True), kv_dma(False)
    a.e(f"s_mov_b32 s{sN}, s{sHalf}")
    a.e(f"s_cmp_eq_u32 s{sI}, 0"); a.e(f"s_cbranch_scc1 {name}_tailh")
    a.e(f"s_cmp_ge_u32 s{sN}, s{sI}"); a.e(f"s_cbranch_scc1 {name}_lasth")
    def body(half):
        hk = a.uid(f"{name}_side"); hr = a.uid(f"{name}_sret")
        ool.append((hk, lambda: side_hook(hr)))
        a.e(f"s_cmp_eq_u32 s{sVt}, s{sNext}"); a.e(f"s_cbranch_scc1 {hk}"); a.e(f"{hr}:")
        q = (1,) if half else (0, 1)
        slots = vslots(0) + kslots(0, q) + vslots(1) + kslots(1, q)
        fills = {}; post = {}
        fills[0] = list(lacc); fills[16] = list(lacc)
        post[1] = mask_hook(1); post[17] = mask_hook(0)
        distribute(fills, exp_code(1), 2, 16); post[15] = check(1, True)
        distribute(fills, exp_code(0, q), 18, 32); post[31] = check(0, True, half)
        f2 = {0: dK[:3], 1: [dK[3]], 2: [dK[4]], 3: [dK[5]], 16: dV[:3], 17: [dV[3]], 18: [dV[4]], 19: [dV[5]]}
        distribute(f2, kv_adv(True) + kv_adv(False) + [f"s_add_u32 s{sN}, s{sN}, 1"], 21, 27)
        for k_, v_ in f2.items(): fills[k_] = v_ + fills.get(k_, [])
        if half: fills[0] = ["s_nop 1"] + fills[0]
        run_slots(slots, fills, vslots(0), sync_after=28, sync=["s_waitcnt lgkmcnt(0) vmcnt(0)", "s_barrier"] + toggles, post=post)
    def tail(half):
        q = (1,) if half else (0, 1)
        la = lacc[1:] if half else lacc
        fills = {0: list(la), 8: list(la)}; post = {(2 if half else 1): mask_hook(1), 7: check(1, False, half) + ["s_nop 0"]}
        distribute(fills, exp_code(1, q), 3 if half else 2, 8)
        xl = []
        for x0_, x1_ in zip(xlane("v_add_f32", vLS, vT + 4), xlane("v_add_f32", vLS + 1, vT + 5)):
            xl.append(x0_)
            if not x1_.startswith("s_nop"): xl.append(x1_)
        xl += [f"v_rcp_f32 v{vT}, v{vLS}", f"v_rcp_f32 v{vT+3}, v{vLS+1}", "s_nop 0", f"v_mov_b32 v{vT+2}, v{vT}", f"v_mov_b32 v{vT+1}, v{vT}", f"v_mov_b32 v{vT+4}, v{vT+3}",
               f"s_lshl_b32 s{sT0}, s{sTile}, 3", f"s_add_u32 s{sT0}, s{sT0}, s{sWL}",
               f"s_lshl_b32 s{sT0}, s{sT0}, 17", f"s_lshl_b32 s{sT1}, s{sH}, 12", f"s_add_u32 s{sT0}, s{sT0}, s{sT1}"]
        distribute(fills, xl, 9, 16)
        run_slots(vslots(0, q) + vslots(1, q), fills, [], post=post)
    a.label(f"{name}_loop")
    if "phst" in X or "phst2" in X:
        for i in range(10):
            l_ = a.uid("phst"); a.e(f"s_cmp_lg_u32 s{sVt}, {i + (1 if 'phst' in X else 7)}"); a.e(f"s_cbranch_scc1 {l_}"); _at(2 + i); a.e("s_waitcnt lgkmcnt(0)"); a.e(l_ + ":")
    body(False)
    a.e(f"s_cmp_lt_u32 s{sN}, s{sI}"); a.e(f"s_cbranch_scc1 {name}_loop")
    a.e(f"s_cmp_lg_u32 s{sHalf}, 0"); a.e(f"s_cbranch_scc1 {name}_lasth")
    a.label(f"{name}_tail")
    tail(False)
    a.e(f"s_branch {name}_final")
    a.label(f"{name}_lasth")
    body(True)
    a.label(f"{name}_tailh")
    nd = a.uid(f"{name}_nd")
    a.e(f"s_cmp_lg_u32 s{sSeg}, 0"); a.e(f"s_cbranch_scc1 {nd}")
    for x in dK + dV + kv_adv(True) + kv_adv(False): a.e(x)
    a.e(f"{nd}:")
    tail(True)
    a.e("s_nop 3")
    a.e(f"s_cmp_lg_u32 s{sSeg}, 0"); a.e(f"s_cbranch_scc1 {name}_final")
    a.e(f"s_lshl_b32 s{sT1}, s{sWL}, 12"); a.e(f"s_add_u32 s{sT1}, s{sT1}, {QSTASH}"); a.e(f"v_add_u32 v{vT+6}, s{sT1}, v{vL16}")
    a.e(f"s_lshl_b32 s{sT1}, s{sQD}, 12"); a.e(f"v_add_u32 v{vT+7}, s{sT1}, v{vT+6}")
    for f in range(8): a.e(f"ds_read_b128 {v(Q+4*f,4)}, v{vT + 6 + (f >> 2)} offset:{(f & 3)*1024}")
    a.e(f"s_lshl_b32 s{sT1}, s{sQD}, 17"); a.e(f"s_add_u32 s{sT1}, s{sT1}, s{sT0}")
    for x in range(4):
        for qt in range(2):
            PK = S + ((x*2+qt) % 8) * 4
            for dt in (2*x, 2*x+1):
                for rr in (0, 2): a.e(f"v_pk_mul_f32 {v(Or(dt,qt)+rr,2)}, {v(Or(dt,qt)+rr,2)}, {v(vT+1+2*qt,2)}")
            a.e(f"v_cvt_pk_bf16_f32 v{PK}, v{Or(2*x,qt)}, v{Or(2*x,qt)+1}"); a.e(f"v_cvt_pk_bf16_f32 v{PK+1}, v{Or(2*x,qt)+2}, v{Or(2*x,qt)+3}")
            a.e(f"v_cvt_pk_bf16_f32 v{PK+2}, v{Or(2*x+1,qt)}, v{Or(2*x+1,qt)+1}"); a.e(f"v_cvt_pk_bf16_f32 v{PK+3}, v{Or(2*x+1,qt)+2}, v{Or(2*x+1,qt)+3}")
            a.e(f"buffer_store_dwordx4 {v(PK,4)}, v{vL16}, s[{S_CT}:{S_CT+3}], s{sT1 if qt else sT0} offen offset:{x*1024} sc1")
    a.e(f"v_xor_b32 v{vVR}, 0x8000, v{vVR}")
    a.e(f"s_mov_b32 s{sSeg}, 1")
    a.e(f"s_sub_u32 s{sTile}, 15, s{sP}")
    a.e(f"s_lshl_b32 s{sT0}, s{sP}, 1"); a.e(f"s_sub_u32 s{sI}, 14, s{sT0}")
    a.e(f"s_lshl_b32 s{sR}, s{sTile}, 2"); a.e(f"s_sub_u32 s{sR}, 34, s{sR}")
    a.e(f"s_branch {name}_seg")
    a.label(f"{name}_final")
    st.at(9)
    vP1, vP2, vZ = 60, 64, 65
    a.e("s_load_dwordx2 s[4:5], s[0:1], 88"); a.e("s_load_dwordx2 s[16:17], s[0:1], 96")
    a.e(f"s_lshr_b32 s53, s{sH}, 2"); a.e("s_lshl_b32 s56, s53, 4"); a.e("s_add_u32 s56, s56, 36864"); a.e(f"s_lshl_b32 s71, s{sP}, 7")
    a.e("s_add_u32 s70, s56, s71"); a.e(f"s_sub_u32 s71, {15*128}, s71"); a.e("s_add_u32 s71, s71, s56")
    a.e("s_mov_b32 s52, 32768")
    pollS = f"buffer_load_dwordx4 {v(vP1,4)}, v{vL16}, s[{S_FL}:{S_FL+3}], s52 offen sc1"
    pollC = f"buffer_load_dword v{vP2}, v{vZ}, s[{S_FL}:{S_FL+3}], s70 offen sc1"
    a.e(f"v_and_b32 v{vZ}, 3, v{vL}"); a.e(f"v_lshlrev_b32 v{vZ}, 2, v{vZ}")
    a.e(pollC)
    vOWN, vPAR, vOM, vPM = vT + 6, vT + 7, vT + 8, vT
    a.e(f"s_lshl_b32 s{sT1}, s{sW}, 13"); a.e(f"v_add_u32 v{vOWN}, s{sT1}, v{vL16}"); a.e(f"v_xor_b32 v{vPAR}, 0x8000, v{vOWN}")
    a.e(f"s_lshl_b32 s{sT1}, s{sW}, 10"); a.e(f"s_add_u32 s{sT1}, s{sT1}, {155648}"); a.e(f"v_add_u32 v{vOM}, s{sT1}, v{vL16}"); a.e(f"v_xor_b32 v{vPM}, 0x1000, v{vOM}")
    a.e(f"ds_write_b128 v{vOM}, {v(vLS,4)}")
    a.e(f"s_lshl_b32 s{sT1}, s{sG}, 11"); a.e(f"s_add_u32 s{sT0}, s{sT0}, s{sT1}"); a.e(f"s_lshl_b32 s{sT1}, s{sQD}, 17"); a.e(f"s_add_u32 s{sT1}, s{sT1}, s{sT0}")
    lg1 = a.uid(f"{name}_g1"); lgd = a.uid(f"{name}_gd")
    sItem, sNT, sCG, sTq, sKQ = 48, 49, 50, 51, 53
    uT0, uT1, uT2 = 66, 67, 68
    def o_setup():
        a.e(f"s_and_b32 s{uT0}, s2, 7"); a.e(f"s_mul_i32 s{sCG}, s{uT0}, 18"); a.e(f"s_lshr_b32 s{uT1}, s2, 3"); a.e(f"s_sub_u32 s{uT1}, s{uT1}, 7")
        a.e(f"s_add_u32 s{sCG}, s{sCG}, s{uT1}"); a.e(f"s_cmp_lt_u32 s{uT1}, 18"); a.e(f"s_cselect_b32 s{sCG}, s{sCG}, -1")
        a.e(f"s_and_b32 s51, s{sH}, 3")
        ko.gemm_setup(a, sW, sP, 51, 53, (uT0, uT1, uT2))
    a.e(f"s_cmp_eq_u32 s{sG}, 0"); a.e(f"s_cbranch_scc0 {lg1}")
    XM = 56
    for g in range(2):
        keep = O + 32 * g; send = O + 32 * (1 - g)
        if g == 1: a.label(lg1)
        for n in range(8): a.e(f"ds_write_b128 v{vOWN}, {v(send+4*n,4)} offset:{n*1024}")
        a.e("s_waitcnt lgkmcnt(0)")
        o_setup()
        ko.gemm_vsetup(a, vL, vL16, 38, g == 0)
        a.e("s_barrier")
        a.e(f"ds_read_b128 {v(XM,4)}, v{vPM}")
        for n in range(8): a.e(f"ds_read_b128 {v(FR+4*n,4)}, v{vPAR} offset:{n*1024}")
        if g == 0 and False:
            for gg in (2, 3):
                for x in ko.gemm_wl(gg, (uT0, uT1, uT2)): a.e(x)
        a.e("s_waitcnt lgkmcnt(8)")
        for qt in range(2):
            mm = vE + 4*qt; e0 = mm + 1; e1 = mm + 2
            a.e(f"v_max_f32 v{mm}, v{vM+qt}, v{XM+2+qt}"); a.e(f"v_sub_f32 v{e0}, v{vM+qt}, v{mm}"); a.e(f"v_sub_f32 v{e1}, v{XM+2+qt}, v{mm}")
            a.e(f"v_exp_f32 v{e0}, v{e0}"); a.e(f"v_exp_f32 v{e1}, v{e1}"); a.e("s_nop 0")
            a.e(f"v_mul_f32 v{mm}, v{e0}, v{vLS+qt}"); a.e(f"v_fmac_f32 v{mm}, v{e1}, v{XM+qt}"); a.e(f"v_rcp_f32 v{mm}, v{mm}"); a.e("s_nop 0")
            a.e(f"v_mul_f32 v{e0}, v{e0}, v{mm}"); a.e(f"v_mul_f32 v{e1}, v{e1}, v{mm}")
        for xx in range(2):
            for qt in range(2):
                n0 = (2*xx)*2 + qt; n1 = (2*xx+1)*2 + qt
                for n in (n0, n1):
                    for rr in range(4): a.e(f"v_mul_f32 v{keep+4*n+rr}, v{keep+4*n+rr}, v{vE+4*qt+1}")
                a.e(f"s_waitcnt lgkmcnt({7 - n1})")
                for n in (n0, n1):
                    for rr in range(4): a.e(f"v_fmac_f32 v{keep+4*n+rr}, v{FR+4*n+rr}, v{vE+4*qt+2}")
                PK = S + (xx*2+qt)*4
                a.e(f"v_cvt_pk_bf16_f32 v{PK}, v{keep+4*n0}, v{keep+4*n0+1}"); a.e(f"v_cvt_pk_bf16_f32 v{PK+1}, v{keep+4*n0+2}, v{keep+4*n0+3}")
                a.e(f"v_cvt_pk_bf16_f32 v{PK+2}, v{keep+4*n1}, v{keep+4*n1+1}"); a.e(f"v_cvt_pk_bf16_f32 v{PK+3}, v{keep+4*n1+2}, v{keep+4*n1+3}")
                a.e(f"buffer_store_dwordx4 {v(PK,4)}, v{vL16}, s[{S_CT}:{S_CT+3}], s{sT1 if qt else sT0} offen offset:{xx*1024} sc1")
        if g == 0: a.e(f"s_branch {name}_convw")
    st.at(10)
    T3 = (sT0, sT1, sT2)
    G = ko.Gemm(a, name, T3, vL16, " sc1", S_FL, sNonce, _at if "gst" in X else None)
    a.e(f"v_mov_b32 v16, v{vZ}")
    a.e("s_waitcnt vmcnt(4)")
    a.e(f"v_cmp_ne_u32 vcc, s{sNonce}, v{vP2}"); a.e("s_mov_b32 s66, vcc_lo")
    a.e(f"s_cbranch_vccnz {name}_late")
    G.first_loads(False)
    a.e("s_waitcnt vmcnt(16)")
    a.e(f"s_branch {name}_late2")
    a.label(f"{name}_late")
    a.e("s_waitcnt vmcnt(0)")
    a.label(f"{name}_late2")
    a.e("s_barrier")
    st.at(8)
    a.e(f"s_cmp_lg_u32 s{sW}, 7"); a.e(f"s_cbranch_scc1 {name}_nsg")
    for x in [f"v_mov_b32 v{vT}, s{sNonce}", f"v_mov_b32 v{vT+1}, 0", f"s_lshl_b32 s{sT2}, s{sH}, 2", f"s_and_b32 s{sT2}, s{sT2}, 15",
              f"s_add_u32 s{sT0}, s71, s{sT2}", f"s_add_u32 s{sT1}, s70, s{sT2}", "s_mov_b64 exec, 1",
              f"buffer_store_dword v{vT}, v{vT+1}, s[{S_FL}:{S_FL+3}], s{sT0} offen sc1",
              f"buffer_store_dword v{vT}, v{vT+1}, s[{S_FL}:{S_FL+3}], s{sT1} offen sc1", "s_mov_b64 exec, -1"]: a.e(x)
    a.label(f"{name}_nsg")
    a.e("s_cmp_eq_u32 s66, 0"); a.e(f"s_cbranch_scc1 {name}_rdy")
    G.spin(f"buffer_load_dword v15, v16, s[{S_FL}:{S_FL+3}], s70 offen sc1")
    G.first_loads(False)
    a.label(f"{name}_rdy")
    if True: a.e("s_barrier")
    st.at(2)
    G.first_loads(True)
    G.main(f"buffer_load_dword v15, v16, s[{S_FL}:{S_FL+3}], s71 offen sc1")
    a.e(f"s_branch {name}_fin")
    a.label(f"{name}_convw")
    if True:
        for gg in (2, 3):
            for x in ko.gemm_wl(gg, T3): a.e(x)
        a.e("s_waitcnt vmcnt(18)")
        a.e("s_barrier")
        a.e("s_waitcnt vmcnt(0)")
        a.e("s_barrier")
    else:
        a.e("s_waitcnt vmcnt(0)")
        a.e("s_barrier")
    for gg in range(2):
        for x in ko.gemm_wl(gg, T3): a.e(x)
    a.e(f"v_mov_b32 v{vT}, {ko.CNT}"); a.e(f"v_mov_b32 v{vT+1}, 0"); a.e(f"ds_write_b32 v{vT}, v{vT+1}")
    a.e("s_waitcnt vmcnt(0) lgkmcnt(0)")
    a.e("s_barrier")
    a.e(f"s_cmp_eq_u32 s{sCG}, -1"); a.e(f"s_cbranch_scc1 {name}_fin")
    a.e(f"s_mov_b32 s{sT0}, 0")
    a.label(f"{name}_ssp")
    a.e(pollS); a.e("s_waitcnt vmcnt(0)")
    for r in range(4): a.e(f"v_xor_b32 v{vP1+r}, s{sNonce}, v{vP1+r}")
    a.e(f"v_or3_b32 v{vP1}, v{vP1}, v{vP1+1}, v{vP1+2}"); a.e(f"v_or_b32 v{vP1}, v{vP1}, v{vP1+3}"); a.e(f"v_cmp_ne_u32 vcc, 0, v{vP1}")
    a.e(f"s_add_u32 s{sT0}, s{sT0}, 1"); a.e(f"s_cbranch_vccz {name}_sok")
    a.e(f"s_cmp_lt_u32 s{sT0}, 0x40000"); a.e(f"s_cbranch_scc1 {name}_ssp")
    a.label(f"{name}_sok")
    a.e("s_barrier")
    ko.gen_conv(a, name, st, sW, sCG, T3, vL, vL16, " sc1")
    a.label(f"{name}_fin")
    if diag: a.e("s_waitcnt vmcnt(0)")
    st.at(11); st.at(12, True)
    if "dbgst" in X:
        a.e(f"s_cmp_lg_u32 s{sW}, 4"); a.e(f"s_cbranch_scc1 {name}_end")
        st.dump_dbg(sNonce, [1, 5, 7, 9, 10, 2, 12])
    else: st.dump(6, sW)
    a.label(f"{name}_end")
    a.e("s_endpgm")
    i = 0
    while i < len(ool):
        lab, fn = ool[i]; a.label(lab); fn(); i += 1
    a.label(code_end)
    a.e("s_endpgm")
    a.e = _e
    kernel_desc(a, name, 256, 102)
```

```python
from asmlib import *
import ko
from k1 import MF, WS_KV, WS_CTX, WS_WOF, WS_KVB, WS_QB, wg_decode, act_dma_offsets, w_dma_offsets, act_read_addr, w_read_addr

QSCALE = 0x3e0293ee
NEG = 0xf149f2ca
LTHR = 0x4e800000
OOB = 0x7ff00000
WS_FLAG = 64 << 20

def gen_ka(a, name="ka_kernel", diag=False, X=(), code_end=None):
    kernel_begin(a, name)
    code_end = f"{name}_code_end"
    st = Stamps(a, diag, 0, 76)
    _at = st.at
    pst = (lambda i: (_at(i), a.e("s_waitcnt lgkmcnt(0)"))) if "prost" in X else (lambda i: None)
    if "qst" in X or "phst" in X or "phst2" in X: st.at = lambda i, real=False: _at(i, real) if (i < 2 or i == 12) else None
    if "gst" in X: st.at = lambda i, real=False: _at(i, real) if (i < 3 or i == 12) else None
    if "g2" in X: st.at = lambda i, real=False: _at(i, real) if (i in (0, 1, 2, 3, 4, 10, 11, 12)) else None
    if "prost" in X: st.at = lambda i, real=False: _at(i, real) if (i < 4 or i == 12) else None
    if "kvst" in X:
        _at = st.at
        st.at = lambda i, real=False: _at(i, real) if (i < 4 or i == 12) else None
    _e = a.e
    def e2(x):
        if x.endswith(":"): a.label(x[:-1])
        else: _e(x)
    a.e = e2
    S_C, S_W, S_KV, S_X, S_WQ, S_CT = 8, 12, 16, 20, 24, 28
    sW, sH, sP, sG, sWL = 32, 33, 34, 35, 36
    sT0, sT1, sT2 = 37, 38, 39
    sIT, sKC, sKW, sM0C, sM0W = 40, 41, 42, 43, 44
    sRole, sA, sB = 45, 46, 47
    S_S = 48
    S_DBG = 72
    sI, sN, sKoff, sVoff, sKt, sVt, sM0K, sM0V = 40, 41, 42, 43, 44, 45, 46, 47
    sTA, sJump, sSeg, sR, sTH, sTile, sKX, sKWq = 48, 49, 50, 51, 52, 53, 54, 55
    sQD = 55; sHalf = 54
    sMSK = 56
    vL = 1; vL16 = 2; vDUM = 3
    vDC = 4; vDW = 8; vRC = 12; vRW = 14; vST = 18; vT = 19
    vDX = 28; vDWq = 124
    CF = 32; WA, WB = 48, 64; ACC = 128
    XS = [0, 131072, 65536]; WSL = [32768, 49152, 98304]
    VRING = 65536; QTMP = 98304; QSTASH = 131072

    a.e("s_cmp_ge_u32 s2, 256")
    a.e(f"s_cbranch_scc1 {name}_end")
    st.at(0); st.at(1, True)
    a.e("s_load_dwordx8 s[60:67], s[0:1], 48")
    a.e("s_load_dwordx2 s[68:69], s[0:1], 80")
    a.e("s_memrealtime s[70:71]")
    a.e("s_load_dwordx4 s[4:7], s[0:1], 104")
    a.e(f"v_lshrrev_b32 v{vT}, 6, v0")
    a.e(f"v_and_b32 v{vL}, 63, v0")
    a.e(f"v_readfirstlane_b32 s{sW}, v{vT}")
    a.e(f"v_lshlrev_b32 v{vL16}, 4, v{vL}")
    wg_decode(a, sH, sP, sT0, sT1)
    a.e(f"s_lshr_b32 s{sG}, s{sW}, 2")
    a.e(f"s_and_b32 s{sWL}, s{sW}, 3")
    a.e(f"s_lshl_b32 s{sT0}, s{sP}, 8")
    a.e(f"s_lshl_b32 s{sT1}, s{sW}, 5")
    a.e(f"s_add_u32 s{sT0}, s{sT0}, s{sT1}")
    act_dma_offsets(a, vDC, vL, vT, sT0, 1024)
    a.e(f"s_lshl_b32 s{sT0}, s{sWL}, 4")
    a.e(f"s_lshl_b32 s{sT1}, s{sH}, 8")
    w_dma_offsets(a, vDW, vL, vT, sT0, sT1, [(0, 0), (1, 0), (2, 1), (3, 1)])
    a.e(f"s_lshl_b32 s{sM0C}, s{sW}, 12")
    a.e(f"s_add_u32 s{sM0W}, s{sM0C}, 32768")
    a.e(f"s_mov_b32 s{sKC}, 0")
    a.e(f"s_mov_b32 s{sKW}, 0")
    pst(4)
    a.e("s_waitcnt lgkmcnt(0)")
    pst(5)
    srd(a, S_C, 62, 2048 * 1024)
    a.e(f"s_cmp_lt_u32 s{sW}, 4")
    a.e("s_cselect_b32 s46, s66, s68")
    a.e("s_cselect_b32 s47, s67, s69")
    srd(a, S_W, 46, 512 * 8192)
    S_W2 = 28
    dma_c = lambda i, so=sKC: f"buffer_load_dwordx4 v{vDC+i}, s[{S_C}:{S_C+3}], s{so} offen offset:{i*1024} lds"
    dma_w = lambda i, S=S_W: f"buffer_load_dwordx4 v{vDW+i}, s[{S}:{S+3}], s{sKW} offen offset:{i*1024} lds"
    dma_adv = [f"s_add_u32 s{sKC}, s{sKC}, 128", f"s_add_u32 s{sKW}, s{sKW}, {64*8192}",
               f"s_xor_b32 s{sM0C}, s{sM0C}, 0x10000", f"s_xor_b32 s{sM0W}, s{sM0W}, 0x10000"]
    if "wf" in X:
        a.e(f"s_mov_b32 m0, s{sM0W}"); a.e("s_nop 0")
        for i in range(4): a.e(dma_w(i))
    a.e(f"s_mov_b32 m0, s{sM0C}"); a.e("s_nop 0")
    for i in range(4): a.e(dma_c(i))
    if "wf" not in X:
        a.e(f"s_mov_b32 m0, s{sM0W}"); a.e("s_nop 0")
        for i in range(4): a.e(dma_w(i))
    for x in dma_adv: a.e(x)
    pst(6)
    a.e(f"s_add_u32 s{S_KV}, s6, {WS_KV}"); a.e(f"s_addc_u32 s{S_KV+1}, s7, 0")
    srd(a, S_KV, S_KV, 32 << 20)
    srd(a, S_X, 60, 2048 * 1152)
    srd(a, S_WQ, 64, 576 * 8192)
    srd(a, S_W2, 68, 512 * 8192)
    srd(a, 72, 4, 256)
    pst(8)
    a.e(f"s_and_b32 s{sT0}, s{sW}, 1"); a.e(f"s_lshl_b32 s{sT0}, s{sT0}, 14")
    act_read_addr(a, vRC, vL, vT, sT0)
    a.e(f"s_lshl_b32 s{sT0}, s{sG}, 14"); a.e(f"s_add_u32 s{sT0}, s{sT0}, 32768")
    a.e(f"s_and_b32 s{sT1}, s{sW}, 2"); a.e(f"s_lshl_b32 s{sT1}, s{sT1}, 1")
    w_read_addr(a, vRW, vL, vT, sT0, sT1, sT2)
    a.e(f"s_lshl_b32 s{sT0}, s{sH}, 20"); a.e(f"s_lshl_b32 s{sT1}, s{sP}, 17"); a.e(f"s_add_u32 s{sT0}, s{sT0}, s{sT1}")
    a.e(f"s_and_b32 s{sT1}, s{sW}, 1"); a.e(f"s_lshl_b32 s{sT1}, s{sT1}, 16"); a.e(f"s_add_u32 s{sT0}, s{sT0}, s{sT1}")
    a.e(f"v_add_u32 v{vST}, s{sT0}, v{vL16}")
    a.e(f"s_sub_u32 s{sT0}, 15, s{sP}"); a.e(f"s_cmp_eq_u32 s{sG}, 0"); a.e(f"s_cselect_b32 s{sT0}, s{sT0}, s{sP}")
    a.e(f"s_lshl_b32 s{sT0}, s{sT0}, 7"); a.e(f"s_lshl_b32 s{sT1}, s{sWL}, 5"); a.e(f"s_add_u32 s{sT0}, s{sT0}, s{sT1}")
    act_dma_offsets(a, vDX, vL, vT, sT0, 1152)
    a.e(f"v_lshrrev_b32 v{vT+2}, 4, v{vL}"); a.e(f"s_lshl_b32 s{sT0}, s{sW}, 3"); a.e(f"v_add_u32 v{vT}, s{sT0}, v{vT+2}")
    a.e(f"v_lshlrev_b32 v{vT}, 13, v{vT}"); a.e(f"s_lshl_b32 s{sT1}, s{sH}, 8"); a.e(f"v_add_u32 v{vT}, s{sT1}, v{vT}")
    a.e(f"v_and_b32 v{vT+1}, 15, v{vL}"); a.e(f"v_lshlrev_b32 v{vT+3}, 1, v{vT+2}"); a.e(f"v_xor_b32 v{vT+1}, v{vT+1}, v{vT+3}")
    a.e(f"s_and_b32 s{sT0}, s{sW}, 1"); a.e(f"s_lshl_b32 s{sT0}, s{sT0}, 3"); a.e(f"v_xor_b32 v{vT+1}, s{sT0}, v{vT+1}")
    a.e(f"v_lshl_add_u32 v{vDWq}, v{vT+1}, 4, v{vT}"); a.e(f"v_add_u32 v{vDWq+1}, {4*8192-1024}, v{vDWq}")
    pst(9)
    for i in range(128): a.e(f"v_mov_b32 v{ACC+i}, 0")
    pst(10)
    pst(11)
    kdma = ([f"s_mov_b32 m0, s{sM0C}", f"s_add_u32 s45, s{sKC}, 131072"] + [dma_c(i) for i in range(4)] + [f"s_mov_b32 m0, s{sM0W}", "s_nop 0"] + [dma_w(i) for i in range(4)]
            + [f"s_add_u32 m0, s{sM0C}, 16384", "s_nop 0"] + [dma_c(i, 45) for i in range(4)] + [f"s_add_u32 m0, s{sM0W}, 16384", "s_nop 0"] + [dma_w(i, S_W2) for i in range(4)] + dma_adv)
    sGW = 3
    PX, PC, PWQ, PWK, PWV = 60, 62, 64, 66, 68
    def touch(parts, R=46, skip=True):
        base = 0; RS = R + 2
        a.e(f"s_mov_b32 s{R}, s6"); a.e(f"s_mov_b32 s{R+1}, s7"); a.e(f"s_mov_b32 s{sT0}, {200 << 20}"); a.e(f"s_mov_b32 s{RS}, 1024")
        for (lo, start, n, wt) in parts:
            a.e(f"s_sub_u32 s{sT1}, s{sGW}, {base}"); a.e(f"s_lshl_b32 s{sT2}, s{sT1}, {16 if wt == 1 else 13}")
            if start: a.e(f"s_add_u32 s{sT2}, s{sT2}, {start}")
            if wt == 1: a.e(f"s_add_u32 s{sT2}, s{sT2}, s59")
            if wt >= 2:
                a.e(f"s_mul_i32 s58, s59, {8 * n}"); a.e(f"s_add_u32 s{sT2}, s{sT2}, s58")
            a.e(f"s_cmp_lt_u32 s{sT1}, {n}")
            a.e(f"s_cselect_b32 s{sT0}, s{sT2}, s{sT0}"); a.e(f"s_cselect_b32 s{R}, s{lo}, s{R}"); a.e(f"s_cselect_b32 s{R+1}, s{lo+1}, s{R+1}")
            if wt == 1: a.e(f"s_cselect_b32 s{RS}, 8192, s{RS}")
            base += n
        ls = a.uid(f"{name}_tsk")
        if skip: a.e(f"s_cmp_eq_u32 s{sT0}, {200 << 20}"); a.e(f"s_cbranch_scc1 {ls}")
        a.e(f"s_add_u32 s{R}, s{R}, s{sT0}"); a.e(f"s_addc_u32 s{R+1}, s{R+1}, 0")
        a.e(f"v_lshrrev_b32 v{vT}, 3, v{vL}"); a.e(f"v_and_b32 v{vT+1}, 7, v{vL}"); a.e(f"v_lshlrev_b32 v{vT+1}, 7, v{vT+1}")
        a.e(f"v_mad_u32_u24 v{vT}, v{vT}, s{RS}, v{vT+1}"); a.e(f"global_load_dword v{vDUM}, v{vT}, s[{R}:{R+1}]")
        a.e(ls + ":")
    WW = lambda r0, n: [(PWK, r0*8192, n // 8, 1), (PWV, r0*8192, n // 8, 1)]
    a.e(f"s_cmp_lt_u32 s{sW}, 4"); a.e(f"s_cbranch_scc0 {name}_vp0")
    for x in kdma: a.e(x)
    a.e(f"s_branch {name}_nop0")
    a.label(f"{name}_vp0")
    a.e(f"s_lshr_b32 s{sGW}, s2, 3"); a.e(f"s_lshl_b32 s{sT0}, s{sWL}, 5"); a.e(f"s_add_u32 s{sGW}, s{sGW}, s{sT0}")
    a.e("s_and_b32 s59, s2, 7"); a.e("s_lshl_b32 s59, s59, 10")
    touch([(PC, 0, 32, 2)] + WW(64, 128), skip=False)
    a.e("s_getpc_b64 s[28:29]")
    a.e(f"{name}_pc:")
    a.e(f"s_sub_u32 s28, s28, {name}_pc - {name}"); a.e("s_subb_u32 s29, s29, 0")
    a.e("s_and_b32 s29, s29, 0xffff"); a.e(f"s_mov_b32 s30, {code_end} - {name}"); a.e("s_mov_b32 s31, 0x20000")
    a.e(f"s_sub_u32 s{sT0}, s{sGW}, 88"); a.e(f"s_lshl_b32 s{sT0}, s{sT0}, 13"); a.e(f"s_min_u32 s{sT0}, s{sT0}, {OOB}")
    a.e(f"v_lshlrev_b32 v{vT}, 7, v{vL}")
    a.e(f"buffer_load_dword v{vDUM}, v{vT}, s[28:31], s{sT0} offen")
    a.e("s_or_b32 s70, s70, 1")
    a.e("v_mov_b32 v126, s70"); a.e("v_mov_b32 v127, 0"); a.e(f"v_mov_b32 v{vT}, 0")
    a.e(f"s_cmp_eq_u32 s{sW}, 7"); a.e(f"s_cselect_b32 s{sT0}, 0, {OOB}")
    a.e("s_mov_b64 exec, 1")
    a.e(f"buffer_atomic_cmpswap v[126:127], v{vT}, s[72:75], s{sT0} offen sc0 sc1")
    a.e("s_mov_b64 exec, -1")
    a.label(f"{name}_nop0")
    pst(7)

    def rd_w(W, ks2):
        r = []
        for d in range(4):
            r.append(f"ds_read_b64_tr_b16 {v(W+4*d,2)}, v{vRW+d} offset:{ks2*8192}")
            r.append(f"ds_read_b64_tr_b16 {v(W+4*d+2,2)}, v{vRW+d} offset:{ks2*8192+1024}")
        return r
    rd_c = lambda t, ks2: f"ds_read_b128 {v(CF+4*(t%4),4)}, v{vRC+ks2} offset:{t*2048}"
    def mf(W, t, d, isK):
        acc = v(ACC + (t*4+d)*4, 4); cf = v(CF+4*(t%4), 4); wf = v(W+4*d, 4)
        return f"{MF} {acc}, {wf}, {cf}, {acc}" if isK else f"{MF} {acc}, {cf}, {wf}, {acc}"
    def qdma(stage):
        sl = stage % 3
        r = [f"s_lshl_b32 s{sT0}, s{sW}, 12", f"s_add_u32 m0, s{sT0}, {XS[sl]}", f"s_mov_b32 s{sT1}, {stage*128}"]
        r += [f"buffer_load_dwordx4 v{vDX+i}, s[{S_X}:{S_X+3}], s{sT1} offen offset:{i*1024} lds" for i in range(4)]
        r += [f"s_lshl_b32 s{sT0}, s{sW}, 11", f"s_add_u32 m0, s{sT0}, {WSL[sl]}", f"s_mov_b32 s{sT1}, {stage*64*8192}"]
        r += [f"buffer_load_dwordx4 v{vDWq+i}, s[{S_WQ}:{S_WQ+3}], s{sT1} offen offset:{i*1024} lds" for i in range(2)]
        return r

    ool = []
    def rot():
        a.e(f"s_add_u32 s{sT0}, s{sGW}, 8"); a.e(f"s_and_b32 s{sT0}, s{sT0}, 31"); a.e(f"s_andn2_b32 s{sGW}, s{sGW}, 31"); a.e(f"s_or_b32 s{sGW}, s{sGW}, s{sT0}")
    SCH = {0: [lambda: touch(WW(192, 128), skip=False)], 1: [lambda: touch(WW(320, 128))], 2: [rot, lambda: touch(WW(448, 64) + [(PX, 0, 36, 2)])],
           3: [rot, rot, lambda: touch([(PWQ, 0, 36, 1)])], 4: [rot, lambda: touch([(PWQ, 288*8192, 36, 1)])]}
    if "xl2" in X:
        SCH[5] = [lambda: touch([(PX, 0, 128, 0)])]; SCH[6] = [lambda: touch([(PX, 128*8192, 128, 0)]), lambda: touch([(PX, 256*8192, 32, 0)])]
    a.e(f"s_cmp_lt_u32 s{sW}, 4"); a.e(f"s_cbranch_scc1 {name}_w3"); a.e("s_waitcnt vmcnt(3)"); a.label(f"{name}_w3")
    NPF = 16
    a.e(f"s_waitcnt vmcnt({NPF})")
    a.e("s_barrier")
    for x in rd_w(WA, 0): a.e(x)
    for t in range(3): a.e(rd_c(t, 0))
    a.e(f"s_mov_b32 s{sIT}, 0")
    a.e(f"s_cmp_lt_u32 s{sW}, 4")
    a.e(f"s_cbranch_scc0 {name}_vfirst")
    def kv_iter(isK, last, tag, first=False):
        wn = rd_w(WB, 1)
        per = {}
        if last:
            dm = qdma(0) + qdma(1)
            for t in range(8): per[t] = dm[len(dm)*t//8: len(dm)*(t+1)//8]
        elif isK and not first:
            dm = ([f"s_mov_b32 m0, s{sM0C}", f"s_add_u32 s45, s{sKC}, 131072"] + [dma_c(i) for i in range(4)] + [f"s_mov_b32 m0, s{sM0W}", "s_nop 0"] + [dma_w(i) for i in range(4)]
                  + [f"s_add_u32 m0, s{sM0C}, 16384", "s_nop 0"] + [dma_c(i, 45) for i in range(4)] + [f"s_add_u32 m0, s{sM0W}, 16384", "s_nop 0"] + [dma_w(i, S_W2) for i in range(4)] + dma_adv)
            ND = 6 if 'nd6' in X else 10 if 'nd10' in X else 13 if 'nd13' in X else 8
            for t in range(ND): per[t] = dm[len(dm)*t//ND: len(dm)*(t+1)//ND]
        for t in range(8):
            a.e(f"s_waitcnt lgkmcnt({[2,4,6,6,6,4,2,2][t]})")
            ms = [mf(WA, t, d, isK) for d in range(4)]
            nt = t + 3
            a.e(ms[0])
            if t < 4: a.e(wn[2*t])
            a.e(ms[1])
            if "kd3" not in X:
                for x in per.get(t, []): a.e(x)
            a.e(ms[2])
            if t < 4: a.e(wn[2*t+1])
            a.e(ms[3])
            if "kd3" in X:
                for x in per.get(t, []): a.e(x)
            a.e(rd_c(nt % 8, 0 if nt < 8 else 1))
        for t in range(6):
            a.e("s_waitcnt lgkmcnt(2)")
            ms = [mf(WB, t, d, isK) for d in range(4)]
            a.e(ms[0]); a.e(ms[1])
            for x in per.get(8 + t, []): a.e(x)
            a.e(ms[2]); a.e(ms[3])
            if t < 5: a.e(rd_c(t + 3, 1))
            if not last and not isK and t == 0:
                r = a.uid(f"{name}_r")
                for itv, fns in SCH.items():
                    if (itv == 0) != first: continue
                    h = a.uid(f"{name}_h")
                    def hook(fns=fns, r=r):
                        for fn in fns: fn()
                        a.e(f"s_branch {r}")
                    ool.append((h, hook))
                    a.e(f"s_cmp_eq_u32 s{sIT}, {itv}"); a.e(f"s_cbranch_scc1 {h}")
                a.e(f"{r}:")
        a.e("s_waitcnt lgkmcnt(0)" + (" vmcnt(6)" if last else (" vmcnt(0)" if isK else "")))
        a.e("s_barrier")
        if not last:
            for r in [vRC, vRC+1, vRW, vRW+1, vRW+2, vRW+3]: a.e(f"v_xor_b32 v{r}, 0x10000, v{r}")
            wn = rd_w(WA, 0)
            for d in range(4):
                a.e(mf(WB, 6, d, isK)); a.e(wn[2*d]); a.e(wn[2*d+1])
            a.e(rd_c(0, 0)); a.e(rd_c(1, 0))
            for d in range(4): a.e(mf(WB, 7, d, isK))
            a.e(rd_c(2, 0))
        else:
            dm = qdma(2)
            ms = [mf(WB, 6 + (n >> 2), n & 3, isK) for n in range(8)]
            for n in range(8):
                a.e(ms[n])
                for x in dm[len(dm)*n//8: len(dm)*(n+1)//8]: a.e(x)
    SC1 = " sc1" if "plain" not in X else ""
    sSB = 66; sNonce = 69; S_FL = 72
    PKR = lambda n: (32 + 4 * n) if n < 8 else (160 + 4 * (n - 8))
    def kv_store(n):
        if "nost" in X: return [f"buffer_load_dword v{vDUM}, v{vL16}, s[{S_KV}:{S_KV+3}], 0 offen"]
        if "stnt" in X: return [f"s_add_u32 s68, s{sSB + ((n >> 1) & 1)}, {((n >> 2) & 1) * 8192 + (n >> 3) * 32768}",
                f"buffer_store_dwordx4 {v(PKR(n),4)}, v{vST}, s[{S_KV}:{S_KV+3}], s68 offen offset:{(n & 1) * 1024} sc1 nt"]
        return [f"s_add_u32 s68, s{sSB + ((n >> 1) & 1)}, {((n >> 2) & 1) * 8192 + (n >> 3) * 32768}",
                f"buffer_store_dwordx4 {v(PKR(n),4)}, v{vST}, s[{S_KV}:{S_KV+3}], s68 offen offset:{(n & 1) * 1024}{SC1}"]
    for isK in (True, False):
        tag = "k" if isK else "v"
        a.label(f"{name}_{tag}first")
        if isK and "kprio" in X: a.e("s_setprio 1")
        kv_iter(isK, False, tag, True)
        if "kvst" in X: _at(4); a.e("s_waitcnt lgkmcnt(0)")
        a.e(f"s_mov_b32 s{sIT}, 1")
        a.label(f"{name}_{tag}loop")
        kv_iter(isK, False, tag)
        if "kvst" in X:
            for i in range(7):
                l_ = a.uid("kvst"); a.e(f"s_cmp_lg_u32 s{sIT}, {i}"); a.e(f"s_cbranch_scc1 {l_}"); _at(4 + i); a.e("s_waitcnt lgkmcnt(0)"); a.e(l_ + ":")
        a.e(f"s_add_u32 s{sIT}, s{sIT}, 1"); a.e(f"s_cmp_lt_u32 s{sIT}, 7"); a.e(f"s_cbranch_scc1 {name}_{tag}loop")
        kv_iter(isK, True, tag)
        if "kvend" in X: _at(4)
        if "kvst" in X: _at(11)
        a.e(f"s_and_b32 s{sT1}, s{sW}, 2")
        if isK:
            a.e(f"s_lshl_b32 s{sSB}, s{sT1}, 10"); a.e(f"s_add_u32 s{sSB+1}, s{sSB}, 4096")
        else:
            a.e(f"s_lshl_b32 s{sSB}, s{sT1}, 11"); a.e(f"s_add_u32 s{sSB}, s{sSB}, 16384"); a.e(f"s_add_u32 s{sSB+1}, s{sSB}, 2048")
        for n in range(16):
            P = PKR(n)
            if isK:
                t = n >> 1; x = n & 1
                t0, t1 = ACC + (t*4 + 2*x)*4, ACC + (t*4 + 2*x + 1)*4
            else:
                y = n >> 2; d = n & 3
                t0, t1 = ACC + (2*y*4 + d)*4, ACC + ((2*y+1)*4 + d)*4
            a.e(f"v_cvt_pk_bf16_f32 v{P}, v{t0}, v{t0+1}"); a.e(f"v_cvt_pk_bf16_f32 v{P+1}, v{t0+2}, v{t0+3}")
            a.e(f"v_cvt_pk_bf16_f32 v{P+2}, v{t1}, v{t1+1}"); a.e(f"v_cvt_pk_bf16_f32 v{P+3}, v{t1+2}, v{t1+3}")
        if isK: a.e(f"s_branch {name}_qproj")
    a.label(f"{name}_qproj")
    if "drop5" in X:
        a.e(f"s_cmp_ge_u32 s{sP}, 5"); a.e(f"s_cselect_b32 s{sSB}, {0x70000000}, s{sSB}"); a.e(f"s_cselect_b32 s{sSB+1}, {0x70000000}, s{sSB+1}")
    a.e(f"v_mov_b32 v127, 0"); a.e("buffer_load_dword v126, v127, s[72:75], 0 offen sc1")
    if "kprio" in X: a.e("s_setprio 0")
    st.at(5)

    vRX = 12; vRWq = 14
    a.e(f"s_add_u32 s58, s6, {WS_CTX}"); a.e("s_addc_u32 s59, s7, 0")
    srd(a, S_CT, 58, 16 << 20)
    a.e(f"s_add_u32 s58, s6, {WS_FLAG}"); a.e("s_addc_u32 s59, s7, 0")
    srd(a, S_FL, 58, 65536)
    vDMA = 4; vKR = 5; vVR = 6; vTHR = 7; vNEG = 8; vPOLL = 9; vMT = 10
    vLS = 40; vM = 42; vLP = 44; vE = 46; NE = 8
    FR = 72; NB = 8
    C = 104; P = 112; S = 128; Q = 160; O = 192
    a.e(f"s_lshr_b32 s{sT0}, s{sW}, 1"); a.e(f"s_lshl_b32 s{sT0}, s{sT0}, 13")
    act_read_addr(a, vRX, vL, vT, sT0)
    a.e(f"s_mov_b32 s{sT0}, {WSL[0]}"); a.e(f"s_and_b32 s{sT1}, s{sW}, 1"); a.e(f"s_lshl_b32 s{sT1}, s{sT1}, 2")
    w_read_addr(a, vRWq, vL, vT, sT0, sT1, sT2)
    SETS = [64, 128]
    def q_reads(F, ks2):
        r = []
        for d in range(4):
            r.append(f"ds_read_b64_tr_b16 {v(F+16+4*d,2)}, v{vRWq+d} offset:{ks2*8192}")
            r.append(f"ds_read_b64_tr_b16 {v(F+16+4*d+2,2)}, v{vRWq+d} offset:{ks2*8192+1024}")
            r.append(f"ds_read_b128 {v(F+4*d,4)}, v{vRX+ks2} offset:{d*2048}")
        return r
    def q_mfmas(F, first=False):
        return [f"{MF} {v(O+(t*4+d)*4,4)}, {v(F+16+4*d,4)}, {v(F+4*t,4)}, {'0' if first else v(O+(t*4+d)*4,4)}" for t in range(4) for d in range(4)]
    def spread(ms, fill, upto):
        out = []; k = 0
        for i, m in enumerate(ms):
            out.append(m)
            tgt = min(len(fill), (len(fill) * (i + 1) + upto - 1) // upto)
            while k < tgt:
                out.append(fill[k]); k += 1
        return out
    for x in q_reads(SETS[0], 0): a.e(x)
    a.e(f"s_lshl_b32 s{sT0}, s{sWL}, 12"); a.e(f"v_add_u32 v{vDMA}, s{sT0}, v{vL16}")
    a.e(f"s_lshl_b32 s{sT1}, s{sG}, 14"); a.e(f"v_add_u32 v{vKR}, s{sT1}, v{vL16}"); a.e(f"v_add_u32 v{vVR}, {VRING}, v{vKR}")
    a.e(f"s_add_u32 s{sM0K}, s{sT0}, s{sT1}"); a.e(f"s_add_u32 s{sM0V}, s{sM0K}, {VRING}")
    a.e(f"s_lshl_b32 s{sKoff}, s{sH}, 20"); a.e(f"s_add_u32 s{sVoff}, s{sKoff}, 16384"); a.e(f"s_add_u32 s{sJump}, s{sKoff}, {17*32768}")
    a.e(f"s_mov_b32 s{sKt}, 0"); a.e(f"s_mov_b32 s{sVt}, 0")
    a.e(f"s_lshl_b32 s{sT0}, s{sP}, 1"); a.e(f"s_add_u32 s{sT0}, s{sT0}, 2"); a.e(f"s_sub_u32 s{sT1}, 15, s{sP}")
    a.e(f"s_cmp_eq_u32 s{sG}, 0")
    a.e(f"s_cselect_b32 s{sTA}, s{sT0}, 99"); a.e(f"s_cselect_b32 s{sI}, s{sT0}, 17"); a.e(f"s_cselect_b32 s{sTile}, s{sP}, s{sT1}")
    a.e(f"s_cselect_b32 s{sSeg}, 0, 1")
    a.e(f"s_cselect_b32 s{sHalf}, 1, 0")
    a.e(f"s_sub_u32 s{sI}, s{sI}, 1")
    a.e(f"s_lshl_b32 s{sR}, s{sTile}, 2"); a.e(f"s_sub_u32 s{sR}, 0, s{sR}")
    a.e(f"s_mov_b32 s{sTH}, {LTHR}"); a.e(f"v_mov_b32 v{vNEG}, {NEG}")
    a.e(f"s_lshl_b32 s{sT0}, s{sWL}, 4"); a.e(f"v_and_b32 v{vT}, 15, v{vL}")
    a.e(f"v_lshrrev_b32 v{vT+1}, 4, v{vL}"); a.e(f"v_lshlrev_b32 v{vT+1}, 2, v{vT+1}"); a.e(f"v_sub_u32 v{vT}, v{vT}, v{vT+1}")
    a.e(f"v_add_u32 v{vTHR}, s{sT0}, v{vT}"); a.e(f"s_sub_u32 s{sT0}, 112, s{sT0}"); a.e(f"v_add_u32 v0, s{sT0}, v{vT}")
    a.e(f"s_lshl_b32 s{sQD}, s{sWL}, 1"); a.e(f"s_sub_u32 s{sQD}, 7, s{sQD}")
    a.e(f"s_lshl_b32 s{sT0}, s{sH}, 10"); a.e(f"v_and_b32 v{vMT}, 7, v{vL}"); a.e(f"v_lshl_add_u32 v{vMT}, v{vMT}, 7, s{sT0}")
    def kv_dma(isK):
        off, m0 = (sKoff, sM0K) if isK else (sVoff, sM0V)
        return [f"s_mov_b32 m0, s{m0}", "s_nop 0"] + [f"buffer_load_dwordx4 v{vDMA}, s[{S_KV}:{S_KV+3}], s{off} offen offset:{i*1024}{'' if 'inv' in X else ' sc1'} lds" for i in range(4)]
    def kv_adv(isK):
        off, tt, m0 = (sKoff, sKt, sM0K) if isK else (sVoff, sVt, sM0V)
        return [f"s_xor_b32 s{m0}, s{m0}, 0x8000", f"s_add_u32 s{tt}, s{tt}, 1", f"s_add_u32 s{off}, s{off}, 32768",
                f"s_add_u32 s{sT2}, s{sJump}, {0 if isK else 16384}", f"s_cmp_eq_u32 s{tt}, s{sTA}", f"s_cselect_b32 s{off}, s{sT2}, s{off}",
                f"s_cmp_ge_u32 s{tt}, 17", f"s_cselect_b32 s{off}, {OOB}, s{off}"]
    NA = [2, 2, 2, 2] + [0] * 6; NBs = [2, 2, 2, 2] + [0] * 6
    if "st5" in X: NA = [2, 2, 2, 2, 2] + [0] * 5; NBs = [1, 1, 1, 1, 2] + [0] * 5
    if "st3" in X: NA = [3, 3, 3] + [0] * 7; NBs = [3, 2, 2] + [0] * 7
    if "stA" in X: NA = [0, 2, 2, 2, 2] + [0] * 5; NBs = [2, 2, 2, 2] + [0] * 6
    lastst = max(i for i in range(9) if NA[i] + NBs[i])
    sdone = [0]
    def add_stores(fl, n, marks):
        out = []; nm = 0; marks = list(marks[:n])
        for x in fl:
            out.append(x)
            if x.startswith("v_mfma"):
                nm += 1
                if marks and nm == marks[0]:
                    marks.pop(0); out += kv_store(sdone[0]); sdone[0] += 1
        return out
    for it in range(9):
        if "qst" in X: _at(2 + it)
        a.e("s_waitcnt lgkmcnt(0)")
        fl = add_stores(spread(q_mfmas(SETS[0], it == 0), q_reads(SETS[1], 1), 10 if 'q10' in X else 14 if 'q14' in X else 12), NA[it], [4, 12] if NA[it] < 3 else [3, 8, 13])
        for x in fl: a.e(x)
        if it < 8:
            if it == 7:
                lw = a.uid(f"{name}_nw7")
                a.e(f"s_cmp_eq_u32 s{sW}, 7"); a.e(f"s_cbranch_scc1 {lw}"); a.e("s_waitcnt vmcnt(0)"); a.e(f"{lw}:")
                a.e("s_waitcnt lgkmcnt(0) vmcnt(1)")
            else:
                a.e(f"s_waitcnt lgkmcnt(0) vmcnt({6 + NA[it] + (NA[it-1] + NBs[it-1] if it else 0) + (1 if it < 2 else 0)})")
            a.e("s_barrier")
            dx = XS[(it+1) % 3] - XS[it % 3]; dw = WSL[(it+1) % 3] - WSL[it % 3]
            for r in (vRX, vRX+1): a.e(f"v_add_u32 v{r}, {dx & 0xffffffff}, v{r}")
            for r in range(vRWq, vRWq+4): a.e(f"v_add_u32 v{r}, {dw & 0xffffffff}, v{r}")
            sig = []
            if it == 2: sig = [f"v_readfirstlane_b32 s{sNonce}, v126"]
            if it == lastst + 2:
                ls = a.uid(f"{name}_sig")
                sig = [f"s_cmp_lg_u32 s{sW}, 7", f"s_cbranch_scc1 {ls}", f"v_mov_b32 v{vPOLL}, s{sNonce}", f"s_lshl_b32 s{sT0}, s{sP}, 7", "s_mov_b64 exec, 1",
                       f"buffer_store_dword v{vPOLL}, v{vMT}, s[{S_FL}:{S_FL+3}], s{sT0} offen sc1",
                       "s_mov_b64 exec, -1", ls + ":"]
            if it == 6:
                ls = a.uid(f"{name}_pl")
                sig += [f"s_cmp_lg_u32 s{sW}, 7", f"s_cbranch_scc1 {ls}", f"buffer_load_dword v{vPOLL}, v{vMT}, s[{S_FL}:{S_FL+3}], 0 offen sc1", ls + ":"]
            if it < 6: dm = qdma(it + 3)
            elif it == 6: dm = []
            else: dm = []
            for x in sig: a.e(x)
            ms = q_mfmas(SETS[1])
            if "qmix" in X:
                rr_ = q_reads(SETS[0], 0); mix = []
                for i_ in range(12):
                    mix.append(rr_[i_]); mix += dm[len(dm)*i_//12: len(dm)*(i_+1)//12]
                for x in add_stores(spread(ms, mix, 13), NBs[it], [2, 6, 8]): a.e(x)
            else:
                QS = 10 if "qs10" in X else 8
                for x in add_stores(spread(ms[:QS], q_reads(SETS[0], 0), QS), NBs[it], [2, 6, 8]): a.e(x)
                for x in spread(ms[QS:], dm, 16 - QS): a.e(x)
        else:
            lw = a.uid(f"{name}_nw7"); lp = a.uid(f"{name}_poll")
            a.e("s_waitcnt vmcnt(0)")
            a.e(f"s_cmp_lg_u32 s{sW}, 7"); a.e(f"s_cbranch_scc1 {lw}")
            a.e(f"s_mov_b32 s{sT1}, 0")
            a.e(f"{lp}:")
            a.e(f"v_cmp_ne_u32 vcc, s{sNonce}, v{vPOLL}")
            a.e(f"s_add_u32 s{sT1}, s{sT1}, 1")
            a.e(f"s_cbranch_vccz {lw}")
            a.e(f"s_cmp_ge_u32 s{sT1}, 0x40000"); a.e(f"s_cbranch_scc1 {lw}")
            a.e(f"buffer_load_dword v{vPOLL}, v{vMT}, s[{S_FL}:{S_FL+3}], 0 offen sc1")
            a.e("s_waitcnt vmcnt(0)")
            a.e(f"s_branch {lp}")
            a.e(f"{lw}:")
            a.e("s_waitcnt lgkmcnt(0)")
            a.e("s_barrier")
            for x in spread(q_mfmas(SETS[1]), kv_dma(True) + kv_adv(True) + kv_dma(True) + kv_adv(True) + kv_dma(False) + kv_adv(False), 12): a.e(x)
    st.at(6)
    if "qst" in X: _at(11)
    a.e(f"s_lshr_b32 s{sT0}, s{sW}, 1"); a.e(f"s_and_b32 s{sT1}, s{sT0}, 1"); a.e(f"s_lshl_b32 s{sT1}, s{sT1}, 14")
    a.e(f"s_lshl_b32 s{sT0}, s{sG}, 15"); a.e(f"s_sub_u32 s{sT0}, s{sT1}, s{sT0}")
    a.e(f"s_and_b32 s{sT1}, s{sW}, 1"); a.e(f"s_lshl_b32 s{sT1}, s{sT1}, 11"); a.e(f"s_add_u32 s{sT0}, s{sT0}, s{sT1}")
    a.e(f"s_add_u32 s{sT0}, s{sT0}, {QSTASH}"); a.e(f"v_add_u32 v{vT}, s{sT0}, v{vL16}")
    a.e(f"s_mov_b32 s{sT1}, {QSCALE}"); a.e(f"v_mov_b32 v{vT+3}, {QSCALE}"); a.e(f"v_mov_b32 v{vT+4}, {QSCALE}")
    a.e("s_nop 2")
    for t in range(4):
        for x in range(2):
            PK = FR + ((t*2+x) % 4) * 4
            t0 = O + (t*4 + 2*x)*4
            if "nopkq" not in X:
                for j in range(4): a.e(f"v_pk_mul_f32 {v(t0+2*j,2)}, {v(t0+2*j,2)}, {v(vT+3,2)}")
            else:
                for j in range(8): a.e(f"v_mul_f32 v{t0+j}, s{sT1}, v{t0+j}")
            for j in range(4): a.e(f"v_cvt_pk_bf16_f32 v{PK+j}, v{t0+2*j}, v{t0+2*j+1}")
            a.e(f"ds_write_b128 v{vT}, {v(PK,4)} offset:{t*4096 + x*1024}")
    a.e("s_waitcnt lgkmcnt(0) vmcnt(8)")
    a.e("s_barrier")
    a.e(f"s_lshl_b32 s{sT0}, s{sWL}, 12"); a.e(f"s_lshl_b32 s{sT1}, s{sG}, 15"); a.e(f"s_add_u32 s{sT0}, s{sT0}, s{sT1}")
    a.e(f"s_add_u32 s{sT0}, s{sT0}, {QTMP}"); a.e(f"v_add_u32 v{vT}, s{sT0}, v{vL16}")
    a.e(f"s_lshl_b32 s{sT1}, s{sQD}, 12"); a.e(f"v_add_u32 v{vT+1}, s{sT1}, v{vT}")
    for f in range(8): a.e(f"ds_read_b128 {v(Q+4*f,4)}, v{vT + (f >> 2)} offset:{(f & 3)*1024}")
    if "noprio" not in X:
        a.e(f"s_cmp_eq_u32 s{sG}, {1 if 'prio0' in X else 0}"); a.e(f"s_cbranch_scc1 {name}_np"); a.e("s_setprio 1"); a.label(f"{name}_np")
    st.at(7)

    Sr = lambda buf, kt, qt: S + buf*16 + (kt*2+qt)*4
    Pr = lambda buf, qt: P + buf*8 + qt*4
    Or = lambda dt, qt: O + (dt*2+qt)*4
    def slot_k(b, n, qts=(0, 1)):
        kt, ds = (n >> 2, n & 3) if 'kord' not in X else (n & 1, n >> 1)
        rd = lambda f: f"ds_read_b128 {v(f,4)}, v{vKR} offset:{((2*b+kt)*4+ds)*1024}"
        def ms(f, czero=False):
            return [f"{MF} {v(Sr(b,kt,qt),4)}, {v(f,4)}, {v(Q+(qt*4+ds)*4,4)}, " + (("0" if czero else v(C+4*qt,4)) if ds == 0 else v(Sr(b,kt,qt),4)) for qt in qts]
        return rd, ms
    def slot_v(b, dt, qts=(0, 1)):
        rd = lambda f: f"ds_read_b128 {v(f,4)}, v{vVR} offset:{(b*8+dt)*1024}"
        ms = lambda f: [f"{MF} {v(Or(dt,qt),4)}, {v(f,4)}, {v(Pr(b,qt),4)}, {v(Or(dt,qt),4)}" for qt in qts]
        return rd, ms
    def mask_block(buf, ret):
        a.e(f"s_lshl_b32 s{sT0}, s{sR}, 5"); a.e(f"v_subrev_u32 v{vMT}, s{sT0}, v{vTHR}"); a.e(f"v_subrev_u32 v{vPOLL}, s{sT0}, v0")
        items = [(kt, qt, rr) for kt in range(2) for qt in range(2) for rr in range(4)]
        for base in range(0, 16, 4):
            for n, (kt, qt, rr) in enumerate(items[base:base+4]):
                a.e(f"v_cmp_le_i32 s[{sMSK+2*n}:{sMSK+2*n+1}], {16*kt+rr}, v{vPOLL if qt else vMT}")
            for n, (kt, qt, rr) in enumerate(items[base:base+4]):
                x = Sr(buf,kt,qt)+rr
                a.e(f"v_cndmask_b32 v{x}, v{vNEG}, v{x}, s[{sMSK+2*n}:{sMSK+2*n+1}]")
        a.e(f"s_branch {ret}")
    def mask_hook(buf):
        h = a.uid(f"{name}_mask"); r = a.uid(f"{name}_mret")
        ool.append((h, lambda: mask_block(buf, r)))
        return [f"s_cmp_ge_i32 s{sR}, 0", f"s_cbranch_scc1 {h}", r + ":", f"s_add_u32 s{sR}, s{sR}, 1"]
    def exp_code_pk(buf):
        r = []; pend = []; k = 0
        for qt in range(2):
            for kt in range(2):
                x = Sr(buf,kt,qt)
                for hf in range(2):
                    e0 = vE + (k % NE); e1 = e0 + 1; k += 2
                    r.append(f"v_exp_f32 v{e0}, v{x+2*hf}")
                    if pend: r.append(pend.pop(0))
                    r.append(f"v_exp_f32 v{e1}, v{x+2*hf+1}")
                    if pend: r.append(pend.pop(0))
                    if kt == 0 and hf == 1: pend.append(f"v_pk_add_f32 {v(vLQ,2)}, {v(vE + ((k - 4) % NE),2)}, {v(e0,2)}")
                    elif kt == 1: pend.append(f"v_pk_add_f32 {v(vLQ,2)}, {v(vLQ,2)}, {v(e0,2)}")
                    pend.append(f"v_cvt_pk_bf16_f32 v{Pr(buf,qt)+2*kt+hf}, v{e0}, v{e1}")
                    if kt == 1 and hf == 1: pend.append(f"v_add_f32 v{vLP+qt}, v{vLQ}, v{vLQ+1}")
        return r + ["s_nop 0"] + pend
    vLQ = 66
    def exp_code(buf, qts=(0, 1)):
        if "ord2" in X:
            r = []; pend = []; k = 0
            for qt in qts:
                for kt in range(2):
                    x = Sr(buf,kt,qt); e = [vE + (k + i) % NE for i in range(4)]; k += 4
                    for i in range(4):
                        r.append(f"v_exp_f32 v{e[i]}, v{x+i}")
                        if pend: r.append(pend.pop(0))
                        if pend and i % 2: r.append(pend.pop(0))
                    r += pend; pend = []
                    pend += [f"v_add_f32 v{vLP+qt}, v{e[0]}, v{e[1]}"] if kt == 0 else [f"v_add_f32 v{vLP+qt}, v{vLP+qt}, v{e[0]}", f"v_add_f32 v{vLP+qt}, v{vLP+qt}, v{e[1]}"]
                    pend += [f"v_cvt_pk_bf16_f32 v{Pr(buf,qt)+2*kt}, v{e[0]}, v{e[1]}", f"v_add_f32 v{vLP+qt}, v{vLP+qt}, v{e[2]}",
                             f"v_cvt_pk_bf16_f32 v{Pr(buf,qt)+2*kt+1}, v{e[2]}, v{e[3]}", f"v_add_f32 v{vLP+qt}, v{vLP+qt}, v{e[3]}"]
            return r + ["s_nop 0"] + pend
        r = []; pend = []; k = 0
        for qt in qts:
            for kt in range(2):
                x = Sr(buf,kt,qt)
                for hf in range(2):
                    e0 = vE + (k % NE); e1 = vE + ((k + 1) % NE); k += 2
                    r.append(f"v_exp_f32 v{e0}, v{x+2*hf}")
                    if pend: r.append(pend.pop(0))
                    r.append(f"v_exp_f32 v{e1}, v{x+2*hf+1}")
                    if pend: r.append(pend.pop(0))
                    if pend: r.append(pend.pop(0))
                    if kt == 0 and hf == 0: pend.append(f"v_add_f32 v{vLP+qt}, v{e0}, v{e1}")
                    else: pend += [f"v_add_f32 v{vLP+qt}, v{vLP+qt}, v{e0}"]
                    pend.append(f"v_cvt_pk_bf16_f32 v{Pr(buf,qt)+2*kt+hf}, v{e0}, v{e1}")
                    if not (kt == 0 and hf == 0): pend.append(f"v_add_f32 v{vLP+qt}, v{vLP+qt}, v{e1}")
        return r + ["s_nop 0"] + pend
    lacc = [f"v_add_f32 v{vLS}, v{vLS}, v{vLP}", f"v_add_f32 v{vLS+1}, v{vLS+1}, v{vLP+1}"]
    def xlane(op, x, t):
        return [f"v_mov_b32 v{t}, v{x}", "s_nop 1", f"v_permlane16_swap_b32 v{x}, v{t}", f"{op} v{x}, v{x}, v{t}",
                f"v_mov_b32 v{t}, v{x}", "s_nop 1", f"v_permlane32_swap_b32 v{x}, v{t}", f"{op} v{x}, v{x}, v{t}"]
    def rare_block(sbuf, other, ret):
        a.e("s_nop 7")
        for qt in range(2):
            d = vT + qt; f = vT + 2 + qt
            x0, x1 = Sr(sbuf,0,qt), Sr(sbuf,1,qt)
            a.e(f"v_max3_f32 v{d}, v{x0}, v{x0+1}, v{x0+2}"); a.e(f"v_max3_f32 v{d}, v{d}, v{x0+3}, v{x1}")
            a.e(f"v_max3_f32 v{d}, v{d}, v{x1+1}, v{x1+2}"); a.e(f"v_max3_f32 v{d}, v{d}, v{x1+3}, 0")
            for x in xlane("v_max_f32", d, vT + 4): a.e(x)
            a.e(f"v_sub_f32 v{f}, 0, v{d}"); a.e(f"v_exp_f32 v{f}, v{f}")
            for b_ in ([sbuf, 1 - sbuf] if other else [sbuf]):
                for kt in range(2):
                    for rr in range(4): a.e(f"v_sub_f32 v{Sr(b_,kt,qt)+rr}, v{Sr(b_,kt,qt)+rr}, v{d}")
            for rr in range(4): a.e(f"v_sub_f32 v{C+4*qt+rr}, v{C+4*qt+rr}, v{d}")
            a.e(f"v_add_f32 v{vM+qt}, v{vM+qt}, v{d}"); a.e(f"v_mul_f32 v{vLS+qt}, v{vLS+qt}, v{f}")
            for dt in range(8):
                for rr in range(4): a.e(f"v_mul_f32 v{Or(dt,qt)+rr}, v{Or(dt,qt)+rr}, v{f}")
        for x in exp_code(sbuf): a.e(x)
        a.e("s_nop 1")
        a.e(f"s_branch {ret}")
    def check(sbuf, other, half=False):
        h = a.uid(f"{name}_rare"); r = a.uid(f"{name}_ret")
        ool.append((h, lambda: rare_block(sbuf, other, r)))
        if half: return [f"v_cmp_nge_f32 vcc, s{sTH}, v{vLP+1}", f"s_cbranch_vccnz {h}", r + ":"]
        return [f"v_add_f32 v{vT}, v{vLP}, v{vLP+1}", f"v_cmp_nge_f32 vcc, s{sTH}, v{vT}", f"s_cbranch_vccnz {h}", r + ":"]
    D = 6 if 'd6' in X else (4 if 'd4' in X else 5)
    def run_slots(slots, fills, nxt, sync_after=None, sync=None, post={}):
        n = len(slots)
        for sidx, (rd, ms) in enumerate(slots):
            f = FR + 4 * (sidx % NB)
            if sync_after is None: out = min(D - 1, n - 1 - sidx + len(nxt[:max(0, sidx + D - n)]))
            else: out = min(D - 1, n - 1 - sidx) if sidx <= sync_after else None
            if "now2" not in X and n == 32 and out is not None:
                out = None if sidx % 2 else max(0, out - 1)
            if out is not None: a.e(f"s_waitcnt lgkmcnt({out})")
            m = ms(f); fl = fills.get(sidx, []); h = (len(fl) + 1) // 2
            if "hfl" in X and n == 32: h = len(fl) // 2
            if "h23" in X and n == 32: h = (2 * len(fl) + 2) // 3
            if "hall" in X and n == 32: h = len(fl)
            if "hm1" in X and n == 32: h = max(1, len(fl) - 1)
            if "h2" in X and n == 32: h = min(2, len(fl))
            if isinstance(fl, tuple): h = len(fl[0]); fl = fl[0] + fl[1]
            early = "rdmid" in X and n == 32 and sidx + D < n and len(m) > 1
            a.e(m[0])
            if early: a.e(slots[sidx + D][0](FR + 4 * ((sidx + D) % NB)))
            for x in fl[:h]: a.e(x)
            if len(m) > 1: a.e(m[1])
            for x in fl[h:]: a.e(x)
            t = sidx + D
            if early: pass
            elif t < n: a.e(slots[t][0](FR + 4 * (t % NB)))
            elif sync_after is None:
                if t - n < len(nxt): a.e(nxt[t - n][0](FR + 4 * (t % NB)))
            elif sidx == sync_after:
                for x in sync: a.e(x)
                for tt in range(n, sidx + D + 1): a.e(nxt[tt - n][0](FR + 4 * (tt % NB)))
            elif sidx > sync_after: a.e(nxt[t - n][0](FR + 4 * (t % NB)))
            for x in post.get(sidx, []): a.e(x)
    def distribute(fills, items, lo, hi):
        n = hi - lo
        for i in range(n):
            fills.setdefault(lo + i, []).extend(items[len(items) * i // n: len(items) * (i + 1) // n])
    toggles = [f"v_xor_b32 v{vKR}, 0x8000, v{vKR}", f"v_xor_b32 v{vVR}, 0x8000, v{vVR}"]
    vslots = lambda b, qts=(0, 1): [slot_v(b, dt, qts) for dt in range(8)]
    kslots = lambda b, qts=(0, 1): [slot_k(b, n, qts) for n in range(8)]

    sNext, sEv = 64, 65
    sRole, sA, sB = 66, 67, 68
    SK, SV, SQ, SSK = 8, 12, 20, 24
    SU, SQT = 8, 12
    KR, VR, QR, WR, TP, PR = 54, 28, 11, 36, 68, 46
    wrow = lambda r: (11 + r) if r < 8 else ((28 + r - 8) if r < 20 else (54 + r - 20))
    def side_load(rnd):
        le = a.uid(f"{name}_sle")
        a.e("s_load_dwordx8 s[56:63], s[0:1], 0")
        a.e(f"s_and_b32 s{sA}, s2, 7"); a.e(f"s_lshl_b32 s{sA}, s{sA}, 3"); a.e(f"s_lshr_b32 s{sT0}, s2, 5"); a.e(f"s_add_u32 s{sA}, s{sA}, s{sT0}")
        a.e(f"s_bfe_u32 s{sT0}, s2, 0x20003")
        a.e(f"s_mul_i32 s{sT1}, s{sT0}, 9"); a.e(f"s_add_u32 s{sT1}, s{sT1}, 1"); a.e(f"s_lshr_b32 s{sT1}, s{sT1}, 1")
        a.e(f"s_add_u32 s{sB}, s{sT1}, s{sW}")
        a.e(f"s_and_b32 s{sT1}, s{sT0}, 1"); a.e(f"s_sub_u32 s{sT1}, 5, s{sT1}")
        a.e(f"s_cmp_lt_u32 s{sW}, s{sT1}"); a.e(f"s_cselect_b32 s{sRole}, 1, 0")
        a.e("s_waitcnt lgkmcnt(0)")
        a.e(f"s_cmp_eq_u32 s{sRole}, 0"); a.e(f"s_cbranch_scc1 {le}")
        srd(a, SQ, 56, 2048*1152); srd(a, SK, 58, 2048*1152); srd(a, SV, 60, 2048*1152); srd(a, SSK, 62, 576*8)
        a.e(f"v_lshrrev_b32 v{vT}, 4, v{vL}"); a.e(f"v_and_b32 v{vT+1}, 15, v{vL}")
        a.e(f"s_lshl_b32 s{sT0}, s{sA}, 5"); a.e(f"v_lshl_add_u32 v{vT}, v{vT}, 3, s{sT0}")
        a.e(f"v_mul_u32_u24 v{vT}, 1152, v{vT}"); a.e(f"v_lshl_add_u32 v{vT}, v{vT+1}, 2, v{vT}")
        a.e(f"s_lshl_b32 s{sT0}, s{sB}, 6"); a.e(f"v_add_u32 v{vT}, s{sT0}, v{vT}")
        a.e(f"v_add_u32 v{vT+2}, {(-3456) & 0xffffffff}, v{vT}"); a.e(f"v_add_u32 v{vT+3}, 4608, v{vT}")
        a.e(f"v_lshlrev_b32 v{vT+1}, 4, v{vT+1}"); a.e(f"s_lshl_b32 s{sT0}, s{sB}, 8")
        for i in range(3): a.e(f"buffer_load_dword v{KR+i}, v{vT+2}, s[{SK}:{SK+3}], 0 offen offset:{i*1152}")
        for R_, S_ in ((KR + 3, SK), (VR, SV), (QR, SQ)):
            for i in range(8): a.e(f"buffer_load_dword v{R_+i}, v{vT if i < 4 else vT+3}, s[{S_}:{S_+3}], 0 offen offset:{(i%4)*1152}")
        a.e(f"buffer_load_dwordx4 {v(WR,4)}, v{vT+1}, s[{SSK}:{SSK+3}], s{sT0} offen")
        a.e(f"{le}:")
    SSC = " sc1"
    def side_compute(rnd):
        l3 = a.uid(f"{name}_sc2"); le = a.uid(f"{name}_sce")
        a.e(f"s_cmp_eq_u32 s{sRole}, 0"); a.e(f"s_cbranch_scc1 {le}")
        a.e(f"s_mov_b32 s{sT1}, 0x05040100"); a.e(f"s_mov_b32 s{sT2}, 0x07060302")
        a.e(f"v_lshrrev_b32 v{vT}, 4, v{vL}"); a.e(f"v_and_b32 v{vT+1}, 15, v{vL}")
        a.e(f"s_add_u32 s70, s6, {WS_KVB}"); a.e("s_addc_u32 s71, s7, 0"); srd(a, SU, 70, 576*4096)
        a.e(f"s_add_u32 s70, s6, {WS_QB}"); a.e("s_addc_u32 s71, s7, 0"); srd(a, SQT, 70, 576*4096)
        a.e(f"s_lshl_b32 s{sT0}, s{sA}, 6"); a.e(f"v_lshl_add_u32 v{vT}, v{vT}, 4, s{sT0}")
        a.e(f"v_lshlrev_b32 v{vT+1}, 13, v{vT+1}")
        a.e(f"v_sub_u32 v{vT+2}, 4080, v{vT}"); a.e(f"v_add_u32 v{vT+2}, v{vT+2}, v{vT+1}"); a.e(f"v_add_u32 v{vT}, v{vT}, v{vT+1}")
        a.e(f"s_lshl_b32 s{sT0}, s{sB}, 17")
        for c in range(2):
            sel = sT2 if c else sT1
            for i in range(4): a.e(f"v_perm_b32 v{TP+i}, v{QR+2*i+1}, v{QR+2*i}, s{sel}")
            a.e(f"buffer_store_dwordx4 {v(TP,4)}, v{vT}, s[{SQT}:{SQT+3}], s{sT0} offen{SSC}")
            AC = vT + 3
            for hf in (1, 0):
                for i in range(6):
                    j = 4 * hf - 2 + i
                    a.e(f"v_perm_b32 v{PR+i}, v{KR+j+2}, v{KR+j+3}, s{sel}")
                for i in range(4): a.e(f"v_dot2_f32_bf16 v{AC+i}, v{PR+2+i}, v{WR+2*c}, 0")
                for i in range(4): a.e(f"v_dot2_f32_bf16 v{AC+i}, v{PR+i}, v{WR+2*c+1}, v{AC+i}")
                for i in range(4):
                    a.e(f"v_and_b32 v{PR+i}, 0xffff0000, v{VR+4*hf+i}" if c else f"v_lshlrev_b32 v{PR+i}, 16, v{VR+4*hf+i}")
                for i in range(4): a.e(f"v_mul_f32 v{AC+i}, v{AC+i}, v{PR+i}")
                o = TP + (0 if hf else 2)
                a.e(f"v_cvt_pk_bf16_f32 v{o}, v{AC+3}, v{AC+2}"); a.e(f"v_cvt_pk_bf16_f32 v{o+1}, v{AC+1}, v{AC}")
            a.e(f"buffer_store_dwordx4 {v(TP,4)}, v{vT+2}, s[{SU}:{SU+3}], s{sT0} offen{SSC}")
            a.e(f"s_add_u32 s{sT0}, s{sT0}, 4096"); a.e("s_nop 0")
        a.e(f"{le}:")
    def flag_store(off_code):
        a.e(f"v_mov_b32 v{vT}, s{sNonce}"); a.e(f"v_mov_b32 v{vT+1}, 0")
        for x in off_code: a.e(x)
        a.e("s_mov_b64 exec, 1")
        a.e(f"buffer_store_dword v{vT}, v{vT+1}, s[{S_FL}:{S_FL+3}], s{sT1} offen sc1")
        a.e("s_mov_b64 exec, -1")
    def side_hook(ret):
        L = [a.uid(f"{name}_ev") for _ in range(6)]
        for e in range(1, 6):
            a.e(f"s_cmp_eq_u32 s{sEv}, {e}"); a.e(f"s_cbranch_scc1 {L[e]}")
        a.e(f"s_add_u32 s{sNext}, s{sNext}, 2"); a.e(f"s_mov_b32 s{sEv}, 1")
        side_load(1)
        a.e(f"s_branch {ret}")
        a.e(L[1] + ":")
        a.e(f"s_mov_b32 s{sNext}, 99")
        side_compute(1)
        a.e(f"s_branch {ret}")
        a.e(L[2] + ":")
        a.e(L[3] + ":")
        a.e(f"s_mov_b32 s{sEv}, 4")
        a.e(f"s_lshl_b32 s{sT1}, s{sP}, 1"); a.e(f"s_add_u32 s{sT1}, s{sT1}, 4"); a.e(f"s_add_u32 s{sNext}, s{sNext}, 1"); a.e(f"s_max_u32 s{sNext}, s{sNext}, s{sT1}")
        flag_store([f"s_lshl_b32 s{sT1}, s2, 2", f"s_add_u32 s{sT1}, s{sT1}, 32768"])
        a.e(f"s_branch {ret}")
        a.e(L[5] + ":")
        a.e("s_load_dwordx2 s[8:9], s[0:1], 88"); a.e("s_load_dwordx2 s[10:11], s[0:1], 32")
        a.e(f"s_mov_b32 s{sNext}, 99"); a.e(f"v_lshlrev_b32 v{vT}, 7, v{vL}")
        a.e(f"s_lshl_b32 s{sT0}, s2, 13"); a.e(f"v_add_u32 v{vT}, s{sT0}, v{vT}")
        a.e(f"s_min_u32 s{sT1}, s2, 63"); a.e(f"s_min_u32 s{sT2}, s2, 31")
        a.e(f"s_sub_u32 s{sT1}, s{sT1}, s2"); a.e(f"s_sub_u32 s{sT2}, s{sT2}, s2")
        a.e(f"s_lshl_b32 s{sT1}, s{sT1}, 13"); a.e(f"s_lshl_b32 s{sT2}, s{sT2}, 13")
        a.e(f"v_add_u32 v{vT+1}, {256 << 13}, v{vT}"); a.e(f"v_add_u32 v{vT+2}, s{sT1}, v{vT+1}"); a.e(f"v_add_u32 v{vT+2}, {256 << 13}, v{vT+2}"); a.e(f"v_add_u32 v{vT+3}, s{sT2}, v{vT+1}")
        a.e("s_waitcnt lgkmcnt(0)")
        for r_, b_ in ((0, 8), (1, 8), (2, 8), (0, 10), (3, 10)): a.e(f"global_load_dword v{vDUM}, v{vT+r_}, s[{b_}:{b_+1}]")
        a.e(f"s_branch {ret}")
        a.e(L[4] + ":")
        a.e(f"s_mov_b32 s{sNext}, 99")
        flag_store([f"s_lshl_b32 s{sT1}, s{sP}, 7", f"s_lshl_b32 s{sT2}, s{sH}, 2", f"s_add_u32 s{sT1}, s{sT1}, s{sT2}", f"s_add_u32 s{sT1}, s{sT1}, 36864"])
        a.e(f"s_branch {ret}")
    a.e(f"s_and_b32 s{sT0}, s2, 7"); a.e(f"s_add_u32 s{sT0}, s{sT0}, s{sP}"); a.e(f"s_mul_i32 s{sT1}, s{sT0}, 52"); a.e(f"s_lshr_b32 s{sT1}, s{sT1}, 8"); a.e(f"s_mul_i32 s{sT1}, s{sT1}, 5")
    a.e(f"s_sub_u32 s{sT0}, s{sT0}, s{sT1}"); a.e(f"s_lshl_b32 s{sNext}, s{sT0}, 1"); a.e(f"s_add_u32 s{sNext}, s{sNext}, {3 if 'ph3' in X else 1}"); a.e(f"s_mov_b32 s{sEv}, 0")
    a.e(f"s_add_u32 s{sT0}, s{sNext}, 3"); a.e(f"s_cmp_eq_u32 s{sW}, 7"); a.e(f"s_cselect_b32 s{sNext}, s{sT0}, s{sNext}"); a.e(f"s_cselect_b32 s{sEv}, 2, 0")
    a.e(f"s_lshl_b32 s{sT0}, s{sP}, 1"); a.e(f"s_add_u32 s{sT0}, s{sT0}, 2"); a.e(f"s_min_u32 s{sT0}, s{sT0}, 14")
    a.e(f"s_cmp_eq_u32 s{sW}, 6"); a.e(f"s_cselect_b32 s{sNext}, s{sT0}, s{sNext}"); a.e(f"s_cselect_b32 s{sEv}, 5, s{sEv}")

    a.label(f"{name}_seg")
    k0 = kslots(0); k1s = kslots(1)
    for t in range(D): a.e(k0[t][0](FR + 4 * t))
    zero = [f"v_mov_b32 v{O+i}, 0" for i in range(64)] + [f"v_mov_b32 v{vLS}, 0", f"v_mov_b32 v{vLS+1}, 0"]
    fills = {}; distribute(fills, zero, 0, 8)
    run_slots([(rd, (lambda ms: (lambda f: ms(f, True)))(ms)) for rd, ms in k0], fills, k1s)
    a.e("s_nop 3")
    for x in mask_hook(0): a.e(x)
    for qt in range(2):
        d = vM + qt; x0, x1 = Sr(0,0,qt), Sr(0,1,qt)
        a.e(f"v_max3_f32 v{d}, v{x0}, v{x0+1}, v{x0+2}"); a.e(f"v_max3_f32 v{d}, v{d}, v{x0+3}, v{x1}")
        a.e(f"v_max3_f32 v{d}, v{d}, v{x1+1}, v{x1+2}"); a.e(f"v_max_f32 v{d}, v{d}, v{x1+3}")
    for x0_, x1_ in zip(xlane("v_max_f32", vM, vT + 4), xlane("v_max_f32", vM + 1, vT + 5)):
        a.e(x0_)
        if not x1_.startswith("s_nop"): a.e(x1_)
    for qt in range(2):
        for rr in range(4): a.e(f"v_sub_f32 v{C+4*qt+rr}, 0, v{vM+qt}")
    sub0 = [f"v_sub_f32 v{Sr(0,kt,qt)+rr}, v{Sr(0,kt,qt)+rr}, v{vM+qt}" for qt in range(2) for kt in range(2) for rr in range(4)]
    fills = {}; distribute(fills, sub0 + exp_code(0), 0, 8)
    labA = a.uid(f"{name}_wa")
    sync = ["s_waitcnt lgkmcnt(0)", f"s_cmp_lg_u32 s{sKt}, 2", f"s_cbranch_scc1 {labA}", "s_waitcnt vmcnt(0)", labA + ":", "s_waitcnt vmcnt(8)",
            "s_barrier", f"v_xor_b32 v{vKR}, 0x8000, v{vKR}"]
    run_slots(k1s, fills, vslots(0), sync_after=4, sync=sync)
    dK, dV = kv_dma(True), kv_dma(False)
    a.e(f"s_mov_b32 s{sN}, s{sHalf}")
    a.e(f"s_cmp_eq_u32 s{sI}, 0"); a.e(f"s_cbranch_scc1 {name}_tailh")
    a.e(f"s_cmp_ge_u32 s{sN}, s{sI}"); a.e(f"s_cbranch_scc1 {name}_lasth")
    adv_all = kv_adv(True) + kv_adv(False)
    if "noadv" not in X:
        adv_all = [f"s_add_u32 s{sVoff}, s{sKoff}, 16384", f"s_xor_b32 s{sM0K}, s{sM0K}, 0x8000", f"s_xor_b32 s{sM0V}, s{sM0V}, 0x8000", f"s_add_u32 s{sKt}, s{sKt}, 1",
                   f"s_add_u32 s{sVt}, s{sVt}, 1", f"s_add_u32 s{sKoff}, s{sKoff}, 32768", f"s_cmp_eq_u32 s{sKt}, s{sTA}", f"s_cselect_b32 s{sKoff}, s{sJump}, s{sKoff}"]
    def body(half):
        hk = a.uid(f"{name}_side"); hr = a.uid(f"{name}_sret")
        ool.append((hk, lambda: side_hook(hr)))
        a.e(f"s_cmp_eq_u32 s{sVt}, s{sNext}"); a.e(f"s_cbranch_scc1 {hk}"); a.e(f"{hr}:")
        q = (1,) if half else (0, 1)
        slots = vslots(0) + kslots(0, q) + vslots(1) + kslots(1, q)
        fills = {}; post = {}
        fills[0] = list(lacc); fills[16] = list(lacc)
        post[1] = mask_hook(1); post[17] = mask_hook(0)
        E0, E1 = 2, 16
        if "e14" in X: E1 = 14
        if "s3" in X: E0 = 3
        if "e15" in X: E1 = 15
        def merged(ec, ck):
            if "ck" not in X: return ec, ck
            nv = [x for x in ck if x.startswith("v_")]; rest = [x for x in ck if not x.startswith("v_")]
            NC = 3 if "ck3" in X else 2
            idx = [i for i, x in enumerate(ec) if x.startswith("v_cvt")][-NC:]
            tailc = [ec[i] for i in idx]; body_ = [x for i, x in enumerate(ec) if i not in idx]
            return body_ + nv + tailc, rest
        e_, c_ = merged(exp_code(1), check(1, True)); distribute(fills, e_, E0, E1); post[15] = c_
        e_, c_ = merged(exp_code(0, q), check(0, True, half)); distribute(fills, e_, 16 + E0, 16 + E1); post[31] = c_ + (["s_nop 0"] if "ck" in X else [])
        if "ck" in X: post[15] = post[15] + ["s_nop 0"]
        f2 = {0: dK[:3], 1: [dK[3]], 2: [dK[4]], 3: [dK[5]], 16: dV[:3], 17: [dV[3]], 18: [dV[4]], 19: [dV[5]]}
        if "dm0" in X: f2 = {0: dK[:4], 1: dK[4:], 16: dV[:4], 17: dV[4:]}
        if "dm1" in X: f2 = {0: dK[:3], 1: [dK[3]], 2: [dK[4]], 3: [dK[5]], 4: dV[:3], 5: [dV[3]], 6: [dV[4]], 7: [dV[5]]}
        if "dmA" not in X: f2 = {0: dK[:3], 2: [dK[3]], 4: [dK[4]], 6: [dK[5]], 16: dV[:3], 18: [dV[3]], 20: [dV[4]], 22: [dV[5]]}
        if "dm4" in X: f2 = {0: dK[:2], 1: [dK[2]], 3: [dK[3]], 5: [dK[4]], 7: [dK[5]], 16: dV[:2], 17: [dV[2]], 19: [dV[3]], 21: [dV[4]], 22: [dV[5]]}
        if "dm5" in X: f2 = {0: dK[:3], 3: [dK[3]], 6: [dK[4]], 9: [dK[5]], 12: dV[:3], 15: [dV[3]], 18: [dV[4]], 21: [dV[5]]}
        if "dm6" in X: f2 = {0: dK[:3], 2: [dK[3]], 4: [dK[4]], 6: [dK[5]], 8: dV[:3], 10: [dV[3]], 12: [dV[4]], 14: [dV[5]]}
        if "dm7" in X: f2 = {0: dV[:3], 2: [dV[3]], 4: [dV[4]], 6: [dV[5]], 16: dK[:3], 18: [dK[3]], 20: [dK[4]], 22: [dK[5]]}
        if "dm3" in X: f2 = {8: dK[:3], 9: [dK[3]], 10: [dK[4]], 11: [dK[5]], 12: dV[:3], 13: [dV[3]], 14: [dV[4]], 15: [dV[5]]}
        distribute(f2, adv_all + [f"s_add_u32 s{sN}, s{sN}, 1"], *((23, 27) if "dmA" not in X else (21, 27)))
        CW = [x for x in X if x.startswith("cw")]
        if CW and not half:
            cd, ce = [int(t) for t in CW[0][2:].split("_")]
            cost = lambda x: ce if x.startswith("v_exp") else (4 if x.startswith("v_") else (cd if x.startswith("buffer") else 1))
            gaps = {}
            for s_ in range(32):
                fx = f2.get(s_, []); h_ = (len(fx) + 1) // 2 if any(x.startswith("buffer") for x in fx) and len(fx) > 1 else len(fx)
                gaps[2*s_] = list(fx); gaps[2*s_+1] = []
            for base_, items in ((0, exp_code(1)), (16, exp_code(0))):
                gaps[2*base_+1] += lacc
                g0, g1 = 2*(base_+2), 2*(base_+16)
                fixed = {g: sum(cost(x) for x in gaps[g]) + (4 if g % 2 else 0) for g in range(g0, g1)}
                tot = sum(fixed.values()) + sum(cost(x) for x in items)
                acc_ = 0; i_ = 0
                for n_, g in enumerate(range(g0, g1)):
                    acc_ += fixed[g]; tgt = tot * (n_ + 1) / (g1 - g0)
                    while i_ < len(items) and (acc_ + cost(items[i_]) / 2 <= tgt or n_ == g1 - g0 - 1):
                        gaps[g].append(items[i_]); acc_ += cost(items[i_]); i_ += 1
            fills = {s_: (gaps[2*s_], gaps[2*s_+1]) for s_ in range(32)}
        else:
            for k_, v_ in f2.items(): fills[k_] = (fills.get(k_, []) + v_) if "dfirst" not in X else (v_ + fills.get(k_, []))
        if half: fills[0] = ["s_nop 1"] + fills[0]
        run_slots(slots, fills, vslots(0), sync_after=(27 if 'sa27' in X else 29 if 'sa29' in X else 28), sync=["s_waitcnt lgkmcnt(0) vmcnt(0)", "s_barrier"] + toggles, post=post)
    def tail(half):
        q = (1,) if half else (0, 1)
        la = lacc[1:] if half else lacc
        fills = {0: list(la), 8: list(la)}; post = {(2 if half else 1): mask_hook(1), 7: check(1, False, half) + ["s_nop 0"]}
        distribute(fills, exp_code(1, q), 3 if half else 2, 8)
        xl = []
        for x0_, x1_ in zip(xlane("v_add_f32", vLS, vT + 4), xlane("v_add_f32", vLS + 1, vT + 5)):
            xl.append(x0_)
            if not x1_.startswith("s_nop"): xl.append(x1_)
        xl += [f"v_rcp_f32 v{vT}, v{vLS}", f"v_rcp_f32 v{vT+3}, v{vLS+1}", "s_nop 0", f"v_mov_b32 v{vT+2}, v{vT}", f"v_mov_b32 v{vT+1}, v{vT}", f"v_mov_b32 v{vT+4}, v{vT+3}",
               f"s_lshl_b32 s{sT0}, s{sTile}, 3", f"s_add_u32 s{sT0}, s{sT0}, s{sWL}",
               f"s_lshl_b32 s{sT0}, s{sT0}, 17", f"s_lshl_b32 s{sT1}, s{sH}, 12", f"s_add_u32 s{sT0}, s{sT0}, s{sT1}"]
        distribute(fills, xl, 9, 16)
        run_slots(vslots(0, q) + vslots(1, q), fills, [], post=post)
    a.label(f"{name}_loop")
    if "phst" in X or "phst2" in X:
        for i in range(10):
            l_ = a.uid("phst"); a.e(f"s_cmp_lg_u32 s{sVt}, {i + (1 if 'phst' in X else 7)}"); a.e(f"s_cbranch_scc1 {l_}"); _at(2 + i); a.e("s_waitcnt lgkmcnt(0)"); a.e(l_ + ":")
    body(False)
    a.e(f"s_cmp_lt_u32 s{sN}, s{sI}"); a.e(f"s_cbranch_scc1 {name}_loop")
    a.e(f"s_cmp_lg_u32 s{sHalf}, 0"); a.e(f"s_cbranch_scc1 {name}_lasth")
    a.label(f"{name}_tail")
    tail(False)
    a.e(f"s_branch {name}_final")
    a.label(f"{name}_lasth")
    body(True)
    a.label(f"{name}_tailh")
    nd = a.uid(f"{name}_nd")
    a.e(f"s_cmp_lg_u32 s{sSeg}, 0"); a.e(f"s_cbranch_scc1 {nd}")
    for x in dK + dV + adv_all: a.e(x)
    a.e(f"{nd}:")
    tail(True)
    a.e("s_nop 3")
    a.e(f"s_cmp_lg_u32 s{sSeg}, 0"); a.e(f"s_cbranch_scc1 {name}_final")
    a.e(f"s_lshl_b32 s{sT1}, s{sWL}, 12"); a.e(f"s_add_u32 s{sT1}, s{sT1}, {QSTASH}"); a.e(f"v_add_u32 v{vT+6}, s{sT1}, v{vL16}")
    a.e(f"s_lshl_b32 s{sT1}, s{sQD}, 12"); a.e(f"v_add_u32 v{vT+7}, s{sT1}, v{vT+6}")
    for f in range(8): a.e(f"ds_read_b128 {v(Q+4*f,4)}, v{vT + 6 + (f >> 2)} offset:{(f & 3)*1024}")
    a.e(f"s_lshl_b32 s{sT1}, s{sQD}, 17"); a.e(f"s_add_u32 s{sT1}, s{sT1}, s{sT0}")
    for x in range(4):
        for qt in range(2):
            PK = S + ((x*2+qt) % 8) * 4
            for dt in (2*x, 2*x+1):
                for rr in (0, 2): a.e(f"v_pk_mul_f32 {v(Or(dt,qt)+rr,2)}, {v(Or(dt,qt)+rr,2)}, {v(vT+1+2*qt,2)}")
            a.e(f"v_cvt_pk_bf16_f32 v{PK}, v{Or(2*x,qt)}, v{Or(2*x,qt)+1}"); a.e(f"v_cvt_pk_bf16_f32 v{PK+1}, v{Or(2*x,qt)+2}, v{Or(2*x,qt)+3}")
            a.e(f"v_cvt_pk_bf16_f32 v{PK+2}, v{Or(2*x+1,qt)}, v{Or(2*x+1,qt)+1}"); a.e(f"v_cvt_pk_bf16_f32 v{PK+3}, v{Or(2*x+1,qt)+2}, v{Or(2*x+1,qt)+3}")
            a.e(f"buffer_store_dwordx4 {v(PK,4)}, v{vL16}, s[{S_CT}:{S_CT+3}], s{sT1 if qt else sT0} offen offset:{x*1024} sc1")
    a.e(f"v_xor_b32 v{vVR}, 0x8000, v{vVR}")
    a.e(f"s_mov_b32 s{sSeg}, 1")
    a.e(f"s_sub_u32 s{sTile}, 15, s{sP}")
    a.e(f"s_lshl_b32 s{sT0}, s{sP}, 1"); a.e(f"s_sub_u32 s{sI}, 14, s{sT0}")
    a.e(f"s_lshl_b32 s{sR}, s{sTile}, 2"); a.e(f"s_sub_u32 s{sR}, 34, s{sR}")
    a.e(f"s_branch {name}_seg")
    a.label(f"{name}_final")
    st.at(9)
    vP1, vP2, vZ = 60, 64, 65
    a.e("s_load_dwordx2 s[4:5], s[0:1], 88"); a.e("s_load_dwordx2 s[16:17], s[0:1], 96")
    a.e(f"s_lshr_b32 s53, s{sH}, 2"); a.e("s_lshl_b32 s56, s53, 4"); a.e("s_add_u32 s56, s56, 36864"); a.e(f"s_lshl_b32 s71, s{sP}, 7")
    a.e("s_add_u32 s70, s56, s71"); a.e(f"s_sub_u32 s71, {15*128}, s71"); a.e("s_add_u32 s71, s71, s56")
    a.e("s_mov_b32 s52, 32768")
    pollS = f"buffer_load_dwordx4 {v(vP1,4)}, v{vL16}, s[{S_FL}:{S_FL+3}], s52 offen sc1"
    pollC = f"buffer_load_dword v{vP2}, v{vZ}, s[{S_FL}:{S_FL+3}], s70 offen sc1"
    a.e(f"v_and_b32 v{vZ}, 3, v{vL}"); a.e(f"v_lshlrev_b32 v{vZ}, 2, v{vZ}")
    a.e(pollC)
    vOWN, vPAR, vOM, vPM = vT + 6, vT + 7, vT + 8, vT
    a.e(f"s_lshl_b32 s{sT1}, s{sW}, 13"); a.e(f"v_add_u32 v{vOWN}, s{sT1}, v{vL16}"); a.e(f"v_xor_b32 v{vPAR}, 0x8000, v{vOWN}")
    a.e(f"s_lshl_b32 s{sT1}, s{sW}, 10"); a.e(f"s_add_u32 s{sT1}, s{sT1}, {155648}"); a.e(f"v_add_u32 v{vOM}, s{sT1}, v{vL16}"); a.e(f"v_xor_b32 v{vPM}, 0x1000, v{vOM}")
    a.e(f"ds_write_b128 v{vOM}, {v(vLS,4)}")
    a.e(f"s_lshl_b32 s{sT1}, s{sG}, 11"); a.e(f"s_add_u32 s{sT0}, s{sT0}, s{sT1}"); a.e(f"s_lshl_b32 s{sT1}, s{sQD}, 17"); a.e(f"s_add_u32 s{sT1}, s{sT1}, s{sT0}")
    lg1 = a.uid(f"{name}_g1"); lgd = a.uid(f"{name}_gd")
    sItem, sNT, sCG, sTq, sKQ = 48, 49, 50, 51, 53
    uT0, uT1, uT2 = 66, 67, 68
    def o_setup():
        a.e(f"s_and_b32 s{uT0}, s2, 7"); a.e(f"s_mul_i32 s{sCG}, s{uT0}, 18"); a.e(f"s_lshr_b32 s{uT1}, s2, 3"); a.e(f"s_sub_u32 s{uT1}, s{uT1}, 7")
        a.e(f"s_add_u32 s{sCG}, s{sCG}, s{uT1}"); a.e(f"s_cmp_lt_u32 s{uT1}, 18"); a.e(f"s_cselect_b32 s{sCG}, s{sCG}, -1")
        a.e(f"s_and_b32 s51, s{sH}, 3")
        ko.gemm_setup(a, sW, sP, 51, 53, (uT0, uT1, uT2))
    a.e(f"s_cmp_eq_u32 s{sG}, 0"); a.e(f"s_cbranch_scc0 {lg1}")
    XM = 56
    for g in range(2):
        keep = O + 32 * g; send = O + 32 * (1 - g)
        if g == 1: a.label(lg1)
        for n in range(8): a.e(f"ds_write_b128 v{vOWN}, {v(send+4*n,4)} offset:{n*1024}")
        a.e("s_waitcnt lgkmcnt(0)")
        o_setup()
        ko.gemm_vsetup(a, vL, vL16, 38, g == 0)
        a.e("s_barrier")
        a.e(f"ds_read_b128 {v(XM,4)}, v{vPM}")
        for n in range(8): a.e(f"ds_read_b128 {v(FR+4*n,4)}, v{vPAR} offset:{n*1024}")
        if g == 0 and False:
            for gg in (2, 3):
                for x in ko.gemm_wl(gg, (uT0, uT1, uT2)): a.e(x)
        a.e("s_waitcnt lgkmcnt(8)")
        for qt in range(2):
            mm = vE + 4*qt; e0 = mm + 1; e1 = mm + 2
            a.e(f"v_max_f32 v{mm}, v{vM+qt}, v{XM+2+qt}"); a.e(f"v_sub_f32 v{e0}, v{vM+qt}, v{mm}"); a.e(f"v_sub_f32 v{e1}, v{XM+2+qt}, v{mm}")
            a.e(f"v_exp_f32 v{e0}, v{e0}"); a.e(f"v_exp_f32 v{e1}, v{e1}"); a.e("s_nop 0")
            a.e(f"v_mul_f32 v{mm}, v{e0}, v{vLS+qt}"); a.e(f"v_fmac_f32 v{mm}, v{e1}, v{XM+qt}"); a.e(f"v_rcp_f32 v{mm}, v{mm}"); a.e("s_nop 0")
            a.e(f"v_mul_f32 v{e0}, v{e0}, v{mm}"); a.e(f"v_mul_f32 v{e1}, v{e1}, v{mm}")
        for xx in range(2):
            for qt in range(2):
                n0 = (2*xx)*2 + qt; n1 = (2*xx+1)*2 + qt
                for n in (n0, n1):
                    for rr in range(4): a.e(f"v_mul_f32 v{keep+4*n+rr}, v{keep+4*n+rr}, v{vE+4*qt+1}")
                a.e(f"s_waitcnt lgkmcnt({7 - n1})")
                for n in (n0, n1):
                    for rr in range(4): a.e(f"v_fmac_f32 v{keep+4*n+rr}, v{FR+4*n+rr}, v{vE+4*qt+2}")
                PK = S + (xx*2+qt)*4
                a.e(f"v_cvt_pk_bf16_f32 v{PK}, v{keep+4*n0}, v{keep+4*n0+1}"); a.e(f"v_cvt_pk_bf16_f32 v{PK+1}, v{keep+4*n0+2}, v{keep+4*n0+3}")
                a.e(f"v_cvt_pk_bf16_f32 v{PK+2}, v{keep+4*n1}, v{keep+4*n1+1}"); a.e(f"v_cvt_pk_bf16_f32 v{PK+3}, v{keep+4*n1+2}, v{keep+4*n1+3}")
                a.e(f"buffer_store_dwordx4 {v(PK,4)}, v{vL16}, s[{S_CT}:{S_CT+3}], s{sT1 if qt else sT0} offen offset:{xx*1024} sc1")
        if g == 0: a.e(f"s_branch {name}_convw")
    st.at(10)
    T3 = (sT0, sT1, sT2)
    G = ko.Gemm(a, name, T3, vL16, " sc1", S_FL, sNonce, _at if "gst" in X else None); G.X = X
    a.e(f"v_mov_b32 v16, v{vZ}")
    a.e("s_waitcnt vmcnt(4)")
    a.e(f"v_cmp_ne_u32 vcc, s{sNonce}, v{vP2}"); a.e("s_mov_b32 s66, vcc_lo")
    a.e(f"s_cbranch_vccnz {name}_late")
    G.first_loads(False)
    a.e("s_waitcnt vmcnt(16)")
    a.e(f"s_branch {name}_late2")
    a.label(f"{name}_late")
    a.e("s_waitcnt vmcnt(0)")
    a.label(f"{name}_late2")
    a.e("s_barrier")
    st.at(8)
    a.e(f"s_cmp_lg_u32 s{sW}, 7"); a.e(f"s_cbranch_scc1 {name}_nsg")
    for x in [f"v_mov_b32 v{vT}, s{sNonce}", f"v_mov_b32 v{vT+1}, 0", f"s_lshl_b32 s{sT2}, s{sH}, 2", f"s_and_b32 s{sT2}, s{sT2}, 15",
              f"s_add_u32 s{sT0}, s71, s{sT2}", f"s_add_u32 s{sT1}, s70, s{sT2}", "s_mov_b64 exec, 1",
              f"buffer_store_dword v{vT}, v{vT+1}, s[{S_FL}:{S_FL+3}], s{sT0} offen sc1",
              f"buffer_store_dword v{vT}, v{vT+1}, s[{S_FL}:{S_FL+3}], s{sT1} offen sc1", "s_mov_b64 exec, -1"]: a.e(x)
    a.label(f"{name}_nsg")
    a.e("s_cmp_eq_u32 s66, 0"); a.e(f"s_cbranch_scc1 {name}_rdy")
    G.spin(f"buffer_load_dword v15, v16, s[{S_FL}:{S_FL+3}], s70 offen sc1")
    G.first_loads(False)
    a.label(f"{name}_rdy")
    if True: a.e("s_barrier")
    st.at(2)
    G.first_loads(True)
    G.main(f"buffer_load_dword v15, v16, s[{S_FL}:{S_FL+3}], s71 offen sc1")
    a.e(f"s_branch {name}_fin")
    a.label(f"{name}_convw")
    if True:
        for gg in (2, 3):
            for x in ko.gemm_wl(gg, T3): a.e(x)
        a.e("s_waitcnt vmcnt(18)")
        a.e("s_barrier")
        a.e("s_waitcnt vmcnt(0)")
        a.e("s_barrier")
    else:
        a.e("s_waitcnt vmcnt(0)")
        a.e("s_barrier")
    for gg in range(2):
        for x in ko.gemm_wl(gg, T3): a.e(x)
    a.e(f"v_mov_b32 v{vT}, {ko.CNT}"); a.e(f"v_mov_b32 v{vT+1}, 0"); a.e(f"ds_write_b32 v{vT}, v{vT+1}")
    a.e("s_waitcnt vmcnt(0) lgkmcnt(0)")
    a.e("s_barrier")
    a.e(f"s_cmp_eq_u32 s{sCG}, -1"); a.e(f"s_cbranch_scc1 {name}_fin")
    a.e(f"s_mov_b32 s{sT0}, 0")
    a.label(f"{name}_ssp")
    a.e(pollS); a.e("s_waitcnt vmcnt(0)")
    for r in range(4): a.e(f"v_xor_b32 v{vP1+r}, s{sNonce}, v{vP1+r}")
    a.e(f"v_or3_b32 v{vP1}, v{vP1}, v{vP1+1}, v{vP1+2}"); a.e(f"v_or_b32 v{vP1}, v{vP1}, v{vP1+3}"); a.e(f"v_cmp_ne_u32 vcc, 0, v{vP1}")
    a.e(f"s_add_u32 s{sT0}, s{sT0}, 1"); a.e(f"s_cbranch_vccz {name}_sok")
    a.e(f"s_cmp_lt_u32 s{sT0}, 0x40000"); a.e(f"s_cbranch_scc1 {name}_ssp")
    a.label(f"{name}_sok")
    a.e("s_barrier")
    ko.gen_conv(a, name, st, sW, sCG, T3, vL, vL16, " sc1")
    a.label(f"{name}_fin")
    if diag: a.e("s_waitcnt vmcnt(0)")
    st.at(11); st.at(12, True)
    if "dbgst" in X:
        a.e(f"s_cmp_lg_u32 s{sW}, 4"); a.e(f"s_cbranch_scc1 {name}_end")
        st.dump_dbg(sNonce, [1, 5, 7, 9, 10, 2, 12])
    else: st.dump(6, sW)
    a.label(f"{name}_end")
    a.e("s_endpgm")
    i = 0
    while i < len(ool):
        lab, fn = ool[i]; a.label(lab); fn(); i += 1
    a.label(code_end)
    a.e("s_endpgm")
    a.e = _e
    kernel_desc(a, name, 256, 102)
```

```python
from asmlib import *
from k1 import MF, WS_CTX, WS_WOF, WS_KVB, WS_QB

EOFF = 4608; OOFF = EOFF + 4160; CROW = OOFF + 4160
CBASE = 73728; CNT = 155648 - 128
OOB = 0x7ff00000

def gen_conv(a, name, st, sW, sCG, sT, vL, vL16, LD, OF=''):
    sT0, sT1, sT2 = sT
    S_U, S_QT, S_H, S_OUT = 8, 12, 16, 20
    sCH, sD, sH0, sLB = 40, 41, 42, 43
    vT = 4
    a.e("s_load_dwordx4 s[24:27], s[0:1], 32")
    a.e("s_load_dwordx2 s[4:5], s[0:1], 96")
    a.e(f"s_lshl_b32 s{sCH}, s{sCG}, 2"); a.e(f"s_add_u32 s{sCH}, s{sCH}, s{sW}")
    a.e(f"s_mul_i32 s{sLB}, s{sW}, {CROW}"); a.e(f"s_add_u32 s{sLB}, s{sLB}, {CBASE}")
    a.e(f"s_lshl_b32 s{sT2}, s{sCH}, 12")
    a.e(f"s_add_u32 s44, s6, {WS_KVB}"); a.e("s_addc_u32 s45, s7, 0"); srd(a, S_U, 44, 576 * 4096)
    a.e(f"s_add_u32 s44, s6, {WS_QB}"); a.e("s_addc_u32 s45, s7, 0"); srd(a, S_QT, 44, 576 * 4096)
    a.e(f"s_mov_b32 m0, s{sLB}"); a.e("s_nop 0")
    for i in range(4): a.e(f"buffer_load_dwordx4 v{vL16}, s[{S_U}:{S_U+3}], s{sT2} offen offset:{i*1024}{LD} lds")
    a.e("s_waitcnt lgkmcnt(0)")
    srd(a, S_H, 24, 576 * 4096); srd(a, S_OUT, 4, 2048 * 2304)
    a.e(f"s_add_u32 m0, s{sLB}, {EOFF + 32}"); a.e(f"s_add_u32 s{sT1}, s{sT2}, 2")
    for i in range(4): a.e(f"buffer_load_dwordx4 v{vL16}, s[{S_H}:{S_H+3}], s{sT2} offen offset:{i*1024} lds")
    a.e(f"s_add_u32 m0, s{sLB}, {OOFF + 32}"); a.e("s_nop 0")
    for i in range(4): a.e(f"buffer_load_dwordx4 v{vL16}, s[{S_H}:{S_H+3}], s{sT1} offen offset:{i*1024} lds")
    a.e(f"s_add_u32 s24, s24, s{sT2}"); a.e("s_addc_u32 s25, s25, 0")
    a.e(f"s_lshr_b32 s{sT0}, s{sCH}, 1"); a.e(f"s_lshl_b32 s{sT0}, s{sT0}, 2")
    a.e(f"s_add_u32 s26, s26, s{sT0}"); a.e("s_addc_u32 s27, s27, 0")
    a.e(f"s_load_dword s{sH0}, s[24:25], 0"); a.e(f"s_load_dword s{sD}, s[26:27], 0")
    vAa, vBa, vKa, vYa, vQo = 8, 12, 13, 14, 15
    a.e(f"v_and_b32 v{vT}, 15, v{vL}"); a.e(f"v_lshrrev_b32 v{vT+1}, 4, v{vL}")
    a.e(f"v_lshl_add_u32 v16, v{vT+1}, 3, v{vT}"); a.e("v_add_u32 v16, 1, v16"); a.e("v_and_b32 v17, 1, v16")
    a.e("v_and_b32 v16, 0xfe, v16"); a.e("v_lshlrev_b32 v16, 1, v16"); a.e(f"v_mul_u32_u24 v17, {OOFF - EOFF}, v17")
    a.e(f"s_add_u32 s{sT0}, s{sLB}, {EOFF}"); a.e(f"v_add3_u32 v{vAa}, v16, v17, s{sT0}")
    for i in range(1, 4): a.e(f"v_add_u32 v{vAa+i}, {1024*i}, v{vAa}")
    a.e(f"v_lshlrev_b32 v17, 5, v{vT}"); a.e(f"v_lshlrev_b32 v18, 4, v{vT+1}"); a.e("v_sub_u32 v19, v18, v17")
    a.e(f"s_add_u32 s{sT1}, s{sLB}, {4064 - 3584}"); a.e(f"v_add_u32 v{vBa}, s{sT1}, v19")
    a.e(f"v_lshlrev_b32 v18, 3, v{vT+1}"); a.e(f"v_add_u32 v{vQo}, v17, v18")
    a.e(f"s_add_u32 s{sT1}, s{sLB}, {4088 - 3584}"); a.e(f"v_sub_u32 v{vKa}, s{sT1}, v{vQo}"); a.e(f"v_add_u32 v{vYa}, s{sT0}, v{vQo}")
    QR = 224; KVR = 240; ACC = 192; BUF = [64, 128]
    for j in range(8):
        a.e(f"buffer_load_dwordx2 {v(QR+2*j,2)}, v{vQo}, s[{S_QT}:{S_QT+3}], s{sT2} offen offset:{512*j}{LD}")
    for i in range(4): a.e(f"v_mov_b32 v{20+i}, 0")
    a.e(f"v_and_b32 v16, 31, v{vL}"); a.e("v_lshlrev_b32 v16, 4, v16"); a.e(f"v_add_u32 v16, s{sLB}, v16")
    a.e(f"ds_write_b128 v16, {v(20,4)} offset:4096")
    a.e(f"v_and_b32 v16, 7, v{vL}"); a.e("v_cmp_eq_u32 vcc, 7, v16"); a.e("v_lshlrev_b32 v16, 2, v16"); a.e(f"v_add_u32 v16, s{sT0}, v16")
    a.e("ds_write_b32 v16, v20")
    a.e("s_waitcnt lgkmcnt(0)")
    a.e(f"s_lshl_b32 s{sH0}, s{sH0}, 16"); a.e(f"v_mov_b32 v17, s{sH0}"); a.e("v_cndmask_b32 v17, v20, v17, vcc")
    a.e(f"ds_write_b32 v16, v17 offset:{OOFF - EOFF}")
    a.e(f"s_lshl_b32 s{sT0}, s{sD}, 16"); a.e(f"s_and_b32 s{sT1}, s{sD}, 0xffff0000")
    a.e(f"s_bitcmp0_b32 s{sCH}, 0"); a.e(f"s_cselect_b32 s{sD}, s{sT0}, s{sT1}")
    a.e("s_waitcnt vmcnt(8) lgkmcnt(0)")
    def creads(buf, r):
        B = BUF[buf]; o = []
        for m in range(8):
            d0 = (512 * (m & 1) + 64 * r) // 4
            o.append(f"ds_read2_b32 {v(B+4*m,2)}, v{vAa+(m>>1)} offset0:{d0} offset1:{d0+1}")
            o.append(f"ds_read2_b32 {v(B+4*m+2,2)}, v{vAa+(m>>1)} offset0:{d0+2} offset1:{d0+3}")
            o.append(f"ds_read_b128 {v(B+32+4*m,4)}, v{vBa} offset:{512*(7-m)+64*r}")
        return o
    for x in creads(0, 0): a.e(x)
    for r in range(8):
        B = BUF[r % 2]
        pairs = sorted([(m, j - m) for j in range(8) for m in range(j + 1)], key=lambda p: (max(p), p[0] + p[1]))
        seen = set(); ms = []
        for (m, n) in pairs:
            c = "0" if (r == 0 and m + n not in seen) else v(ACC+4*(m+n), 4)
            seen.add(m + n)
            ms.append(f"{MF} {v(ACC+4*(m+n),4)}, {v(B+4*m,4)}, {v(B+32+4*n,4)}, {c}")
        rd = creads((r + 1) % 2, r + 1) if r < 7 else [f"ds_read_b64 {v(KVR+2*j,2)}, v{vKa} offset:{512*(7-j)}" for j in range(8)]
        a.e("s_waitcnt lgkmcnt(0)")
        k_ = 0
        for m in ms:
            a.e(m)
            if k_ < len(rd):
                a.e(rd[k_]); k_ += 1
    a.e("s_waitcnt lgkmcnt(0) vmcnt(0)")
    a.e("s_nop 3")
    for j in range(8):
        a.e(f"v_and_b32 v24, 0xffff0000, v{KVR+1+2*j}"); a.e(f"v_lshlrev_b32 v25, 16, v{KVR+1+2*j}")
        a.e(f"v_and_b32 v26, 0xffff0000, v{KVR+2*j}"); a.e(f"v_lshlrev_b32 v27, 16, v{KVR+2*j}")
        for rr in range(4): a.e(f"v_fmac_f32 v{ACC+4*j+rr}, s{sD}, v{24+rr}")
        a.e(f"v_lshlrev_b32 v24, 16, v{QR+2*j}"); a.e(f"v_and_b32 v25, 0xffff0000, v{QR+2*j}")
        a.e(f"v_lshlrev_b32 v26, 16, v{QR+2*j+1}"); a.e(f"v_and_b32 v27, 0xffff0000, v{QR+2*j+1}")
        for rr in range(4): a.e(f"v_mul_f32 v{ACC+4*j+rr}, v{ACC+4*j+rr}, v{24+rr}")
        Pq = 28 + 2 * (j & 1)
        a.e(f"v_cvt_pk_bf16_f32 v{Pq}, v{ACC+4*j}, v{ACC+4*j+1}"); a.e(f"v_cvt_pk_bf16_f32 v{Pq+1}, v{ACC+4*j+2}, v{ACC+4*j+3}")
        a.e(f"ds_write_b64 v{vYa}, {v(Pq,2)} offset:{512*j}")
    a.e(f"v_bfe_u32 v16, v{vL}, 2, 2"); a.e(f"v_mul_u32_u24 v16, {CROW}, v16")
    a.e(f"v_lshrrev_b32 v17, 4, v{vL}"); a.e("v_lshl_add_u32 v16, v17, 5, v16")
    a.e(f"v_and_b32 v17, 3, v{vL}"); a.e("v_lshl_add_u32 v16, v17, 3, v16")
    a.e(f"s_lshl_b32 s{sT0}, s{sW}, 10"); a.e(f"s_add_u32 s{sT0}, s{sT0}, {CBASE + EOFF}"); a.e(f"v_add_u32 v16, s{sT0}, v16")
    a.e(f"s_lshl_b32 s{sT0}, s{sW}, 9"); a.e(f"v_add_u32 v17, s{sT0}, v{vL}"); a.e("v_mul_u32_u24 v17, 2304, v17")
    a.e(f"s_lshl_b32 s{sT0}, s{sCG}, 3")
    a.e(f"v_mov_b32 v18, {CNT}"); a.e("v_mov_b32 v19, 1")
    a.e("s_waitcnt lgkmcnt(0)")
    a.e("s_mov_b64 exec, 1"); a.e("ds_add_u32 v18, v19"); a.e("s_mov_b64 exec, -1")
    lsp = a.uid(f"{name}_csp")
    a.label(lsp)
    a.e("ds_read_b32 v19, v18"); a.e("s_waitcnt lgkmcnt(0)"); a.e(f"v_readfirstlane_b32 s{sT1}, v19")
    a.e(f"s_cmp_lt_u32 s{sT1}, 4"); a.e(f"s_cbranch_scc1 {lsp}")
    for i in range(8): a.e(f"ds_read_b64_tr_b16 {v(32+2*i,2)}, v16 offset:{128*i}")
    for i in range(8):
        a.e(f"s_waitcnt lgkmcnt({7-i})")
        a.e(f"buffer_store_dwordx2 {v(32+2*i,2)}, v17, s[{S_OUT}:{S_OUT+3}], s{sT0} offen{OF}")
        a.e(f"s_add_u32 s{sT0}, s{sT0}, {64*2304}")

WS_PART = 72 << 20
VW = 28; VRB = 11; VC1 = 17
CX = 48; GACC = [112, 184]; WF = 24
KORD = list(range(8, 16)) + list(range(8))

def gemm_setup(a, sW, sP, sC, sX, sT):
    sT0, sT1, sT2 = sT
    a.e(f"s_add_u32 s44, s6, {WS_CTX}"); a.e("s_addc_u32 s45, s7, 0"); srd(a, 8, 44, 16 << 20)
    srd(a, 12, 4, 4096 * 1152)
    a.e(f"s_add_u32 s44, s6, {WS_PART}"); a.e("s_addc_u32 s45, s7, 0"); srd(a, 20, 44, 512 * 36864)
    srd(a, 16, 16, 2048 * 2304)
    a.e(f"s_and_b32 s43, s{sW}, 3")
    a.e(f"s_lshl_b32 s41, s{sX}, 4"); a.e("s_add_u32 s41, s41, s43"); a.e(f"s_mul_i32 s41, s41, {32*1152}")
    a.e(f"s_mul_i32 s{sT0}, s{sC}, 288"); a.e(f"s_add_u32 s41, s41, s{sT0}")
    a.e("s_mul_i32 s42, s43, 9216")
    for part in range(2):
        T = 46
        if part == 0: a.e(f"s_mov_b32 s{T}, s{sP}")
        else: a.e(f"s_sub_u32 s{T}, 15, s{sP}")
        a.e(f"s_lshl_b32 s{sT0}, s{T}, 3"); a.e(f"s_lshl_b32 s{sT1}, s43, 1"); a.e(f"s_add_u32 s{sT1}, s{sT1}, s{sT0}"); a.e(f"s_lshl_b32 s{sT1}, s{sT1}, 17")
        a.e(f"s_lshl_b32 s{sT2}, s{sX}, 14"); a.e(f"s_add_u32 s{56+part}, s{sT1}, s{sT2}")
        a.e(f"s_add_u32 s{sT0}, s{sT0}, s{sX}"); a.e(f"s_mul_i32 s{48+part}, s{sT0}, {16*2304}"); a.e(f"s_mul_i32 s{sT1}, s{sC}, 288")
        a.e(f"s_add_u32 s{48+part}, s{48+part}, s{sT1}"); a.e(f"s_add_u32 s{48+part}, s{48+part}, 1152")
        a.e(f"s_lshl_b32 s{sT0}, s{T}, 2"); a.e(f"s_add_u32 s{sT0}, s{sT0}, s{sC}"); a.e(f"s_lshl_b32 s{sT0}, s{sT0}, 3")
        a.e(f"s_mul_i32 s{64+part}, s{sT0}, 36864"); a.e(f"s_mul_i32 s{sT1}, s{sX}, 4608"); a.e(f"s_add_u32 s{64+part}, s{64+part}, s{sT1}")
        a.e(f"s_lshl_b32 s{62+part}, s{sT0}, 4"); a.e(f"s_lshr_b32 s{sT1}, s{sX}, 1"); a.e(f"s_lshl_b32 s{sT1}, s{sT1}, 2")
        a.e(f"s_add_u32 s{62+part}, s{62+part}, s{sT1}"); a.e(f"s_add_u32 s{62+part}, s{62+part}, 40960")
        a.e(f"s_add_u32 s{sT0}, s{sT0}, s{sX}")
        a.e(f"s_mul_i32 s{58+part}, s{sT0}, 36864"); a.e(f"s_add_u32 s{58+part}, s{58+part}, s42")
        a.e(f"s_lshl_b32 s{60+part}, s{sT0}, 2"); a.e(f"s_add_u32 s{60+part}, s{60+part}, s43"); a.e(f"s_lshl_b32 s{60+part}, s{60+part}, 2"); a.e(f"s_add_u32 s{60+part}, s{60+part}, 40960")

def gemm_vsetup(a, vL, vL16, t, ld):
    if not ld:
        a.e(f"v_add_u32 v{VC1}, 131072, v{vL16}")
        a.e(f"v_lshrrev_b32 v{t}, 2, v{vL}"); a.e(f"v_mul_u32_u24 v{t}, 288, v{t}"); a.e(f"v_and_b32 v{t+1}, 3, v{vL}"); a.e(f"v_lshl_add_u32 v{VRB}, v{t+1}, 3, v{t}")
        a.e(f"v_add_u32 v{VRB+1}, 55296, v{VRB}"); a.e(f"v_add_u32 v{VRB+2}, 110592, v{VRB}")
        a.e(f"v_and_b32 v9, 15, v{vL}"); a.e("v_mul_u32_u24 v9, 2304, v9"); a.e(f"v_lshrrev_b32 v10, 4, v{vL}"); a.e("v_lshl_add_u32 v9, v10, 3, v9")
        a.e(f"v_lshlrev_b32 v10, 3, v{vL}")
        a.e(f"v_and_b32 v14, 7, v{vL}"); a.e("v_lshlrev_b32 v14, 4, v14")
    else:
        for n in range(9):
            a.e(f"v_add_u32 v{VW+n}, {64*n}, v{vL}")
            a.e(f"v_mul_u32_u24 v{t}, 3641, v{VW+n}"); a.e(f"v_lshrrev_b32 v{t}, 16, v{t}")
            a.e(f"v_lshlrev_b32 v{VW+n}, 4, v{VW+n}"); a.e(f"v_mul_u32_u24 v{t}, {1152-288}, v{t}"); a.e(f"v_add_u32 v{VW+n}, v{VW+n}, v{t}")
            if n % 4: a.e(f"v_subrev_u32 v{VW+n}, {1024*(n%4)}, v{VW+n}")

def gemm_wl(q, sT):
    r = [f"s_add_u32 s{sT[0]}, s41, {q * 4 * 32 * 1152}"]
    for part, n in ((0, 4), (1, 4), (2, 1)):
        r += [f"s_add_u32 m0, s42, {q * 36864 + part * 4096}", "s_nop 0"]
        r += [f"buffer_load_dwordx4 v{VW + 4*part + i}, s[12:15], s{sT[0]} offen offset:{i*1024} lds" for i in range(n)]
    return r

class Gemm:
    def __init__(self, a, name, sT, vL16, LD, S_FL, sNonce, gst=None):
        self.__dict__.update(locals()); self.vm = []
    def E(self, x, tag=None):
        self.a.e(x)
        if x.startswith("buffer_"): self.vm.append(tag)
    def wait(self, tag):
        idx = max(i for i, t in enumerate(self.vm) if t == tag)
        self.a.e(f"s_waitcnt vmcnt({len(self.vm) - 1 - idx})")
    def cl(self, s):
        part, ks = s >> 4, KORD[s & 15]; sT1 = self.sT[1]
        return [(f"s_add_u32 s{sT1}, s{56+part}, {(ks >> 2) * 4096}", None)] + [
                (f"buffer_load_dwordx4 {v(CX + (s % 8) * 8 + 4 * i, 4)}, v{VC1 if i else self.vL16}, s[8:11], s{sT1} offen offset:{(ks & 3) * 1024}{self.LD}", ("c", s)) for i in range(2)]
    def first_loads(self, book):
        for s in range(8):
            for x, t in self.cl(s):
                if book:
                    if x.startswith("buffer_"): self.vm.append(t)
                else: self.a.e(x)
    def spin(self, poll, pre=False):
        a = self.a; sT0 = self.sT[0]
        lp = a.uid(f"{self.name}_sp"); lc = a.uid(f"{self.name}_sc"); lo = a.uid(f"{self.name}_ok")
        a.e(f"s_mov_b32 s{sT0}, 0")
        if pre: a.e(f"s_branch {lc}")
        a.label(lp)
        a.e(poll); a.e("s_waitcnt vmcnt(0)")
        a.label(lc)
        a.e(f"v_cmp_ne_u32 vcc, s{self.sNonce}, v15"); a.e(f"s_add_u32 s{sT0}, s{sT0}, 1"); a.e(f"s_cbranch_vccz {lo}")
        a.e(f"s_cmp_lt_u32 s{sT0}, 0x40000"); a.e(f"s_cbranch_scc1 {lp}")
        a.label(lo)
    def main(self, pollL):
        a = self.a; E = self.E; wait = self.wait; gst = self.gst; vL16 = self.vL16; LD = self.LD; S_FL = self.S_FL
        sT0, sT1, sT2 = self.sT
        def pstores(part):
            r = []
            for i in range(2):
                for f in range(5):
                    A = GACC[part] + (i * 9 + 2 * f) * 4; P = 4 if (f + i) % 2 else 20
                    nq = 4 if f < 4 else 2
                    r.append([(f"v_cvt_pk_bf16_f32 v{P+q}, v{A+2*q}, v{A+2*q+1}", None) for q in range(nq)] +
                             ([(f"s_add_u32 s{sT2}, s{58+part}, {i * 4608 + (4096 if f == 4 else 0)}", None)] if f in (0, 4) else []) +
                             [(f"buffer_store_dwordx{nq} {v(P, nq)}, v{vL16 if f < 4 else 10}, s[20:23], s{sT2} offen offset:{(f % 4) * 1024} sc1", ("p", part))])
            return r
        def flag(part):
            for x in [f"v_mov_b32 v18, s{self.sNonce}", "v_mov_b32 v19, 0", "s_mov_b64 exec, 1"]: a.e(x)
            E(f"buffer_store_dword v18, v19, s[{S_FL}:{S_FL+3}], s{60+part} offen sc1", "f"); a.e("s_mov_b64 exec, -1")
        ppoll = lambda part: f"buffer_load_dword v15, v14, s[{S_FL}:{S_FL+3}], s{62+part} offen sc1"
        E(pollL, "pl")
        NB = 6; D = 4 if 'gd4' in self.X else 5
        rd = lambda n: [f"ds_read_b64_tr_b16 {v(WF + 4 * (n % NB) + 2 * hh, 2)}, v{VRB + KORD[(n // 9) & 15] // 6} offset:{(KORD[(n // 9) & 15] % 6) * 9216 + (n % 9) * 32 + hh * 4608}" for hh in range(2)]
        NT = 32 * 9
        can = lambda n, cur: not (72 <= n < 144 and cur < 72)
        issued = 0; pend = []
        for n in range(NT):
            s, j = divmod(n, 9); part = s >> 4
            if n == 72:
                if gst: gst(5)
                a.e("s_barrier")
                wait("pl"); self.spin(pollL, True)
                if gst: gst(6); a.e("s_waitcnt lgkmcnt(0)")
            if n == 144 + 54: a.e("s_barrier")
            if n == 144 and gst: gst(7); a.e("s_waitcnt lgkmcnt(0)")
            if n in (0, 72):
                while issued < n + D:
                    for x in rd(issued): a.e(x)
                    issued += 1
            if j == 0: wait(("c", s))
            if "gw2" in self.X:
                if n % 2 == 0: a.e(f"s_waitcnt lgkmcnt({2 * max(0, issued - n - 2)})")
            else: a.e(f"s_waitcnt lgkmcnt({2 * (issued - n - 1)})")
            nx = rd(issued) if (issued < NT and can(issued, n)) else None
            for i in range(2):
                acc = v(GACC[part] + (i * 9 + j) * 4, 4)
                a.e(f"{MF} {acc}, {v(WF + 4 * (n % NB), 4)}, {v(CX + (s % 8) * 8 + 4 * i, 4)}, {'0' if (s & 15) == 0 else acc}")
                if nx: a.e(nx[i])
            if nx: issued += 1
            if j == 8 and s + 8 < 32:
                for x, t in self.cl(s + 8): E(x, t)
            if n == 144 + 3: pend = pstores(0)
            if pend and n % (2 if 'p2' in self.X else 3) == 0:
                for x, t in pend.pop(0): E(x, t)
            if n == 144 + 9 * (7 if 'f7' in self.X else 9):
                wait(("p", 0)); flag(0)
            if n == NT - 18: E(ppoll(0), "pp")
        if gst: gst(8)
        def rloads(part):
            a.e(f"s_lshl_b32 s{sT1}, s43, 10"); a.e(f"s_add_u32 s{sT1}, s{sT1}, s{64+part}")
            a.e(f"s_add_u32 s{sT2}, s{64+part}, 4096"); a.e(f"s_cmp_eq_u32 s43, {part}"); a.e(f"s_cselect_b32 s{sT2}, s{sT2}, {OOB}")
            for q in range(8):
                E(f"buffer_load_dwordx4 {v(64 + 4 * q, 4)}, v{vL16}, s[20:23], s{sT1} offen{LD}", ("r", part, 0, q)); a.e(f"s_add_u32 s{sT1}, s{sT1}, 36864")
            for q in range(8):
                E(f"buffer_load_dwordx2 {v(96 + 2 * q, 2)}, v10, s[20:23], s{sT2} offen{LD}", ("r", part, 1, q)); a.e(f"s_add_u32 s{sT2}, s{sT2}, 36864")
        def rsum(part):
            a.e(f"s_lshl_b32 s{sT1}, s43, 6"); a.e(f"s_add_u32 s{sT1}, s{sT1}, s{48+part}")
            a.e(f"s_add_u32 s{sT2}, s{48+part}, 256"); a.e(f"s_cmp_eq_u32 s43, {part}"); a.e(f"s_cselect_b32 s{sT2}, s{sT2}, {OOB}")
            for z, (B, nd, A) in enumerate(((64, 4, 40), (96, 2, 52))):
                for q in range(8):
                    wait(("r", part, z, q))
                    for d in range(nd):
                        if q == 0:
                            a.e(f"v_lshlrev_b32 v{A+2*d}, 16, v{B+d}"); a.e(f"v_and_b32 v{A+1+2*d}, 0xffff0000, v{B+d}")
                        else:
                            a.e(f"v_dot2_f32_bf16 v{A+2*d}, v{B+nd*q+d}, s44, v{A+2*d}"); a.e(f"v_dot2_f32_bf16 v{A+1+2*d}, v{B+nd*q+d}, s45, v{A+1+2*d}")
                a.e("s_nop 2")
                O_ = 56 if nd == 4 else 60
                for d in range(nd): a.e(f"v_cvt_pk_bf16_f32 v{O_+d}, v{A+2*d}, v{A+1+2*d}")
                if nd == 4:
                    E(f"buffer_store_dwordx2 {v(56,2)}, v9, s[16:19], s{sT1} offen"); E(f"buffer_store_dwordx2 {v(58,2)}, v9, s[16:19], s{sT1} offen offset:32")
                else:
                    E(f"buffer_store_dwordx2 {v(60,2)}, v9, s[16:19], s{sT2} offen")
        a.e("s_mov_b32 s44, 0x00003f80"); a.e("s_mov_b32 s45, 0x3f800000")
        la = a.uid(f"{self.name}_ea"); lb = a.uid(f"{self.name}_eb")
        for grp in pstores(1):
            for x, t in grp: E(x, t)
        wait("pp")
        a.e(f"v_cmp_ne_u32 vcc, s{self.sNonce}, v15"); a.e(f"s_cbranch_vccnz {la}")
        save = list(self.vm)
        rloads(0)
        wait(("p", 1)); flag(1)
        rsum(0)
        a.e(f"s_branch {lb}")
        a.label(la)
        self.vm = save
        wait(("p", 1)); flag(1)
        self.spin(ppoll(0)); rloads(0); rsum(0)
        a.label(lb)
        if gst: gst(10)
        self.spin(ppoll(1))
        if gst: gst(11)
        self.vm = []
        rloads(1); rsum(1)
```

```python
import sys
from asmlib import *
import k1, k2, k3, ka
HDR = open("concat_heads__ssm_conv_h3__compressed_kv_cla__prompt.s.ref").read().split("; Override launch")[0]
def build(launches, gens, path):
    a = Asm()
    a.raw(HDR.rstrip("\n"))
    for (k, g, b, l) in launches:
        a.raw(f"; @launch kernel={k} grid=({g},1,1) block=({b},1,1) lds={l}")
    a.raw('.amdgcn_target "amdgcn-amd-amdhsa--gfx950"')
    for g in gens: g(a)
    t = a.text()
    lint(t)
    open(path, "w").write(t)
LA = ("ka_kernel", 256, 512, 163840)
L3 = ("k3_kernel", 256 + k3.NCONV, 256, k3.K3_LDS)
FINAL = "concat_heads__ssm_conv_h3__compressed_kv_cla__prompt.s"
if __name__ == "__main__":
    build([LA], [ka.gen_ka], "all.s")
    build([LA], [lambda a: ka.gen_ka(a, diag=True)], "alldiag.s")
    t = open("all.s").read()
    KN = "concat_heads__ssm_conv_h3__compressed_kv_cla__prompt_kernel"
    t = t.replace("; @launch kernel=ka_kernel ", "; @launch ")
    import re
    t = re.sub(r"\bka_kernel\b", KN, t)
    DOC = """;
"""
    i = t.index(".amdgcn_target")
    t = t[:i] + DOC + t[i:]
    open(FINAL, "w").write(t)
```

```python
from asmlib import *
import ko
from k1 import MF, WS_KV, WS_CTX, WS_WOF, WS_KVB, WS_QB, wg_decode, act_dma_offsets, w_dma_offsets, act_read_addr, w_read_addr

QSCALE = 0x3e0293ee
NEG = 0xf149f2ca
LTHR = 0x4e800000
OOB = 0x7ff00000
WS_FLAG = 64 << 20

def gen_ka(a, name="ka_kernel", diag=False, X=(), code_end=None):
    kernel_begin(a, name)
    code_end = f"{name}_code_end"
    st = Stamps(a, diag, 0, 76)
    _at = st.at
    pst = (lambda i: (_at(i), a.e("s_waitcnt lgkmcnt(0)"))) if "prost" in X else (lambda i: None)
    if "qst" in X or "phst" in X or "phst2" in X: st.at = lambda i, real=False: _at(i, real) if (i < 2 or i == 12) else None
    if "gst" in X: st.at = lambda i, real=False: _at(i, real) if (i < 3 or i == 12) else None
    if "g2" in X: st.at = lambda i, real=False: _at(i, real) if (i in (0, 1, 2, 3, 4, 10, 11, 12)) else None
    if "prost" in X: st.at = lambda i, real=False: _at(i, real) if (i < 4 or i == 12) else None
    if "kvst" in X:
        _at = st.at
        st.at = lambda i, real=False: _at(i, real) if (i < 4 or i == 12) else None
    _e = a.e
    def e2(x):
        if x.endswith(":"): a.label(x[:-1])
        else: _e(x)
    a.e = e2
    S_C, S_W, S_KV, S_X, S_WQ, S_CT = 8, 12, 16, 20, 24, 28
    sW, sH, sP, sG, sWL = 32, 33, 34, 35, 36
    sT0, sT1, sT2 = 37, 38, 39
    sIT, sKC, sKW, sM0C, sM0W = 40, 41, 42, 43, 44
    sRole, sA, sB = 45, 46, 47
    S_S = 48
    S_DBG = 72
    sI, sN, sKoff, sVoff, sKt, sVt, sM0K, sM0V = 40, 41, 42, 43, 44, 45, 46, 47
    sTA, sJump, sSeg, sR, sTH, sTile, sKX, sKWq = 48, 49, 50, 51, 52, 53, 54, 55
    sQD = 55; sHalf = 54
    sMSK = 56
    vL = 1; vL16 = 2; vDUM = 3
    vDC = 4; vDW = 8; vRC = 12; vRW = 14; vST = 18; vT = 19
    vDX = 28; vDWq = 124
    CF = 32; WA, WB = 48, 64; ACC = 128
    XS = [0, 131072, 65536]; WSL = [32768, 49152, 98304]
    VRING = 65536; QTMP = 98304; QSTASH = 131072

    a.e("s_cmp_ge_u32 s2, 256")
    a.e(f"s_cbranch_scc1 {name}_end")
    st.at(0); st.at(1, True)
    a.e("s_load_dwordx8 s[60:67], s[0:1], 48")
    a.e("s_load_dwordx2 s[68:69], s[0:1], 80")
    a.e("s_memrealtime s[70:71]")
    a.e("s_load_dwordx4 s[4:7], s[0:1], 104")
    a.e(f"v_lshrrev_b32 v{vT}, 6, v0")
    a.e(f"v_and_b32 v{vL}, 63, v0")
    a.e(f"v_readfirstlane_b32 s{sW}, v{vT}")
    a.e(f"v_lshlrev_b32 v{vL16}, 4, v{vL}")
    wg_decode(a, sH, sP, sT0, sT1)
    a.e(f"s_lshr_b32 s{sG}, s{sW}, 2")
    a.e(f"s_and_b32 s{sWL}, s{sW}, 3")
    a.e(f"s_lshl_b32 s{sT0}, s{sP}, 8")
    a.e(f"s_lshl_b32 s{sT1}, s{sW}, 5")
    a.e(f"s_add_u32 s{sT0}, s{sT0}, s{sT1}")
    act_dma_offsets(a, vDC, vL, vT, sT0, 1024)
    a.e(f"s_lshl_b32 s{sT0}, s{sWL}, 4")
    a.e(f"s_lshl_b32 s{sT1}, s{sH}, 8")
    w_dma_offsets(a, vDW, vL, vT, sT0, sT1, [(0, 0), (1, 0), (2, 1), (3, 1)])
    a.e(f"s_lshl_b32 s{sM0C}, s{sW}, 12")
    a.e(f"s_add_u32 s{sM0W}, s{sM0C}, 32768")
    a.e(f"s_mov_b32 s{sKC}, 0")
    a.e(f"s_mov_b32 s{sKW}, 0")
    pst(4)
    a.e("s_waitcnt lgkmcnt(0)")
    pst(5)
    srd(a, S_C, 62, 2048 * 1024)
    a.e(f"s_cmp_lt_u32 s{sW}, 4")
    a.e("s_cselect_b32 s46, s66, s68")
    a.e("s_cselect_b32 s47, s67, s69")
    srd(a, S_W, 46, 512 * 8192)
    S_W2 = 28
    dma_c = lambda i, so=sKC: f"buffer_load_dwordx4 v{vDC+i}, s[{S_C}:{S_C+3}], s{so} offen offset:{i*1024} lds"
    dma_w = lambda i, S=S_W: f"buffer_load_dwordx4 v{vDW+i}, s[{S}:{S+3}], s{sKW} offen offset:{i*1024} lds"
    dma_adv = [f"s_add_u32 s{sKC}, s{sKC}, 128", f"s_add_u32 s{sKW}, s{sKW}, {64*8192}",
               f"s_xor_b32 s{sM0C}, s{sM0C}, 0x10000", f"s_xor_b32 s{sM0W}, s{sM0W}, 0x10000"]
    if "wf" in X:
        a.e(f"s_mov_b32 m0, s{sM0W}"); a.e("s_nop 0")
        for i in range(4): a.e(dma_w(i))
    a.e(f"s_mov_b32 m0, s{sM0C}"); a.e("s_nop 0")
    for i in range(4): a.e(dma_c(i))
    if "wf" not in X:
        a.e(f"s_mov_b32 m0, s{sM0W}"); a.e("s_nop 0")
        for i in range(4): a.e(dma_w(i))
    for x in dma_adv: a.e(x)
    pst(6)
    a.e(f"s_add_u32 s{S_KV}, s6, {WS_KV}"); a.e(f"s_addc_u32 s{S_KV+1}, s7, 0")
    srd(a, S_KV, S_KV, 32 << 20)
    srd(a, S_X, 60, 2048 * 1152)
    srd(a, S_WQ, 64, 576 * 8192)
    srd(a, S_W2, 68, 512 * 8192)
    srd(a, 72, 4, 256)
    pst(8)
    a.e(f"s_and_b32 s{sT0}, s{sW}, 1"); a.e(f"s_lshl_b32 s{sT0}, s{sT0}, 14")
    act_read_addr(a, vRC, vL, vT, sT0)
    a.e(f"s_lshl_b32 s{sT0}, s{sG}, 14"); a.e(f"s_add_u32 s{sT0}, s{sT0}, 32768")
    a.e(f"s_and_b32 s{sT1}, s{sW}, 2"); a.e(f"s_lshl_b32 s{sT1}, s{sT1}, 1")
    w_read_addr(a, vRW, vL, vT, sT0, sT1, sT2)
    a.e(f"s_lshl_b32 s{sT0}, s{sH}, 20"); a.e(f"s_lshl_b32 s{sT1}, s{sP}, 17"); a.e(f"s_add_u32 s{sT0}, s{sT0}, s{sT1}")
    a.e(f"s_and_b32 s{sT1}, s{sW}, 1"); a.e(f"s_lshl_b32 s{sT1}, s{sT1}, 16"); a.e(f"s_add_u32 s{sT0}, s{sT0}, s{sT1}")
    a.e(f"v_add_u32 v{vST}, s{sT0}, v{vL16}")
    a.e(f"s_sub_u32 s{sT0}, 15, s{sP}"); a.e(f"s_cmp_eq_u32 s{sG}, 0"); a.e(f"s_cselect_b32 s{sT0}, s{sT0}, s{sP}")
    a.e(f"s_lshl_b32 s{sT0}, s{sT0}, 7"); a.e(f"s_lshl_b32 s{sT1}, s{sWL}, 5"); a.e(f"s_add_u32 s{sT0}, s{sT0}, s{sT1}")
    act_dma_offsets(a, vDX, vL, vT, sT0, 1152)
    a.e(f"v_lshrrev_b32 v{vT+2}, 4, v{vL}"); a.e(f"s_lshl_b32 s{sT0}, s{sW}, 3"); a.e(f"v_add_u32 v{vT}, s{sT0}, v{vT+2}")
    a.e(f"v_lshlrev_b32 v{vT}, 13, v{vT}"); a.e(f"s_lshl_b32 s{sT1}, s{sH}, 8"); a.e(f"v_add_u32 v{vT}, s{sT1}, v{vT}")
    a.e(f"v_and_b32 v{vT+1}, 15, v{vL}"); a.e(f"v_lshlrev_b32 v{vT+3}, 1, v{vT+2}"); a.e(f"v_xor_b32 v{vT+1}, v{vT+1}, v{vT+3}")
    a.e(f"s_and_b32 s{sT0}, s{sW}, 1"); a.e(f"s_lshl_b32 s{sT0}, s{sT0}, 3"); a.e(f"v_xor_b32 v{vT+1}, s{sT0}, v{vT+1}")
    a.e(f"v_lshl_add_u32 v{vDWq}, v{vT+1}, 4, v{vT}"); a.e(f"v_add_u32 v{vDWq+1}, {4*8192-1024}, v{vDWq}")
    pst(9)
    for i in range(128): a.e(f"v_mov_b32 v{ACC+i}, 0")
    pst(10)
    pst(11)
    kdma = ([f"s_mov_b32 m0, s{sM0C}", f"s_add_u32 s45, s{sKC}, 131072"] + [dma_c(i) for i in range(4)] + [f"s_mov_b32 m0, s{sM0W}", "s_nop 0"] + [dma_w(i) for i in range(4)]
            + [f"s_add_u32 m0, s{sM0C}, 16384", "s_nop 0"] + [dma_c(i, 45) for i in range(4)] + [f"s_add_u32 m0, s{sM0W}, 16384", "s_nop 0"] + [dma_w(i, S_W2) for i in range(4)] + dma_adv)
    sGW = 3
    PX, PC, PWQ, PWK, PWV = 60, 62, 64, 66, 68
    def touch(parts, R=46, skip=True):
        base = 0; RS = R + 2
        a.e(f"s_mov_b32 s{R}, s6"); a.e(f"s_mov_b32 s{R+1}, s7"); a.e(f"s_mov_b32 s{sT0}, {200 << 20}"); a.e(f"s_mov_b32 s{RS}, 1024")
        for (lo, start, n, wt) in parts:
            a.e(f"s_sub_u32 s{sT1}, s{sGW}, {base}"); a.e(f"s_lshl_b32 s{sT2}, s{sT1}, {16 if wt == 1 else 13}")
            if start: a.e(f"s_add_u32 s{sT2}, s{sT2}, {start}")
            if wt == 1: a.e(f"s_add_u32 s{sT2}, s{sT2}, s59")
            if wt >= 2:
                a.e(f"s_mul_i32 s58, s59, {8 * n}"); a.e(f"s_add_u32 s{sT2}, s{sT2}, s58")
            a.e(f"s_cmp_lt_u32 s{sT1}, {n}")
            a.e(f"s_cselect_b32 s{sT0}, s{sT2}, s{sT0}"); a.e(f"s_cselect_b32 s{R}, s{lo}, s{R}"); a.e(f"s_cselect_b32 s{R+1}, s{lo+1}, s{R+1}")
            if wt == 1: a.e(f"s_cselect_b32 s{RS}, 8192, s{RS}")
            base += n
        ls = a.uid(f"{name}_tsk")
        if skip: a.e(f"s_cmp_eq_u32 s{sT0}, {200 << 20}"); a.e(f"s_cbranch_scc1 {ls}")
        a.e(f"s_add_u32 s{R}, s{R}, s{sT0}"); a.e(f"s_addc_u32 s{R+1}, s{R+1}, 0")
        a.e(f"v_lshrrev_b32 v{vT}, 3, v{vL}"); a.e(f"v_and_b32 v{vT+1}, 7, v{vL}"); a.e(f"v_lshlrev_b32 v{vT+1}, 7, v{vT+1}")
        a.e(f"v_mad_u32_u24 v{vT}, v{vT}, s{RS}, v{vT+1}"); a.e(f"global_load_dword v{vDUM}, v{vT}, s[{R}:{R+1}]")
        a.e(ls + ":")
    WW = lambda r0, n: [(PWK, r0*8192, n // 8, 1), (PWV, r0*8192, n // 8, 1)]
    a.e(f"s_cmp_lt_u32 s{sW}, 4"); a.e(f"s_cbranch_scc0 {name}_vp0")
    for x in kdma: a.e(x)
    a.e(f"s_branch {name}_nop0")
    a.label(f"{name}_vp0")
    a.e(f"s_lshr_b32 s{sGW}, s2, 3"); a.e(f"s_lshl_b32 s{sT0}, s{sWL}, 5"); a.e(f"s_add_u32 s{sGW}, s{sGW}, s{sT0}")
    a.e("s_and_b32 s59, s2, 7"); a.e("s_lshl_b32 s59, s59, 10")
    touch([(PC, 0, 32, 2)] + WW(64, 128), skip=False)
    a.e("s_getpc_b64 s[28:29]")
    a.e(f"{name}_pc:")
    a.e(f"s_sub_u32 s28, s28, {name}_pc - {name}"); a.e("s_subb_u32 s29, s29, 0")
    a.e("s_and_b32 s29, s29, 0xffff"); a.e(f"s_mov_b32 s30, {code_end} - {name}"); a.e("s_mov_b32 s31, 0x20000")
    a.e(f"s_sub_u32 s{sT0}, s{sGW}, 88"); a.e(f"s_lshl_b32 s{sT0}, s{sT0}, 13"); a.e(f"s_min_u32 s{sT0}, s{sT0}, {OOB}")
    a.e(f"v_lshlrev_b32 v{vT}, 7, v{vL}")
    a.e(f"buffer_load_dword v{vDUM}, v{vT}, s[28:31], s{sT0} offen")
    a.e("s_or_b32 s70, s70, 1")
    a.e("v_mov_b32 v126, s70"); a.e("v_mov_b32 v127, 0"); a.e(f"v_mov_b32 v{vT}, 0")
    a.e(f"s_cmp_eq_u32 s{sW}, 7"); a.e(f"s_cselect_b32 s{sT0}, 0, {OOB}")
    a.e("s_mov_b64 exec, 1")
    a.e(f"buffer_atomic_cmpswap v[126:127], v{vT}, s[72:75], s{sT0} offen sc0 sc1")
    a.e("s_mov_b64 exec, -1")
    a.label(f"{name}_nop0")
    pst(7)

    def rd_w(W, ks2):
        r = []
        for d in range(4):
            r.append(f"ds_read_b64_tr_b16 {v(W+4*d,2)}, v{vRW+d} offset:{ks2*8192}")
            r.append(f"ds_read_b64_tr_b16 {v(W+4*d+2,2)}, v{vRW+d} offset:{ks2*8192+1024}")
        return r
    rd_c = lambda t, ks2: f"ds_read_b128 {v(CF+4*(t%4),4)}, v{vRC+ks2} offset:{t*2048}"
    def mf(W, t, d, isK):
        acc = v(ACC + (t*4+d)*4, 4); cf = v(CF+4*(t%4), 4); wf = v(W+4*d, 4)
        return f"{MF} {acc}, {wf}, {cf}, {acc}" if isK else f"{MF} {acc}, {cf}, {wf}, {acc}"
    def qdma(stage):
        sl = stage % 3
        r = [f"s_lshl_b32 s{sT0}, s{sW}, 12", f"s_add_u32 m0, s{sT0}, {XS[sl]}", f"s_mov_b32 s{sT1}, {stage*128}"]
        r += [f"buffer_load_dwordx4 v{vDX+i}, s[{S_X}:{S_X+3}], s{sT1} offen offset:{i*1024} lds" for i in range(4)]
        r += [f"s_lshl_b32 s{sT0}, s{sW}, 11", f"s_add_u32 m0, s{sT0}, {WSL[sl]}", f"s_mov_b32 s{sT1}, {stage*64*8192}"]
        r += [f"buffer_load_dwordx4 v{vDWq+i}, s[{S_WQ}:{S_WQ+3}], s{sT1} offen offset:{i*1024} lds" for i in range(2)]
        return r

    ool = []
    def rot():
        a.e(f"s_add_u32 s{sT0}, s{sGW}, 8"); a.e(f"s_and_b32 s{sT0}, s{sT0}, 31"); a.e(f"s_andn2_b32 s{sGW}, s{sGW}, 31"); a.e(f"s_or_b32 s{sGW}, s{sGW}, s{sT0}")
    SCH = {0: [lambda: touch(WW(192, 128), skip=False)], 1: [lambda: touch(WW(320, 128))], 2: [rot, lambda: touch(WW(448, 64) + [(PX, 0, 36, 2)])],
           3: [rot, rot, lambda: touch([(PWQ, 0, 36, 1)])], 4: [rot, lambda: touch([(PWQ, 288*8192, 36, 1)])]}
    if "xl2" in X:
        SCH[5] = [lambda: touch([(PX, 0, 128, 0)])]; SCH[6] = [lambda: touch([(PX, 128*8192, 128, 0)]), lambda: touch([(PX, 256*8192, 32, 0)])]
    a.e(f"s_cmp_lt_u32 s{sW}, 4"); a.e(f"s_cbranch_scc1 {name}_w3"); a.e("s_waitcnt vmcnt(3)"); a.label(f"{name}_w3")
    NPF = 16
    a.e(f"s_waitcnt vmcnt({NPF})")
    a.e("s_barrier")
    for x in rd_w(WA, 0): a.e(x)
    for t in range(3): a.e(rd_c(t, 0))
    a.e(f"s_mov_b32 s{sIT}, 0")
    a.e(f"s_cmp_lt_u32 s{sW}, 4")
    a.e(f"s_cbranch_scc0 {name}_vfirst")
    def kv_iter(isK, last, tag, first=False):
        wn = rd_w(WB, 1)
        per = {}
        if last:
            dm = qdma(0) + qdma(1)
            for t in range(8): per[t] = dm[len(dm)*t//8: len(dm)*(t+1)//8]
        elif isK and not first:
            dm = ([f"s_mov_b32 m0, s{sM0C}", f"s_add_u32 s45, s{sKC}, 131072"] + [dma_c(i) for i in range(4)] + [f"s_mov_b32 m0, s{sM0W}", "s_nop 0"] + [dma_w(i) for i in range(4)]
                  + [f"s_add_u32 m0, s{sM0C}, 16384", "s_nop 0"] + [dma_c(i, 45) for i in range(4)] + [f"s_add_u32 m0, s{sM0W}, 16384", "s_nop 0"] + [dma_w(i, S_W2) for i in range(4)] + dma_adv)
            ND = 6 if 'nd6' in X else 10 if 'nd10' in X else 13 if 'nd13' in X else 8
            for t in range(ND): per[t] = dm[len(dm)*t//ND: len(dm)*(t+1)//ND]
        for t in range(8):
            a.e(f"s_waitcnt lgkmcnt({[2,4,6,6,6,4,2,2][t]})")
            ms = [mf(WA, t, d, isK) for d in range(4)]
            nt = t + 3
            a.e(ms[0])
            if t < 4: a.e(wn[2*t])
            a.e(ms[1])
            if "kd3" not in X:
                for x in per.get(t, []): a.e(x)
            a.e(ms[2])
            if t < 4: a.e(wn[2*t+1])
            a.e(ms[3])
            if "kd3" in X:
                for x in per.get(t, []): a.e(x)
            a.e(rd_c(nt % 8, 0 if nt < 8 else 1))
        for t in range(6):
            a.e("s_waitcnt lgkmcnt(2)")
            ms = [mf(WB, t, d, isK) for d in range(4)]
            a.e(ms[0]); a.e(ms[1])
            for x in per.get(8 + t, []): a.e(x)
            a.e(ms[2]); a.e(ms[3])
            if t < 5: a.e(rd_c(t + 3, 1))
            if not last and not isK and t == 0:
                r = a.uid(f"{name}_r")
                for itv, fns in SCH.items():
                    if (itv == 0) != first: continue
                    h = a.uid(f"{name}_h")
                    def hook(fns=fns, r=r):
                        for fn in fns: fn()
                        a.e(f"s_branch {r}")
                    ool.append((h, hook))
                    a.e(f"s_cmp_eq_u32 s{sIT}, {itv}"); a.e(f"s_cbranch_scc1 {h}")
                a.e(f"{r}:")
        a.e("s_waitcnt lgkmcnt(0)" + (" vmcnt(6)" if last else (" vmcnt(0)" if isK else "")))
        a.e("s_barrier")
        if not last:
            for r in [vRC, vRC+1, vRW, vRW+1, vRW+2, vRW+3]: a.e(f"v_xor_b32 v{r}, 0x10000, v{r}")
            wn = rd_w(WA, 0)
            for d in range(4):
                a.e(mf(WB, 6, d, isK)); a.e(wn[2*d]); a.e(wn[2*d+1])
            a.e(rd_c(0, 0)); a.e(rd_c(1, 0))
            for d in range(4): a.e(mf(WB, 7, d, isK))
            a.e(rd_c(2, 0))
        else:
            dm = qdma(2)
            ms = [mf(WB, 6 + (n >> 2), n & 3, isK) for n in range(8)]
            for n in range(8):
                a.e(ms[n])
                for x in dm[len(dm)*n//8: len(dm)*(n+1)//8]: a.e(x)
    SC1 = " sc1" if "plain" not in X else ""
    sSB = 66; sNonce = 69; S_FL = 72
    PKR = lambda n: (32 + 4 * n) if n < 8 else (160 + 4 * (n - 8))
    def kv_store(n):
        if "nost" in X: return [f"buffer_load_dword v{vDUM}, v{vL16}, s[{S_KV}:{S_KV+3}], 0 offen"]
        if "stnt" in X: return [f"s_add_u32 s68, s{sSB + ((n >> 1) & 1)}, {((n >> 2) & 1) * 8192 + (n >> 3) * 32768}",
                f"buffer_store_dwordx4 {v(PKR(n),4)}, v{vST}, s[{S_KV}:{S_KV+3}], s68 offen offset:{(n & 1) * 1024} sc1 nt"]
        return [f"s_add_u32 s68, s{sSB + ((n >> 1) & 1)}, {((n >> 2) & 1) * 8192 + (n >> 3) * 32768}",
                f"buffer_store_dwordx4 {v(PKR(n),4)}, v{vST}, s[{S_KV}:{S_KV+3}], s68 offen offset:{(n & 1) * 1024}{SC1}"]
    for isK in (True, False):
        tag = "k" if isK else "v"
        a.label(f"{name}_{tag}first")
        if isK and "kprio" in X: a.e("s_setprio 1")
        kv_iter(isK, False, tag, True)
        if "kvst" in X: _at(4); a.e("s_waitcnt lgkmcnt(0)")
        a.e(f"s_mov_b32 s{sIT}, 1")
        a.label(f"{name}_{tag}loop")
        kv_iter(isK, False, tag)
        if "kvst" in X:
            for i in range(7):
                l_ = a.uid("kvst"); a.e(f"s_cmp_lg_u32 s{sIT}, {i}"); a.e(f"s_cbranch_scc1 {l_}"); _at(4 + i); a.e("s_waitcnt lgkmcnt(0)"); a.e(l_ + ":")
        a.e(f"s_add_u32 s{sIT}, s{sIT}, 1"); a.e(f"s_cmp_lt_u32 s{sIT}, 7"); a.e(f"s_cbranch_scc1 {name}_{tag}loop")
        kv_iter(isK, True, tag)
        if "kvend" in X: _at(4)
        if "kvst" in X: _at(11)
        a.e(f"s_and_b32 s{sT1}, s{sW}, 2")
        if isK:
            a.e(f"s_lshl_b32 s{sSB}, s{sT1}, 10"); a.e(f"s_add_u32 s{sSB+1}, s{sSB}, 4096")
        else:
            a.e(f"s_lshl_b32 s{sSB}, s{sT1}, 11"); a.e(f"s_add_u32 s{sSB}, s{sSB}, 16384"); a.e(f"s_add_u32 s{sSB+1}, s{sSB}, 2048")
        for n in range(16):
            P = PKR(n)
            if isK:
                t = n >> 1; x = n & 1
                t0, t1 = ACC + (t*4 + 2*x)*4, ACC + (t*4 + 2*x + 1)*4
            else:
                y = n >> 2; d = n & 3
                t0, t1 = ACC + (2*y*4 + d)*4, ACC + ((2*y+1)*4 + d)*4
            a.e(f"v_cvt_pk_bf16_f32 v{P}, v{t0}, v{t0+1}"); a.e(f"v_cvt_pk_bf16_f32 v{P+1}, v{t0+2}, v{t0+3}")
            a.e(f"v_cvt_pk_bf16_f32 v{P+2}, v{t1}, v{t1+1}"); a.e(f"v_cvt_pk_bf16_f32 v{P+3}, v{t1+2}, v{t1+3}")
        if isK: a.e(f"s_branch {name}_qproj")
    a.label(f"{name}_qproj")
    if "drop5" in X:
        a.e(f"s_cmp_ge_u32 s{sP}, 5"); a.e(f"s_cselect_b32 s{sSB}, {0x70000000}, s{sSB}"); a.e(f"s_cselect_b32 s{sSB+1}, {0x70000000}, s{sSB+1}")
    a.e(f"v_mov_b32 v127, 0"); a.e("buffer_load_dword v126, v127, s[72:75], 0 offen sc1")
    if "kprio" in X: a.e("s_setprio 0")
    st.at(5)

    vRX = 12; vRWq = 14
    a.e(f"s_add_u32 s58, s6, {WS_CTX}"); a.e("s_addc_u32 s59, s7, 0")
    srd(a, S_CT, 58, 16 << 20)
    a.e(f"s_add_u32 s58, s6, {WS_FLAG}"); a.e("s_addc_u32 s59, s7, 0")
    srd(a, S_FL, 58, 65536)
    vDMA = 4; vKR = 5; vVR = 6; vTHR = 7; vNEG = 8; vPOLL = 9; vMT = 10
    vLS = 40; vM = 42; vLP = 44; vE = 46; NE = 8
    FR = 72; NB = 8
    C = 104; P = 112; S = 128; Q = 160; O = 192
    a.e(f"s_lshr_b32 s{sT0}, s{sW}, 1"); a.e(f"s_lshl_b32 s{sT0}, s{sT0}, 13")
    act_read_addr(a, vRX, vL, vT, sT0)
    a.e(f"s_mov_b32 s{sT0}, {WSL[0]}"); a.e(f"s_and_b32 s{sT1}, s{sW}, 1"); a.e(f"s_lshl_b32 s{sT1}, s{sT1}, 2")
    w_read_addr(a, vRWq, vL, vT, sT0, sT1, sT2)
    SETS = [64, 128]
    def q_reads(F, ks2):
        r = []
        for d in range(4):
            r.append(f"ds_read_b64_tr_b16 {v(F+16+4*d,2)}, v{vRWq+d} offset:{ks2*8192}")
            r.append(f"ds_read_b64_tr_b16 {v(F+16+4*d+2,2)}, v{vRWq+d} offset:{ks2*8192+1024}")
            r.append(f"ds_read_b128 {v(F+4*d,4)}, v{vRX+ks2} offset:{d*2048}")
        return r
    def q_mfmas(F, first=False):
        return [f"{MF} {v(O+(t*4+d)*4,4)}, {v(F+16+4*d,4)}, {v(F+4*t,4)}, {'0' if first else v(O+(t*4+d)*4,4)}" for t in range(4) for d in range(4)]
    def spread(ms, fill, upto):
        out = []; k = 0
        for i, m in enumerate(ms):
            out.append(m)
            tgt = min(len(fill), (len(fill) * (i + 1) + upto - 1) // upto)
            while k < tgt:
                out.append(fill[k]); k += 1
        return out
    for x in q_reads(SETS[0], 0): a.e(x)
    a.e(f"s_lshl_b32 s{sT0}, s{sWL}, 12"); a.e(f"v_add_u32 v{vDMA}, s{sT0}, v{vL16}")
    a.e(f"s_lshl_b32 s{sT1}, s{sG}, 14"); a.e(f"v_add_u32 v{vKR}, s{sT1}, v{vL16}"); a.e(f"v_add_u32 v{vVR}, {VRING}, v{vKR}")
    a.e(f"s_add_u32 s{sM0K}, s{sT0}, s{sT1}"); a.e(f"s_add_u32 s{sM0V}, s{sM0K}, {VRING}")
    a.e(f"s_lshl_b32 s{sKoff}, s{sH}, 20"); a.e(f"s_add_u32 s{sVoff}, s{sKoff}, 16384"); a.e(f"s_add_u32 s{sJump}, s{sKoff}, {17*32768}")
    a.e(f"s_mov_b32 s{sKt}, 0"); a.e(f"s_mov_b32 s{sVt}, 0")
    a.e(f"s_lshl_b32 s{sT0}, s{sP}, 1"); a.e(f"s_add_u32 s{sT0}, s{sT0}, 2"); a.e(f"s_sub_u32 s{sT1}, 15, s{sP}")
    a.e(f"s_cmp_eq_u32 s{sG}, 0")
    a.e(f"s_cselect_b32 s{sTA}, s{sT0}, 99"); a.e(f"s_cselect_b32 s{sI}, s{sT0}, 17"); a.e(f"s_cselect_b32 s{sTile}, s{sP}, s{sT1}")
    a.e(f"s_cselect_b32 s{sSeg}, 0, 1")
    a.e(f"s_cselect_b32 s{sHalf}, 1, 0")
    a.e(f"s_sub_u32 s{sI}, s{sI}, 1")
    a.e(f"s_lshl_b32 s{sR}, s{sTile}, 2"); a.e(f"s_sub_u32 s{sR}, 0, s{sR}")
    a.e(f"s_mov_b32 s{sTH}, {LTHR}"); a.e(f"v_mov_b32 v{vNEG}, {NEG}")
    a.e(f"s_lshl_b32 s{sT0}, s{sWL}, 4"); a.e(f"v_and_b32 v{vT}, 15, v{vL}")
    a.e(f"v_lshrrev_b32 v{vT+1}, 4, v{vL}"); a.e(f"v_lshlrev_b32 v{vT+1}, 2, v{vT+1}"); a.e(f"v_sub_u32 v{vT}, v{vT}, v{vT+1}")
    a.e(f"v_add_u32 v{vTHR}, s{sT0}, v{vT}"); a.e(f"s_sub_u32 s{sT0}, 112, s{sT0}"); a.e(f"v_add_u32 v0, s{sT0}, v{vT}")
    a.e(f"s_lshl_b32 s{sQD}, s{sWL}, 1"); a.e(f"s_sub_u32 s{sQD}, 7, s{sQD}")
    a.e(f"s_lshl_b32 s{sT0}, s{sH}, 10"); a.e(f"v_and_b32 v{vMT}, 7, v{vL}"); a.e(f"v_lshl_add_u32 v{vMT}, v{vMT}, 7, s{sT0}")
    def kv_dma(isK):
        off, m0 = (sKoff, sM0K) if isK else (sVoff, sM0V)
        return [f"s_mov_b32 m0, s{m0}", "s_nop 0"] + [f"buffer_load_dwordx4 v{vDMA}, s[{S_KV}:{S_KV+3}], s{off} offen offset:{i*1024}{'' if 'inv' in X else ' sc1'} lds" for i in range(4)]
    def kv_adv(isK):
        off, tt, m0 = (sKoff, sKt, sM0K) if isK else (sVoff, sVt, sM0V)
        return [f"s_xor_b32 s{m0}, s{m0}, 0x8000", f"s_add_u32 s{tt}, s{tt}, 1", f"s_add_u32 s{off}, s{off}, 32768",
                f"s_add_u32 s{sT2}, s{sJump}, {0 if isK else 16384}", f"s_cmp_eq_u32 s{tt}, s{sTA}", f"s_cselect_b32 s{off}, s{sT2}, s{off}",
                f"s_cmp_ge_u32 s{tt}, 17", f"s_cselect_b32 s{off}, {OOB}, s{off}"]
    NA = [2, 2, 2, 2] + [0] * 6; NBs = [2, 2, 2, 2] + [0] * 6
    if "st5" in X: NA = [2, 2, 2, 2, 2] + [0] * 5; NBs = [1, 1, 1, 1, 2] + [0] * 5
    if "st3" in X: NA = [3, 3, 3] + [0] * 7; NBs = [3, 2, 2] + [0] * 7
    if "stA" in X: NA = [0, 2, 2, 2, 2] + [0] * 5; NBs = [2, 2, 2, 2] + [0] * 6
    lastst = max(i for i in range(9) if NA[i] + NBs[i])
    sdone = [0]
    def add_stores(fl, n, marks):
        out = []; nm = 0; marks = list(marks[:n])
        for x in fl:
            out.append(x)
            if x.startswith("v_mfma"):
                nm += 1
                if marks and nm == marks[0]:
                    marks.pop(0); out += kv_store(sdone[0]); sdone[0] += 1
        return out
    for it in range(9):
        if "qst" in X: _at(2 + it)
        a.e("s_waitcnt lgkmcnt(0)")
        fl = add_stores(spread(q_mfmas(SETS[0], it == 0), q_reads(SETS[1], 1), 10 if 'q10' in X else 14 if 'q14' in X else 12), NA[it], [4, 12] if NA[it] < 3 else [3, 8, 13])
        for x in fl: a.e(x)
        if it < 8:
            if it == 7:
                lw = a.uid(f"{name}_nw7")
                a.e(f"s_cmp_eq_u32 s{sW}, 7"); a.e(f"s_cbranch_scc1 {lw}"); a.e("s_waitcnt vmcnt(0)"); a.e(f"{lw}:")
                a.e("s_waitcnt lgkmcnt(0) vmcnt(1)")
            else:
                a.e(f"s_waitcnt lgkmcnt(0) vmcnt({6 + NA[it] + (NA[it-1] + NBs[it-1] if it else 0) + (1 if it < 2 else 0)})")
            a.e("s_barrier")
            dx = XS[(it+1) % 3] - XS[it % 3]; dw = WSL[(it+1) % 3] - WSL[it % 3]
            for r in (vRX, vRX+1): a.e(f"v_add_u32 v{r}, {dx & 0xffffffff}, v{r}")
            for r in range(vRWq, vRWq+4): a.e(f"v_add_u32 v{r}, {dw & 0xffffffff}, v{r}")
            sig = []
            if it == 2: sig = [f"v_readfirstlane_b32 s{sNonce}, v126"]
            if it == lastst + 2:
                ls = a.uid(f"{name}_sig")
                sig = [f"s_cmp_lg_u32 s{sW}, 7", f"s_cbranch_scc1 {ls}", f"v_mov_b32 v{vPOLL}, s{sNonce}", f"s_lshl_b32 s{sT0}, s{sP}, 7", "s_mov_b64 exec, 1",
                       f"buffer_store_dword v{vPOLL}, v{vMT}, s[{S_FL}:{S_FL+3}], s{sT0} offen sc1",
                       "s_mov_b64 exec, -1", ls + ":"]
            if it == 6:
                ls = a.uid(f"{name}_pl")
                sig += [f"s_cmp_lg_u32 s{sW}, 7", f"s_cbranch_scc1 {ls}", f"buffer_load_dword v{vPOLL}, v{vMT}, s[{S_FL}:{S_FL+3}], 0 offen sc1", ls + ":"]
            if it < 6: dm = qdma(it + 3)
            elif it == 6: dm = []
            else: dm = []
            for x in sig: a.e(x)
            ms = q_mfmas(SETS[1])
            if "qmix" in X:
                rr_ = q_reads(SETS[0], 0); mix = []
                for i_ in range(12):
                    mix.append(rr_[i_]); mix += dm[len(dm)*i_//12: len(dm)*(i_+1)//12]
                for x in add_stores(spread(ms, mix, 13), NBs[it], [2, 6, 8]): a.e(x)
            else:
                QS = 10 if "qs10" in X else 8
                for x in add_stores(spread(ms[:QS], q_reads(SETS[0], 0), QS), NBs[it], [2, 6, 8]): a.e(x)
                for x in spread(ms[QS:], dm, 16 - QS): a.e(x)
        else:
            lw = a.uid(f"{name}_nw7"); lp = a.uid(f"{name}_poll")
            a.e("s_waitcnt vmcnt(0)")
            a.e(f"s_cmp_lg_u32 s{sW}, 7"); a.e(f"s_cbranch_scc1 {lw}")
            a.e(f"s_mov_b32 s{sT1}, 0")
            a.e(f"{lp}:")
            a.e(f"v_cmp_ne_u32 vcc, s{sNonce}, v{vPOLL}")
            a.e(f"s_add_u32 s{sT1}, s{sT1}, 1")
            a.e(f"s_cbranch_vccz {lw}")
            a.e(f"s_cmp_ge_u32 s{sT1}, 0x40000"); a.e(f"s_cbranch_scc1 {lw}")
            a.e(f"buffer_load_dword v{vPOLL}, v{vMT}, s[{S_FL}:{S_FL+3}], 0 offen sc1")
            a.e("s_waitcnt vmcnt(0)")
            a.e(f"s_branch {lp}")
            a.e(f"{lw}:")
            a.e("s_waitcnt lgkmcnt(0)")
            a.e("s_barrier")
            for x in spread(q_mfmas(SETS[1]), kv_dma(True) + kv_adv(True) + kv_dma(True) + kv_adv(True) + kv_dma(False) + kv_adv(False), 12): a.e(x)
    st.at(6)
    if "qst" in X: _at(11)
    a.e(f"s_lshr_b32 s{sT0}, s{sW}, 1"); a.e(f"s_and_b32 s{sT1}, s{sT0}, 1"); a.e(f"s_lshl_b32 s{sT1}, s{sT1}, 14")
    a.e(f"s_lshl_b32 s{sT0}, s{sG}, 15"); a.e(f"s_sub_u32 s{sT0}, s{sT1}, s{sT0}")
    a.e(f"s_and_b32 s{sT1}, s{sW}, 1"); a.e(f"s_lshl_b32 s{sT1}, s{sT1}, 11"); a.e(f"s_add_u32 s{sT0}, s{sT0}, s{sT1}")
    a.e(f"s_add_u32 s{sT0}, s{sT0}, {QSTASH}"); a.e(f"v_add_u32 v{vT}, s{sT0}, v{vL16}")
    a.e(f"s_mov_b32 s{sT1}, {QSCALE}"); a.e(f"v_mov_b32 v{vT+3}, {QSCALE}"); a.e(f"v_mov_b32 v{vT+4}, {QSCALE}")
    a.e("s_nop 2")
    for t in range(4):
        for x in range(2):
            PK = FR + ((t*2+x) % 4) * 4
            t0 = O + (t*4 + 2*x)*4
            if "nopkq" not in X:
                for j in range(4): a.e(f"v_pk_mul_f32 {v(t0+2*j,2)}, {v(t0+2*j,2)}, {v(vT+3,2)}")
            else:
                for j in range(8): a.e(f"v_mul_f32 v{t0+j}, s{sT1}, v{t0+j}")
            for j in range(4): a.e(f"v_cvt_pk_bf16_f32 v{PK+j}, v{t0+2*j}, v{t0+2*j+1}")
            a.e(f"ds_write_b128 v{vT}, {v(PK,4)} offset:{t*4096 + x*1024}")
    a.e("s_waitcnt lgkmcnt(0) vmcnt(8)")
    a.e("s_barrier")
    a.e(f"s_lshl_b32 s{sT0}, s{sWL}, 12"); a.e(f"s_lshl_b32 s{sT1}, s{sG}, 15"); a.e(f"s_add_u32 s{sT0}, s{sT0}, s{sT1}")
    a.e(f"s_add_u32 s{sT0}, s{sT0}, {QTMP}"); a.e(f"v_add_u32 v{vT}, s{sT0}, v{vL16}")
    a.e(f"s_lshl_b32 s{sT1}, s{sQD}, 12"); a.e(f"v_add_u32 v{vT+1}, s{sT1}, v{vT}")
    for f in range(8): a.e(f"ds_read_b128 {v(Q+4*f,4)}, v{vT + (f >> 2)} offset:{(f & 3)*1024}")
    if "noprio" not in X:
        a.e(f"s_cmp_eq_u32 s{sG}, {1 if 'prio0' in X else 0}"); a.e(f"s_cbranch_scc1 {name}_np"); a.e("s_setprio 1"); a.label(f"{name}_np")
    st.at(7)

    Sr = lambda buf, kt, qt: S + buf*16 + (kt*2+qt)*4
    Pr = lambda buf, qt: P + buf*8 + qt*4
    Or = lambda dt, qt: O + (dt*2+qt)*4
    def slot_k(b, n, qts=(0, 1)):
        kt, ds = (n >> 2, n & 3) if 'kord' not in X else (n & 1, n >> 1)
        rd = lambda f: f"ds_read_b128 {v(f,4)}, v{vKR} offset:{((2*b+kt)*4+ds)*1024}"
        def ms(f, czero=False):
            return [f"{MF} {v(Sr(b,kt,qt),4)}, {v(f,4)}, {v(Q+(qt*4+ds)*4,4)}, " + (("0" if czero else v(C+4*qt,4)) if ds == 0 else v(Sr(b,kt,qt),4)) for qt in qts]
        return rd, ms
    def slot_v(b, dt, qts=(0, 1)):
        rd = lambda f: f"ds_read_b128 {v(f,4)}, v{vVR} offset:{(b*8+dt)*1024}"
        ms = lambda f: [f"{MF} {v(Or(dt,qt),4)}, {v(f,4)}, {v(Pr(b,qt),4)}, {v(Or(dt,qt),4)}" for qt in qts]
        return rd, ms
    def mask_block(buf, ret):
        a.e(f"s_lshl_b32 s{sT0}, s{sR}, 5"); a.e(f"v_subrev_u32 v{vMT}, s{sT0}, v{vTHR}"); a.e(f"v_subrev_u32 v{vPOLL}, s{sT0}, v0")
        items = [(kt, qt, rr) for kt in range(2) for qt in range(2) for rr in range(4)]
        for base in range(0, 16, 4):
            for n, (kt, qt, rr) in enumerate(items[base:base+4]):
                a.e(f"v_cmp_le_i32 s[{sMSK+2*n}:{sMSK+2*n+1}], {16*kt+rr}, v{vPOLL if qt else vMT}")
            for n, (kt, qt, rr) in enumerate(items[base:base+4]):
                x = Sr(buf,kt,qt)+rr
                a.e(f"v_cndmask_b32 v{x}, v{vNEG}, v{x}, s[{sMSK+2*n}:{sMSK+2*n+1}]")
        a.e(f"s_branch {ret}")
    def mask_hook(buf):
        h = a.uid(f"{name}_mask"); r = a.uid(f"{name}_mret")
        ool.append((h, lambda: mask_block(buf, r)))
        return [f"s_cmp_ge_i32 s{sR}, 0", f"s_cbranch_scc1 {h}", r + ":", f"s_add_u32 s{sR}, s{sR}, 1"]
    def exp_code_pk(buf):
        r = []; pend = []; k = 0
        for qt in range(2):
            for kt in range(2):
                x = Sr(buf,kt,qt)
                for hf in range(2):
                    e0 = vE + (k % NE); e1 = e0 + 1; k += 2
                    r.append(f"v_exp_f32 v{e0}, v{x+2*hf}")
                    if pend: r.append(pend.pop(0))
                    r.append(f"v_exp_f32 v{e1}, v{x+2*hf+1}")
                    if pend: r.append(pend.pop(0))
                    if kt == 0 and hf == 1: pend.append(f"v_pk_add_f32 {v(vLQ,2)}, {v(vE + ((k - 4) % NE),2)}, {v(e0,2)}")
                    elif kt == 1: pend.append(f"v_pk_add_f32 {v(vLQ,2)}, {v(vLQ,2)}, {v(e0,2)}")
                    pend.append(f"v_cvt_pk_bf16_f32 v{Pr(buf,qt)+2*kt+hf}, v{e0}, v{e1}")
                    if kt == 1 and hf == 1: pend.append(f"v_add_f32 v{vLP+qt}, v{vLQ}, v{vLQ+1}")
        return r + ["s_nop 0"] + pend
    vLQ = 66
    def exp_code(buf, qts=(0, 1)):
        if "ord2" in X:
            r = []; pend = []; k = 0
            for qt in qts:
                for kt in range(2):
                    x = Sr(buf,kt,qt); e = [vE + (k + i) % NE for i in range(4)]; k += 4
                    for i in range(4):
                        r.append(f"v_exp_f32 v{e[i]}, v{x+i}")
                        if pend: r.append(pend.pop(0))
                        if pend and i % 2: r.append(pend.pop(0))
                    r += pend; pend = []
                    pend += [f"v_add_f32 v{vLP+qt}, v{e[0]}, v{e[1]}"] if kt == 0 else [f"v_add_f32 v{vLP+qt}, v{vLP+qt}, v{e[0]}", f"v_add_f32 v{vLP+qt}, v{vLP+qt}, v{e[1]}"]
                    pend += [f"v_cvt_pk_bf16_f32 v{Pr(buf,qt)+2*kt}, v{e[0]}, v{e[1]}", f"v_add_f32 v{vLP+qt}, v{vLP+qt}, v{e[2]}",
                             f"v_cvt_pk_bf16_f32 v{Pr(buf,qt)+2*kt+1}, v{e[2]}, v{e[3]}", f"v_add_f32 v{vLP+qt}, v{vLP+qt}, v{e[3]}"]
            return r + ["s_nop 0"] + pend
        r = []; pend = []; k = 0
        for qt in qts:
            for kt in range(2):
                x = Sr(buf,kt,qt)
                for hf in range(2):
                    e0 = vE + (k % NE); e1 = vE + ((k + 1) % NE); k += 2
                    r.append(f"v_exp_f32 v{e0}, v{x+2*hf}")
                    if pend: r.append(pend.pop(0))
                    r.append(f"v_exp_f32 v{e1}, v{x+2*hf+1}")
                    if pend: r.append(pend.pop(0))
                    if pend: r.append(pend.pop(0))
                    if kt == 0 and hf == 0: pend.append(f"v_add_f32 v{vLP+qt}, v{e0}, v{e1}")
                    else: pend += [f"v_add_f32 v{vLP+qt}, v{vLP+qt}, v{e0}"]
                    pend.append(f"v_cvt_pk_bf16_f32 v{Pr(buf,qt)+2*kt+hf}, v{e0}, v{e1}")
                    if not (kt == 0 and hf == 0): pend.append(f"v_add_f32 v{vLP+qt}, v{vLP+qt}, v{e1}")
        return r + ["s_nop 0"] + pend
    lacc = [f"v_add_f32 v{vLS}, v{vLS}, v{vLP}", f"v_add_f32 v{vLS+1}, v{vLS+1}, v{vLP+1}"]
    def xlane(op, x, t):
        return [f"v_mov_b32 v{t}, v{x}", "s_nop 1", f"v_permlane16_swap_b32 v{x}, v{t}", f"{op} v{x}, v{x}, v{t}",
                f"v_mov_b32 v{t}, v{x}", "s_nop 1", f"v_permlane32_swap_b32 v{x}, v{t}", f"{op} v{x}, v{x}, v{t}"]
    def rare_block(sbuf, other, ret):
        a.e("s_nop 7")
        for qt in range(2):
            d = vT + qt; f = vT + 2 + qt
            x0, x1 = Sr(sbuf,0,qt), Sr(sbuf,1,qt)
            a.e(f"v_max3_f32 v{d}, v{x0}, v{x0+1}, v{x0+2}"); a.e(f"v_max3_f32 v{d}, v{d}, v{x0+3}, v{x1}")
            a.e(f"v_max3_f32 v{d}, v{d}, v{x1+1}, v{x1+2}"); a.e(f"v_max3_f32 v{d}, v{d}, v{x1+3}, 0")
            for x in xlane("v_max_f32", d, vT + 4): a.e(x)
            a.e(f"v_sub_f32 v{f}, 0, v{d}"); a.e(f"v_exp_f32 v{f}, v{f}")
            for b_ in ([sbuf, 1 - sbuf] if other else [sbuf]):
                for kt in range(2):
                    for rr in range(4): a.e(f"v_sub_f32 v{Sr(b_,kt,qt)+rr}, v{Sr(b_,kt,qt)+rr}, v{d}")
            for rr in range(4): a.e(f"v_sub_f32 v{C+4*qt+rr}, v{C+4*qt+rr}, v{d}")
            a.e(f"v_add_f32 v{vM+qt}, v{vM+qt}, v{d}"); a.e(f"v_mul_f32 v{vLS+qt}, v{vLS+qt}, v{f}")
            for dt in range(8):
                for rr in range(4): a.e(f"v_mul_f32 v{Or(dt,qt)+rr}, v{Or(dt,qt)+rr}, v{f}")
        for x in exp_code(sbuf): a.e(x)
        a.e("s_nop 1")
        a.e(f"s_branch {ret}")
    def check(sbuf, other, half=False):
        h = a.uid(f"{name}_rare"); r = a.uid(f"{name}_ret")
        ool.append((h, lambda: rare_block(sbuf, other, r)))
        if half: return [f"v_cmp_nge_f32 vcc, s{sTH}, v{vLP+1}", f"s_cbranch_vccnz {h}", r + ":"]
        return [f"v_add_f32 v{vT}, v{vLP}, v{vLP+1}", f"v_cmp_nge_f32 vcc, s{sTH}, v{vT}", f"s_cbranch_vccnz {h}", r + ":"]
    D = 6 if 'd6' in X else (4 if 'd4' in X else 5)
    def run_slots(slots, fills, nxt, sync_after=None, sync=None, post={}):
        n = len(slots)
        for sidx, (rd, ms) in enumerate(slots):
            f = FR + 4 * (sidx % NB)
            if sync_after is None: out = min(D - 1, n - 1 - sidx + len(nxt[:max(0, sidx + D - n)]))
            else: out = min(D - 1, n - 1 - sidx) if sidx <= sync_after else None
            if "now2" not in X and n == 32 and out is not None:
                out = None if sidx % 2 else max(0, out - 1)
            if out is not None: a.e(f"s_waitcnt lgkmcnt({out})")
            m = ms(f); fl = fills.get(sidx, []); h = (len(fl) + 1) // 2
            if "hfl" in X and n == 32: h = len(fl) // 2
            if "h23" in X and n == 32: h = (2 * len(fl) + 2) // 3
            if "hall" in X and n == 32: h = len(fl)
            if "hm1" in X and n == 32: h = max(1, len(fl) - 1)
            if "h2" in X and n == 32: h = min(2, len(fl))
            if isinstance(fl, tuple): h = len(fl[0]); fl = fl[0] + fl[1]
            early = "rdmid" in X and n == 32 and sidx + D < n and len(m) > 1
            a.e(m[0])
            if early: a.e(slots[sidx + D][0](FR + 4 * ((sidx + D) % NB)))
            for x in fl[:h]: a.e(x)
            if len(m) > 1: a.e(m[1])
            for x in fl[h:]: a.e(x)
            t = sidx + D
            if early: pass
            elif t < n: a.e(slots[t][0](FR + 4 * (t % NB)))
            elif sync_after is None:
                if t - n < len(nxt): a.e(nxt[t - n][0](FR + 4 * (t % NB)))
            elif sidx == sync_after:
                for x in sync: a.e(x)
                for tt in range(n, sidx + D + 1): a.e(nxt[tt - n][0](FR + 4 * (tt % NB)))
            elif sidx > sync_after: a.e(nxt[t - n][0](FR + 4 * (t % NB)))
            for x in post.get(sidx, []): a.e(x)
    def distribute(fills, items, lo, hi):
        n = hi - lo
        for i in range(n):
            fills.setdefault(lo + i, []).extend(items[len(items) * i // n: len(items) * (i + 1) // n])
    toggles = [f"v_xor_b32 v{vKR}, 0x8000, v{vKR}", f"v_xor_b32 v{vVR}, 0x8000, v{vVR}"]
    vslots = lambda b, qts=(0, 1): [slot_v(b, dt, qts) for dt in range(8)]
    kslots = lambda b, qts=(0, 1): [slot_k(b, n, qts) for n in range(8)]

    sNext, sEv = 64, 65
    sRole, sA, sB = 66, 67, 68
    SK, SV, SQ, SSK = 8, 12, 24, 60
    SU, SQT = 8, 12
    KR, VR, QR, WR, TP, PR = 54, 28, 11, 36, 68, 46
    wrow = lambda r: (11 + r) if r < 8 else ((28 + r - 8) if r < 20 else (54 + r - 20))
    def side_load(rnd):
        le = a.uid(f"{name}_sle")
        a.e("s_load_dwordx8 s[56:63], s[0:1], 0")
        a.e(f"s_and_b32 s{sA}, s2, 7"); a.e(f"s_lshl_b32 s{sA}, s{sA}, 3"); a.e(f"s_lshr_b32 s{sT0}, s2, 5"); a.e(f"s_add_u32 s{sA}, s{sA}, s{sT0}")
        a.e(f"s_bfe_u32 s{sT0}, s2, 0x20003")
        a.e(f"s_mul_i32 s{sT1}, s{sT0}, 9"); a.e(f"s_add_u32 s{sT1}, s{sT1}, 1"); a.e(f"s_lshr_b32 s{sT1}, s{sT1}, 1")
        a.e(f"s_add_u32 s{sB}, s{sT1}, s{sW}")
        a.e(f"s_and_b32 s{sT1}, s{sT0}, 1"); a.e(f"s_sub_u32 s{sT1}, 5, s{sT1}")
        a.e(f"s_cmp_lt_u32 s{sW}, s{sT1}"); a.e(f"s_cselect_b32 s{sRole}, 1, 0")
        a.e("s_waitcnt lgkmcnt(0)")
        a.e(f"s_cmp_eq_u32 s{sRole}, 0"); a.e(f"s_cbranch_scc1 {le}")
        srd(a, SQ, 56, 2048*1152); srd(a, SK, 58, 2048*1152); srd(a, SV, 60, 2048*1152); srd(a, SSK, 62, 576*8)
        a.e(f"v_lshrrev_b32 v{vT}, 4, v{vL}"); a.e(f"v_and_b32 v{vT+1}, 15, v{vL}")
        a.e(f"s_lshl_b32 s{sT0}, s{sA}, 5"); a.e(f"v_lshl_add_u32 v{vT}, v{vT}, 3, s{sT0}")
        a.e(f"v_mul_u32_u24 v{vT}, 1152, v{vT}"); a.e(f"v_lshl_add_u32 v{vT}, v{vT+1}, 2, v{vT}")
        a.e(f"s_lshl_b32 s{sT0}, s{sB}, 6"); a.e(f"v_add_u32 v{vT}, s{sT0}, v{vT}")
        a.e(f"v_add_u32 v{vT+2}, {(-3456) & 0xffffffff}, v{vT}"); a.e(f"v_add_u32 v{vT+3}, 4608, v{vT}")
        a.e(f"v_lshlrev_b32 v{vT+1}, 4, v{vT+1}"); a.e(f"s_lshl_b32 s{sT0}, s{sB}, 8")
        for i in range(3): a.e(f"buffer_load_dword v{KR+i}, v{vT+2}, s[{SK}:{SK+3}], 0 offen offset:{i*1152}")
        for R_, S_ in ((KR + 3, SK), (VR, SV), (QR, SQ)):
            for i in range(8): a.e(f"buffer_load_dword v{R_+i}, v{vT if i < 4 else vT+3}, s[{S_}:{S_+3}], 0 offen offset:{(i%4)*1152}")
        a.e(f"buffer_load_dwordx4 {v(WR,4)}, v{vT+1}, s[{SSK}:{SSK+3}], s{sT0} offen")
        a.e(f"{le}:")
    SSC = " sc1"
    def side_compute(rnd):
        l3 = a.uid(f"{name}_sc2"); le = a.uid(f"{name}_sce")
        a.e(f"s_cmp_eq_u32 s{sRole}, 0"); a.e(f"s_cbranch_scc1 {le}")
        a.e(f"s_mov_b32 s{sT1}, 0x05040100"); a.e(f"s_mov_b32 s{sT2}, 0x07060302")
        a.e(f"v_lshrrev_b32 v{vT}, 4, v{vL}"); a.e(f"v_and_b32 v{vT+1}, 15, v{vL}")
        a.e(f"s_add_u32 s70, s6, {WS_KVB}"); a.e("s_addc_u32 s71, s7, 0"); srd(a, SU, 70, 576*4096)
        a.e(f"s_add_u32 s70, s6, {WS_QB}"); a.e("s_addc_u32 s71, s7, 0"); srd(a, SQT, 70, 576*4096)
        a.e(f"s_lshl_b32 s{sT0}, s{sA}, 6"); a.e(f"v_lshl_add_u32 v{vT}, v{vT}, 4, s{sT0}")
        a.e(f"v_lshlrev_b32 v{vT+1}, 13, v{vT+1}")
        a.e(f"v_sub_u32 v{vT+2}, 4080, v{vT}"); a.e(f"v_add_u32 v{vT+2}, v{vT+2}, v{vT+1}"); a.e(f"v_add_u32 v{vT}, v{vT}, v{vT+1}")
        a.e(f"s_lshl_b32 s{sT0}, s{sB}, 17")
        for c in range(2):
            sel = sT2 if c else sT1
            for i in range(4): a.e(f"v_perm_b32 v{TP+i}, v{QR+2*i+1}, v{QR+2*i}, s{sel}")
            a.e(f"buffer_store_dwordx4 {v(TP,4)}, v{vT}, s[{SQT}:{SQT+3}], s{sT0} offen{SSC}")
            AC = vT + 3
            for hf in (1, 0):
                for i in range(6):
                    j = 4 * hf - 2 + i
                    a.e(f"v_perm_b32 v{PR+i}, v{KR+j+2}, v{KR+j+3}, s{sel}")
                for i in range(4): a.e(f"v_dot2_f32_bf16 v{AC+i}, v{PR+2+i}, v{WR+2*c}, 0")
                for i in range(4): a.e(f"v_dot2_f32_bf16 v{AC+i}, v{PR+i}, v{WR+2*c+1}, v{AC+i}")
                for i in range(4):
                    a.e(f"v_and_b32 v{PR+i}, 0xffff0000, v{VR+4*hf+i}" if c else f"v_lshlrev_b32 v{PR+i}, 16, v{VR+4*hf+i}")
                for i in range(4): a.e(f"v_mul_f32 v{AC+i}, v{AC+i}, v{PR+i}")
                o = TP + (0 if hf else 2)
                a.e(f"v_cvt_pk_bf16_f32 v{o}, v{AC+3}, v{AC+2}"); a.e(f"v_cvt_pk_bf16_f32 v{o+1}, v{AC+1}, v{AC}")
            a.e(f"buffer_store_dwordx4 {v(TP,4)}, v{vT+2}, s[{SU}:{SU+3}], s{sT0} offen{SSC}")
            a.e(f"s_add_u32 s{sT0}, s{sT0}, 4096"); a.e("s_nop 0")
        a.e(f"{le}:")
    def flag_store(off_code):
        a.e(f"v_mov_b32 v{vT}, s{sNonce}"); a.e(f"v_mov_b32 v{vT+1}, 0")
        for x in off_code: a.e(x)
        a.e("s_mov_b64 exec, 1")
        a.e(f"buffer_store_dword v{vT}, v{vT+1}, s[{S_FL}:{S_FL+3}], s{sT1} offen sc1")
        a.e("s_mov_b64 exec, -1")
    def side_hook(ret):
        L = [a.uid(f"{name}_ev") for _ in range(6)]
        for e in range(1, 6):
            a.e(f"s_cmp_eq_u32 s{sEv}, {e}"); a.e(f"s_cbranch_scc1 {L[e]}")
        a.e(f"s_add_u32 s{sNext}, s{sNext}, 2"); a.e(f"s_mov_b32 s{sEv}, 1")
        side_load(1)
        a.e(f"s_branch {ret}")
        a.e(L[1] + ":")
        a.e(f"s_mov_b32 s{sNext}, 99")
        side_compute(1)
        a.e(f"s_branch {ret}")
        a.e(L[2] + ":")
        a.e(L[3] + ":")
        a.e(f"s_mov_b32 s{sEv}, 4")
        a.e(f"s_lshl_b32 s{sT1}, s{sP}, 1"); a.e(f"s_add_u32 s{sT1}, s{sT1}, 4"); a.e(f"s_add_u32 s{sNext}, s{sNext}, 1"); a.e(f"s_max_u32 s{sNext}, s{sNext}, s{sT1}")
        flag_store([f"s_lshl_b32 s{sT1}, s2, 2", f"s_add_u32 s{sT1}, s{sT1}, 32768"])
        a.e(f"s_branch {ret}")
        a.e(L[5] + ":")
        a.e("s_load_dwordx2 s[8:9], s[0:1], 88"); a.e("s_load_dwordx2 s[10:11], s[0:1], 32")
        a.e(f"s_mov_b32 s{sNext}, 99"); a.e(f"v_lshlrev_b32 v{vT}, 7, v{vL}")
        a.e(f"s_lshl_b32 s{sT0}, s2, 13"); a.e(f"v_add_u32 v{vT}, s{sT0}, v{vT}")
        a.e(f"s_min_u32 s{sT1}, s2, 63"); a.e(f"s_min_u32 s{sT2}, s2, 31")
        a.e(f"s_sub_u32 s{sT1}, s{sT1}, s2"); a.e(f"s_sub_u32 s{sT2}, s{sT2}, s2")
        a.e(f"s_lshl_b32 s{sT1}, s{sT1}, 13"); a.e(f"s_lshl_b32 s{sT2}, s{sT2}, 13")
        a.e(f"v_add_u32 v{vT+1}, {256 << 13}, v{vT}"); a.e(f"v_add_u32 v{vT+2}, s{sT1}, v{vT+1}"); a.e(f"v_add_u32 v{vT+2}, {256 << 13}, v{vT+2}"); a.e(f"v_add_u32 v{vT+3}, s{sT2}, v{vT+1}")
        a.e("s_waitcnt lgkmcnt(0)")
        for r_, b_ in ((0, 8), (1, 8), (2, 8), (0, 10), (3, 10)): a.e(f"global_load_dword v{vDUM}, v{vT+r_}, s[{b_}:{b_+1}]")
        a.e(f"s_branch {ret}")
        a.e(L[4] + ":")
        a.e(f"s_mov_b32 s{sNext}, 99")
        flag_store([f"s_lshl_b32 s{sT1}, s{sP}, 7", f"s_lshl_b32 s{sT2}, s{sH}, 2", f"s_add_u32 s{sT1}, s{sT1}, s{sT2}", f"s_add_u32 s{sT1}, s{sT1}, 36864"])
        a.e(f"s_branch {ret}")
    a.e(f"s_and_b32 s{sT0}, s2, 7"); a.e(f"s_add_u32 s{sT0}, s{sT0}, s{sP}"); a.e(f"s_mul_i32 s{sT1}, s{sT0}, 52"); a.e(f"s_lshr_b32 s{sT1}, s{sT1}, 8"); a.e(f"s_mul_i32 s{sT1}, s{sT1}, 5")
    a.e(f"s_sub_u32 s{sT0}, s{sT0}, s{sT1}"); a.e(f"s_lshl_b32 s{sNext}, s{sT0}, 1"); a.e(f"s_add_u32 s{sNext}, s{sNext}, {3 if 'ph3' in X else 1}"); a.e(f"s_mov_b32 s{sEv}, 0")
    a.e(f"s_add_u32 s{sT0}, s{sNext}, 3"); a.e(f"s_cmp_eq_u32 s{sW}, 7"); a.e(f"s_cselect_b32 s{sNext}, s{sT0}, s{sNext}"); a.e(f"s_cselect_b32 s{sEv}, 2, 0")
    a.e(f"s_lshl_b32 s{sT0}, s{sP}, 1"); a.e(f"s_add_u32 s{sT0}, s{sT0}, 2"); a.e(f"s_min_u32 s{sT0}, s{sT0}, 14")
    a.e(f"s_cmp_eq_u32 s{sW}, 6"); a.e(f"s_cselect_b32 s{sNext}, s{sT0}, s{sNext}"); a.e(f"s_cselect_b32 s{sEv}, 5, s{sEv}")

    if "desc" in X:
        a.e("s_mov_b32 s20, 32768"); a.e(f"s_lshl_b32 s{sT0}, s{sP}, 16"); a.e(f"s_lshl_b32 s{sT1}, s{sH}, 20")
        a.e(f"s_sub_u32 s22, s{sT1}, s{sT0}"); a.e(f"s_add_u32 s22, s22, {30*32768}"); a.e(f"s_sub_u32 s{sT0}, s22, 32768")
        a.e(f"s_cmp_lt_u32 s{sP}, 7"); a.e(f"s_cselect_b32 s{sJump}, s{sT0}, s{sJump}"); a.e("s_cselect_b32 s21, 15, 99")
        a.e(f"s_cmp_eq_u32 s{sG}, 0"); a.e("s_cselect_b32 s21, s21, 99")
        a.e(f"s_cmp_eq_u32 s{sKt}, s{sTA}"); a.e(f"s_cselect_b32 s{sKoff}, s{sJump}, s{sKoff}"); a.e(f"s_cselect_b32 s20, {(-32768) & 0xffffffff}, s20")
    a.label(f"{name}_seg")
    k0 = kslots(0); k1s = kslots(1)
    for t in range(D): a.e(k0[t][0](FR + 4 * t))
    zero = [f"v_mov_b32 v{O+i}, 0" for i in range(64)] + [f"v_mov_b32 v{vLS}, 0", f"v_mov_b32 v{vLS+1}, 0"]
    fills = {}; distribute(fills, zero, 0, 8)
    run_slots([(rd, (lambda ms: (lambda f: ms(f, True)))(ms)) for rd, ms in k0], fills, k1s)
    a.e("s_nop 3")
    for x in mask_hook(0): a.e(x)
    for qt in range(2):
        d = vM + qt; x0, x1 = Sr(0,0,qt), Sr(0,1,qt)
        a.e(f"v_max3_f32 v{d}, v{x0}, v{x0+1}, v{x0+2}"); a.e(f"v_max3_f32 v{d}, v{d}, v{x0+3}, v{x1}")
        a.e(f"v_max3_f32 v{d}, v{d}, v{x1+1}, v{x1+2}"); a.e(f"v_max_f32 v{d}, v{d}, v{x1+3}")
    for x0_, x1_ in zip(xlane("v_max_f32", vM, vT + 4), xlane("v_max_f32", vM + 1, vT + 5)):
        a.e(x0_)
        if not x1_.startswith("s_nop"): a.e(x1_)
    for qt in range(2):
        for rr in range(4): a.e(f"v_sub_f32 v{C+4*qt+rr}, 0, v{vM+qt}")
    sub0 = [f"v_sub_f32 v{Sr(0,kt,qt)+rr}, v{Sr(0,kt,qt)+rr}, v{vM+qt}" for qt in range(2) for kt in range(2) for rr in range(4)]
    fills = {}; distribute(fills, sub0 + exp_code(0), 0, 8)
    labA = a.uid(f"{name}_wa")
    sync = ["s_waitcnt lgkmcnt(0)", f"s_cmp_lg_u32 s{sKt}, 2", f"s_cbranch_scc1 {labA}", "s_waitcnt vmcnt(0)", labA + ":", "s_waitcnt vmcnt(8)",
            "s_barrier", f"v_xor_b32 v{vKR}, 0x8000, v{vKR}"]
    run_slots(k1s, fills, vslots(0), sync_after=4, sync=sync)
    dK, dV = kv_dma(True), kv_dma(False)
    a.e(f"s_mov_b32 s{sN}, s{sHalf}")
    a.e(f"s_cmp_eq_u32 s{sI}, 0"); a.e(f"s_cbranch_scc1 {name}_tailh")
    a.e(f"s_cmp_ge_u32 s{sN}, s{sI}"); a.e(f"s_cbranch_scc1 {name}_lasth")
    adv_all = kv_adv(True) + kv_adv(False)
    if "noadv" not in X:
        adv_all = [f"s_add_u32 s{sVoff}, s{sKoff}, 16384", f"s_xor_b32 s{sM0K}, s{sM0K}, 0x8000", f"s_xor_b32 s{sM0V}, s{sM0V}, 0x8000", f"s_add_u32 s{sKt}, s{sKt}, 1",
                   f"s_add_u32 s{sVt}, s{sVt}, 1", f"s_add_u32 s{sKoff}, s{sKoff}, 32768", f"s_cmp_eq_u32 s{sKt}, s{sTA}", f"s_cselect_b32 s{sKoff}, s{sJump}, s{sKoff}"]
        if "desc" in X:
            adv_all[5] = f"s_add_u32 s{sKoff}, s{sKoff}, s20"
            adv_all += [f"s_cselect_b32 s20, {(-32768) & 0xffffffff}, s20", f"s_cmp_eq_u32 s{sKt}, s21", f"s_cselect_b32 s{sKoff}, s22, s{sKoff}", "s_cselect_b32 s20, 32768, s20"]
    def body(half):
        hk = a.uid(f"{name}_side"); hr = a.uid(f"{name}_sret")
        ool.append((hk, lambda: side_hook(hr)))
        a.e(f"s_cmp_eq_u32 s{sVt}, s{sNext}"); a.e(f"s_cbranch_scc1 {hk}"); a.e(f"{hr}:")
        q = (1,) if half else (0, 1)
        slots = vslots(0) + kslots(0, q) + vslots(1) + kslots(1, q)
        fills = {}; post = {}
        fills[0] = list(lacc); fills[16] = list(lacc)
        post[1] = mask_hook(1); post[17] = mask_hook(0)
        E0, E1 = 2, 16
        if "e14" in X: E1 = 14
        if "s3" in X: E0 = 3
        if "e15" in X: E1 = 15
        def merged(ec, ck):
            if "ck" not in X: return ec, ck
            nv = [x for x in ck if x.startswith("v_")]; rest = [x for x in ck if not x.startswith("v_")]
            NC = 3 if "ck3" in X else 2
            idx = [i for i, x in enumerate(ec) if x.startswith("v_cvt")][-NC:]
            tailc = [ec[i] for i in idx]; body_ = [x for i, x in enumerate(ec) if i not in idx]
            return body_ + nv + tailc, rest
        e_, c_ = merged(exp_code(1), check(1, True)); distribute(fills, e_, E0, E1); post[15] = c_
        e_, c_ = merged(exp_code(0, q), check(0, True, half)); distribute(fills, e_, 16 + E0, 16 + E1); post[31] = c_ + (["s_nop 0"] if "ck" in X else [])
        if "ck" in X: post[15] = post[15] + ["s_nop 0"]
        f2 = {0: dK[:3], 1: [dK[3]], 2: [dK[4]], 3: [dK[5]], 16: dV[:3], 17: [dV[3]], 18: [dV[4]], 19: [dV[5]]}
        if "dm0" in X: f2 = {0: dK[:4], 1: dK[4:], 16: dV[:4], 17: dV[4:]}
        if "dm1" in X: f2 = {0: dK[:3], 1: [dK[3]], 2: [dK[4]], 3: [dK[5]], 4: dV[:3], 5: [dV[3]], 6: [dV[4]], 7: [dV[5]]}
        if "dmA" not in X: f2 = {0: dK[:3], 2: [dK[3]], 4: [dK[4]], 6: [dK[5]], 16: dV[:3], 18: [dV[3]], 20: [dV[4]], 22: [dV[5]]}
        if "dm4" in X: f2 = {0: dK[:2], 1: [dK[2]], 3: [dK[3]], 5: [dK[4]], 7: [dK[5]], 16: dV[:2], 17: [dV[2]], 19: [dV[3]], 21: [dV[4]], 22: [dV[5]]}
        if "dm5" in X: f2 = {0: dK[:3], 3: [dK[3]], 6: [dK[4]], 9: [dK[5]], 12: dV[:3], 15: [dV[3]], 18: [dV[4]], 21: [dV[5]]}
        if "dm6" in X: f2 = {0: dK[:3], 2: [dK[3]], 4: [dK[4]], 6: [dK[5]], 8: dV[:3], 10: [dV[3]], 12: [dV[4]], 14: [dV[5]]}
        if "dm7" in X: f2 = {0: dV[:3], 2: [dV[3]], 4: [dV[4]], 6: [dV[5]], 16: dK[:3], 18: [dK[3]], 20: [dK[4]], 22: [dK[5]]}
        if "dm3" in X: f2 = {8: dK[:3], 9: [dK[3]], 10: [dK[4]], 11: [dK[5]], 12: dV[:3], 13: [dV[3]], 14: [dV[4]], 15: [dV[5]]}
        distribute(f2, adv_all + [f"s_add_u32 s{sN}, s{sN}, 1"], *((23, 27) if "dmA" not in X else (21, 27)))
        CW = [x for x in X if x.startswith("cw")]
        if CW and not half:
            cd, ce = [int(t) for t in CW[0][2:].split("_")]
            cost = lambda x: ce if x.startswith("v_exp") else (4 if x.startswith("v_") else (cd if x.startswith("buffer") else 1))
            gaps = {}
            for s_ in range(32):
                fx = f2.get(s_, []); h_ = (len(fx) + 1) // 2 if any(x.startswith("buffer") for x in fx) and len(fx) > 1 else len(fx)
                gaps[2*s_] = list(fx); gaps[2*s_+1] = []
            for base_, items in ((0, exp_code(1)), (16, exp_code(0))):
                gaps[2*base_+1] += lacc
                g0, g1 = 2*(base_+2), 2*(base_+16)
                fixed = {g: sum(cost(x) for x in gaps[g]) + (4 if g % 2 else 0) for g in range(g0, g1)}
                tot = sum(fixed.values()) + sum(cost(x) for x in items)
                acc_ = 0; i_ = 0
                for n_, g in enumerate(range(g0, g1)):
                    acc_ += fixed[g]; tgt = tot * (n_ + 1) / (g1 - g0)
                    while i_ < len(items) and (acc_ + cost(items[i_]) / 2 <= tgt or n_ == g1 - g0 - 1):
                        gaps[g].append(items[i_]); acc_ += cost(items[i_]); i_ += 1
            fills = {s_: (gaps[2*s_], gaps[2*s_+1]) for s_ in range(32)}
        else:
            for k_, v_ in f2.items(): fills[k_] = (fills.get(k_, []) + v_) if "dfirst" not in X else (v_ + fills.get(k_, []))
        if half: fills[0] = ["s_nop 1"] + fills[0]
        run_slots(slots, fills, vslots(0), sync_after=(27 if 'sa27' in X else 29 if 'sa29' in X else 28), sync=["s_waitcnt lgkmcnt(0) vmcnt(0)", "s_barrier"] + toggles, post=post)
    def tail(half):
        q = (1,) if half else (0, 1)
        la = lacc[1:] if half else lacc
        fills = {0: list(la), 8: list(la)}; post = {(2 if half else 1): mask_hook(1), 7: check(1, False, half) + ["s_nop 0"]}
        distribute(fills, exp_code(1, q), 3 if half else 2, 8)
        xl = []
        for x0_, x1_ in zip(xlane("v_add_f32", vLS, vT + 4), xlane("v_add_f32", vLS + 1, vT + 5)):
            xl.append(x0_)
            if not x1_.startswith("s_nop"): xl.append(x1_)
        xl += [f"v_rcp_f32 v{vT}, v{vLS}", f"v_rcp_f32 v{vT+3}, v{vLS+1}", "s_nop 0", f"v_mov_b32 v{vT+2}, v{vT}", f"v_mov_b32 v{vT+1}, v{vT}", f"v_mov_b32 v{vT+4}, v{vT+3}",
               f"s_lshl_b32 s{sT0}, s{sTile}, 3", f"s_add_u32 s{sT0}, s{sT0}, s{sWL}",
               f"s_lshl_b32 s{sT0}, s{sT0}, 17", f"s_lshl_b32 s{sT1}, s{sH}, 12", f"s_add_u32 s{sT0}, s{sT0}, s{sT1}"]
        distribute(fills, xl, 9, 16)
        run_slots(vslots(0, q) + vslots(1, q), fills, [], post=post)
    a.label(f"{name}_loop")
    if "phst" in X or "phst2" in X:
        for i in range(10):
            l_ = a.uid("phst"); a.e(f"s_cmp_lg_u32 s{sVt}, {i + (1 if 'phst' in X else 7)}"); a.e(f"s_cbranch_scc1 {l_}"); _at(2 + i); a.e("s_waitcnt lgkmcnt(0)"); a.e(l_ + ":")
    body(False)
    a.e(f"s_cmp_lt_u32 s{sN}, s{sI}"); a.e(f"s_cbranch_scc1 {name}_loop")
    a.e(f"s_cmp_lg_u32 s{sHalf}, 0"); a.e(f"s_cbranch_scc1 {name}_lasth")
    a.label(f"{name}_tail")
    tail(False)
    a.e(f"s_branch {name}_final")
    a.label(f"{name}_lasth")
    body(True)
    a.label(f"{name}_tailh")
    nd = a.uid(f"{name}_nd")
    a.e(f"s_cmp_lg_u32 s{sSeg}, 0"); a.e(f"s_cbranch_scc1 {nd}")
    for x in dK + dV + adv_all: a.e(x)
    a.e(f"{nd}:")
    tail(True)
    a.e("s_nop 3")
    a.e(f"s_cmp_lg_u32 s{sSeg}, 0"); a.e(f"s_cbranch_scc1 {name}_final")
    a.e(f"s_lshl_b32 s{sT1}, s{sWL}, 12"); a.e(f"s_add_u32 s{sT1}, s{sT1}, {QSTASH}"); a.e(f"v_add_u32 v{vT+6}, s{sT1}, v{vL16}")
    a.e(f"s_lshl_b32 s{sT1}, s{sQD}, 12"); a.e(f"v_add_u32 v{vT+7}, s{sT1}, v{vT+6}")
    for f in range(8): a.e(f"ds_read_b128 {v(Q+4*f,4)}, v{vT + 6 + (f >> 2)} offset:{(f & 3)*1024}")
    a.e(f"s_lshl_b32 s{sT1}, s{sQD}, 17"); a.e(f"s_add_u32 s{sT1}, s{sT1}, s{sT0}")
    for x in range(4):
        for qt in range(2):
            PK = S + ((x*2+qt) % 8) * 4
            for dt in (2*x, 2*x+1):
                for rr in (0, 2): a.e(f"v_pk_mul_f32 {v(Or(dt,qt)+rr,2)}, {v(Or(dt,qt)+rr,2)}, {v(vT+1+2*qt,2)}")
            a.e(f"v_cvt_pk_bf16_f32 v{PK}, v{Or(2*x,qt)}, v{Or(2*x,qt)+1}"); a.e(f"v_cvt_pk_bf16_f32 v{PK+1}, v{Or(2*x,qt)+2}, v{Or(2*x,qt)+3}")
            a.e(f"v_cvt_pk_bf16_f32 v{PK+2}, v{Or(2*x+1,qt)}, v{Or(2*x+1,qt)+1}"); a.e(f"v_cvt_pk_bf16_f32 v{PK+3}, v{Or(2*x+1,qt)+2}, v{Or(2*x+1,qt)+3}")
            a.e(f"buffer_store_dwordx4 {v(PK,4)}, v{vL16}, s[{S_CT}:{S_CT+3}], s{sT1 if qt else sT0} offen offset:{x*1024} sc1")
    a.e(f"v_xor_b32 v{vVR}, 0x8000, v{vVR}")
    a.e(f"s_mov_b32 s{sSeg}, 1")
    a.e(f"s_sub_u32 s{sTile}, 15, s{sP}")
    a.e(f"s_lshl_b32 s{sT0}, s{sP}, 1"); a.e(f"s_sub_u32 s{sI}, 14, s{sT0}")
    a.e(f"s_lshl_b32 s{sR}, s{sTile}, 2"); a.e(f"s_sub_u32 s{sR}, 34, s{sR}")
    a.e(f"s_branch {name}_seg")
    a.label(f"{name}_final")
    st.at(9)
    vP1, vP2, vZ = 60, 64, 65
    a.e("s_load_dwordx2 s[4:5], s[0:1], 88"); a.e("s_load_dwordx2 s[16:17], s[0:1], 96")
    a.e(f"s_lshr_b32 s53, s{sH}, 2"); a.e("s_lshl_b32 s56, s53, 4"); a.e("s_add_u32 s56, s56, 36864"); a.e(f"s_lshl_b32 s71, s{sP}, 7")
    a.e("s_add_u32 s70, s56, s71"); a.e(f"s_sub_u32 s71, {15*128}, s71"); a.e("s_add_u32 s71, s71, s56")
    a.e("s_mov_b32 s52, 32768")
    pollS = f"buffer_load_dwordx4 {v(vP1,4)}, v{vL16}, s[{S_FL}:{S_FL+3}], s52 offen sc1"
    pollC = f"buffer_load_dword v{vP2}, v{vZ}, s[{S_FL}:{S_FL+3}], s70 offen sc1"
    a.e(f"v_and_b32 v{vZ}, 3, v{vL}"); a.e(f"v_lshlrev_b32 v{vZ}, 2, v{vZ}")
    a.e(pollC)
    vOWN, vPAR, vOM, vPM = vT + 6, vT + 7, vT + 8, vT
    a.e(f"s_lshl_b32 s{sT1}, s{sW}, 13"); a.e(f"v_add_u32 v{vOWN}, s{sT1}, v{vL16}"); a.e(f"v_xor_b32 v{vPAR}, 0x8000, v{vOWN}")
    a.e(f"s_lshl_b32 s{sT1}, s{sW}, 10"); a.e(f"s_add_u32 s{sT1}, s{sT1}, {155648}"); a.e(f"v_add_u32 v{vOM}, s{sT1}, v{vL16}"); a.e(f"v_xor_b32 v{vPM}, 0x1000, v{vOM}")
    a.e(f"ds_write_b128 v{vOM}, {v(vLS,4)}")
    a.e(f"s_lshl_b32 s{sT1}, s{sG}, 11"); a.e(f"s_add_u32 s{sT0}, s{sT0}, s{sT1}"); a.e(f"s_lshl_b32 s{sT1}, s{sQD}, 17"); a.e(f"s_add_u32 s{sT1}, s{sT1}, s{sT0}")
    lg1 = a.uid(f"{name}_g1"); lgd = a.uid(f"{name}_gd")
    sItem, sNT, sCG, sTq, sKQ = 48, 49, 50, 51, 53
    uT0, uT1, uT2 = 66, 67, 68
    def o_setup():
        a.e(f"s_and_b32 s{uT0}, s2, 7"); a.e(f"s_mul_i32 s{sCG}, s{uT0}, 18"); a.e(f"s_lshr_b32 s{uT1}, s2, 3"); a.e(f"s_sub_u32 s{uT1}, s{uT1}, 7")
        a.e(f"s_add_u32 s{sCG}, s{sCG}, s{uT1}"); a.e(f"s_cmp_lt_u32 s{uT1}, 18"); a.e(f"s_cselect_b32 s{sCG}, s{sCG}, -1")
        a.e(f"s_and_b32 s51, s{sH}, 3")
        ko.gemm_setup(a, sW, sP, 51, 53, (uT0, uT1, uT2))
    a.e(f"s_cmp_eq_u32 s{sG}, 0"); a.e(f"s_cbranch_scc0 {lg1}")
    XM = 56
    for g in range(2):
        keep = O + 32 * g; send = O + 32 * (1 - g)
        if g == 1: a.label(lg1)
        for n in range(8): a.e(f"ds_write_b128 v{vOWN}, {v(send+4*n,4)} offset:{n*1024}")
        a.e("s_waitcnt lgkmcnt(0)")
        o_setup()
        ko.gemm_vsetup(a, vL, vL16, 38, g == 0)
        a.e("s_barrier")
        a.e(f"ds_read_b128 {v(XM,4)}, v{vPM}")
        for n in range(8): a.e(f"ds_read_b128 {v(FR+4*n,4)}, v{vPAR} offset:{n*1024}")
        if g == 0 and False:
            for gg in (2, 3):
                for x in ko.gemm_wl(gg, (uT0, uT1, uT2)): a.e(x)
        a.e("s_waitcnt lgkmcnt(8)")
        for qt in range(2):
            mm = vE + 4*qt; e0 = mm + 1; e1 = mm + 2
            a.e(f"v_max_f32 v{mm}, v{vM+qt}, v{XM+2+qt}"); a.e(f"v_sub_f32 v{e0}, v{vM+qt}, v{mm}"); a.e(f"v_sub_f32 v{e1}, v{XM+2+qt}, v{mm}")
            a.e(f"v_exp_f32 v{e0}, v{e0}"); a.e(f"v_exp_f32 v{e1}, v{e1}"); a.e("s_nop 0")
            a.e(f"v_mul_f32 v{mm}, v{e0}, v{vLS+qt}"); a.e(f"v_fmac_f32 v{mm}, v{e1}, v{XM+qt}"); a.e(f"v_rcp_f32 v{mm}, v{mm}"); a.e("s_nop 0")
            a.e(f"v_mul_f32 v{e0}, v{e0}, v{mm}"); a.e(f"v_mul_f32 v{e1}, v{e1}, v{mm}")
        for xx in range(2):
            for qt in range(2):
                n0 = (2*xx)*2 + qt; n1 = (2*xx+1)*2 + qt
                for n in (n0, n1):
                    for rr in range(4): a.e(f"v_mul_f32 v{keep+4*n+rr}, v{keep+4*n+rr}, v{vE+4*qt+1}")
                a.e(f"s_waitcnt lgkmcnt({7 - n1})")
                for n in (n0, n1):
                    for rr in range(4): a.e(f"v_fmac_f32 v{keep+4*n+rr}, v{FR+4*n+rr}, v{vE+4*qt+2}")
                PK = S + (xx*2+qt)*4
                a.e(f"v_cvt_pk_bf16_f32 v{PK}, v{keep+4*n0}, v{keep+4*n0+1}"); a.e(f"v_cvt_pk_bf16_f32 v{PK+1}, v{keep+4*n0+2}, v{keep+4*n0+3}")
                a.e(f"v_cvt_pk_bf16_f32 v{PK+2}, v{keep+4*n1}, v{keep+4*n1+1}"); a.e(f"v_cvt_pk_bf16_f32 v{PK+3}, v{keep+4*n1+2}, v{keep+4*n1+3}")
                a.e(f"buffer_store_dwordx4 {v(PK,4)}, v{vL16}, s[{S_CT}:{S_CT+3}], s{sT1 if qt else sT0} offen offset:{xx*1024} sc1")
        if g == 0: a.e(f"s_branch {name}_convw")
    st.at(10)
    T3 = (sT0, sT1, sT2)
    G = ko.Gemm(a, name, T3, vL16, " sc1", S_FL, sNonce, _at if "gst" in X else None); G.X = X
    a.e(f"v_mov_b32 v16, v{vZ}")
    a.e("s_waitcnt vmcnt(4)")
    a.e(f"v_cmp_ne_u32 vcc, s{sNonce}, v{vP2}"); a.e("s_mov_b32 s66, vcc_lo")
    a.e(f"s_cbranch_vccnz {name}_late")
    G.first_loads(False)
    a.e("s_waitcnt vmcnt(16)")
    a.e(f"s_branch {name}_late2")
    a.label(f"{name}_late")
    a.e("s_waitcnt vmcnt(0)")
    a.label(f"{name}_late2")
    a.e("s_barrier")
    st.at(8)
    a.e(f"s_cmp_lg_u32 s{sW}, 7"); a.e(f"s_cbranch_scc1 {name}_nsg")
    for x in [f"v_mov_b32 v{vT}, s{sNonce}", f"v_mov_b32 v{vT+1}, 0", f"s_lshl_b32 s{sT2}, s{sH}, 2", f"s_and_b32 s{sT2}, s{sT2}, 15",
              f"s_add_u32 s{sT0}, s71, s{sT2}", f"s_add_u32 s{sT1}, s70, s{sT2}", "s_mov_b64 exec, 1",
              f"buffer_store_dword v{vT}, v{vT+1}, s[{S_FL}:{S_FL+3}], s{sT0} offen sc1",
              f"buffer_store_dword v{vT}, v{vT+1}, s[{S_FL}:{S_FL+3}], s{sT1} offen sc1", "s_mov_b64 exec, -1"]: a.e(x)
    a.label(f"{name}_nsg")
    a.e("s_cmp_eq_u32 s66, 0"); a.e(f"s_cbranch_scc1 {name}_rdy")
    G.spin(f"buffer_load_dword v15, v16, s[{S_FL}:{S_FL+3}], s70 offen sc1")
    G.first_loads(False)
    a.label(f"{name}_rdy")
    if True: a.e("s_barrier")
    st.at(2)
    G.first_loads(True)
    G.main(f"buffer_load_dword v15, v16, s[{S_FL}:{S_FL+3}], s71 offen sc1")
    a.e(f"s_branch {name}_fin")
    a.label(f"{name}_convw")
    if True:
        for gg in (2, 3):
            for x in ko.gemm_wl(gg, T3): a.e(x)
        a.e("s_waitcnt vmcnt(18)")
        a.e("s_barrier")
        a.e("s_waitcnt vmcnt(0)")
        a.e("s_barrier")
    else:
        a.e("s_waitcnt vmcnt(0)")
        a.e("s_barrier")
    for gg in range(2):
        for x in ko.gemm_wl(gg, T3): a.e(x)
    a.e(f"v_mov_b32 v{vT}, {ko.CNT}"); a.e(f"v_mov_b32 v{vT+1}, 0"); a.e(f"ds_write_b32 v{vT}, v{vT+1}")
    a.e("s_waitcnt vmcnt(0) lgkmcnt(0)")
    a.e("s_barrier")
    a.e(f"s_cmp_eq_u32 s{sCG}, -1"); a.e(f"s_cbranch_scc1 {name}_fin")
    a.e(f"s_mov_b32 s{sT0}, 0")
    a.label(f"{name}_ssp")
    a.e(pollS); a.e("s_waitcnt vmcnt(0)")
    for r in range(4): a.e(f"v_xor_b32 v{vP1+r}, s{sNonce}, v{vP1+r}")
    a.e(f"v_or3_b32 v{vP1}, v{vP1}, v{vP1+1}, v{vP1+2}"); a.e(f"v_or_b32 v{vP1}, v{vP1}, v{vP1+3}"); a.e(f"v_cmp_ne_u32 vcc, 0, v{vP1}")
    a.e(f"s_add_u32 s{sT0}, s{sT0}, 1"); a.e(f"s_cbranch_vccz {name}_sok")
    a.e(f"s_cmp_lt_u32 s{sT0}, 0x40000"); a.e(f"s_cbranch_scc1 {name}_ssp")
    a.label(f"{name}_sok")
    a.e("s_barrier")
    ko.gen_conv(a, name, st, sW, sCG, T3, vL, vL16, " sc1")
    a.label(f"{name}_fin")
    if diag: a.e("s_waitcnt vmcnt(0)")
    st.at(11); st.at(12, True)
    if "dbgst" in X:
        a.e(f"s_cmp_lg_u32 s{sW}, 4"); a.e(f"s_cbranch_scc1 {name}_end")
        st.dump_dbg(sNonce, [1, 5, 7, 9, 10, 2, 12])
    else: st.dump(6, sW)
    a.label(f"{name}_end")
    a.e("s_endpgm")
    i = 0
    while i < len(ool):
        lab, fn = ool[i]; a.label(lab); fn(); i += 1
    a.label(code_end)
    a.e("s_endpgm")
    a.e = _e
    kernel_desc(a, name, 256, 102)
```

```python
from asmlib import *
import ko
from k1 import MF, WS_KV, WS_CTX, WS_WOF, WS_KVB, WS_QB, wg_decode, act_dma_offsets, w_dma_offsets, act_read_addr, w_read_addr

QSCALE = 0x3e0293ee
NEG = 0xf149f2ca
LTHR = 0x4e800000
OOB = 0x7ff00000
WS_FLAG = 64 << 20

def gen_ka(a, name="ka_kernel", diag=False, X=(), code_end=None):
    kernel_begin(a, name)
    code_end = f"{name}_code_end"
    st = Stamps(a, diag, 0, 76)
    _at = st.at
    pst = (lambda i: (_at(i), a.e("s_waitcnt lgkmcnt(0)"))) if "prost" in X else (lambda i: None)
    if "qst" in X or "phst" in X or "phst2" in X: st.at = lambda i, real=False: _at(i, real) if (i < 2 or i == 12) else None
    if "gst" in X: st.at = lambda i, real=False: _at(i, real) if (i < 3 or i == 12) else None
    if "g2" in X: st.at = lambda i, real=False: _at(i, real) if (i in (0, 1, 2, 3, 4, 10, 11, 12)) else None
    if "prost" in X: st.at = lambda i, real=False: _at(i, real) if (i < 4 or i == 12) else None
    if "kvst" in X:
        _at = st.at
        st.at = lambda i, real=False: _at(i, real) if (i < 4 or i == 12) else None
    _e = a.e
    def e2(x):
        if x.endswith(":"): a.label(x[:-1])
        else: _e(x)
    a.e = e2
    S_C, S_W, S_KV, S_X, S_WQ, S_CT = 8, 12, 16, 20, 24, 28
    sW, sH, sP, sG, sWL = 32, 33, 34, 35, 36
    sT0, sT1, sT2 = 37, 38, 39
    sIT, sKC, sKW, sM0C, sM0W = 40, 41, 42, 43, 44
    sRole, sA, sB = 45, 46, 47
    S_S = 48
    S_DBG = 72
    sI, sN, sKoff, sVoff, sKt, sVt, sM0K, sM0V = 40, 41, 42, 43, 44, 45, 46, 47
    sTA, sJump, sSeg, sR, sTH, sTile, sKX, sKWq = 48, 49, 50, 51, 52, 53, 54, 55
    sQD = 55; sHalf = 54
    sMSK = 56
    vL = 1; vL16 = 2; vDUM = 3
    vDC = 4; vDW = 8; vRC = 12; vRW = 14; vST = 18; vT = 19
    vDX = 28; vDWq = 124
    CF = 32; WA, WB = 48, 64; ACC = 128
    XS = [0, 131072, 65536]; WSL = [32768, 49152, 98304]
    VRING = 65536; QTMP = 98304; QSTASH = 131072

    a.e("s_cmp_ge_u32 s2, 256")
    a.e(f"s_cbranch_scc1 {name}_end")
    st.at(0); st.at(1, True)
    a.e("s_load_dwordx8 s[60:67], s[0:1], 48")
    a.e("s_load_dwordx2 s[68:69], s[0:1], 80")
    a.e("s_memrealtime s[70:71]")
    a.e("s_load_dwordx4 s[4:7], s[0:1], 104")
    a.e(f"v_lshrrev_b32 v{vT}, 6, v0")
    a.e(f"v_and_b32 v{vL}, 63, v0")
    a.e(f"v_readfirstlane_b32 s{sW}, v{vT}")
    a.e(f"v_lshlrev_b32 v{vL16}, 4, v{vL}")
    wg_decode(a, sH, sP, sT0, sT1)
    a.e(f"s_lshr_b32 s{sG}, s{sW}, 2")
    a.e(f"s_and_b32 s{sWL}, s{sW}, 3")
    a.e(f"s_lshl_b32 s{sT0}, s{sP}, 8")
    a.e(f"s_lshl_b32 s{sT1}, s{sW}, 5")
    a.e(f"s_add_u32 s{sT0}, s{sT0}, s{sT1}")
    act_dma_offsets(a, vDC, vL, vT, sT0, 1024)
    a.e(f"s_lshl_b32 s{sT0}, s{sWL}, 4")
    a.e(f"s_lshl_b32 s{sT1}, s{sH}, 8")
    w_dma_offsets(a, vDW, vL, vT, sT0, sT1, [(0, 0), (1, 0), (2, 1), (3, 1)])
    a.e(f"s_lshl_b32 s{sM0C}, s{sW}, 12")
    a.e(f"s_add_u32 s{sM0W}, s{sM0C}, 32768")
    a.e(f"s_mov_b32 s{sKC}, 0")
    a.e(f"s_mov_b32 s{sKW}, 0")
    pst(4)
    a.e("s_waitcnt lgkmcnt(0)")
    pst(5)
    srd(a, S_C, 62, 2048 * 1024)
    a.e(f"s_cmp_lt_u32 s{sW}, 4")
    a.e("s_cselect_b32 s46, s66, s68")
    a.e("s_cselect_b32 s47, s67, s69")
    srd(a, S_W, 46, 512 * 8192)
    S_W2 = 28
    dma_c = lambda i, so=sKC: f"buffer_load_dwordx4 v{vDC+i}, s[{S_C}:{S_C+3}], s{so} offen offset:{i*1024} lds"
    dma_w = lambda i, S=S_W: f"buffer_load_dwordx4 v{vDW+i}, s[{S}:{S+3}], s{sKW} offen offset:{i*1024} lds"
    dma_adv = [f"s_add_u32 s{sKC}, s{sKC}, 128", f"s_add_u32 s{sKW}, s{sKW}, {64*8192}",
               f"s_xor_b32 s{sM0C}, s{sM0C}, 0x10000", f"s_xor_b32 s{sM0W}, s{sM0W}, 0x10000"]
    if "wf" in X:
        a.e(f"s_mov_b32 m0, s{sM0W}"); a.e("s_nop 0")
        for i in range(4): a.e(dma_w(i))
    a.e(f"s_mov_b32 m0, s{sM0C}"); a.e("s_nop 0")
    for i in range(4): a.e(dma_c(i))
    if "wf" not in X:
        a.e(f"s_mov_b32 m0, s{sM0W}"); a.e("s_nop 0")
        for i in range(4): a.e(dma_w(i))
    for x in dma_adv: a.e(x)
    pst(6)
    a.e(f"s_add_u32 s{S_KV}, s6, {WS_KV}"); a.e(f"s_addc_u32 s{S_KV+1}, s7, 0")
    srd(a, S_KV, S_KV, 32 << 20)
    srd(a, S_X, 60, 2048 * 1152)
    srd(a, S_WQ, 64, 576 * 8192)
    srd(a, S_W2, 68, 512 * 8192)
    srd(a, 72, 4, 256)
    pst(8)
    a.e(f"s_and_b32 s{sT0}, s{sW}, 1"); a.e(f"s_lshl_b32 s{sT0}, s{sT0}, 14")
    act_read_addr(a, vRC, vL, vT, sT0)
    a.e(f"s_lshl_b32 s{sT0}, s{sG}, 14"); a.e(f"s_add_u32 s{sT0}, s{sT0}, 32768")
    a.e(f"s_and_b32 s{sT1}, s{sW}, 2"); a.e(f"s_lshl_b32 s{sT1}, s{sT1}, 1")
    w_read_addr(a, vRW, vL, vT, sT0, sT1, sT2)
    a.e(f"s_lshl_b32 s{sT0}, s{sH}, 20"); a.e(f"s_lshl_b32 s{sT1}, s{sP}, 17"); a.e(f"s_add_u32 s{sT0}, s{sT0}, s{sT1}")
    a.e(f"s_and_b32 s{sT1}, s{sW}, 1"); a.e(f"s_lshl_b32 s{sT1}, s{sT1}, 16"); a.e(f"s_add_u32 s{sT0}, s{sT0}, s{sT1}")
    a.e(f"v_add_u32 v{vST}, s{sT0}, v{vL16}")
    a.e(f"s_sub_u32 s{sT0}, 15, s{sP}"); a.e(f"s_cmp_eq_u32 s{sG}, 0"); a.e(f"s_cselect_b32 s{sT0}, s{sT0}, s{sP}")
    a.e(f"s_lshl_b32 s{sT0}, s{sT0}, 7"); a.e(f"s_lshl_b32 s{sT1}, s{sWL}, 5"); a.e(f"s_add_u32 s{sT0}, s{sT0}, s{sT1}")
    act_dma_offsets(a, vDX, vL, vT, sT0, 1152)
    a.e(f"v_lshrrev_b32 v{vT+2}, 4, v{vL}"); a.e(f"s_lshl_b32 s{sT0}, s{sW}, 3"); a.e(f"v_add_u32 v{vT}, s{sT0}, v{vT+2}")
    a.e(f"v_lshlrev_b32 v{vT}, 13, v{vT}"); a.e(f"s_lshl_b32 s{sT1}, s{sH}, 8"); a.e(f"v_add_u32 v{vT}, s{sT1}, v{vT}")
    a.e(f"v_and_b32 v{vT+1}, 15, v{vL}"); a.e(f"v_lshlrev_b32 v{vT+3}, 1, v{vT+2}"); a.e(f"v_xor_b32 v{vT+1}, v{vT+1}, v{vT+3}")
    a.e(f"s_and_b32 s{sT0}, s{sW}, 1"); a.e(f"s_lshl_b32 s{sT0}, s{sT0}, 3"); a.e(f"v_xor_b32 v{vT+1}, s{sT0}, v{vT+1}")
    a.e(f"v_lshl_add_u32 v{vDWq}, v{vT+1}, 4, v{vT}"); a.e(f"v_add_u32 v{vDWq+1}, {4*8192-1024}, v{vDWq}")
    pst(9)
    for i in range(128): a.e(f"v_mov_b32 v{ACC+i}, 0")
    pst(10)
    pst(11)
    kdma = ([f"s_mov_b32 m0, s{sM0C}", f"s_add_u32 s45, s{sKC}, 131072"] + [dma_c(i) for i in range(4)] + [f"s_mov_b32 m0, s{sM0W}", "s_nop 0"] + [dma_w(i) for i in range(4)]
            + [f"s_add_u32 m0, s{sM0C}, 16384", "s_nop 0"] + [dma_c(i, 45) for i in range(4)] + [f"s_add_u32 m0, s{sM0W}, 16384", "s_nop 0"] + [dma_w(i, S_W2) for i in range(4)] + dma_adv)
    sGW = 3
    PX, PC, PWQ, PWK, PWV = 60, 62, 64, 66, 68
    def touch(parts, R=46, skip=True):
        base = 0; RS = R + 2
        a.e(f"s_mov_b32 s{R}, s6"); a.e(f"s_mov_b32 s{R+1}, s7"); a.e(f"s_mov_b32 s{sT0}, {200 << 20}"); a.e(f"s_mov_b32 s{RS}, 1024")
        for (lo, start, n, wt) in parts:
            a.e(f"s_sub_u32 s{sT1}, s{sGW}, {base}"); a.e(f"s_lshl_b32 s{sT2}, s{sT1}, {16 if wt == 1 else 13}")
            if start: a.e(f"s_add_u32 s{sT2}, s{sT2}, {start}")
            if wt == 1: a.e(f"s_add_u32 s{sT2}, s{sT2}, s59")
            if wt >= 2:
                a.e(f"s_mul_i32 s58, s59, {8 * n}"); a.e(f"s_add_u32 s{sT2}, s{sT2}, s58")
            a.e(f"s_cmp_lt_u32 s{sT1}, {n}")
            a.e(f"s_cselect_b32 s{sT0}, s{sT2}, s{sT0}"); a.e(f"s_cselect_b32 s{R}, s{lo}, s{R}"); a.e(f"s_cselect_b32 s{R+1}, s{lo+1}, s{R+1}")
            if wt == 1: a.e(f"s_cselect_b32 s{RS}, 8192, s{RS}")
            base += n
        ls = a.uid(f"{name}_tsk")
        if skip: a.e(f"s_cmp_eq_u32 s{sT0}, {200 << 20}"); a.e(f"s_cbranch_scc1 {ls}")
        a.e(f"s_add_u32 s{R}, s{R}, s{sT0}"); a.e(f"s_addc_u32 s{R+1}, s{R+1}, 0")
        a.e(f"v_lshrrev_b32 v{vT}, 3, v{vL}"); a.e(f"v_and_b32 v{vT+1}, 7, v{vL}"); a.e(f"v_lshlrev_b32 v{vT+1}, 7, v{vT+1}")
        a.e(f"v_mad_u32_u24 v{vT}, v{vT}, s{RS}, v{vT+1}"); a.e(f"global_load_dword v{vDUM}, v{vT}, s[{R}:{R+1}]")
        a.e(ls + ":")
    WW = lambda r0, n: [(PWK, r0*8192, n // 8, 1), (PWV, r0*8192, n // 8, 1)]
    a.e(f"s_cmp_lt_u32 s{sW}, 4"); a.e(f"s_cbranch_scc0 {name}_vp0")
    for x in kdma: a.e(x)
    a.e(f"s_branch {name}_nop0")
    a.label(f"{name}_vp0")
    a.e(f"s_lshr_b32 s{sGW}, s2, 3"); a.e(f"s_lshl_b32 s{sT0}, s{sWL}, 5"); a.e(f"s_add_u32 s{sGW}, s{sGW}, s{sT0}")
    a.e("s_and_b32 s59, s2, 7"); a.e("s_lshl_b32 s59, s59, 10")
    touch([(PC, 0, 32, 2)] + WW(64, 128), skip=False)
    a.e("s_getpc_b64 s[28:29]")
    a.e(f"{name}_pc:")
    a.e(f"s_sub_u32 s28, s28, {name}_pc - {name}"); a.e("s_subb_u32 s29, s29, 0")
    a.e("s_and_b32 s29, s29, 0xffff"); a.e(f"s_mov_b32 s30, {code_end} - {name}"); a.e("s_mov_b32 s31, 0x20000")
    a.e(f"s_sub_u32 s{sT0}, s{sGW}, 88"); a.e(f"s_lshl_b32 s{sT0}, s{sT0}, 13"); a.e(f"s_min_u32 s{sT0}, s{sT0}, {OOB}")
    a.e(f"v_lshlrev_b32 v{vT}, 7, v{vL}")
    a.e(f"buffer_load_dword v{vDUM}, v{vT}, s[28:31], s{sT0} offen")
    a.e("s_or_b32 s70, s70, 1")
    a.e("v_mov_b32 v126, s70"); a.e("v_mov_b32 v127, 0"); a.e(f"v_mov_b32 v{vT}, 0")
    a.e(f"s_cmp_eq_u32 s{sW}, 7"); a.e(f"s_cselect_b32 s{sT0}, 0, {OOB}")
    a.e("s_mov_b64 exec, 1")
    a.e(f"buffer_atomic_cmpswap v[126:127], v{vT}, s[72:75], s{sT0} offen sc0 sc1")
    a.e("s_mov_b64 exec, -1")
    a.label(f"{name}_nop0")
    pst(7)

    def rd_w(W, ks2):
        r = []
        for d in range(4):
            r.append(f"ds_read_b64_tr_b16 {v(W+4*d,2)}, v{vRW+d} offset:{ks2*8192}")
            r.append(f"ds_read_b64_tr_b16 {v(W+4*d+2,2)}, v{vRW+d} offset:{ks2*8192+1024}")
        return r
    rd_c = lambda t, ks2: f"ds_read_b128 {v(CF+4*(t%4),4)}, v{vRC+ks2} offset:{t*2048}"
    def mf(W, t, d, isK):
        acc = v(ACC + (t*4+d)*4, 4); cf = v(CF+4*(t%4), 4); wf = v(W+4*d, 4)
        return f"{MF} {acc}, {wf}, {cf}, {acc}" if isK else f"{MF} {acc}, {cf}, {wf}, {acc}"
    def qdma(stage):
        sl = stage % 3
        r = [f"s_lshl_b32 s{sT0}, s{sW}, 12", f"s_add_u32 m0, s{sT0}, {XS[sl]}", f"s_mov_b32 s{sT1}, {stage*128}"]
        r += [f"buffer_load_dwordx4 v{vDX+i}, s[{S_X}:{S_X+3}], s{sT1} offen offset:{i*1024} lds" for i in range(4)]
        r += [f"s_lshl_b32 s{sT0}, s{sW}, 11", f"s_add_u32 m0, s{sT0}, {WSL[sl]}", f"s_mov_b32 s{sT1}, {stage*64*8192}"]
        r += [f"buffer_load_dwordx4 v{vDWq+i}, s[{S_WQ}:{S_WQ+3}], s{sT1} offen offset:{i*1024} lds" for i in range(2)]
        return r

    ool = []
    def rot():
        a.e(f"s_add_u32 s{sT0}, s{sGW}, 8"); a.e(f"s_and_b32 s{sT0}, s{sT0}, 31"); a.e(f"s_andn2_b32 s{sGW}, s{sGW}, 31"); a.e(f"s_or_b32 s{sGW}, s{sGW}, s{sT0}")
    SCH = {0: [lambda: touch(WW(192, 128), skip=False)], 1: [lambda: touch(WW(320, 128))], 2: [rot, lambda: touch(WW(448, 64) + [(PX, 0, 36, 2)])],
           3: [rot, rot, lambda: touch([(PWQ, 0, 36, 1)])], 4: [rot, lambda: touch([(PWQ, 288*8192, 36, 1)])]}
    if "xl2" in X:
        SCH[5] = [lambda: touch([(PX, 0, 128, 0)])]; SCH[6] = [lambda: touch([(PX, 128*8192, 128, 0)]), lambda: touch([(PX, 256*8192, 32, 0)])]
    a.e(f"s_cmp_lt_u32 s{sW}, 4"); a.e(f"s_cbranch_scc1 {name}_w3"); a.e("s_waitcnt vmcnt(3)"); a.label(f"{name}_w3")
    NPF = 16
    a.e(f"s_waitcnt vmcnt({NPF})")
    a.e("s_barrier")
    for x in rd_w(WA, 0): a.e(x)
    for t in range(3): a.e(rd_c(t, 0))
    a.e(f"s_mov_b32 s{sIT}, 0")
    a.e(f"s_cmp_lt_u32 s{sW}, 4")
    a.e(f"s_cbranch_scc0 {name}_vfirst")
    def kv_iter(isK, last, tag, first=False):
        wn = rd_w(WB, 1)
        per = {}
        if last:
            dm = qdma(0) + qdma(1)
            for t in range(8): per[t] = dm[len(dm)*t//8: len(dm)*(t+1)//8]
        elif isK and not first:
            dm = ([f"s_mov_b32 m0, s{sM0C}", f"s_add_u32 s45, s{sKC}, 131072"] + [dma_c(i) for i in range(4)] + [f"s_mov_b32 m0, s{sM0W}", "s_nop 0"] + [dma_w(i) for i in range(4)]
                  + [f"s_add_u32 m0, s{sM0C}, 16384", "s_nop 0"] + [dma_c(i, 45) for i in range(4)] + [f"s_add_u32 m0, s{sM0W}, 16384", "s_nop 0"] + [dma_w(i, S_W2) for i in range(4)] + dma_adv)
            ND = 6 if 'nd6' in X else 10 if 'nd10' in X else 13 if 'nd13' in X else 8
            for t in range(ND): per[t] = dm[len(dm)*t//ND: len(dm)*(t+1)//ND]
        for t in range(8):
            a.e(f"s_waitcnt lgkmcnt({[2,4,6,6,6,4,2,2][t]})")
            ms = [mf(WA, t, d, isK) for d in range(4)]
            nt = t + 3
            a.e(ms[0])
            if t < 4: a.e(wn[2*t])
            a.e(ms[1])
            if "kd3" not in X:
                for x in per.get(t, []): a.e(x)
            a.e(ms[2])
            if t < 4: a.e(wn[2*t+1])
            a.e(ms[3])
            if "kd3" in X:
                for x in per.get(t, []): a.e(x)
            a.e(rd_c(nt % 8, 0 if nt < 8 else 1))
        for t in range(6):
            a.e("s_waitcnt lgkmcnt(2)")
            ms = [mf(WB, t, d, isK) for d in range(4)]
            a.e(ms[0]); a.e(ms[1])
            for x in per.get(8 + t, []): a.e(x)
            a.e(ms[2]); a.e(ms[3])
            if t < 5: a.e(rd_c(t + 3, 1))
            if not last and not isK and t == 0:
                r = a.uid(f"{name}_r")
                for itv, fns in SCH.items():
                    if (itv == 0) != first: continue
                    h = a.uid(f"{name}_h")
                    def hook(fns=fns, r=r):
                        for fn in fns: fn()
                        a.e(f"s_branch {r}")
                    ool.append((h, hook))
                    a.e(f"s_cmp_eq_u32 s{sIT}, {itv}"); a.e(f"s_cbranch_scc1 {h}")
                a.e(f"{r}:")
        a.e("s_waitcnt lgkmcnt(0)" + (" vmcnt(6)" if last else (" vmcnt(0)" if isK else "")))
        a.e("s_barrier")
        if not last:
            for r in [vRC, vRC+1, vRW, vRW+1, vRW+2, vRW+3]: a.e(f"v_xor_b32 v{r}, 0x10000, v{r}")
            wn = rd_w(WA, 0)
            for d in range(4):
                a.e(mf(WB, 6, d, isK)); a.e(wn[2*d]); a.e(wn[2*d+1])
            a.e(rd_c(0, 0)); a.e(rd_c(1, 0))
            for d in range(4): a.e(mf(WB, 7, d, isK))
            a.e(rd_c(2, 0))
        else:
            dm = qdma(2)
            ms = [mf(WB, 6 + (n >> 2), n & 3, isK) for n in range(8)]
            for n in range(8):
                a.e(ms[n])
                for x in dm[len(dm)*n//8: len(dm)*(n+1)//8]: a.e(x)
    SC1 = " sc1" if "plain" not in X else ""
    sSB = 66; sNonce = 69; S_FL = 72
    PKR = lambda n: (32 + 4 * n) if n < 8 else (160 + 4 * (n - 8))
    def kv_store(n):
        if "nost" in X: return [f"buffer_load_dword v{vDUM}, v{vL16}, s[{S_KV}:{S_KV+3}], 0 offen"]
        if "stnt" in X: return [f"s_add_u32 s68, s{sSB + ((n >> 1) & 1)}, {((n >> 2) & 1) * 8192 + (n >> 3) * 32768}",
                f"buffer_store_dwordx4 {v(PKR(n),4)}, v{vST}, s[{S_KV}:{S_KV+3}], s68 offen offset:{(n & 1) * 1024} sc1 nt"]
        return [f"s_add_u32 s68, s{sSB + ((n >> 1) & 1)}, {((n >> 2) & 1) * 8192 + (n >> 3) * 32768}",
                f"buffer_store_dwordx4 {v(PKR(n),4)}, v{vST}, s[{S_KV}:{S_KV+3}], s68 offen offset:{(n & 1) * 1024}{SC1}"]
    for isK in (True, False):
        tag = "k" if isK else "v"
        a.label(f"{name}_{tag}first")
        if isK and "kprio" in X: a.e("s_setprio 1")
        kv_iter(isK, False, tag, True)
        if "kvst" in X: _at(4); a.e("s_waitcnt lgkmcnt(0)")
        a.e(f"s_mov_b32 s{sIT}, 1")
        a.label(f"{name}_{tag}loop")
        kv_iter(isK, False, tag)
        if "kvst" in X:
            for i in range(7):
                l_ = a.uid("kvst"); a.e(f"s_cmp_lg_u32 s{sIT}, {i}"); a.e(f"s_cbranch_scc1 {l_}"); _at(4 + i); a.e("s_waitcnt lgkmcnt(0)"); a.e(l_ + ":")
        a.e(f"s_add_u32 s{sIT}, s{sIT}, 1"); a.e(f"s_cmp_lt_u32 s{sIT}, 7"); a.e(f"s_cbranch_scc1 {name}_{tag}loop")
        kv_iter(isK, True, tag)
        if "kvend" in X: _at(4)
        if "kvst" in X: _at(11)
        a.e(f"s_and_b32 s{sT1}, s{sW}, 2")
        if isK:
            a.e(f"s_lshl_b32 s{sSB}, s{sT1}, 10"); a.e(f"s_add_u32 s{sSB+1}, s{sSB}, 4096")
        else:
            a.e(f"s_lshl_b32 s{sSB}, s{sT1}, 11"); a.e(f"s_add_u32 s{sSB}, s{sSB}, 16384"); a.e(f"s_add_u32 s{sSB+1}, s{sSB}, 2048")
        for n in range(16):
            P = PKR(n)
            if isK:
                t = n >> 1; x = n & 1
                t0, t1 = ACC + (t*4 + 2*x)*4, ACC + (t*4 + 2*x + 1)*4
            else:
                y = n >> 2; d = n & 3
                t0, t1 = ACC + (2*y*4 + d)*4, ACC + ((2*y+1)*4 + d)*4
            a.e(f"v_cvt_pk_bf16_f32 v{P}, v{t0}, v{t0+1}"); a.e(f"v_cvt_pk_bf16_f32 v{P+1}, v{t0+2}, v{t0+3}")
            a.e(f"v_cvt_pk_bf16_f32 v{P+2}, v{t1}, v{t1+1}"); a.e(f"v_cvt_pk_bf16_f32 v{P+3}, v{t1+2}, v{t1+3}")
        if isK: a.e(f"s_branch {name}_qproj")
    a.label(f"{name}_qproj")
    if "drop5" in X:
        a.e(f"s_cmp_ge_u32 s{sP}, 5"); a.e(f"s_cselect_b32 s{sSB}, {0x70000000}, s{sSB}"); a.e(f"s_cselect_b32 s{sSB+1}, {0x70000000}, s{sSB+1}")
    a.e(f"v_mov_b32 v127, 0"); a.e("buffer_load_dword v126, v127, s[72:75], 0 offen sc1")
    if "kprio" in X: a.e("s_setprio 0")
    st.at(5)

    vRX = 12; vRWq = 14
    a.e(f"s_add_u32 s58, s6, {WS_CTX}"); a.e("s_addc_u32 s59, s7, 0")
    srd(a, S_CT, 58, 16 << 20)
    a.e(f"s_add_u32 s58, s6, {WS_FLAG}"); a.e("s_addc_u32 s59, s7, 0")
    srd(a, S_FL, 58, 65536)
    vDMA = 4; vKR = 5; vVR = 6; vTHR = 7; vNEG = 8; vPOLL = 9; vMT = 10
    vLS = 40; vM = 42; vLP = 44; vE = 46; NE = 8
    FR = 72; NB = 8
    C = 104; P = 112; S = 128; Q = 160; O = 192
    a.e(f"s_lshr_b32 s{sT0}, s{sW}, 1"); a.e(f"s_lshl_b32 s{sT0}, s{sT0}, 13")
    act_read_addr(a, vRX, vL, vT, sT0)
    a.e(f"s_mov_b32 s{sT0}, {WSL[0]}"); a.e(f"s_and_b32 s{sT1}, s{sW}, 1"); a.e(f"s_lshl_b32 s{sT1}, s{sT1}, 2")
    w_read_addr(a, vRWq, vL, vT, sT0, sT1, sT2)
    SETS = [64, 128]
    def q_reads(F, ks2):
        r = []
        for d in range(4):
            r.append(f"ds_read_b64_tr_b16 {v(F+16+4*d,2)}, v{vRWq+d} offset:{ks2*8192}")
            r.append(f"ds_read_b64_tr_b16 {v(F+16+4*d+2,2)}, v{vRWq+d} offset:{ks2*8192+1024}")
            r.append(f"ds_read_b128 {v(F+4*d,4)}, v{vRX+ks2} offset:{d*2048}")
        return r
    def q_mfmas(F, first=False):
        return [f"{MF} {v(O+(t*4+d)*4,4)}, {v(F+16+4*d,4)}, {v(F+4*t,4)}, {'0' if first else v(O+(t*4+d)*4,4)}" for t in range(4) for d in range(4)]
    def spread(ms, fill, upto):
        out = []; k = 0
        for i, m in enumerate(ms):
            out.append(m)
            tgt = min(len(fill), (len(fill) * (i + 1) + upto - 1) // upto)
            while k < tgt:
                out.append(fill[k]); k += 1
        return out
    for x in q_reads(SETS[0], 0): a.e(x)
    a.e(f"s_lshl_b32 s{sT0}, s{sWL}, 12"); a.e(f"v_add_u32 v{vDMA}, s{sT0}, v{vL16}")
    a.e(f"s_lshl_b32 s{sT1}, s{sG}, 14"); a.e(f"v_add_u32 v{vKR}, s{sT1}, v{vL16}"); a.e(f"v_add_u32 v{vVR}, {VRING}, v{vKR}")
    a.e(f"s_add_u32 s{sM0K}, s{sT0}, s{sT1}"); a.e(f"s_add_u32 s{sM0V}, s{sM0K}, {VRING}")
    a.e(f"s_lshl_b32 s{sKoff}, s{sH}, 20"); a.e(f"s_add_u32 s{sVoff}, s{sKoff}, 16384"); a.e(f"s_add_u32 s{sJump}, s{sKoff}, {17*32768}")
    a.e(f"s_mov_b32 s{sKt}, 0"); a.e(f"s_mov_b32 s{sVt}, 0")
    a.e(f"s_lshl_b32 s{sT0}, s{sP}, 1"); a.e(f"s_add_u32 s{sT0}, s{sT0}, 2"); a.e(f"s_sub_u32 s{sT1}, 15, s{sP}")
    a.e(f"s_cmp_eq_u32 s{sG}, 0")
    a.e(f"s_cselect_b32 s{sTA}, s{sT0}, 99"); a.e(f"s_cselect_b32 s{sI}, s{sT0}, 17"); a.e(f"s_cselect_b32 s{sTile}, s{sP}, s{sT1}")
    a.e(f"s_cselect_b32 s{sSeg}, 0, 1")
    a.e(f"s_cselect_b32 s{sHalf}, 1, 0")
    a.e(f"s_sub_u32 s{sI}, s{sI}, 1")
    a.e(f"s_lshl_b32 s{sR}, s{sTile}, 2"); a.e(f"s_sub_u32 s{sR}, 0, s{sR}")
    a.e(f"s_mov_b32 s{sTH}, {LTHR}"); a.e(f"v_mov_b32 v{vNEG}, {NEG}")
    a.e(f"s_lshl_b32 s{sT0}, s{sWL}, 4"); a.e(f"v_and_b32 v{vT}, 15, v{vL}")
    a.e(f"v_lshrrev_b32 v{vT+1}, 4, v{vL}"); a.e(f"v_lshlrev_b32 v{vT+1}, 2, v{vT+1}"); a.e(f"v_sub_u32 v{vT}, v{vT}, v{vT+1}")
    a.e(f"v_add_u32 v{vTHR}, s{sT0}, v{vT}"); a.e(f"s_sub_u32 s{sT0}, 112, s{sT0}"); a.e(f"v_add_u32 v0, s{sT0}, v{vT}")
    a.e(f"s_lshl_b32 s{sQD}, s{sWL}, 1"); a.e(f"s_sub_u32 s{sQD}, 7, s{sQD}")
    a.e(f"s_lshl_b32 s{sT0}, s{sH}, 10"); a.e(f"v_and_b32 v{vMT}, 7, v{vL}"); a.e(f"v_lshl_add_u32 v{vMT}, v{vMT}, 7, s{sT0}")
    def kv_dma(isK):
        off, m0 = (sKoff, sM0K) if isK else (sVoff, sM0V)
        return [f"s_mov_b32 m0, s{m0}", "s_nop 0"] + [f"buffer_load_dwordx4 v{vDMA}, s[{S_KV}:{S_KV+3}], s{off} offen offset:{i*1024}{'' if 'inv' in X else ' sc1'} lds" for i in range(4)]
    def kv_adv(isK):
        off, tt, m0 = (sKoff, sKt, sM0K) if isK else (sVoff, sVt, sM0V)
        return [f"s_xor_b32 s{m0}, s{m0}, 0x8000", f"s_add_u32 s{tt}, s{tt}, 1", f"s_add_u32 s{off}, s{off}, 32768",
                f"s_add_u32 s{sT2}, s{sJump}, {0 if isK else 16384}", f"s_cmp_eq_u32 s{tt}, s{sTA}", f"s_cselect_b32 s{off}, s{sT2}, s{off}",
                f"s_cmp_ge_u32 s{tt}, 17", f"s_cselect_b32 s{off}, {OOB}, s{off}"]
    NA = [2, 2, 2, 2] + [0] * 6; NBs = [2, 2, 2, 2] + [0] * 6
    if "st5" in X: NA = [2, 2, 2, 2, 2] + [0] * 5; NBs = [1, 1, 1, 1, 2] + [0] * 5
    if "st3" in X: NA = [3, 3, 3] + [0] * 7; NBs = [3, 2, 2] + [0] * 7
    if "stA" in X: NA = [0, 2, 2, 2, 2] + [0] * 5; NBs = [2, 2, 2, 2] + [0] * 6
    lastst = max(i for i in range(9) if NA[i] + NBs[i])
    sdone = [0]
    def add_stores(fl, n, marks):
        out = []; nm = 0; marks = list(marks[:n])
        for x in fl:
            out.append(x)
            if x.startswith("v_mfma"):
                nm += 1
                if marks and nm == marks[0]:
                    marks.pop(0); out += kv_store(sdone[0]); sdone[0] += 1
        return out
    for it in range(9):
        if "qst" in X: _at(2 + it)
        a.e("s_waitcnt lgkmcnt(0)")
        fl = add_stores(spread(q_mfmas(SETS[0], it == 0), q_reads(SETS[1], 1), 10 if 'q10' in X else 14 if 'q14' in X else 12), NA[it], [4, 12] if NA[it] < 3 else [3, 8, 13])
        for x in fl: a.e(x)
        if it < 8:
            if it == 7:
                lw = a.uid(f"{name}_nw7")
                a.e(f"s_cmp_eq_u32 s{sW}, 7"); a.e(f"s_cbranch_scc1 {lw}"); a.e("s_waitcnt vmcnt(0)"); a.e(f"{lw}:")
                a.e("s_waitcnt lgkmcnt(0) vmcnt(1)")
            else:
                a.e(f"s_waitcnt lgkmcnt(0) vmcnt({6 + NA[it] + (NA[it-1] + NBs[it-1] if it else 0) + (1 if it < 2 else 0)})")
            a.e("s_barrier")
            dx = XS[(it+1) % 3] - XS[it % 3]; dw = WSL[(it+1) % 3] - WSL[it % 3]
            for r in (vRX, vRX+1): a.e(f"v_add_u32 v{r}, {dx & 0xffffffff}, v{r}")
            for r in range(vRWq, vRWq+4): a.e(f"v_add_u32 v{r}, {dw & 0xffffffff}, v{r}")
            sig = []
            if it == 2: sig = [f"v_readfirstlane_b32 s{sNonce}, v126"]
            if it == lastst + 2:
                ls = a.uid(f"{name}_sig")
                sig = [f"s_cmp_lg_u32 s{sW}, 7", f"s_cbranch_scc1 {ls}", f"v_mov_b32 v{vPOLL}, s{sNonce}", f"s_lshl_b32 s{sT0}, s{sP}, 7", "s_mov_b64 exec, 1",
                       f"buffer_store_dword v{vPOLL}, v{vMT}, s[{S_FL}:{S_FL+3}], s{sT0} offen sc1",
                       "s_mov_b64 exec, -1", ls + ":"]
            if it == 6:
                ls = a.uid(f"{name}_pl")
                sig += [f"s_cmp_lg_u32 s{sW}, 7", f"s_cbranch_scc1 {ls}", f"buffer_load_dword v{vPOLL}, v{vMT}, s[{S_FL}:{S_FL+3}], 0 offen sc1", ls + ":"]
            if it < 6: dm = qdma(it + 3)
            elif it == 6: dm = []
            else: dm = []
            for x in sig: a.e(x)
            ms = q_mfmas(SETS[1])
            if "qmix" in X:
                rr_ = q_reads(SETS[0], 0); mix = []
                for i_ in range(12):
                    mix.append(rr_[i_]); mix += dm[len(dm)*i_//12: len(dm)*(i_+1)//12]
                for x in add_stores(spread(ms, mix, 13), NBs[it], [2, 6, 8]): a.e(x)
            else:
                QS = 10 if "qs10" in X else 8
                for x in add_stores(spread(ms[:QS], q_reads(SETS[0], 0), QS), NBs[it], [2, 6, 8]): a.e(x)
                for x in spread(ms[QS:], dm, 16 - QS): a.e(x)
        else:
            lw = a.uid(f"{name}_nw7"); lp = a.uid(f"{name}_poll")
            a.e("s_waitcnt vmcnt(0)")
            a.e(f"s_cmp_lg_u32 s{sW}, 7"); a.e(f"s_cbranch_scc1 {lw}")
            a.e(f"s_mov_b32 s{sT1}, 0")
            a.e(f"{lp}:")
            a.e(f"v_cmp_ne_u32 vcc, s{sNonce}, v{vPOLL}")
            a.e(f"s_add_u32 s{sT1}, s{sT1}, 1")
            a.e(f"s_cbranch_vccz {lw}")
            a.e(f"s_cmp_ge_u32 s{sT1}, 0x40000"); a.e(f"s_cbranch_scc1 {lw}")
            a.e(f"buffer_load_dword v{vPOLL}, v{vMT}, s[{S_FL}:{S_FL+3}], 0 offen sc1")
            a.e("s_waitcnt vmcnt(0)")
            a.e(f"s_branch {lp}")
            a.e(f"{lw}:")
            a.e("s_waitcnt lgkmcnt(0)")
            a.e("s_barrier")
            for x in spread(q_mfmas(SETS[1]), kv_dma(True) + kv_adv(True) + kv_dma(True) + kv_adv(True) + kv_dma(False) + kv_adv(False), 12): a.e(x)
    st.at(6)
    if "qst" in X: _at(11)
    a.e(f"s_lshr_b32 s{sT0}, s{sW}, 1"); a.e(f"s_and_b32 s{sT1}, s{sT0}, 1"); a.e(f"s_lshl_b32 s{sT1}, s{sT1}, 14")
    a.e(f"s_lshl_b32 s{sT0}, s{sG}, 15"); a.e(f"s_sub_u32 s{sT0}, s{sT1}, s{sT0}")
    a.e(f"s_and_b32 s{sT1}, s{sW}, 1"); a.e(f"s_lshl_b32 s{sT1}, s{sT1}, 11"); a.e(f"s_add_u32 s{sT0}, s{sT0}, s{sT1}")
    a.e(f"s_add_u32 s{sT0}, s{sT0}, {QSTASH}"); a.e(f"v_add_u32 v{vT}, s{sT0}, v{vL16}")
    a.e(f"s_mov_b32 s{sT1}, {QSCALE}"); a.e(f"v_mov_b32 v{vT+3}, {QSCALE}"); a.e(f"v_mov_b32 v{vT+4}, {QSCALE}")
    a.e("s_nop 2")
    for t in range(4):
        for x in range(2):
            PK = FR + ((t*2+x) % 4) * 4
            t0 = O + (t*4 + 2*x)*4
            if "nopkq" not in X:
                for j in range(4): a.e(f"v_pk_mul_f32 {v(t0+2*j,2)}, {v(t0+2*j,2)}, {v(vT+3,2)}")
            else:
                for j in range(8): a.e(f"v_mul_f32 v{t0+j}, s{sT1}, v{t0+j}")
            for j in range(4): a.e(f"v_cvt_pk_bf16_f32 v{PK+j}, v{t0+2*j}, v{t0+2*j+1}")
            a.e(f"ds_write_b128 v{vT}, {v(PK,4)} offset:{t*4096 + x*1024}")
    a.e("s_waitcnt lgkmcnt(0) vmcnt(8)")
    a.e("s_barrier")
    a.e(f"s_lshl_b32 s{sT0}, s{sWL}, 12"); a.e(f"s_lshl_b32 s{sT1}, s{sG}, 15"); a.e(f"s_add_u32 s{sT0}, s{sT0}, s{sT1}")
    a.e(f"s_add_u32 s{sT0}, s{sT0}, {QTMP}"); a.e(f"v_add_u32 v{vT}, s{sT0}, v{vL16}")
    a.e(f"s_lshl_b32 s{sT1}, s{sQD}, 12"); a.e(f"v_add_u32 v{vT+1}, s{sT1}, v{vT}")
    for f in range(8): a.e(f"ds_read_b128 {v(Q+4*f,4)}, v{vT + (f >> 2)} offset:{(f & 3)*1024}")
    if "noprio" not in X:
        a.e(f"s_cmp_eq_u32 s{sG}, {1 if 'prio0' in X else 0}"); a.e(f"s_cbranch_scc1 {name}_np"); a.e("s_setprio 1"); a.label(f"{name}_np")
    st.at(7)

    Sr = lambda buf, kt, qt: S + buf*16 + (kt*2+qt)*4
    Pr = lambda buf, qt: P + buf*8 + qt*4
    Or = lambda dt, qt: O + (dt*2+qt)*4
    def slot_k(b, n, qts=(0, 1)):
        kt, ds = (n >> 2, n & 3) if 'kord' not in X else (n & 1, n >> 1)
        rd = lambda f: f"ds_read_b128 {v(f,4)}, v{vKR} offset:{((2*b+kt)*4+ds)*1024}"
        def ms(f, czero=False):
            return [f"{MF} {v(Sr(b,kt,qt),4)}, {v(f,4)}, {v(Q+(qt*4+ds)*4,4)}, " + (("0" if czero else v(C+4*qt,4)) if ds == 0 else v(Sr(b,kt,qt),4)) for qt in qts]
        return rd, ms
    def slot_v(b, dt, qts=(0, 1)):
        rd = lambda f: f"ds_read_b128 {v(f,4)}, v{vVR} offset:{(b*8+dt)*1024}"
        ms = lambda f: [f"{MF} {v(Or(dt,qt),4)}, {v(f,4)}, {v(Pr(b,qt),4)}, {v(Or(dt,qt),4)}" for qt in qts]
        return rd, ms
    def mask_block(buf, ret):
        a.e(f"s_lshl_b32 s{sT0}, s{sR}, 5"); a.e(f"v_subrev_u32 v{vMT}, s{sT0}, v{vTHR}"); a.e(f"v_subrev_u32 v{vPOLL}, s{sT0}, v0")
        items = [(kt, qt, rr) for kt in range(2) for qt in range(2) for rr in range(4)]
        for base in range(0, 16, 4):
            for n, (kt, qt, rr) in enumerate(items[base:base+4]):
                a.e(f"v_cmp_le_i32 s[{sMSK+2*n}:{sMSK+2*n+1}], {16*kt+rr}, v{vPOLL if qt else vMT}")
            for n, (kt, qt, rr) in enumerate(items[base:base+4]):
                x = Sr(buf,kt,qt)+rr
                a.e(f"v_cndmask_b32 v{x}, v{vNEG}, v{x}, s[{sMSK+2*n}:{sMSK+2*n+1}]")
        a.e(f"s_branch {ret}")
    def mask_hook(buf):
        h = a.uid(f"{name}_mask"); r = a.uid(f"{name}_mret")
        ool.append((h, lambda: mask_block(buf, r)))
        return [f"s_cmp_ge_i32 s{sR}, 0", f"s_cbranch_scc1 {h}", r + ":", f"s_add_u32 s{sR}, s{sR}, 1"]
    def exp_code_pk(buf):
        r = []; pend = []; k = 0
        for qt in range(2):
            for kt in range(2):
                x = Sr(buf,kt,qt)
                for hf in range(2):
                    e0 = vE + (k % NE); e1 = e0 + 1; k += 2
                    r.append(f"v_exp_f32 v{e0}, v{x+2*hf}")
                    if pend: r.append(pend.pop(0))
                    r.append(f"v_exp_f32 v{e1}, v{x+2*hf+1}")
                    if pend: r.append(pend.pop(0))
                    if kt == 0 and hf == 1: pend.append(f"v_pk_add_f32 {v(vLQ,2)}, {v(vE + ((k - 4) % NE),2)}, {v(e0,2)}")
                    elif kt == 1: pend.append(f"v_pk_add_f32 {v(vLQ,2)}, {v(vLQ,2)}, {v(e0,2)}")
                    pend.append(f"v_cvt_pk_bf16_f32 v{Pr(buf,qt)+2*kt+hf}, v{e0}, v{e1}")
                    if kt == 1 and hf == 1: pend.append(f"v_add_f32 v{vLP+qt}, v{vLQ}, v{vLQ+1}")
        return r + ["s_nop 0"] + pend
    vLQ = 66
    def exp_code(buf, qts=(0, 1)):
        if "ord2" in X:
            r = []; pend = []; k = 0
            for qt in qts:
                for kt in range(2):
                    x = Sr(buf,kt,qt); e = [vE + (k + i) % NE for i in range(4)]; k += 4
                    for i in range(4):
                        r.append(f"v_exp_f32 v{e[i]}, v{x+i}")
                        if pend: r.append(pend.pop(0))
                        if pend and i % 2: r.append(pend.pop(0))
                    r += pend; pend = []
                    pend += [f"v_add_f32 v{vLP+qt}, v{e[0]}, v{e[1]}"] if kt == 0 else [f"v_add_f32 v{vLP+qt}, v{vLP+qt}, v{e[0]}", f"v_add_f32 v{vLP+qt}, v{vLP+qt}, v{e[1]}"]
                    pend += [f"v_cvt_pk_bf16_f32 v{Pr(buf,qt)+2*kt}, v{e[0]}, v{e[1]}", f"v_add_f32 v{vLP+qt}, v{vLP+qt}, v{e[2]}",
                             f"v_cvt_pk_bf16_f32 v{Pr(buf,qt)+2*kt+1}, v{e[2]}, v{e[3]}", f"v_add_f32 v{vLP+qt}, v{vLP+qt}, v{e[3]}"]
            return r + ["s_nop 0"] + pend
        r = []; pend = []; k = 0
        for qt in qts:
            for kt in range(2):
                x = Sr(buf,kt,qt)
                for hf in range(2):
                    e0 = vE + (k % NE); e1 = vE + ((k + 1) % NE); k += 2
                    r.append(f"v_exp_f32 v{e0}, v{x+2*hf}")
                    if pend: r.append(pend.pop(0))
                    r.append(f"v_exp_f32 v{e1}, v{x+2*hf+1}")
                    if pend: r.append(pend.pop(0))
                    if pend: r.append(pend.pop(0))
                    if kt == 0 and hf == 0: pend.append(f"v_add_f32 v{vLP+qt}, v{e0}, v{e1}")
                    else: pend += [f"v_add_f32 v{vLP+qt}, v{vLP+qt}, v{e0}"]
                    pend.append(f"v_cvt_pk_bf16_f32 v{Pr(buf,qt)+2*kt+hf}, v{e0}, v{e1}")
                    if not (kt == 0 and hf == 0): pend.append(f"v_add_f32 v{vLP+qt}, v{vLP+qt}, v{e1}")
        return r + ["s_nop 0"] + pend
    lacc = [f"v_add_f32 v{vLS}, v{vLS}, v{vLP}", f"v_add_f32 v{vLS+1}, v{vLS+1}, v{vLP+1}"]
    def xlane(op, x, t):
        return [f"v_mov_b32 v{t}, v{x}", "s_nop 1", f"v_permlane16_swap_b32 v{x}, v{t}", f"{op} v{x}, v{x}, v{t}",
                f"v_mov_b32 v{t}, v{x}", "s_nop 1", f"v_permlane32_swap_b32 v{x}, v{t}", f"{op} v{x}, v{x}, v{t}"]
    def rare_block(sbuf, other, ret):
        a.e("s_nop 7")
        for qt in range(2):
            d = vT + qt; f = vT + 2 + qt
            x0, x1 = Sr(sbuf,0,qt), Sr(sbuf,1,qt)
            a.e(f"v_max3_f32 v{d}, v{x0}, v{x0+1}, v{x0+2}"); a.e(f"v_max3_f32 v{d}, v{d}, v{x0+3}, v{x1}")
            a.e(f"v_max3_f32 v{d}, v{d}, v{x1+1}, v{x1+2}"); a.e(f"v_max3_f32 v{d}, v{d}, v{x1+3}, 0")
            for x in xlane("v_max_f32", d, vT + 4): a.e(x)
            a.e(f"v_sub_f32 v{f}, 0, v{d}"); a.e(f"v_exp_f32 v{f}, v{f}")
            for b_ in ([sbuf, 1 - sbuf] if other else [sbuf]):
                for kt in range(2):
                    for rr in range(4): a.e(f"v_sub_f32 v{Sr(b_,kt,qt)+rr}, v{Sr(b_,kt,qt)+rr}, v{d}")
            for rr in range(4): a.e(f"v_sub_f32 v{C+4*qt+rr}, v{C+4*qt+rr}, v{d}")
            a.e(f"v_add_f32 v{vM+qt}, v{vM+qt}, v{d}"); a.e(f"v_mul_f32 v{vLS+qt}, v{vLS+qt}, v{f}")
            for dt in range(8):
                for rr in range(4): a.e(f"v_mul_f32 v{Or(dt,qt)+rr}, v{Or(dt,qt)+rr}, v{f}")
        for x in exp_code(sbuf): a.e(x)
        a.e("s_nop 1")
        a.e(f"s_branch {ret}")
    def check(sbuf, other, half=False):
        h = a.uid(f"{name}_rare"); r = a.uid(f"{name}_ret")
        ool.append((h, lambda: rare_block(sbuf, other, r)))
        if half: return [f"v_cmp_nge_f32 vcc, s{sTH}, v{vLP+1}", f"s_cbranch_vccnz {h}", r + ":"]
        return [f"v_add_f32 v{vT}, v{vLP}, v{vLP+1}", f"v_cmp_nge_f32 vcc, s{sTH}, v{vT}", f"s_cbranch_vccnz {h}", r + ":"]
    D = 6 if 'd6' in X else (4 if 'd4' in X else 5)
    def run_slots(slots, fills, nxt, sync_after=None, sync=None, post={}):
        n = len(slots)
        for sidx, (rd, ms) in enumerate(slots):
            f = FR + 4 * (sidx % NB)
            if sync_after is None: out = min(D - 1, n - 1 - sidx + len(nxt[:max(0, sidx + D - n)]))
            else: out = min(D - 1, n - 1 - sidx) if sidx <= sync_after else None
            if "now2" not in X and n == 32 and out is not None:
                out = None if sidx % 2 else max(0, out - 1)
            if out is not None: a.e(f"s_waitcnt lgkmcnt({out})")
            m = ms(f); fl = fills.get(sidx, []); h = (len(fl) + 1) // 2
            if "hfl" in X and n == 32: h = len(fl) // 2
            if "h23" in X and n == 32: h = (2 * len(fl) + 2) // 3
            if "hall" in X and n == 32: h = len(fl)
            if "hm1" in X and n == 32: h = max(1, len(fl) - 1)
            if "h2" in X and n == 32: h = min(2, len(fl))
            if isinstance(fl, tuple): h = len(fl[0]); fl = fl[0] + fl[1]
            early = "rdmid" in X and n == 32 and sidx + D < n and len(m) > 1
            a.e(m[0])
            if early: a.e(slots[sidx + D][0](FR + 4 * ((sidx + D) % NB)))
            for x in fl[:h]: a.e(x)
            if len(m) > 1: a.e(m[1])
            for x in fl[h:]: a.e(x)
            t = sidx + D
            if early: pass
            elif t < n: a.e(slots[t][0](FR + 4 * (t % NB)))
            elif sync_after is None:
                if t - n < len(nxt): a.e(nxt[t - n][0](FR + 4 * (t % NB)))
            elif sidx == sync_after:
                for x in sync: a.e(x)
                for tt in range(n, sidx + D + 1): a.e(nxt[tt - n][0](FR + 4 * (tt % NB)))
            elif sidx > sync_after: a.e(nxt[t - n][0](FR + 4 * (t % NB)))
            for x in post.get(sidx, []): a.e(x)
    def distribute(fills, items, lo, hi):
        n = hi - lo
        for i in range(n):
            fills.setdefault(lo + i, []).extend(items[len(items) * i // n: len(items) * (i + 1) // n])
    toggles = [f"v_xor_b32 v{vKR}, 0x8000, v{vKR}", f"v_xor_b32 v{vVR}, 0x8000, v{vVR}"]
    vslots = lambda b, qts=(0, 1): [slot_v(b, dt, qts) for dt in range(8)]
    kslots = lambda b, qts=(0, 1): [slot_k(b, n, qts) for n in range(8)]

    sNext, sEv = 64, 65
    sRole, sA, sB = 66, 67, 68
    SK, SV, SQ, SSK = 8, 12, 24, 60
    SU, SQT = 8, 12
    KR, VR, QR, WR, TP, PR = 54, 28, 11, 36, 68, 46
    wrow = lambda r: (11 + r) if r < 8 else ((28 + r - 8) if r < 20 else (54 + r - 20))
    def side_load(rnd):
        le = a.uid(f"{name}_sle")
        a.e("s_load_dwordx8 s[56:63], s[0:1], 0")
        a.e(f"s_and_b32 s{sA}, s2, 7"); a.e(f"s_lshl_b32 s{sA}, s{sA}, 3"); a.e(f"s_lshr_b32 s{sT0}, s2, 5"); a.e(f"s_add_u32 s{sA}, s{sA}, s{sT0}")
        a.e(f"s_bfe_u32 s{sT0}, s2, 0x20003")
        a.e(f"s_mul_i32 s{sT1}, s{sT0}, 9"); a.e(f"s_add_u32 s{sT1}, s{sT1}, 1"); a.e(f"s_lshr_b32 s{sT1}, s{sT1}, 1")
        a.e(f"s_add_u32 s{sB}, s{sT1}, s{sW}")
        a.e(f"s_and_b32 s{sT1}, s{sT0}, 1"); a.e(f"s_sub_u32 s{sT1}, 5, s{sT1}")
        a.e(f"s_cmp_lt_u32 s{sW}, s{sT1}"); a.e(f"s_cselect_b32 s{sRole}, 1, 0")
        a.e("s_waitcnt lgkmcnt(0)")
        a.e(f"s_cmp_eq_u32 s{sRole}, 0"); a.e(f"s_cbranch_scc1 {le}")
        srd(a, SQ, 56, 2048*1152); srd(a, SK, 58, 2048*1152); srd(a, SV, 60, 2048*1152); srd(a, SSK, 62, 576*8)
        a.e(f"v_lshrrev_b32 v{vT}, 4, v{vL}"); a.e(f"v_and_b32 v{vT+1}, 15, v{vL}")
        a.e(f"s_lshl_b32 s{sT0}, s{sA}, 5"); a.e(f"v_lshl_add_u32 v{vT}, v{vT}, 3, s{sT0}")
        a.e(f"v_mul_u32_u24 v{vT}, 1152, v{vT}"); a.e(f"v_lshl_add_u32 v{vT}, v{vT+1}, 2, v{vT}")
        a.e(f"s_lshl_b32 s{sT0}, s{sB}, 6"); a.e(f"v_add_u32 v{vT}, s{sT0}, v{vT}")
        a.e(f"v_add_u32 v{vT+2}, {(-3456) & 0xffffffff}, v{vT}"); a.e(f"v_add_u32 v{vT+3}, 4608, v{vT}")
        a.e(f"v_lshlrev_b32 v{vT+1}, 4, v{vT+1}"); a.e(f"s_lshl_b32 s{sT0}, s{sB}, 8")
        for i in range(3): a.e(f"buffer_load_dword v{KR+i}, v{vT+2}, s[{SK}:{SK+3}], 0 offen offset:{i*1152}")
        for R_, S_ in ((KR + 3, SK), (VR, SV), (QR, SQ)):
            for i in range(8): a.e(f"buffer_load_dword v{R_+i}, v{vT if i < 4 else vT+3}, s[{S_}:{S_+3}], 0 offen offset:{(i%4)*1152}")
        a.e(f"buffer_load_dwordx4 {v(WR,4)}, v{vT+1}, s[{SSK}:{SSK+3}], s{sT0} offen")
        a.e(f"{le}:")
    SSC = " sc1"
    def side_compute(rnd):
        l3 = a.uid(f"{name}_sc2"); le = a.uid(f"{name}_sce")
        a.e(f"s_cmp_eq_u32 s{sRole}, 0"); a.e(f"s_cbranch_scc1 {le}")
        a.e(f"s_mov_b32 s{sT1}, 0x05040100"); a.e(f"s_mov_b32 s{sT2}, 0x07060302")
        a.e(f"v_lshrrev_b32 v{vT}, 4, v{vL}"); a.e(f"v_and_b32 v{vT+1}, 15, v{vL}")
        a.e(f"s_add_u32 s70, s6, {WS_KVB}"); a.e("s_addc_u32 s71, s7, 0"); srd(a, SU, 70, 576*4096)
        a.e(f"s_add_u32 s70, s6, {WS_QB}"); a.e("s_addc_u32 s71, s7, 0"); srd(a, SQT, 70, 576*4096)
        a.e(f"s_lshl_b32 s{sT0}, s{sA}, 6"); a.e(f"v_lshl_add_u32 v{vT}, v{vT}, 4, s{sT0}")
        a.e(f"v_lshlrev_b32 v{vT+1}, 13, v{vT+1}")
        a.e(f"v_sub_u32 v{vT+2}, 4080, v{vT}"); a.e(f"v_add_u32 v{vT+2}, v{vT+2}, v{vT+1}"); a.e(f"v_add_u32 v{vT}, v{vT}, v{vT+1}")
        a.e(f"s_lshl_b32 s{sT0}, s{sB}, 17")
        for c in range(2):
            sel = sT2 if c else sT1
            for i in range(4): a.e(f"v_perm_b32 v{TP+i}, v{QR+2*i+1}, v{QR+2*i}, s{sel}")
            a.e(f"buffer_store_dwordx4 {v(TP,4)}, v{vT}, s[{SQT}:{SQT+3}], s{sT0} offen{SSC}")
            AC = vT + 3
            for hf in (1, 0):
                for i in range(6):
                    j = 4 * hf - 2 + i
                    a.e(f"v_perm_b32 v{PR+i}, v{KR+j+2}, v{KR+j+3}, s{sel}")
                for i in range(4): a.e(f"v_dot2_f32_bf16 v{AC+i}, v{PR+2+i}, v{WR+2*c}, 0")
                for i in range(4): a.e(f"v_dot2_f32_bf16 v{AC+i}, v{PR+i}, v{WR+2*c+1}, v{AC+i}")
                for i in range(4):
                    a.e(f"v_and_b32 v{PR+i}, 0xffff0000, v{VR+4*hf+i}" if c else f"v_lshlrev_b32 v{PR+i}, 16, v{VR+4*hf+i}")
                for i in range(4): a.e(f"v_mul_f32 v{AC+i}, v{AC+i}, v{PR+i}")
                o = TP + (0 if hf else 2)
                a.e(f"v_cvt_pk_bf16_f32 v{o}, v{AC+3}, v{AC+2}"); a.e(f"v_cvt_pk_bf16_f32 v{o+1}, v{AC+1}, v{AC}")
            a.e(f"buffer_store_dwordx4 {v(TP,4)}, v{vT+2}, s[{SU}:{SU+3}], s{sT0} offen{SSC}")
            a.e(f"s_add_u32 s{sT0}, s{sT0}, 4096"); a.e("s_nop 0")
        a.e(f"{le}:")
    def flag_store(off_code):
        a.e(f"v_mov_b32 v{vT}, s{sNonce}"); a.e(f"v_mov_b32 v{vT+1}, 0")
        for x in off_code: a.e(x)
        a.e("s_mov_b64 exec, 1")
        a.e(f"buffer_store_dword v{vT}, v{vT+1}, s[{S_FL}:{S_FL+3}], s{sT1} offen sc1")
        a.e("s_mov_b64 exec, -1")
    def side_hook(ret):
        L = [a.uid(f"{name}_ev") for _ in range(6)]
        for e in range(1, 6):
            a.e(f"s_cmp_eq_u32 s{sEv}, {e}"); a.e(f"s_cbranch_scc1 {L[e]}")
        a.e(f"s_add_u32 s{sNext}, s{sNext}, 2"); a.e(f"s_mov_b32 s{sEv}, 1")
        side_load(1)
        a.e(f"s_branch {ret}")
        a.e(L[1] + ":")
        a.e(f"s_mov_b32 s{sNext}, 99")
        side_compute(1)
        a.e(f"s_branch {ret}")
        a.e(L[2] + ":")
        a.e(L[3] + ":")
        a.e(f"s_mov_b32 s{sEv}, 4")
        a.e(f"s_lshl_b32 s{sT1}, s{sP}, 1"); a.e(f"s_add_u32 s{sT1}, s{sT1}, 4"); a.e(f"s_add_u32 s{sNext}, s{sNext}, 1"); a.e(f"s_max_u32 s{sNext}, s{sNext}, s{sT1}")
        flag_store([f"s_lshl_b32 s{sT1}, s2, 2", f"s_add_u32 s{sT1}, s{sT1}, 32768"])
        a.e(f"s_branch {ret}")
        a.e(L[5] + ":")
        a.e("s_load_dwordx2 s[8:9], s[0:1], 88"); a.e("s_load_dwordx2 s[10:11], s[0:1], 32")
        a.e(f"s_mov_b32 s{sNext}, 99"); a.e(f"v_lshlrev_b32 v{vT}, 7, v{vL}")
        a.e(f"s_lshl_b32 s{sT0}, s2, 13"); a.e(f"v_add_u32 v{vT}, s{sT0}, v{vT}")
        a.e(f"s_min_u32 s{sT1}, s2, 63"); a.e(f"s_min_u32 s{sT2}, s2, 31")
        a.e(f"s_sub_u32 s{sT1}, s{sT1}, s2"); a.e(f"s_sub_u32 s{sT2}, s{sT2}, s2")
        a.e(f"s_lshl_b32 s{sT1}, s{sT1}, 13"); a.e(f"s_lshl_b32 s{sT2}, s{sT2}, 13")
        a.e(f"v_add_u32 v{vT+1}, {256 << 13}, v{vT}"); a.e(f"v_add_u32 v{vT+2}, s{sT1}, v{vT+1}"); a.e(f"v_add_u32 v{vT+2}, {256 << 13}, v{vT+2}"); a.e(f"v_add_u32 v{vT+3}, s{sT2}, v{vT+1}")
        a.e("s_waitcnt lgkmcnt(0)")
        for r_, b_ in ((0, 8), (1, 8), (2, 8), (0, 10), (3, 10)): a.e(f"global_load_dword v{vDUM}, v{vT+r_}, s[{b_}:{b_+1}]")
        a.e(f"s_branch {ret}")
        a.e(L[4] + ":")
        a.e(f"s_mov_b32 s{sNext}, 99")
        flag_store([f"s_lshl_b32 s{sT1}, s{sP}, 7", f"s_lshl_b32 s{sT2}, s{sH}, 2", f"s_add_u32 s{sT1}, s{sT1}, s{sT2}", f"s_add_u32 s{sT1}, s{sT1}, 36864"])
        a.e(f"s_branch {ret}")
    a.e(f"s_and_b32 s{sT0}, s2, 7"); a.e(f"s_add_u32 s{sT0}, s{sT0}, s{sP}"); a.e(f"s_mul_i32 s{sT1}, s{sT0}, 52"); a.e(f"s_lshr_b32 s{sT1}, s{sT1}, 8"); a.e(f"s_mul_i32 s{sT1}, s{sT1}, 5")
    a.e(f"s_sub_u32 s{sT0}, s{sT0}, s{sT1}"); a.e(f"s_lshl_b32 s{sNext}, s{sT0}, 1"); a.e(f"s_add_u32 s{sNext}, s{sNext}, {3 if 'ph3' in X else 1}"); a.e(f"s_mov_b32 s{sEv}, 0")
    a.e(f"s_add_u32 s{sT0}, s{sNext}, 3"); a.e(f"s_cmp_eq_u32 s{sW}, 7"); a.e(f"s_cselect_b32 s{sNext}, s{sT0}, s{sNext}"); a.e(f"s_cselect_b32 s{sEv}, 2, 0")
    a.e(f"s_lshl_b32 s{sT0}, s{sP}, 1"); a.e(f"s_add_u32 s{sT0}, s{sT0}, 2"); a.e(f"s_min_u32 s{sT0}, s{sT0}, 14")
    a.e(f"s_cmp_eq_u32 s{sW}, 6"); a.e(f"s_cselect_b32 s{sNext}, s{sT0}, s{sNext}"); a.e(f"s_cselect_b32 s{sEv}, 5, s{sEv}")

    if "desc" in X:
        a.e("s_mov_b32 s20, 32768"); a.e(f"s_lshl_b32 s{sT0}, s{sP}, 16"); a.e(f"s_lshl_b32 s{sT1}, s{sH}, 20")
        a.e(f"s_sub_u32 s22, s{sT1}, s{sT0}"); a.e(f"s_add_u32 s22, s22, {30*32768}"); a.e(f"s_sub_u32 s{sT0}, s22, 32768")
        a.e(f"s_cmp_lt_u32 s{sP}, 7"); a.e(f"s_cselect_b32 s{sJump}, s{sT0}, s{sJump}"); a.e("s_cselect_b32 s21, 15, 99")
        a.e(f"s_cmp_eq_u32 s{sG}, 0"); a.e("s_cselect_b32 s21, s21, 99")
        a.e(f"s_cmp_eq_u32 s{sKt}, s{sTA}"); a.e(f"s_cselect_b32 s{sKoff}, s{sJump}, s{sKoff}"); a.e(f"s_cselect_b32 s20, {(-32768) & 0xffffffff}, s20")
    a.label(f"{name}_seg")
    k0 = kslots(0); k1s = kslots(1)
    for t in range(D): a.e(k0[t][0](FR + 4 * t))
    zero = [f"v_mov_b32 v{O+i}, 0" for i in range(64)] + [f"v_mov_b32 v{vLS}, 0", f"v_mov_b32 v{vLS+1}, 0"]
    fills = {}; distribute(fills, zero, 0, 8)
    run_slots([(rd, (lambda ms: (lambda f: ms(f, True)))(ms)) for rd, ms in k0], fills, k1s)
    a.e("s_nop 3")
    for x in mask_hook(0): a.e(x)
    for qt in range(2):
        d = vM + qt; x0, x1 = Sr(0,0,qt), Sr(0,1,qt)
        a.e(f"v_max3_f32 v{d}, v{x0}, v{x0+1}, v{x0+2}"); a.e(f"v_max3_f32 v{d}, v{d}, v{x0+3}, v{x1}")
        a.e(f"v_max3_f32 v{d}, v{d}, v{x1+1}, v{x1+2}"); a.e(f"v_max_f32 v{d}, v{d}, v{x1+3}")
    for x0_, x1_ in zip(xlane("v_max_f32", vM, vT + 4), xlane("v_max_f32", vM + 1, vT + 5)):
        a.e(x0_)
        if not x1_.startswith("s_nop"): a.e(x1_)
    for qt in range(2):
        for rr in range(4): a.e(f"v_sub_f32 v{C+4*qt+rr}, 0, v{vM+qt}")
    sub0 = [f"v_sub_f32 v{Sr(0,kt,qt)+rr}, v{Sr(0,kt,qt)+rr}, v{vM+qt}" for qt in range(2) for kt in range(2) for rr in range(4)]
    fills = {}; distribute(fills, sub0 + exp_code(0), 0, 8)
    labA = a.uid(f"{name}_wa")
    sync = ["s_waitcnt lgkmcnt(0)", f"s_cmp_lg_u32 s{sKt}, 2", f"s_cbranch_scc1 {labA}", "s_waitcnt vmcnt(0)", labA + ":", "s_waitcnt vmcnt(8)",
            "s_barrier", f"v_xor_b32 v{vKR}, 0x8000, v{vKR}"]
    run_slots(k1s, fills, vslots(0), sync_after=4, sync=sync)
    dK, dV = kv_dma(True), kv_dma(False)
    a.e(f"s_mov_b32 s{sN}, s{sHalf}")
    a.e(f"s_cmp_eq_u32 s{sI}, 0"); a.e(f"s_cbranch_scc1 {name}_tailh")
    a.e(f"s_cmp_ge_u32 s{sN}, s{sI}"); a.e(f"s_cbranch_scc1 {name}_lasth")
    adv_all = kv_adv(True) + kv_adv(False)
    if "noadv" not in X:
        adv_all = [f"s_add_u32 s{sVoff}, s{sKoff}, 16384", f"s_xor_b32 s{sM0K}, s{sM0K}, 0x8000", f"s_xor_b32 s{sM0V}, s{sM0V}, 0x8000", f"s_add_u32 s{sKt}, s{sKt}, 1",
                   f"s_add_u32 s{sVt}, s{sVt}, 1", f"s_add_u32 s{sKoff}, s{sKoff}, 32768", f"s_cmp_eq_u32 s{sKt}, s{sTA}", f"s_cselect_b32 s{sKoff}, s{sJump}, s{sKoff}"]
        if "desc" in X:
            adv_all[5] = f"s_add_u32 s{sKoff}, s{sKoff}, s20"
            adv_all += [f"s_cselect_b32 s20, {(-32768) & 0xffffffff}, s20", f"s_cmp_eq_u32 s{sKt}, s21", f"s_cselect_b32 s{sKoff}, s22, s{sKoff}", "s_cselect_b32 s20, 32768, s20"]
    def body(half, lean=False):
        if not lean:
            hk = a.uid(f"{name}_side"); hr = a.uid(f"{name}_sret")
            ool.append((hk, lambda: side_hook(hr)))
            a.e(f"s_cmp_eq_u32 s{sVt}, s{sNext}"); a.e(f"s_cbranch_scc1 {hk}"); a.e(f"{hr}:")
        q = (1,) if half else (0, 1)
        slots = vslots(0) + kslots(0, q) + vslots(1) + kslots(1, q)
        fills = {}; post = {}
        fills[0] = list(lacc); fills[16] = list(lacc)
        if lean and "la1" in X: fills = {0: lacc[:1], 1: lacc[1:], 16: lacc[:1], 17: lacc[1:]}
        if not lean: post[1] = mask_hook(1); post[17] = mask_hook(0)
        E0, E1 = 2, 16
        if "e14" in X: E1 = 14
        if "s3" in X: E0 = 3
        if lean and "le1" in X: E0 = 1
        if "e15" in X: E1 = 15
        def merged(ec, ck):
            if "ck" not in X: return ec, ck
            nv = [x for x in ck if x.startswith("v_")]; rest = [x for x in ck if not x.startswith("v_")]
            NC = 3 if "ck3" in X else 2
            idx = [i for i, x in enumerate(ec) if x.startswith("v_cvt")][-NC:]
            tailc = [ec[i] for i in idx]; body_ = [x for i, x in enumerate(ec) if i not in idx]
            return body_ + nv + tailc, rest
        e_, c_ = merged(exp_code(1), check(1, True)); distribute(fills, e_, E0, E1); post[15] = c_
        e_, c_ = merged(exp_code(0, q), check(0, True, half)); distribute(fills, e_, 16 + E0, 16 + E1); post[31] = c_ + (["s_nop 0"] if "ck" in X else [])
        if "ck" in X: post[15] = post[15] + ["s_nop 0"]
        f2 = {0: dK[:3], 1: [dK[3]], 2: [dK[4]], 3: [dK[5]], 16: dV[:3], 17: [dV[3]], 18: [dV[4]], 19: [dV[5]]}
        if "dm0" in X: f2 = {0: dK[:4], 1: dK[4:], 16: dV[:4], 17: dV[4:]}
        if "dm1" in X: f2 = {0: dK[:3], 1: [dK[3]], 2: [dK[4]], 3: [dK[5]], 4: dV[:3], 5: [dV[3]], 6: [dV[4]], 7: [dV[5]]}
        if "dmA" not in X: f2 = {0: dK[:3], 2: [dK[3]], 4: [dK[4]], 6: [dK[5]], 16: dV[:3], 18: [dV[3]], 20: [dV[4]], 22: [dV[5]]}
        if "dm4" in X: f2 = {0: dK[:2], 1: [dK[2]], 3: [dK[3]], 5: [dK[4]], 7: [dK[5]], 16: dV[:2], 17: [dV[2]], 19: [dV[3]], 21: [dV[4]], 22: [dV[5]]}
        if "dm5" in X: f2 = {0: dK[:3], 3: [dK[3]], 6: [dK[4]], 9: [dK[5]], 12: dV[:3], 15: [dV[3]], 18: [dV[4]], 21: [dV[5]]}
        if "dm6" in X: f2 = {0: dK[:3], 2: [dK[3]], 4: [dK[4]], 6: [dK[5]], 8: dV[:3], 10: [dV[3]], 12: [dV[4]], 14: [dV[5]]}
        if "dm7" in X: f2 = {0: dV[:3], 2: [dV[3]], 4: [dV[4]], 6: [dV[5]], 16: dK[:3], 18: [dK[3]], 20: [dK[4]], 22: [dK[5]]}
        if "dm3" in X: f2 = {8: dK[:3], 9: [dK[3]], 10: [dK[4]], 11: [dK[5]], 12: dV[:3], 13: [dV[3]], 14: [dV[4]], 15: [dV[5]]}
        distribute(f2, (adv_all + [f"s_add_u32 s{sN}, s{sN}, 1"]) if not lean else [adv_all[0], adv_all[1], adv_all[2], adv_all[4], adv_all[5]], *((23, 28) if "ad28" in X else (8, 13) if "ad8" in X and lean and False else (23, 27)))
        CW = [x for x in X if x.startswith("cw")]
        if CW and not half:
            cd, ce = [int(t) for t in CW[0][2:].split("_")]
            cost = lambda x: ce if x.startswith("v_exp") else (4 if x.startswith("v_") else (cd if x.startswith("buffer") else 1))
            gaps = {}
            for s_ in range(32):
                fx = f2.get(s_, []); h_ = (len(fx) + 1) // 2 if any(x.startswith("buffer") for x in fx) and len(fx) > 1 else len(fx)
                gaps[2*s_] = list(fx); gaps[2*s_+1] = []
            for base_, items in ((0, exp_code(1)), (16, exp_code(0))):
                gaps[2*base_+1] += lacc
                g0, g1 = 2*(base_+2), 2*(base_+16)
                fixed = {g: sum(cost(x) for x in gaps[g]) + (4 if g % 2 else 0) for g in range(g0, g1)}
                tot = sum(fixed.values()) + sum(cost(x) for x in items)
                acc_ = 0; i_ = 0
                for n_, g in enumerate(range(g0, g1)):
                    acc_ += fixed[g]; tgt = tot * (n_ + 1) / (g1 - g0)
                    while i_ < len(items) and (acc_ + cost(items[i_]) / 2 <= tgt or n_ == g1 - g0 - 1):
                        gaps[g].append(items[i_]); acc_ += cost(items[i_]); i_ += 1
            fills = {s_: (gaps[2*s_], gaps[2*s_+1]) for s_ in range(32)}
        else:
            for k_, v_ in f2.items():
                if "nonop" in X and v_ and v_[0].startswith("s_mov_b32 m0") and fills.get(k_): fills[k_] = [v_[0]] + fills[k_] + v_[2:]
                else: fills[k_] = (fills.get(k_, []) + v_) if "dfirst" not in X else (v_ + fills.get(k_, []))
        if half: fills[0] = ["s_nop 1"] + fills[0]
        run_slots(slots, fills, vslots(0), sync_after=(27 if 'sa27' in X else 29 if 'sa29' in X else 28), sync=["s_waitcnt lgkmcnt(0) vmcnt(0)", "s_barrier"] + toggles, post=post)
    def tail(half):
        q = (1,) if half else (0, 1)
        la = lacc[1:] if half else lacc
        fills = {0: list(la), 8: list(la)}; post = {(2 if half else 1): mask_hook(1), 7: check(1, False, half) + ["s_nop 0"]}
        distribute(fills, exp_code(1, q), 3 if half else 2, 8)
        xl = []
        for x0_, x1_ in zip(xlane("v_add_f32", vLS, vT + 4), xlane("v_add_f32", vLS + 1, vT + 5)):
            xl.append(x0_)
            if not x1_.startswith("s_nop"): xl.append(x1_)
        xl += [f"v_rcp_f32 v{vT}, v{vLS}", f"v_rcp_f32 v{vT+3}, v{vLS+1}", "s_nop 0", f"v_mov_b32 v{vT+2}, v{vT}", f"v_mov_b32 v{vT+1}, v{vT}", f"v_mov_b32 v{vT+4}, v{vT+3}",
               f"s_lshl_b32 s{sT0}, s{sTile}, 3", f"s_add_u32 s{sT0}, s{sT0}, s{sWL}",
               f"s_lshl_b32 s{sT0}, s{sT0}, 17", f"s_lshl_b32 s{sT1}, s{sH}, 12", f"s_add_u32 s{sT0}, s{sT0}, s{sT1}"]
        distribute(fills, xl, 9, 16)
        run_slots(vslots(0, q) + vslots(1, q), fills, [], post=post)
    a.label(f"{name}_try")
    a.e(f"s_sub_u32 s{sT0}, s{sI}, s{sN}"); a.e(f"s_sub_u32 s{sT1}, -1, s{sR}"); a.e(f"s_ashr_i32 s{sT1}, s{sT1}, 1"); a.e(f"s_min_i32 s{sT0}, s{sT0}, s{sT1}")
    a.e(f"s_sub_u32 s{sT1}, s{sNext}, s{sVt}"); a.e(f"s_min_u32 s{sT1}, s{sT1}, 99"); a.e(f"s_min_i32 s{sT0}, s{sT0}, s{sT1}")
    a.e(f"s_cmp_le_i32 s{sT0}, 0"); a.e(f"s_cbranch_scc1 {name}_loop")
    a.e(f"s_add_u32 s23, s{sVt}, s{sT0}"); a.e(f"s_add_u32 s{sN}, s{sN}, s{sT0}"); a.e(f"s_add_u32 s{sKt}, s{sKt}, s{sT0}")
    a.e(f"s_lshl_b32 s{sT0}, s{sT0}, 1"); a.e(f"s_add_u32 s{sR}, s{sR}, s{sT0}")
    AL = [x for x in X if x.startswith("al")]
    if AL:
        a.raw(".p2alignl 6, 0xbf800000")
        for _ in range(int(AL[0][2:])): a.e("s_nop 0")
    a.label(f"{name}_lean")
    body(False, True)
    a.e(f"s_cmp_lt_u32 s{sVt}, s23"); a.e(f"s_cbranch_scc1 {name}_lean")
    a.e(f"s_cmp_ge_u32 s{sN}, s{sI}"); a.e(f"s_cbranch_scc1 {name}_after")
    a.label(f"{name}_loop")
    if "phst" in X or "phst2" in X:
        for i in range(10):
            l_ = a.uid("phst"); a.e(f"s_cmp_lg_u32 s{sVt}, {i + (1 if 'phst' in X else 7)}"); a.e(f"s_cbranch_scc1 {l_}"); _at(2 + i); a.e("s_waitcnt lgkmcnt(0)"); a.e(l_ + ":")
    body(False)
    a.e(f"s_cmp_lt_u32 s{sN}, s{sI}"); a.e(f"s_cbranch_scc1 {name}_try")
    a.label(f"{name}_after")
    a.e(f"s_cmp_lg_u32 s{sHalf}, 0"); a.e(f"s_cbranch_scc1 {name}_lasth")
    a.label(f"{name}_tail")
    tail(False)
    a.e(f"s_branch {name}_final")
    a.label(f"{name}_lasth")
    body(True)
    a.label(f"{name}_tailh")
    nd = a.uid(f"{name}_nd")
    a.e(f"s_cmp_lg_u32 s{sSeg}, 0"); a.e(f"s_cbranch_scc1 {nd}")
    for x in dK + dV + adv_all: a.e(x)
    a.e(f"{nd}:")
    tail(True)
    a.e("s_nop 3")
    a.e(f"s_cmp_lg_u32 s{sSeg}, 0"); a.e(f"s_cbranch_scc1 {name}_final")
    a.e(f"s_lshl_b32 s{sT1}, s{sWL}, 12"); a.e(f"s_add_u32 s{sT1}, s{sT1}, {QSTASH}"); a.e(f"v_add_u32 v{vT+6}, s{sT1}, v{vL16}")
    a.e(f"s_lshl_b32 s{sT1}, s{sQD}, 12"); a.e(f"v_add_u32 v{vT+7}, s{sT1}, v{vT+6}")
    for f in range(8): a.e(f"ds_read_b128 {v(Q+4*f,4)}, v{vT + 6 + (f >> 2)} offset:{(f & 3)*1024}")
    a.e(f"s_lshl_b32 s{sT1}, s{sQD}, 17"); a.e(f"s_add_u32 s{sT1}, s{sT1}, s{sT0}")
    for x in range(4):
        for qt in range(2):
            PK = S + ((x*2+qt) % 8) * 4
            for dt in (2*x, 2*x+1):
                for rr in (0, 2): a.e(f"v_pk_mul_f32 {v(Or(dt,qt)+rr,2)}, {v(Or(dt,qt)+rr,2)}, {v(vT+1+2*qt,2)}")
            a.e(f"v_cvt_pk_bf16_f32 v{PK}, v{Or(2*x,qt)}, v{Or(2*x,qt)+1}"); a.e(f"v_cvt_pk_bf16_f32 v{PK+1}, v{Or(2*x,qt)+2}, v{Or(2*x,qt)+3}")
            a.e(f"v_cvt_pk_bf16_f32 v{PK+2}, v{Or(2*x+1,qt)}, v{Or(2*x+1,qt)+1}"); a.e(f"v_cvt_pk_bf16_f32 v{PK+3}, v{Or(2*x+1,qt)+2}, v{Or(2*x+1,qt)+3}")
            a.e(f"buffer_store_dwordx4 {v(PK,4)}, v{vL16}, s[{S_CT}:{S_CT+3}], s{sT1 if qt else sT0} offen offset:{x*1024} sc1")
    a.e(f"v_xor_b32 v{vVR}, 0x8000, v{vVR}")
    a.e(f"s_mov_b32 s{sSeg}, 1")
    a.e(f"s_sub_u32 s{sTile}, 15, s{sP}")
    a.e(f"s_lshl_b32 s{sT0}, s{sP}, 1"); a.e(f"s_sub_u32 s{sI}, 14, s{sT0}")
    a.e(f"s_lshl_b32 s{sR}, s{sTile}, 2"); a.e(f"s_sub_u32 s{sR}, 34, s{sR}")
    a.e(f"s_branch {name}_seg")
    a.label(f"{name}_final")
    st.at(9)
    vP1, vP2, vZ = 60, 64, 65
    a.e("s_load_dwordx2 s[4:5], s[0:1], 88"); a.e("s_load_dwordx2 s[16:17], s[0:1], 96")
    a.e(f"s_lshr_b32 s53, s{sH}, 2"); a.e("s_lshl_b32 s56, s53, 4"); a.e("s_add_u32 s56, s56, 36864"); a.e(f"s_lshl_b32 s71, s{sP}, 7")
    a.e("s_add_u32 s70, s56, s71"); a.e(f"s_sub_u32 s71, {15*128}, s71"); a.e("s_add_u32 s71, s71, s56")
    a.e("s_mov_b32 s52, 32768")
    pollS = f"buffer_load_dwordx4 {v(vP1,4)}, v{vL16}, s[{S_FL}:{S_FL+3}], s52 offen sc1"
    pollC = f"buffer_load_dword v{vP2}, v{vZ}, s[{S_FL}:{S_FL+3}], s70 offen sc1"
    a.e(f"v_and_b32 v{vZ}, 3, v{vL}"); a.e(f"v_lshlrev_b32 v{vZ}, 2, v{vZ}")
    a.e(pollC)
    vOWN, vPAR, vOM, vPM = vT + 6, vT + 7, vT + 8, vT
    a.e(f"s_lshl_b32 s{sT1}, s{sW}, 13"); a.e(f"v_add_u32 v{vOWN}, s{sT1}, v{vL16}"); a.e(f"v_xor_b32 v{vPAR}, 0x8000, v{vOWN}")
    a.e(f"s_lshl_b32 s{sT1}, s{sW}, 10"); a.e(f"s_add_u32 s{sT1}, s{sT1}, {155648}"); a.e(f"v_add_u32 v{vOM}, s{sT1}, v{vL16}"); a.e(f"v_xor_b32 v{vPM}, 0x1000, v{vOM}")
    a.e(f"ds_write_b128 v{vOM}, {v(vLS,4)}")
    a.e(f"s_lshl_b32 s{sT1}, s{sG}, 11"); a.e(f"s_add_u32 s{sT0}, s{sT0}, s{sT1}"); a.e(f"s_lshl_b32 s{sT1}, s{sQD}, 17"); a.e(f"s_add_u32 s{sT1}, s{sT1}, s{sT0}")
    lg1 = a.uid(f"{name}_g1"); lgd = a.uid(f"{name}_gd")
    sItem, sNT, sCG, sTq, sKQ = 48, 49, 50, 51, 53
    uT0, uT1, uT2 = 66, 67, 68
    def o_setup():
        a.e(f"s_and_b32 s{uT0}, s2, 7"); a.e(f"s_mul_i32 s{sCG}, s{uT0}, 18"); a.e(f"s_lshr_b32 s{uT1}, s2, 3"); a.e(f"s_sub_u32 s{uT1}, s{uT1}, {4 if 'cj4' in X else 10 if 'cj10' in X else 7}")
        a.e(f"s_add_u32 s{sCG}, s{sCG}, s{uT1}"); a.e(f"s_cmp_lt_u32 s{uT1}, 18"); a.e(f"s_cselect_b32 s{sCG}, s{sCG}, -1")
        a.e(f"s_and_b32 s51, s{sH}, 3")
        ko.gemm_setup(a, sW, sP, 51, 53, (uT0, uT1, uT2))
    a.e(f"s_cmp_eq_u32 s{sG}, 0"); a.e(f"s_cbranch_scc0 {lg1}")
    XM = 56
    for g in range(2):
        keep = O + 32 * g; send = O + 32 * (1 - g)
        if g == 1: a.label(lg1)
        for n in range(8): a.e(f"ds_write_b128 v{vOWN}, {v(send+4*n,4)} offset:{n*1024}")
        a.e("s_waitcnt lgkmcnt(0)")
        o_setup()
        ko.gemm_vsetup(a, vL, vL16, 38, g == 0)
        a.e("s_barrier")
        a.e(f"ds_read_b128 {v(XM,4)}, v{vPM}")
        for n in range(8): a.e(f"ds_read_b128 {v(FR+4*n,4)}, v{vPAR} offset:{n*1024}")
        if g == 0 and False:
            for gg in (2, 3):
                for x in ko.gemm_wl(gg, (uT0, uT1, uT2)): a.e(x)
        a.e("s_waitcnt lgkmcnt(8)")
        for qt in range(2):
            mm = vE + 4*qt; e0 = mm + 1; e1 = mm + 2
            a.e(f"v_max_f32 v{mm}, v{vM+qt}, v{XM+2+qt}"); a.e(f"v_sub_f32 v{e0}, v{vM+qt}, v{mm}"); a.e(f"v_sub_f32 v{e1}, v{XM+2+qt}, v{mm}")
            a.e(f"v_exp_f32 v{e0}, v{e0}"); a.e(f"v_exp_f32 v{e1}, v{e1}"); a.e("s_nop 0")
            a.e(f"v_mul_f32 v{mm}, v{e0}, v{vLS+qt}"); a.e(f"v_fmac_f32 v{mm}, v{e1}, v{XM+qt}"); a.e(f"v_rcp_f32 v{mm}, v{mm}"); a.e("s_nop 0")
            a.e(f"v_mul_f32 v{e0}, v{e0}, v{mm}"); a.e(f"v_mul_f32 v{e1}, v{e1}, v{mm}")
        for xx in range(2):
            for qt in range(2):
                n0 = (2*xx)*2 + qt; n1 = (2*xx+1)*2 + qt
                for n in (n0, n1):
                    for rr in range(4): a.e(f"v_mul_f32 v{keep+4*n+rr}, v{keep+4*n+rr}, v{vE+4*qt+1}")
                a.e(f"s_waitcnt lgkmcnt({7 - n1})")
                for n in (n0, n1):
                    for rr in range(4): a.e(f"v_fmac_f32 v{keep+4*n+rr}, v{FR+4*n+rr}, v{vE+4*qt+2}")
                PK = S + (xx*2+qt)*4
                a.e(f"v_cvt_pk_bf16_f32 v{PK}, v{keep+4*n0}, v{keep+4*n0+1}"); a.e(f"v_cvt_pk_bf16_f32 v{PK+1}, v{keep+4*n0+2}, v{keep+4*n0+3}")
                a.e(f"v_cvt_pk_bf16_f32 v{PK+2}, v{keep+4*n1}, v{keep+4*n1+1}"); a.e(f"v_cvt_pk_bf16_f32 v{PK+3}, v{keep+4*n1+2}, v{keep+4*n1+3}")
                a.e(f"buffer_store_dwordx4 {v(PK,4)}, v{vL16}, s[{S_CT}:{S_CT+3}], s{sT1 if qt else sT0} offen offset:{xx*1024} sc1")
        if g == 0: a.e(f"s_branch {name}_convw")
    st.at(10)
    T3 = (sT0, sT1, sT2)
    G = ko.Gemm(a, name, T3, vL16, " sc1", S_FL, sNonce, _at if "gst" in X else None); G.X = X
    a.e(f"v_mov_b32 v16, v{vZ}")
    a.e("s_waitcnt vmcnt(4)")
    a.e(f"v_cmp_ne_u32 vcc, s{sNonce}, v{vP2}"); a.e("s_mov_b32 s66, vcc_lo")
    a.e(f"s_cbranch_vccnz {name}_late")
    G.first_loads(False)
    a.e("s_waitcnt vmcnt(16)")
    a.e(f"s_branch {name}_late2")
    a.label(f"{name}_late")
    a.e("s_waitcnt vmcnt(0)")
    a.label(f"{name}_late2")
    a.e("s_barrier")
    st.at(8)
    a.e(f"s_cmp_lg_u32 s{sW}, 7"); a.e(f"s_cbranch_scc1 {name}_nsg")
    for x in [f"v_mov_b32 v{vT}, s{sNonce}", f"v_mov_b32 v{vT+1}, 0", f"s_lshl_b32 s{sT2}, s{sH}, 2", f"s_and_b32 s{sT2}, s{sT2}, 15",
              f"s_add_u32 s{sT0}, s71, s{sT2}", f"s_add_u32 s{sT1}, s70, s{sT2}", "s_mov_b64 exec, 1",
              f"buffer_store_dword v{vT}, v{vT+1}, s[{S_FL}:{S_FL+3}], s{sT0} offen sc1",
              f"buffer_store_dword v{vT}, v{vT+1}, s[{S_FL}:{S_FL+3}], s{sT1} offen sc1", "s_mov_b64 exec, -1"]: a.e(x)
    a.label(f"{name}_nsg")
    a.e("s_cmp_eq_u32 s66, 0"); a.e(f"s_cbranch_scc1 {name}_rdy")
    G.spin(f"buffer_load_dword v15, v16, s[{S_FL}:{S_FL+3}], s70 offen sc1")
    G.first_loads(False)
    a.label(f"{name}_rdy")
    if True: a.e("s_barrier")
    st.at(2)
    G.first_loads(True)
    G.main(f"buffer_load_dword v15, v16, s[{S_FL}:{S_FL+3}], s71 offen sc1")
    a.e(f"s_branch {name}_fin")
    a.label(f"{name}_convw")
    if True:
        for gg in (2, 3):
            for x in ko.gemm_wl(gg, T3): a.e(x)
        a.e("s_waitcnt vmcnt(18)")
        a.e("s_barrier")
        a.e("s_waitcnt vmcnt(0)")
        a.e("s_barrier")
    else:
        a.e("s_waitcnt vmcnt(0)")
        a.e("s_barrier")
    for gg in range(2):
        for x in ko.gemm_wl(gg, T3): a.e(x)
    a.e(f"v_mov_b32 v{vT}, {ko.CNT}"); a.e(f"v_mov_b32 v{vT+1}, 0"); a.e(f"ds_write_b32 v{vT}, v{vT+1}")
    a.e("s_waitcnt vmcnt(0) lgkmcnt(0)")
    a.e("s_barrier")
    a.e(f"s_cmp_eq_u32 s{sCG}, -1"); a.e(f"s_cbranch_scc1 {name}_fin")
    a.e(f"s_mov_b32 s{sT0}, 0")
    a.label(f"{name}_ssp")
    a.e(pollS); a.e("s_waitcnt vmcnt(0)")
    for r in range(4): a.e(f"v_xor_b32 v{vP1+r}, s{sNonce}, v{vP1+r}")
    a.e(f"v_or3_b32 v{vP1}, v{vP1}, v{vP1+1}, v{vP1+2}"); a.e(f"v_or_b32 v{vP1}, v{vP1}, v{vP1+3}"); a.e(f"v_cmp_ne_u32 vcc, 0, v{vP1}")
    a.e(f"s_add_u32 s{sT0}, s{sT0}, 1"); a.e(f"s_cbranch_vccz {name}_sok")
    a.e(f"s_cmp_lt_u32 s{sT0}, 0x40000"); a.e(f"s_cbranch_scc1 {name}_ssp")
    a.label(f"{name}_sok")
    a.e("s_barrier")
    ko.gen_conv(a, name, st, sW, sCG, T3, vL, vL16, " sc1")
    a.label(f"{name}_fin")
    if diag: a.e("s_waitcnt vmcnt(0)")
    st.at(11); st.at(12, True)
    if "dbgst" in X:
        a.e(f"s_cmp_lg_u32 s{sW}, 4"); a.e(f"s_cbranch_scc1 {name}_end")
        st.dump_dbg(sNonce, [1, 5, 7, 9, 10, 2, 12])
    else: st.dump(6, sW)
    a.label(f"{name}_end")
    a.e("s_endpgm")
    i = 0
    while i < len(ool):
        lab, fn = ool[i]; a.label(lab); fn(); i += 1
    a.label(code_end)
    a.e("s_endpgm")
    a.e = _e
    kernel_desc(a, name, 256, 102)
```

```python
from asmlib import *
from k1 import MF, WS_CTX, WS_WOF, WS_KVB, WS_QB

EOFF = 4608; OOFF = EOFF + 4160; CROW = OOFF + 4160
CBASE = 73728; CNT = 155648 - 128
OOB = 0x7ff00000

def gen_conv(a, name, st, sW, sCG, sT, vL, vL16, LD, OF=''):
    sT0, sT1, sT2 = sT
    S_U, S_QT, S_H, S_OUT = 8, 12, 16, 20
    sCH, sD, sH0, sLB = 40, 41, 42, 43
    vT = 4
    a.e("s_load_dwordx4 s[24:27], s[0:1], 32")
    a.e("s_load_dwordx2 s[4:5], s[0:1], 96")
    a.e(f"s_lshl_b32 s{sCH}, s{sCG}, 2"); a.e(f"s_add_u32 s{sCH}, s{sCH}, s{sW}")
    a.e(f"s_mul_i32 s{sLB}, s{sW}, {CROW}"); a.e(f"s_add_u32 s{sLB}, s{sLB}, {CBASE}")
    a.e(f"s_lshl_b32 s{sT2}, s{sCH}, 12")
    a.e(f"s_add_u32 s44, s6, {WS_KVB}"); a.e("s_addc_u32 s45, s7, 0"); srd(a, S_U, 44, 576 * 4096)
    a.e(f"s_add_u32 s44, s6, {WS_QB}"); a.e("s_addc_u32 s45, s7, 0"); srd(a, S_QT, 44, 576 * 4096)
    a.e(f"s_mov_b32 m0, s{sLB}"); a.e("s_nop 0")
    for i in range(4): a.e(f"buffer_load_dwordx4 v{vL16}, s[{S_U}:{S_U+3}], s{sT2} offen offset:{i*1024}{LD} lds")
    a.e("s_waitcnt lgkmcnt(0)")
    srd(a, S_H, 24, 576 * 4096); srd(a, S_OUT, 4, 2048 * 2304)
    a.e(f"s_add_u32 m0, s{sLB}, {EOFF + 32}"); a.e(f"s_add_u32 s{sT1}, s{sT2}, 2")
    for i in range(4): a.e(f"buffer_load_dwordx4 v{vL16}, s[{S_H}:{S_H+3}], s{sT2} offen offset:{i*1024} lds")
    a.e(f"s_add_u32 m0, s{sLB}, {OOFF + 32}"); a.e("s_nop 0")
    for i in range(4): a.e(f"buffer_load_dwordx4 v{vL16}, s[{S_H}:{S_H+3}], s{sT1} offen offset:{i*1024} lds")
    a.e(f"s_add_u32 s24, s24, s{sT2}"); a.e("s_addc_u32 s25, s25, 0")
    a.e(f"s_lshr_b32 s{sT0}, s{sCH}, 1"); a.e(f"s_lshl_b32 s{sT0}, s{sT0}, 2")
    a.e(f"s_add_u32 s26, s26, s{sT0}"); a.e("s_addc_u32 s27, s27, 0")
    a.e(f"s_load_dword s{sH0}, s[24:25], 0"); a.e(f"s_load_dword s{sD}, s[26:27], 0")
    vAa, vBa, vKa, vYa, vQo = 8, 12, 13, 14, 15
    a.e(f"v_and_b32 v{vT}, 15, v{vL}"); a.e(f"v_lshrrev_b32 v{vT+1}, 4, v{vL}")
    a.e(f"v_lshl_add_u32 v16, v{vT+1}, 3, v{vT}"); a.e("v_add_u32 v16, 1, v16"); a.e("v_and_b32 v17, 1, v16")
    a.e("v_and_b32 v16, 0xfe, v16"); a.e("v_lshlrev_b32 v16, 1, v16"); a.e(f"v_mul_u32_u24 v17, {OOFF - EOFF}, v17")
    a.e(f"s_add_u32 s{sT0}, s{sLB}, {EOFF}"); a.e(f"v_add3_u32 v{vAa}, v16, v17, s{sT0}")
    for i in range(1, 4): a.e(f"v_add_u32 v{vAa+i}, {1024*i}, v{vAa}")
    a.e(f"v_lshlrev_b32 v17, 5, v{vT}"); a.e(f"v_lshlrev_b32 v18, 4, v{vT+1}"); a.e("v_sub_u32 v19, v18, v17")
    a.e(f"s_add_u32 s{sT1}, s{sLB}, {4064 - 3584}"); a.e(f"v_add_u32 v{vBa}, s{sT1}, v19")
    a.e(f"v_lshlrev_b32 v18, 3, v{vT+1}"); a.e(f"v_add_u32 v{vQo}, v17, v18")
    a.e(f"s_add_u32 s{sT1}, s{sLB}, {4088 - 3584}"); a.e(f"v_sub_u32 v{vKa}, s{sT1}, v{vQo}"); a.e(f"v_add_u32 v{vYa}, s{sT0}, v{vQo}")
    QR = 224; KVR = 240; ACC = 192; BUF = [64, 128]
    for j in range(8):
        a.e(f"buffer_load_dwordx2 {v(QR+2*j,2)}, v{vQo}, s[{S_QT}:{S_QT+3}], s{sT2} offen offset:{512*j}{LD}")
    for i in range(4): a.e(f"v_mov_b32 v{20+i}, 0")
    a.e(f"v_and_b32 v16, 31, v{vL}"); a.e("v_lshlrev_b32 v16, 4, v16"); a.e(f"v_add_u32 v16, s{sLB}, v16")
    a.e(f"ds_write_b128 v16, {v(20,4)} offset:4096")
    a.e(f"v_and_b32 v16, 7, v{vL}"); a.e("v_cmp_eq_u32 vcc, 7, v16"); a.e("v_lshlrev_b32 v16, 2, v16"); a.e(f"v_add_u32 v16, s{sT0}, v16")
    a.e("ds_write_b32 v16, v20")
    a.e("s_waitcnt lgkmcnt(0)")
    a.e(f"s_lshl_b32 s{sH0}, s{sH0}, 16"); a.e(f"v_mov_b32 v17, s{sH0}"); a.e("v_cndmask_b32 v17, v20, v17, vcc")
    a.e(f"ds_write_b32 v16, v17 offset:{OOFF - EOFF}")
    a.e(f"s_lshl_b32 s{sT0}, s{sD}, 16"); a.e(f"s_and_b32 s{sT1}, s{sD}, 0xffff0000")
    a.e(f"s_bitcmp0_b32 s{sCH}, 0"); a.e(f"s_cselect_b32 s{sD}, s{sT0}, s{sT1}")
    a.e("s_waitcnt vmcnt(8) lgkmcnt(0)")
    def creads(buf, r):
        B = BUF[buf]; o = []
        for m in range(8):
            d0 = (512 * (m & 1) + 64 * r) // 4
            o.append(f"ds_read2_b32 {v(B+4*m,2)}, v{vAa+(m>>1)} offset0:{d0} offset1:{d0+1}")
            o.append(f"ds_read2_b32 {v(B+4*m+2,2)}, v{vAa+(m>>1)} offset0:{d0+2} offset1:{d0+3}")
            o.append(f"ds_read_b128 {v(B+32+4*m,4)}, v{vBa} offset:{512*(7-m)+64*r}")
        return o
    for x in creads(0, 0): a.e(x)
    for r in range(8):
        B = BUF[r % 2]
        pairs = sorted([(m, j - m) for j in range(8) for m in range(j + 1)], key=lambda p: (max(p), p[0] + p[1]))
        seen = set(); ms = []
        for (m, n) in pairs:
            c = "0" if (r == 0 and m + n not in seen) else v(ACC+4*(m+n), 4)
            seen.add(m + n)
            ms.append(f"{MF} {v(ACC+4*(m+n),4)}, {v(B+4*m,4)}, {v(B+32+4*n,4)}, {c}")
        rd = creads((r + 1) % 2, r + 1) if r < 7 else [f"ds_read_b64 {v(KVR+2*j,2)}, v{vKa} offset:{512*(7-j)}" for j in range(8)]
        a.e("s_waitcnt lgkmcnt(0)")
        k_ = 0
        for m in ms:
            a.e(m)
            if k_ < len(rd):
                a.e(rd[k_]); k_ += 1
    a.e("s_waitcnt lgkmcnt(0) vmcnt(0)")
    a.e("s_nop 3")
    for j in range(8):
        a.e(f"v_and_b32 v24, 0xffff0000, v{KVR+1+2*j}"); a.e(f"v_lshlrev_b32 v25, 16, v{KVR+1+2*j}")
        a.e(f"v_and_b32 v26, 0xffff0000, v{KVR+2*j}"); a.e(f"v_lshlrev_b32 v27, 16, v{KVR+2*j}")
        for rr in range(4): a.e(f"v_fmac_f32 v{ACC+4*j+rr}, s{sD}, v{24+rr}")
        a.e(f"v_lshlrev_b32 v24, 16, v{QR+2*j}"); a.e(f"v_and_b32 v25, 0xffff0000, v{QR+2*j}")
        a.e(f"v_lshlrev_b32 v26, 16, v{QR+2*j+1}"); a.e(f"v_and_b32 v27, 0xffff0000, v{QR+2*j+1}")
        for rr in range(4): a.e(f"v_mul_f32 v{ACC+4*j+rr}, v{ACC+4*j+rr}, v{24+rr}")
        Pq = 28 + 2 * (j & 1)
        a.e(f"v_cvt_pk_bf16_f32 v{Pq}, v{ACC+4*j}, v{ACC+4*j+1}"); a.e(f"v_cvt_pk_bf16_f32 v{Pq+1}, v{ACC+4*j+2}, v{ACC+4*j+3}")
        a.e(f"ds_write_b64 v{vYa}, {v(Pq,2)} offset:{512*j}")
    a.e(f"v_bfe_u32 v16, v{vL}, 2, 2"); a.e(f"v_mul_u32_u24 v16, {CROW}, v16")
    a.e(f"v_lshrrev_b32 v17, 4, v{vL}"); a.e("v_lshl_add_u32 v16, v17, 5, v16")
    a.e(f"v_and_b32 v17, 3, v{vL}"); a.e("v_lshl_add_u32 v16, v17, 3, v16")
    a.e(f"s_lshl_b32 s{sT0}, s{sW}, 10"); a.e(f"s_add_u32 s{sT0}, s{sT0}, {CBASE + EOFF}"); a.e(f"v_add_u32 v16, s{sT0}, v16")
    a.e(f"s_lshl_b32 s{sT0}, s{sW}, 9"); a.e(f"v_add_u32 v17, s{sT0}, v{vL}"); a.e("v_mul_u32_u24 v17, 2304, v17")
    a.e(f"s_lshl_b32 s{sT0}, s{sCG}, 3")
    a.e(f"v_mov_b32 v18, {CNT}"); a.e("v_mov_b32 v19, 1")
    a.e("s_waitcnt lgkmcnt(0)")
    a.e("s_mov_b64 exec, 1"); a.e("ds_add_u32 v18, v19"); a.e("s_mov_b64 exec, -1")
    lsp = a.uid(f"{name}_csp"); lso = a.uid(f"{name}_cso")
    a.e(f"s_mov_b32 s{sT2}, 0")
    a.label(lsp)
    a.e("ds_read_b32 v19, v18"); a.e(f"s_add_u32 s{sT2}, s{sT2}, 1"); a.e("s_waitcnt lgkmcnt(0)"); a.e(f"v_readfirstlane_b32 s{sT1}, v19")
    a.e(f"s_cmp_ge_u32 s{sT1}, 4"); a.e(f"s_cbranch_scc1 {lso}")
    a.e(f"s_cmp_lt_u32 s{sT2}, 0x400000"); a.e(f"s_cbranch_scc1 {lsp}")
    a.label(lso)
    for i in range(8): a.e(f"ds_read_b64_tr_b16 {v(32+2*i,2)}, v16 offset:{128*i}")
    for i in range(8):
        a.e(f"s_waitcnt lgkmcnt({7-i})")
        a.e(f"buffer_store_dwordx2 {v(32+2*i,2)}, v17, s[{S_OUT}:{S_OUT+3}], s{sT0} offen{OF}")
        a.e(f"s_add_u32 s{sT0}, s{sT0}, {64*2304}")

WS_PART = 72 << 20
VW = 28; VRB = 11; VC1 = 17
CX = 48; GACC = [112, 184]; WF = 24
KORD = list(range(8, 16)) + list(range(8))

def gemm_setup(a, sW, sP, sC, sX, sT):
    sT0, sT1, sT2 = sT
    a.e(f"s_add_u32 s44, s6, {WS_CTX}"); a.e("s_addc_u32 s45, s7, 0"); srd(a, 8, 44, 16 << 20)
    srd(a, 12, 4, 4096 * 1152)
    a.e(f"s_add_u32 s44, s6, {WS_PART}"); a.e("s_addc_u32 s45, s7, 0"); srd(a, 20, 44, 512 * 36864)
    srd(a, 16, 16, 2048 * 2304)
    a.e(f"s_and_b32 s43, s{sW}, 3")
    a.e(f"s_lshl_b32 s41, s{sX}, 4"); a.e("s_add_u32 s41, s41, s43"); a.e(f"s_mul_i32 s41, s41, {32*1152}")
    a.e(f"s_mul_i32 s{sT0}, s{sC}, 288"); a.e(f"s_add_u32 s41, s41, s{sT0}")
    a.e("s_mul_i32 s42, s43, 9216")
    for part in range(2):
        T = 46
        if part == 0: a.e(f"s_mov_b32 s{T}, s{sP}")
        else: a.e(f"s_sub_u32 s{T}, 15, s{sP}")
        a.e(f"s_lshl_b32 s{sT0}, s{T}, 3"); a.e(f"s_lshl_b32 s{sT1}, s43, 1"); a.e(f"s_add_u32 s{sT1}, s{sT1}, s{sT0}"); a.e(f"s_lshl_b32 s{sT1}, s{sT1}, 17")
        a.e(f"s_lshl_b32 s{sT2}, s{sX}, 14"); a.e(f"s_add_u32 s{56+part}, s{sT1}, s{sT2}")
        a.e(f"s_add_u32 s{sT0}, s{sT0}, s{sX}"); a.e(f"s_mul_i32 s{48+part}, s{sT0}, {16*2304}"); a.e(f"s_mul_i32 s{sT1}, s{sC}, 288")
        a.e(f"s_add_u32 s{48+part}, s{48+part}, s{sT1}"); a.e(f"s_add_u32 s{48+part}, s{48+part}, 1152")
        a.e(f"s_lshl_b32 s{sT0}, s{T}, 2"); a.e(f"s_add_u32 s{sT0}, s{sT0}, s{sC}"); a.e(f"s_lshl_b32 s{sT0}, s{sT0}, 3")
        a.e(f"s_mul_i32 s{64+part}, s{sT0}, 36864"); a.e(f"s_mul_i32 s{sT1}, s{sX}, 4608"); a.e(f"s_add_u32 s{64+part}, s{64+part}, s{sT1}")
        a.e(f"s_lshl_b32 s{62+part}, s{sT0}, 4"); a.e(f"s_lshr_b32 s{sT1}, s{sX}, 1"); a.e(f"s_lshl_b32 s{sT1}, s{sT1}, 2")
        a.e(f"s_add_u32 s{62+part}, s{62+part}, s{sT1}"); a.e(f"s_add_u32 s{62+part}, s{62+part}, 40960")
        a.e(f"s_add_u32 s{sT0}, s{sT0}, s{sX}")
        a.e(f"s_mul_i32 s{58+part}, s{sT0}, 36864"); a.e(f"s_add_u32 s{58+part}, s{58+part}, s42")
        a.e(f"s_lshl_b32 s{60+part}, s{sT0}, 2"); a.e(f"s_add_u32 s{60+part}, s{60+part}, s43"); a.e(f"s_lshl_b32 s{60+part}, s{60+part}, 2"); a.e(f"s_add_u32 s{60+part}, s{60+part}, 40960")

def gemm_vsetup(a, vL, vL16, t, ld):
    if not ld:
        a.e(f"v_add_u32 v{VC1}, 131072, v{vL16}")
        a.e(f"v_lshrrev_b32 v{t}, 2, v{vL}"); a.e(f"v_mul_u32_u24 v{t}, 288, v{t}"); a.e(f"v_and_b32 v{t+1}, 3, v{vL}"); a.e(f"v_lshl_add_u32 v{VRB}, v{t+1}, 3, v{t}")
        a.e(f"v_add_u32 v{VRB+1}, 55296, v{VRB}"); a.e(f"v_add_u32 v{VRB+2}, 110592, v{VRB}")
        a.e(f"v_and_b32 v9, 15, v{vL}"); a.e("v_mul_u32_u24 v9, 2304, v9"); a.e(f"v_lshrrev_b32 v10, 4, v{vL}"); a.e("v_lshl_add_u32 v9, v10, 3, v9")
        a.e(f"v_lshlrev_b32 v10, 3, v{vL}")
        a.e(f"v_and_b32 v14, 7, v{vL}"); a.e("v_lshlrev_b32 v14, 4, v14")
    else:
        for n in range(9):
            a.e(f"v_add_u32 v{VW+n}, {64*n}, v{vL}")
            a.e(f"v_mul_u32_u24 v{t}, 3641, v{VW+n}"); a.e(f"v_lshrrev_b32 v{t}, 16, v{t}")
            a.e(f"v_lshlrev_b32 v{VW+n}, 4, v{VW+n}"); a.e(f"v_mul_u32_u24 v{t}, {1152-288}, v{t}"); a.e(f"v_add_u32 v{VW+n}, v{VW+n}, v{t}")
            if n % 4: a.e(f"v_subrev_u32 v{VW+n}, {1024*(n%4)}, v{VW+n}")

def gemm_wl(q, sT):
    r = [f"s_add_u32 s{sT[0]}, s41, {q * 4 * 32 * 1152}"]
    for part, n in ((0, 4), (1, 4), (2, 1)):
        r += [f"s_add_u32 m0, s42, {q * 36864 + part * 4096}", "s_nop 0"]
        r += [f"buffer_load_dwordx4 v{VW + 4*part + i}, s[12:15], s{sT[0]} offen offset:{i*1024} lds" for i in range(n)]
    return r

class Gemm:
    def __init__(self, a, name, sT, vL16, LD, S_FL, sNonce, gst=None):
        self.__dict__.update(locals()); self.vm = []
    def E(self, x, tag=None):
        self.a.e(x)
        if x.startswith("buffer_"): self.vm.append(tag)
    def wait(self, tag):
        idx = max(i for i, t in enumerate(self.vm) if t == tag)
        self.a.e(f"s_waitcnt vmcnt({len(self.vm) - 1 - idx})")
    def cl(self, s):
        part, ks = s >> 4, KORD[s & 15]; sT1 = self.sT[1]
        return [(f"s_add_u32 s{sT1}, s{56+part}, {(ks >> 2) * 4096}", None)] + [
                (f"buffer_load_dwordx4 {v(CX + (s % 8) * 8 + 4 * i, 4)}, v{VC1 if i else self.vL16}, s[8:11], s{sT1} offen offset:{(ks & 3) * 1024}{self.LD}", ("c", s)) for i in range(2)]
    def first_loads(self, book):
        for s in range(8):
            for x, t in self.cl(s):
                if book:
                    if x.startswith("buffer_"): self.vm.append(t)
                else: self.a.e(x)
    def spin(self, poll, pre=False):
        a = self.a; sT0 = self.sT[0]
        lp = a.uid(f"{self.name}_sp"); lc = a.uid(f"{self.name}_sc"); lo = a.uid(f"{self.name}_ok")
        a.e(f"s_mov_b32 s{sT0}, 0")
        if pre: a.e(f"s_branch {lc}")
        a.label(lp)
        a.e(poll); a.e("s_waitcnt vmcnt(0)")
        a.label(lc)
        a.e(f"v_cmp_ne_u32 vcc, s{self.sNonce}, v15"); a.e(f"s_add_u32 s{sT0}, s{sT0}, 1"); a.e(f"s_cbranch_vccz {lo}")
        a.e(f"s_cmp_lt_u32 s{sT0}, 0x40000"); a.e(f"s_cbranch_scc1 {lp}")
        a.label(lo)
    def main(self, pollL):
        a = self.a; E = self.E; wait = self.wait; gst = self.gst; vL16 = self.vL16; LD = self.LD; S_FL = self.S_FL
        sT0, sT1, sT2 = self.sT
        def pstores(part):
            r = []
            for i in range(2):
                for f in range(5):
                    A = GACC[part] + (i * 9 + 2 * f) * 4; P = 4 if (f + i) % 2 else 20
                    nq = 4 if f < 4 else 2
                    r.append([(f"v_cvt_pk_bf16_f32 v{P+q}, v{A+2*q}, v{A+2*q+1}", None) for q in range(nq)] +
                             ([(f"s_add_u32 s{sT2}, s{58+part}, {i * 4608 + (4096 if f == 4 else 0)}", None)] if f in (0, 4) else []) +
                             [(f"buffer_store_dwordx{nq} {v(P, nq)}, v{vL16 if f < 4 else 10}, s[20:23], s{sT2} offen offset:{(f % 4) * 1024} sc1", ("p", part))])
            return r
        def flag(part):
            for x in [f"v_mov_b32 v18, s{self.sNonce}", "v_mov_b32 v19, 0", "s_mov_b64 exec, 1"]: a.e(x)
            E(f"buffer_store_dword v18, v19, s[{S_FL}:{S_FL+3}], s{60+part} offen sc1", "f"); a.e("s_mov_b64 exec, -1")
        ppoll = lambda part: f"buffer_load_dword v15, v14, s[{S_FL}:{S_FL+3}], s{62+part} offen sc1"
        SL = 10 if "sl10" in self.X else 12 if "sl12" in self.X else 8
        PLN = 36
        if PLN == 0: E(pollL, "pl")
        NB = 6; D = 4 if 'gd4' in self.X else 5
        rd = lambda n: [f"ds_read_b64_tr_b16 {v(WF + 4 * (n % NB) + 2 * hh, 2)}, v{VRB + KORD[(n // 9) & 15] // 6} offset:{(KORD[(n // 9) & 15] % 6) * 9216 + (n % 9) * 32 + hh * 4608}" for hh in range(2)]
        NT = 32 * 9
        can = lambda n, cur: not (72 <= n < 144 and cur < 72)
        issued = 0; pend = []
        for n in range(NT):
            s, j = divmod(n, 9); part = s >> 4
            if PLN and n == PLN: E(pollL, "pl")
            if n == 72:
                if gst: gst(5)
                a.e("s_barrier")
                if gst: gst(6); a.e("s_waitcnt lgkmcnt(0)")
            if n == 9 * SL:
                wait("pl"); self.spin(pollL, True)
                for s2 in range(8, SL):
                    for x, t in self.cl(s2 + 8): E(x, t)
            if n == 144 + 54: a.e("s_barrier")
            if n == 144 and gst: gst(7); a.e("s_waitcnt lgkmcnt(0)")
            if n in (0, 72):
                while issued < n + D:
                    for x in rd(issued): a.e(x)
                    issued += 1
            if j == 0: wait(("c", s))
            if "gw2" in self.X:
                if n % 2 == 0: a.e(f"s_waitcnt lgkmcnt({2 * max(0, issued - n - 2)})")
            else: a.e(f"s_waitcnt lgkmcnt({2 * (issued - n - 1)})")
            nx = rd(issued) if (issued < NT and can(issued, n)) else None
            for i in range(2):
                acc = v(GACC[part] + (i * 9 + j) * 4, 4)
                a.e(f"{MF} {acc}, {v(WF + 4 * (n % NB), 4)}, {v(CX + (s % 8) * 8 + 4 * i, 4)}, {'0' if (s & 15) == 0 else acc}")
                if nx: a.e(nx[i])
            if nx: issued += 1
            if j == 8 and s + 8 < 32 and not (8 <= s < SL):
                for x, t in self.cl(s + 8): E(x, t)
            if n == 144 + 3: pend = pstores(0)
            if pend and n % (2 if 'p2' in self.X else 3) == 0:
                for x, t in pend.pop(0): E(x, t)
            if n == 144 + 9 * 7:
                wait(("p", 0)); flag(0)
            if n == NT - (9 if "pp9" in self.X else 36 if "pp36" in self.X else 18): E(ppoll(0), "pp")
        if gst: gst(8)
        def rloads(part):
            a.e(f"s_lshl_b32 s{sT1}, s43, 10"); a.e(f"s_add_u32 s{sT1}, s{sT1}, s{64+part}")
            a.e(f"s_add_u32 s{sT2}, s{64+part}, 4096"); a.e(f"s_cmp_eq_u32 s43, {part}"); a.e(f"s_cselect_b32 s{sT2}, s{sT2}, {OOB}")
            for q in range(8):
                E(f"buffer_load_dwordx4 {v(64 + 4 * q, 4)}, v{vL16}, s[20:23], s{sT1} offen{LD}", ("r", part, 0, q)); a.e(f"s_add_u32 s{sT1}, s{sT1}, 36864")
            for q in range(8):
                E(f"buffer_load_dwordx2 {v(96 + 2 * q, 2)}, v10, s[20:23], s{sT2} offen{LD}", ("r", part, 1, q)); a.e(f"s_add_u32 s{sT2}, s{sT2}, 36864")
        def rsum(part):
            a.e(f"s_lshl_b32 s{sT1}, s43, 6"); a.e(f"s_add_u32 s{sT1}, s{sT1}, s{48+part}")
            a.e(f"s_add_u32 s{sT2}, s{48+part}, 256"); a.e(f"s_cmp_eq_u32 s43, {part}"); a.e(f"s_cselect_b32 s{sT2}, s{sT2}, {OOB}")
            for z, (B, nd, A) in enumerate(((64, 4, 40), (96, 2, 52))):
                for q in range(8):
                    wait(("r", part, z, q))
                    for d in range(nd):
                        if q == 0:
                            a.e(f"v_lshlrev_b32 v{A+2*d}, 16, v{B+d}"); a.e(f"v_and_b32 v{A+1+2*d}, 0xffff0000, v{B+d}")
                        else:
                            a.e(f"v_dot2_f32_bf16 v{A+2*d}, v{B+nd*q+d}, s44, v{A+2*d}"); a.e(f"v_dot2_f32_bf16 v{A+1+2*d}, v{B+nd*q+d}, s45, v{A+1+2*d}")
                a.e("s_nop 2")
                O_ = 56 if nd == 4 else 60
                for d in range(nd): a.e(f"v_cvt_pk_bf16_f32 v{O_+d}, v{A+2*d}, v{A+1+2*d}")
                if nd == 4:
                    E(f"buffer_store_dwordx2 {v(56,2)}, v9, s[16:19], s{sT1} offen"); E(f"buffer_store_dwordx2 {v(58,2)}, v9, s[16:19], s{sT1} offen offset:32")
                else:
                    E(f"buffer_store_dwordx2 {v(60,2)}, v9, s[16:19], s{sT2} offen")
        a.e("s_mov_b32 s44, 0x00003f80"); a.e("s_mov_b32 s45, 0x3f800000")
        la = a.uid(f"{self.name}_ea"); lb = a.uid(f"{self.name}_eb")
        for grp in pstores(1):
            for x, t in grp: E(x, t)
        wait("pp")
        a.e(f"v_cmp_ne_u32 vcc, s{self.sNonce}, v15"); a.e(f"s_cbranch_vccnz {la}")
        save = list(self.vm)
        rloads(0)
        wait(("p", 1)); flag(1)
        rsum(0)
        a.e(f"s_branch {lb}")
        a.label(la)
        self.vm = save
        wait(("p", 1)); flag(1)
        self.spin(ppoll(0)); rloads(0); rsum(0)
        a.label(lb)
        if gst: gst(10)
        self.spin(ppoll(1))
        if gst: gst(11)
        self.vm = []
        rloads(1); rsum(1)
```
